```python
import torch

def _softmax(x, axis=-1):
    return torch.softmax(x, dim=axis)

def _gelu(x):
    return torch.nn.functional.gelu(x, approximate='tanh')

def _silu(x):
    return torch.nn.functional.silu(x)

def _sigmoid(x):
    return torch.sigmoid(x)

def _layernorm(x, axis=-1, eps=1e-05):
    m = x.mean(dim=axis, keepdim=True)
    v = x.var(dim=axis, keepdim=True, unbiased=False)
    return (x - m) / torch.sqrt(v + eps)

def _scatter_add(tgt, idx, src, axis=0):
    return tgt.clone().index_add_(axis, idx, src)

def _segment_sum(src, seg, n):
    out = torch.zeros((n,) + src.shape[1:], dtype=src.dtype)
    return out.index_add_(0, seg, src)

def _pad(x, pw):
    flat = tuple((v for pair in reversed(pw) for v in pair))
    return torch.nn.functional.pad(x, flat)
kernel_name = 'standalone__mm_dit__diffusion'

def setup_inputs():

    _w = lambda a: (lambda t: t.to(torch.bfloat16) if t.is_floating_point() else t)(torch.as_tensor(a))
    B, Ni, Nt, D = (2, 1024, 32, 1152)
    return {'x_img': _w((lambda *s: torch.randn(*s, dtype=torch.bfloat16) * 0.05)(B, Ni, D)), 'x_txt': _w((lambda *s: torch.randn(*s, dtype=torch.bfloat16) * 0.05)(B, Nt, D)), 'c': _w((lambda *s: torch.randn(*s, dtype=torch.bfloat16) * 0.05)(B, D)), 'wqkv_img': _w((lambda *s: torch.randn(*s, dtype=torch.bfloat16) * 0.05)(D, 3 * D)), 'wqkv_txt': _w((lambda *s: torch.randn(*s, dtype=torch.bfloat16) * 0.05)(D, 3 * D)), 'wo_img': _w((lambda *s: torch.randn(*s, dtype=torch.bfloat16) * 0.05)(D, D)), 'wo_txt': _w((lambda *s: torch.randn(*s, dtype=torch.bfloat16) * 0.05)(D, D)), 'wmod_img': _w((lambda *s: torch.randn(*s, dtype=torch.bfloat16) * 0.05)(D, 6 * D)), 'wmod_txt': _w((lambda *s: torch.randn(*s, dtype=torch.bfloat16) * 0.05)(D, 6 * D))}

def reference(x_img, x_txt, c, wqkv_img, wqkv_txt, wo_img, wo_txt, wmod_img, wmod_txt):
    B, Ni, D = x_img.shape
    Nt = x_txt.shape[1]
    mod_i = (_silu(c) @ wmod_img).reshape(B, 6, 1, D)
    mod_t = (_silu(c) @ wmod_txt).reshape(B, 6, 1, D)
    shi, sci, gai = (mod_i[:, 0].clone(), mod_i[:, 1].clone(), mod_i[:, 2].clone())
    sht, sct, gat = (mod_t[:, 0].clone(), mod_t[:, 1].clone(), mod_t[:, 2].clone())
    hi = _layernorm(x_img, axis=-1) * (1 + sci) + shi
    ht = _layernorm(x_txt, axis=-1) * (1 + sct) + sht
    qkvi = hi @ wqkv_img
    qkvt = ht @ wqkv_txt
    qi, ki, vi = (qkvi[..., :D].clone(), qkvi[..., D:2 * D].clone(), qkvi[..., 2 * D:].clone())
    qt, kt, vt = (qkvt[..., :D].clone(), qkvt[..., D:2 * D].clone(), qkvt[..., 2 * D:].clone())
    q = torch.concatenate([qt, qi], axis=1)
    k = torch.concatenate([kt, ki], axis=1)
    v = torch.concatenate([vt, vi], axis=1)
    scores = torch.einsum('bqd,bkd->bqk', q, k) * D ** (-0.5)
    p = _softmax(scores, axis=-1)
    a = torch.einsum('bqk,bkd->bqd', p, v)
    at, ai = (a[:, :Nt].clone(), a[:, Nt:].clone())
    out_i = x_img + gai * (ai @ wo_img)
    out_t = x_txt + gat * (at @ wo_txt)
    return (out_i, out_t)
```

```python
class Asm:
    def __init__(self):
        self.lines = []
        self.uid = 0
    def __call__(self, s):
        for l in s.split('\n'):
            l = l.strip()
            if l: self.lines.append(('' if l.endswith(':') else '  ') + l)
    def label(self, base):
        self.uid += 1
        return f'L_{base}_{self.uid}'
    def text(self): return '\n'.join(self.lines) + '\n'

class Regs:
    def __init__(self, start=0, limit=256):
        self.n = start; self.limit = limit; self.hi = start
    def alloc(self, cnt=1, align=1):
        self.n = (self.n + align - 1) // align * align
        r = self.n; self.n += cnt
        assert self.n <= self.limit, f'out of VGPRs: {self.n}'
        self.hi = max(self.hi, self.n)
        return r
    def mark(self): return self.n
    def release(self, m): self.n = m

def vr(b, n=1): return f'v{b}' if n == 1 else f'v[{b}:{b+n-1}]'
def sr(b, n=1): return f's{b}' if n == 1 else f's[{b}:{b+n-1}]'

def kernel_head(a, name):
    a(f'.globl {name}\n.p2align 8\n.type {name},@function\n{name}:')

def kernel_desc(name, vgpr, sgpr=96):
    vg = max(8, (vgpr + 7) // 8 * 8)
    acc = (vg + 3) // 4 * 4
    return f'''.p2align 6
.amdhsa_kernel {name}
  .amdhsa_next_free_vgpr {vg}
  .amdhsa_next_free_sgpr {sgpr}
  .amdhsa_accum_offset {min(acc,256)}
  .amdhsa_group_segment_fixed_size 0
  .amdhsa_kernarg_size 96
  .amdhsa_user_sgpr_count 2
  .amdhsa_user_sgpr_kernarg_segment_ptr 1
  .amdhsa_system_sgpr_workgroup_id_x 1
  .amdhsa_float_denorm_mode_32 3
  .amdhsa_float_denorm_mode_16_64 3
.end_amdhsa_kernel
'''

G128 = [list(range(0,4))+list(range(12,16))+list(range(20,28)),
        list(range(4,12))+list(range(16,20))+list(range(28,32)),
        list(range(32,36))+list(range(44,48))+list(range(52,60)),
        list(range(36,44))+list(range(48,52))+list(range(60,64))]
G64 = [list(range(0,32)), list(range(32,64))]
def conflict_cycles(addrs, width):
    groups = G128 if width == 16 else G64
    tot = 0
    for g in groups:
        banks = {}
        for l in g:
            for d in range(width // 4):
                a = addrs[l] + 4 * d
                banks.setdefault((a // 4) % 64, set()).add(a // 4)
        tot += max(len(s) for s in banks.values())
    return tot, len(groups)
```

```python
from asmlib import *

def swap23(p): return (p & ~0xC) | ((p & 4) << 1) | ((p & 8) >> 1)
SIG = [0, 2, 3, 1]

class Operand:
    def __init__(self, layout, n, srd, pitch, kstep, BK):
        self.layout, self.n, self.srd, self.pitch, self.kstep, self.BK = layout, n, srd, pitch, kstep, BK
        assert n % 16 == 0
        self.bytes = n * BK * 2
        self.units = self.bytes // 16
        self.ninstr = (self.units + 63) // 64
        self.lds_bytes = self.ninstr * 1024
        if layout == 'K':
            self.U = BK // 8
        else:
            self.U = n // 8
            S = n // 16
            g = 1
            while g < 8 and S % (2 * g) == 0: g *= 2
            self.g = g; self.lg = g.bit_length() - 1
    def swz(self, row):
        if self.layout == 'K':
            if self.BK == 64: return (row >> 1) & 7
            if self.BK in (32, 96): return SIG[(row >> 2) & 3]
            if self.BK == 128: return row & 15
            raise ValueError
        return (row & 7) >> (3 - self.lg)
    def src_off(self, q):
        row, u = divmod(q, self.U)
        if self.layout == 'K':
            return row * self.pitch + ((u ^ self.swz(row)) * 16)
        seg = (u >> 1) ^ self.swz(row)
        return swap23(row) * self.pitch + (seg * 2 + (u & 1)) * 16
    def frag_addr(self, lane, t, kk, h=0):
        g, c = lane >> 4, lane & 15
        if self.layout == 'K':
            row = 16 * t + c
            return row * self.BK * 2 + (((4 * kk + g) ^ self.swz(row)) * 16)
        r, cc = c >> 2, c & 3
        p = swap23(32 * kk + 8 * g + 4 * h + r)
        return p * self.n * 2 + ((t ^ self.swz(p)) * 32) + cc * 8
    def check_banks(self):
        for t in range(self.n // 16):
            for kk in range(self.BK // 32):
                for h in range(1 if self.layout == 'K' else 2):
                    ad = [self.frag_addr(l, t, kk, h) for l in range(64)]
                    c, m = conflict_cycles(ad, 16 if self.layout == 'K' else 8)
                    assert c == m, (self.layout, self.n, self.BK, t, kk, h, c, m)

def emit_divmod(a, vq, U, vrow, vu, maxq):
    if U & (U - 1) == 0:
        s = U.bit_length() - 1
        a(f'v_lshrrev_b32 v{vrow}, {s}, v{vq}\nv_and_b32 v{vu}, {U-1}, v{vq}')
        return
    for sh in range(8, 24):
        M = (1 << sh) // U + 1
        if M * maxq < (1 << 32) and M < (1 << 24) and all((q * M) >> sh == q // U for q in range(maxq + 1)): break
    else: raise ValueError
    a(f'v_mul_u32_u24 v{vrow}, {M}, v{vq}\nv_lshrrev_b32 v{vrow}, {sh}, v{vrow}')
    a(f'v_mul_u32_u24 v{vu}, {U}, v{vrow}\nv_sub_u32 v{vu}, v{vq}, v{vu}')

def emit_swz(a, op, vrow, vout, vt):
    if op.layout == 'K':
        if op.BK == 64: a(f'v_bfe_u32 v{vout}, v{vrow}, 1, 3')
        elif op.BK == 128: a(f'v_and_b32 v{vout}, 15, v{vrow}')
        else:
            a(f'v_bfe_u32 v{vt}, v{vrow}, 2, 2\nv_lshlrev_b32 v{vt}, 1, v{vt}\nv_mov_b32 v{vout}, 0x78\nv_bfe_u32 v{vout}, v{vout}, v{vt}, 2')
    else:
        if op.lg == 0: a(f'v_mov_b32 v{vout}, 0')
        else: a(f'v_bfe_u32 v{vout}, v{vrow}, {3-op.lg}, {op.lg}')

def emit_swap23(a, v, vt, vt2):
    a(f'v_and_b32 v{vt}, 4, v{v}\nv_and_b32 v{vt2}, 8, v{v}\nv_and_b32 v{v}, 0xfffffff3, v{v}')
    a(f'v_lshl_or_b32 v{v}, v{vt}, 1, v{v}\nv_lshrrev_b32 v{vt2}, 1, v{vt2}\nv_or_b32 v{v}, v{v}, v{vt2}')

def emit_src_off(a, op, n, vlane, vdst, t):
    q, row, u, x, y = t, t + 1, t + 2, t + 3, t + 4
    a(f'v_add_u32 v{q}, {64*n}, v{vlane}')
    emit_divmod(a, q, op.U, row, u, 64 * n + 63)
    emit_swz(a, op, row, x, y)
    a(f's_mov_b32 s94, {op.pitch}')
    if op.layout == 'K':
        a(f'v_xor_b32 v{u}, v{u}, v{x}\nv_lshlrev_b32 v{u}, 4, v{u}')
    else:
        a(f'v_lshlrev_b32 v{x}, 1, v{x}\nv_xor_b32 v{u}, v{u}, v{x}\nv_lshlrev_b32 v{u}, 4, v{u}')
        emit_swap23(a, row, x, y)
    a(f'v_mad_u32_u24 v{vdst}, v{row}, s94, v{u}')

class Gemm:
    def __init__(self, a, A, B, WI, WJ, nstages, NS, tag, last_kk=None):
        self.a, self.A, self.B, self.WI, self.WJ = a, A, B, WI, WJ
        assert WI * WJ == 4 and A.BK == B.BK
        self.BK = A.BK; self.NK = self.BK // 32
        self.MT = A.n // 16 // WI; self.NT = B.n // 16 // WJ
        assert self.MT * WI * 16 == A.n and self.NT * WJ * 16 == B.n
        self.S, self.NS, self.tag = nstages, NS, tag
        self.stage = A.lds_bytes + B.lds_bytes
        self.lds = self.stage * NS
        self.last_kk = last_kk or self.NK
        A.check_banks(); B.check_banks()
        self.vmax = 0

    def loader(self, w, vlane, vbase):
        a, S, NS = self.a, self.S, self.NS
        items = [(self.A, n, n * 1024) for n in range(self.A.ninstr)] + \
                [(self.B, n, self.A.lds_bytes + n * 1024) for n in range(self.B.ninstr)]
        mine = self.assign()[w]
        R = Regs(vbase)
        t = R.alloc(5)
        classes = []
        plan = []
        for idx in mine:
            op, n, lo = items[idx]
            offs = [op.src_off(64 * n + l) for l in range(64)]
            for (op2, n0, v, offs0) in classes:
                d = offs[0] - offs0[0]
                if op2 is op and d >= 0 and all(x - y == d for x, y in zip(offs, offs0)):
                    plan.append((op, v, d, lo)); break
            else:
                v = R.alloc()
                emit_src_off(a, op, n, vlane, v, t)
                classes.append((op, n, v, offs)); plan.append((op, v, 0, lo))
        self.vmax = max(self.vmax, R.hi)
        per = len(plan)
        def issue():
            for (op, v, d, lo) in plan:
                so = 's80' if op is self.A else 's81'
                a(f's_add_u32 m0, s82, {lo}')
                if d:
                    a(f's_add_u32 s84, {so}, {d}'); so = 's84'
                else: a('s_nop 0')
                a(f'buffer_load_dwordx4 v{v}, {sr(op.srd,4)}, {so} offen lds')
            a(f's_add_u32 s80, s80, {self.A.kstep}\ns_add_u32 s81, s81, {self.B.kstep}')
            a(f's_add_u32 s82, s82, {self.stage}\ns_cmp_eq_u32 s82, {self.lds}\ns_cselect_b32 s82, 0, s82')
        a('s_mov_b32 s80, 0\ns_mov_b32 s81, 0\ns_mov_b32 s82, 0')
        npro = min(NS, S)
        for s in range(npro): issue()
        assert per * (NS - 1) <= 63
        a(f's_waitcnt vmcnt({per*(npro-1)})\ns_barrier')
        nsteady = S - NS
        if nsteady > 0:
            lab = a.label(f'{self.tag}_ld{w}')
            a(f's_mov_b32 s83, {nsteady}\n{lab}:')
            a(f's_waitcnt vmcnt({per*(NS-2)})\ns_barrier')
            issue()
            a(f's_sub_u32 s83, s83, 1\ns_cmp_lg_u32 s83, 0\ns_cbranch_scc1 {lab}')
        for s in range(max(nsteady, 0), S - 1):
            a(f's_waitcnt vmcnt({per*(S-2-s)})\ns_barrier')

    def assign(self):
        nA, nB = self.A.ninstr, self.B.ninstr
        res = [[] for _ in range(4)]
        for n in range(nA): res[n % 4].append(n)
        off = nA % 4
        for n in range(nB): res[(n + off) % 4].append(nA + n)
        return res

    def setup_compute(self, R, vlane, swave, nacc=1):
        a = self.a
        MT, NT = self.MT, self.NT
        self.acc = [R.alloc(MT * NT * 4, 4) for _ in range(nacc)]
        self.fa = [R.alloc(MT * 4, 4) for _ in range(2)]
        self.fb = [R.alloc(NT * 4, 4) for _ in range(2)]
        lw = self.WJ.bit_length() - 1
        a(f's_lshr_b32 s90, s{swave}, {lw}\ns_and_b32 s91, s{swave}, {self.WJ-1}')
        self.bases = []
        self.rd = {}
        t0 = self.fa[0]
        for name, op, cnt, sw, W, reg0 in (('A', self.A, MT, 's90', self.WI, 0), ('B', self.B, NT, 's91', self.WJ, self.A.lds_bytes)):
            classes = []
            for t in range(cnt):
                for kk in range(self.NK):
                    for h in range(1 if op.layout == 'K' else 2):
                        ad = [op.frag_addr(l, w * cnt + t, kk, h) for w in range(W) for l in range(64)]
                        for (v, ad0) in classes:
                            d = ad[0] - ad0[0]
                            if 0 <= d < 65536 and all(x - y == d for x, y in zip(ad, ad0)):
                                self.rd[(name, t, kk, h)] = (v, d); break
                        else:
                            v = R.alloc()
                            self.emit_frag_addr(op, cnt, t, kk, h, vlane, sw, v, t0, reg0)
                            classes.append((v, ad)); self.bases.append(v)
                            self.rd[(name, t, kk, h)] = (v, 0)
    def emit_frag_addr(self, op, cnt, t, kk, h, vlane, sw, vd, tmp, reg0):
        a = self.a
        g, c, x, y, tb = tmp, tmp + 1, tmp + 2, tmp + 3, tmp + 4
        a(f's_mul_i32 s92, {sw}, {cnt}\ns_add_u32 s92, s92, {t}')
        a(f'v_lshrrev_b32 v{g}, 4, v{vlane}\nv_and_b32 v{c}, 15, v{vlane}')
        if op.layout == 'K':
            a(f's_lshl_b32 s93, s92, 4\nv_add_u32 v{c}, s93, v{c}')
            emit_swz(a, op, c, x, y)
            a(f'v_add_u32 v{g}, {4*kk}, v{g}\nv_xor_b32 v{g}, v{g}, v{x}\nv_lshlrev_b32 v{g}, 4, v{g}')
            a(f'v_mul_u32_u24 v{c}, {op.BK*2}, v{c}\nv_add3_u32 v{vd}, v{c}, v{g}, 0')
        else:
            a(f'v_lshlrev_b32 v{g}, 3, v{g}\nv_lshrrev_b32 v{x}, 2, v{c}\nv_add3_u32 v{g}, v{g}, v{x}, {32*kk+4*h}' if 32*kk+4*h <= 64 else
              f'v_lshlrev_b32 v{g}, 3, v{g}\nv_lshrrev_b32 v{x}, 2, v{c}\nv_add_u32 v{g}, v{g}, v{x}\nv_add_u32 v{g}, {32*kk+4*h}, v{g}')
            emit_swap23(a, g, x, y)
            emit_swz(a, op, g, x, y)
            a(f'v_xor_b32 v{x}, s92, v{x}\nv_lshlrev_b32 v{x}, 5, v{x}')
            a(f'v_and_b32 v{c}, 3, v{c}\nv_lshlrev_b32 v{c}, 3, v{c}')
            a(f'v_mul_u32_u24 v{g}, {op.n*2}, v{g}\nv_add3_u32 v{vd}, v{g}, v{x}, v{c}')
        if reg0: a(f'v_add_u32 v{vd}, {reg0}, v{vd}')

    def reads(self, kk, st):
        out = []
        la = []; lb = []
        for name, op, cnt, fr, lst in (('A', self.A, self.MT, self.fa[st], la), ('B', self.B, self.NT, self.fb[st], lb)):
            for t in range(cnt):
                if op.layout == 'K':
                    v, d = self.rd[(name, t, kk, 0)]
                    lst.append(f'ds_read_b128 {vr(fr+4*t,4)}, v{v} offset:{d}')
                else:
                    for h in range(2):
                        v, d = self.rd[(name, t, kk, h)]
                        lst.append(f'ds_read_b64_tr_b16 {vr(fr+4*t+2*h,2)}, v{v} offset:{d}')
        return la + lb
    def mfmas(self, st, acc, zero=False):
        out = []
        for it in range(self.MT):
            for jt in range(self.NT):
                d = vr(acc + 4 * (it * self.NT + jt), 4)
                out.append(f'v_mfma_f32_16x16x32_bf16 {d}, {vr(self.fa[st]+4*it,4)}, {vr(self.fb[st]+4*jt,4)}, {"0" if zero else d}')
        return out
    def interleave(self, mf, fill, per=1, start=1):
        a = self.a; fill = list(fill)
        for n, m in enumerate(mf):
            a(m)
            if n + 1 >= start:
                for _ in range(per):
                    if fill: a(fill.pop(0))
        for f in fill: a(f)
    def advance(self):
        pre = ['s_mov_b32 s93, s95', f's_add_u32 s95, s95, {self.stage}', f's_cmp_eq_u32 s95, {self.lds}',
               's_cselect_b32 s95, 0, s95', 's_sub_u32 s93, s95, s93']
        return pre + [f'v_add_u32 v{v}, s93, v{v}' for v in self.bases]

    def stage_code(self, par, first, last, acc, zero_first=False, extra=None):
        a = self.a
        nk = self.last_kk if last else self.NK
        for kk in range(nk):
            st = (par + kk) & 1
            mf = self.mfmas(st, acc, zero=(zero_first and kk == 0))
            fill = []
            if kk + 1 < nk:
                fill = self.reads(kk + 1, st ^ 1)
                if kk + 2 == nk and not last: fill = fill + self.advance()
                a('s_waitcnt lgkmcnt(0)')
            elif not last:
                a('s_waitcnt lgkmcnt(0)\ns_barrier')
                if nk == 1:
                    for x in self.advance(): a(x)
                fill = self.reads(0, st ^ 1)
            else:
                a('s_waitcnt lgkmcnt(0)')
            if extra and kk in extra: fill = fill + extra[kk]
            per = max(1, -(-len(fill) // max(1, len(mf) - 1)))
            self.interleave(mf, fill, per=per)
        return (par + nk) & 1

    def mainloop(self):
        a = self.a
        for r in range(self.MT * self.NT * 4): a(f'v_mov_b32 v{self.acc[0]+r}, 0')
        a('s_mov_b32 s95, 0\ns_barrier')
        for r in self.reads(0, 0): a(r)
        period = 1 if self.NK % 2 == 0 else 2
        nloop = (self.S - 1) // period
        par = 0
        if nloop > 0:
            lab = a.label(f'{self.tag}_mm')
            a(f's_mov_b32 s94, {nloop}\n{lab}:')
            for _ in range(period): par = self.stage_code(par, False, False, self.acc[0])
            assert par == 0
            a(f's_sub_u32 s94, s94, 1\ns_cmp_lg_u32 s94, 0\ns_cbranch_scc1 {lab}')
        for s in range(nloop * period, self.S):
            par = self.stage_code(par, False, s == self.S - 1, self.acc[0])
        a('s_nop 7\ns_nop 1')
```

```python
import sys, math, struct
from asmlib import *
from gemm import *

D = 1152
KA = dict(x_img=0, x_txt=8, c=16, wqkv_img=24, wqkv_txt=32, wo_img=40, wo_txt=48, wmod_img=56, wmod_txt=64, out=72, dbg=80, ws=88)
SZ = dict(x_img=4718592, x_txt=147456, c=4608, wqkv_img=7962624, wqkv_txt=7962624, wo_img=2654208, wo_txt=2654208,
          wmod_img=15925248, wmod_txt=15925248, out=4866048, ws=268435456)
WS_MOD = 0
WS_H = 1 << 20
WS_QKV = 8 << 20
WS_P = 24 << 20
WS_ST = 30 << 20
WS_ATT = 32 << 20
def f2u(x): return struct.unpack('<I', struct.pack('<f', x))[0]
LOG2E = 1.4426950408889634

def load_ptr(a, sreg, name): a(f's_load_dwordx2 {sr(sreg,2)}, s[0:1], {KA[name]}')
def make_srd(a, srd, ptr, size, off_s=None, off_imm=0):
    if off_s is None and off_imm == 0:
        a(f's_mov_b32 s{srd}, s{ptr}\ns_mov_b32 s{srd+1}, s{ptr+1}\ns_mov_b32 s{srd+2}, {size}')
    else:
        if off_s is None: a(f's_mov_b32 s{srd+2}, {off_imm}')
        elif off_imm: a(f's_add_u32 s{srd+2}, {off_s}, {off_imm}')
        else: a(f's_mov_b32 s{srd+2}, {off_s}')
        a(f's_add_u32 s{srd}, s{ptr}, s{srd+2}\ns_addc_u32 s{srd+1}, s{ptr+1}, 0\ns_sub_u32 s{srd+2}, {size}, s{srd+2}')
    a(f's_mov_b32 s{srd+3}, 0x20000')
def sdiv(a, dst, src, c, rem=None):
    M = (1 << 32) // c + 1
    a(f's_mul_hi_u32 {dst}, {src}, {M}')
    if rem: a(f's_mul_i32 {rem}, {dst}, {c}\ns_sub_u32 {rem}, {src}, {rem}')

def k_mod(a):
    name = 'mod_kernel'
    kernel_head(a, name)
    a('s_cmp_ge_u32 s2, 108\ns_cbranch_scc1 L_mod_end')
    load_ptr(a, 4, 'wmod_img'); load_ptr(a, 6, 'wmod_txt'); load_ptr(a, 8, 'c'); load_ptr(a, 10, 'ws')
    a('s_cmp_ge_u32 s2, 54\ns_cselect_b32 s12, 1, 0\ns_mul_i32 s13, s12, 54\ns_sub_u32 s13, s2, s13')
    a('v_and_b32 v1, 7, v0\nv_lshrrev_b32 v2, 3, v0\nv_lshlrev_b32 v1, 4, v1\ns_movk_i32 s14, 13824\nv_mad_u32_u24 v1, v2, s14, v1')
    a('s_lshl_b32 s14, s13, 7\nv_add_u32 v1, s14, v1')
    a('s_waitcnt lgkmcnt(0)')
    a('s_cmp_eq_u32 s12, 1\ns_cselect_b32 s4, s6, s4\ns_cselect_b32 s5, s7, s5')
    make_srd(a, 16, 4, SZ['wmod_img']); make_srd(a, 20, 8, SZ['c']); make_srd(a, 24, 10, SZ['ws'])
    a('v_lshlrev_b32 v3, 2, v0\nv_cmp_gt_u32 vcc, 576, v0\nv_mov_b32 v4, 0x7fffffff\ns_nop 0\nv_cndmask_b32 v3, v4, v3, vcc')
    a('buffer_load_dword v4, v3, s[20:23], 0 offen\nbuffer_load_dword v5, v3, s[20:23], 0 offen offset:2304')
    W = 32
    for i in range(9):
        a(f's_mov_b32 s14, {i*128*13824}\nbuffer_load_dwordx4 {vr(W+4*i,4)}, v1, s[16:19], s14 offen')
    a('s_waitcnt vmcnt(9)')
    a('v_lshlrev_b32 v8, 16, v4\nv_lshlrev_b32 v9, 16, v5\nv_and_b32 v10, 0xffff0000, v4\nv_and_b32 v11, 0xffff0000, v5')
    for r in range(4): a(f'v_mul_f32 v{12+r}, {f2u(-LOG2E):#x}, v{8+r}')
    for r in range(4): a(f'v_exp_f32 v{12+r}, v{12+r}')
    a('s_nop 0')
    for r in range(4): a(f'v_add_f32 v{12+r}, 1.0, v{12+r}')
    for r in range(4): a(f'v_rcp_f32 v{12+r}, v{12+r}')
    a('s_nop 0')
    for r in range(4): a(f'v_mul_f32 v{8+r}, v{8+r}, v{12+r}')
    a('v_lshlrev_b32 v3, 4, v0\ns_and_saveexec_b64 s[28:29], vcc\nds_write_b128 v3, v[8:11]\ns_mov_b64 exec, s[28:29]')
    a('s_waitcnt lgkmcnt(0)\ns_barrier')
    S = 72
    a('v_lshlrev_b32 v3, 3, v2')
    for i in range(9): a(f'ds_read_b64 {vr(S+2*i,2)}, v3 offset:{i*128*8}')
    ACC = 8
    for r in range(16): a(f'v_mov_b32 v{ACC+r}, 0')
    a('s_waitcnt lgkmcnt(0)')
    for i in range(9):
        a(f's_waitcnt vmcnt({8-i})')
        for d in range(4):
            w = W + 4 * i + d
            a(f'v_lshlrev_b32 v{24+2*d}, 16, v{w}\nv_and_b32 v{25+2*d}, 0xffff0000, v{w}')
        for d in range(4):
            a(f'v_pk_fma_f32 {vr(ACC+4*d,2)}, {vr(24+2*d,2)}, {vr(S+2*i,2)}, {vr(ACC+4*d,2)} op_sel_hi:[0,1,1]')
            a(f'v_pk_fma_f32 {vr(ACC+4*d+2,2)}, {vr(24+2*d,2)}, {vr(S+2*i,2)}, {vr(ACC+4*d+2,2)} op_sel:[1,0,0]')
    a('s_nop 1')
    for v in range(8): a(f'v_permlane32_swap_b32 v{ACC+v}, v{ACC+v+8}')
    for v in range(8): a(f'v_add_f32 v{ACC+v}, v{ACC+v}, v{ACC+v+8}')
    a('s_nop 1')
    for v in range(4): a(f'v_permlane16_swap_b32 v{ACC+v}, v{ACC+v+4}')
    for v in range(4): a(f'v_add_f32 v{ACC+v}, v{ACC+v}, v{ACC+v+4}')
    a('s_nop 1')
    for v in range(4): a(f'v_add_f32_dpp v{ACC+4+v}, v{ACC+v}, v{ACC+v} row_ror:8 row_mask:0xf bank_mask:0xf')
    a('v_lshrrev_b32 v3, 6, v0\nv_lshlrev_b32 v3, 9, v3\nv_and_b32 v4, 7, v0\nv_lshl_add_u32 v3, v4, 6, v3')
    a('v_bfe_u32 v4, v0, 4, 2\nv_lshl_add_u32 v3, v4, 4, v3')
    a(f'ds_write_b128 v3, {vr(ACC+4,4)} offset:9216')
    a('s_waitcnt lgkmcnt(0)\ns_barrier')
    a('v_cmp_gt_u32 vcc, 128, v0\ns_and_saveexec_b64 s[28:29], vcc\ns_cbranch_execz L_mod_end')
    a('v_lshlrev_b32 v3, 2, v0')
    for w in range(16): a(f'ds_read_b32 v{32+w}, v3 offset:{9216+512*w}')
    a('s_cmp_ge_u32 s13, 18\ns_cselect_b32 s14, 1.0, 0\ns_cmp_ge_u32 s13, 36\ns_cselect_b32 s14, 0, s14')
    a('v_and_b32 v4, 1, v0\nv_mul_u32_u24 v4, 3456, v4\nv_lshrrev_b32 v5, 1, v0\nv_add_u32 v4, v4, v5')
    a(f's_mul_i32 s15, s12, {2*3456}\ns_lshl_b32 s30, s13, 6\ns_add_u32 s15, s15, s30\nv_add_lshl_u32 v4, v4, s15, 2')
    a('s_waitcnt lgkmcnt(0)')
    for st in (8, 4, 2, 1):
        for w in range(st): a(f'v_add_f32 v{32+w}, v{32+w}, v{32+w+st}')
    a('v_add_f32 v32, s14, v32')
    a(f'buffer_store_dword v32, v4, s[24:27], 0 offen offset:{WS_MOD}')
    a('L_mod_end:\ns_endpgm')
    return name, 96, (108, 1024, 9216 + 8192)

def k_ln(a):
    name = 'ln_kernel'
    kernel_head(a, name)
    a('s_cmp_ge_u32 s2, 132\ns_cbranch_scc1 L_ln_end')
    load_ptr(a, 4, 'x_img'); load_ptr(a, 6, 'x_txt'); load_ptr(a, 10, 'ws')
    a('s_cmp_ge_u32 s2, 128\ns_cselect_b32 s12, 1, 0\ns_lshl_b32 s13, s12, 7\ns_sub_u32 s13, s2, s13')
    a('s_lshr_b32 s14, s13, 6\ns_lshr_b32 s15, s13, 1\ns_cmp_eq_u32 s12, 1\ns_cselect_b32 s14, s15, s14')
    a(f's_mov_b32 s15, {SZ["x_img"]}\ns_cselect_b32 s15, {SZ["x_txt"]}, s15')
    a('v_lshrrev_b32 v1, 4, v0\nv_and_b32 v2, 15, v0\nv_mul_u32_u24 v1, 2304, v1\nv_lshl_add_u32 v1, v2, 4, v1')
    a('v_lshlrev_b32 v3, 5, v2')
    a('s_waitcnt lgkmcnt(0)')
    a('s_cselect_b32 s4, s6, s4\ns_cselect_b32 s5, s7, s5')
    a(f's_mov_b32 s16, s4\ns_mov_b32 s17, s5\ns_mov_b32 s18, s15\ns_mov_b32 s19, 0x20000')
    make_srd(a, 24, 10, SZ['ws'])
    a(f's_mul_i32 s20, s13, {16*2304}')
    X = 8; F = 48; SC = 120; SH = 192
    for i in range(9): a(f'buffer_load_dwordx4 {vr(X+4*i,4)}, v1, s[16:19], s20 offen offset:{i*256}')
    a(f's_lshl_b32 s21, s12, 1\ns_add_u32 s21, s21, s14\ns_mul_i32 s21, s21, {3456*4}\ns_add_u32 s21, s21, {WS_MOD}\ns_add_u32 s22, s21, {1152*4}')
    for i in range(9):
        for h in range(2):
            off = i * 512 + h * 16
            so = 's22'
            if off >= 4096:
                a(f's_add_u32 s23, s22, 4096'); so = 's23'; off -= 4096
            a(f'buffer_load_dwordx4 {vr(SC+8*i+4*h,4)}, v3, s[24:27], {so} offen offset:{off}')
    for i in range(8):
        for h in range(2):
            a(f'buffer_load_dwordx4 {vr(SH+8*i+4*h,4)}, v3, s[24:27], s21 offen offset:{i*512+h*16}')
    a('s_waitcnt vmcnt(34)')
    for i in range(9):
        for d in range(4):
            a(f'v_lshlrev_b32 v{F+8*i+2*d}, 16, v{X+4*i+d}\nv_and_b32 v{F+8*i+2*d+1}, 0xffff0000, v{X+4*i+d}')
    a('s_add_u32 s23, s21, 4096')
    for h in range(2): a(f'buffer_load_dwordx4 {vr(X+4*h,4)}, v3, s[24:27], s23 offen offset:{h*16}')
    def rowsum(v, t):
        for r in (8, 4, 2, 1):
            a(f's_nop 1\nv_add_f32_dpp v{t}, v{v}, v{v} row_ror:{r} row_mask:0xf bank_mask:0xf')
            v, t = t, v
        return v
    a(f'v_add_f32 v4, v{F}, v{F+1}\nv_add_f32 v5, v{F+2}, v{F+3}')
    for e in range(4, 72, 2): a(f'v_add_f32 v4, v4, v{F+e}\nv_add_f32 v5, v5, v{F+e+1}')
    a('v_add_f32 v4, v4, v5')
    v = rowsum(4, 5)
    a(f'v_mul_f32 v4, {f2u(1.0/1152):#x}, v{v}')
    for e in range(72): a(f'v_sub_f32 v{F+e}, v{F+e}, v4')
    a(f'v_mul_f32 v5, v{F}, v{F}\nv_mul_f32 v6, v{F+1}, v{F+1}')
    for e in range(2, 72, 2): a(f'v_fmac_f32 v5, v{F+e}, v{F+e}\nv_fmac_f32 v6, v{F+e+1}, v{F+e+1}')
    a('v_add_f32 v5, v5, v6')
    v = rowsum(5, 6)
    a(f'v_mov_b32 v7, {f2u(1e-5):#x}\nv_fmac_f32 v7, {f2u(1.0/1152):#x}, v{v}\nv_rsq_f32 v7, v7\ns_nop 0')
    for e in range(72): a(f'v_mul_f32 v{F+e}, v{F+e}, v7')
    a('s_waitcnt vmcnt(0)')
    for e in range(72):
        sh = SH + e if e < 64 else X + e - 64
        a(f'v_fma_f32 v{F+e}, v{F+e}, v{SC+e}, v{sh}')
    for e in range(0, 72, 2): a(f'v_cvt_pk_bf16_f32 v{SC+e//2}, v{F+e}, v{F+e+1}')
    a(f's_mul_i32 s20, s2, {16*2304}\ns_add_u32 s20, s20, {WS_H}')
    for i in range(9): a(f'buffer_store_dwordx4 {vr(SC+4*i,4)}, v1, s[24:27], s20 offen offset:{i*256}')
    a('L_ln_end:\ns_endpgm')
    return name, 256, (132, 256, 0)

def gemm_entry(a):
    a('v_lshrrev_b32 v1, 6, v0\ns_nop 0\nv_readfirstlane_b32 s3, v1\nv_and_b32 v1, 63, v0')

def gemm_roles(a, g, compute_fn, end):
    labs = [a.label(f'{g.tag}_ldr') for _ in range(4)]
    for w in range(4): a(f's_cmp_eq_u32 s3, {4+w}\ns_cbranch_scc1 {labs[w]}')
    hi = compute_fn()
    a(f's_branch {end}')
    for w in range(4):
        a(f'{labs[w]}:')
        g.loader(w, 1, 2)
        a(f's_branch {end}')
    return max(hi, g.vmax)

def pack_store(a, g, acc, srd, voffs, tmp, so='0'):
    MT, NT = g.MT, g.NT
    k = 0
    for jt in range(NT):
        for it in range(0, MT - 1, 2):
            t = tmp + 4 * (k & 1); k += 1
            x = acc + 4 * (it * NT + jt); y = acc + 4 * ((it + 1) * NT + jt)
            a(f'v_cvt_pk_bf16_f32 v{t}, v{x}, v{x+1}\nv_cvt_pk_bf16_f32 v{t+1}, v{x+2}, v{x+3}')
            a(f'v_cvt_pk_bf16_f32 v{t+2}, v{y}, v{y+1}\nv_cvt_pk_bf16_f32 v{t+3}, v{y+2}, v{y+3}\ns_nop 1')
            a(f'v_permlane16_swap_b32 v{t}, v{t+2}\nv_permlane16_swap_b32 v{t+1}, v{t+3}')
            a(f'buffer_store_dwordx4 {vr(t,4)}, v{voffs[jt]}, {sr(srd,4)}, {so} offen offset:{it*32}')
        if MT & 1:
            it = MT - 1; t = tmp + 4 * (k & 1); k += 1
            x = acc + 4 * (it * NT + jt)
            a(f'v_cvt_pk_bf16_f32 v{t}, v{x}, v{x+1}\nv_cvt_pk_bf16_f32 v{t+1}, v{x+2}, v{x+3}')
            a(f'v_add_u32 v{t+2}, v{voffs[jt]}, v{tmp+8}')
            a(f'buffer_store_dwordx2 {vr(t,2)}, v{t+2}, {sr(srd,4)}, {so} offen offset:{it*32}')

def lane_group_offsets(a, vlane, v16, vadj):
    a(f'v_bfe_u32 v{v16}, v{vlane}, 4, 1\nv_lshlrev_b32 v{v16}, 5, v{v16}\nv_lshrrev_b32 v{vadj}, 5, v{vlane}\nv_lshl_add_u32 v{v16}, v{vadj}, 4, v{v16}')
    a(f'v_lshrrev_b32 v{vadj}, 4, v{vlane}\nv_lshlrev_b32 v{vadj}, 3, v{vadj}\nv_sub_u32 v{vadj}, v{vadj}, v{v16}')

def k_qkv(a):
    name = 'qkv_kernel'
    kernel_head(a, name)
    end = 'L_qkv_end'
    a(f's_cmp_ge_u32 s2, 243\ns_cbranch_scc1 {end}')
    load_ptr(a, 4, 'wqkv_img'); load_ptr(a, 6, 'wqkv_txt'); load_ptr(a, 10, 'ws')
    gemm_entry(a)
    a('s_cmp_ge_u32 s2, 216\ns_cbranch_scc1 L_qkv_txt')
    hi = 0; lds = 0
    for txt in (0, 1):
        TJ = 64 if txt else 256
        if txt:
            a('L_qkv_txt:\ns_sub_u32 s30, s2, 216\ns_mov_b32 s31, 8')
        else:
            a('s_and_b32 s12, s2, 7\ns_lshr_b32 s13, s2, 3\ns_mul_i32 s12, s12, 27\ns_add_u32 s12, s12, s13')
            a('s_cmp_ge_u32 s12, 108\ns_cselect_b32 s13, 1, 0\ns_mul_i32 s14, s13, 108\ns_sub_u32 s12, s12, s14')
            a('s_lshr_b32 s30, s12, 2\ns_and_b32 s31, s12, 3\ns_lshl_b32 s13, s13, 2\ns_add_u32 s31, s31, s13')
        a('s_waitcnt lgkmcnt(0)')
        a('s_lshl_b32 s12, s30, 8')
        make_srd(a, 16, 6 if txt else 4, SZ['wqkv_img'], 's12')
        a(f's_mul_i32 s13, s31, {256*2304}')
        make_srd(a, 20, 10, SZ['ws'], 's13', WS_H)
        make_srd(a, 24, 10, SZ['ws'], 's12', WS_QKV)
        A = Operand('T', 128, 16, 6912, 64 * 6912, 64)
        B = Operand('K', TJ, 20, 2304, 128, 64)
        g = Gemm(a, A, B, 2, 2, 18, 3 if not txt else 5, 'qkvt' if txt else 'qkv')
        def comp():
            R = Regs(2)
            g.setup_compute(R, 1, 3)
            g.mainloop()
            t = g.fa[0]; vo = [g.fb[0] + j for j in range(g.NT)]
            lane_group_offsets(a, 1, t + 9, t + 8)
            a(f'v_and_b32 v{t+10}, 15, v1\ns_mul_i32 s12, s91, {g.NT*16}\nv_add_u32 v{t+10}, s12, v{t+10}')
            a(f's_mul_i32 s12, s90, {g.MT*32}\nv_add_u32 v{t+9}, s12, v{t+9}\ns_movk_i32 s14, 6912')
            if not txt:
                a('s_lshr_b32 s12, s31, 2\ns_mul_i32 s12, s12, 1056\ns_and_b32 s13, s31, 3\ns_lshl_b32 s13, s13, 8\ns_add_u32 s12, s12, s13')
            else:
                a('s_lshl_b32 s12, s91, 10\ns_add_u32 s12, s12, 1024')
            a(f'v_add_u32 v{t+10}, s12, v{t+10}')
            for jt in range(g.NT):
                a(f'v_add_u32 v{t+11}, {16*jt}, v{t+10}\nv_mad_u32_u24 v{vo[jt]}, v{t+11}, s14, v{t+9}')
            pack_store(a, g, g.acc[0], 24, vo, t)
            return R.hi
        hi = max(hi, gemm_roles(a, g, comp, end)); lds = max(lds, g.lds)
    a(f'{end}:\ns_endpgm')
    return name, hi, (243, 512, lds)

def k_s(a):
    name = 's_kernel'
    kernel_head(a, name)
    end = 'L_s_end'
    a(f's_cmp_ge_u32 s2, 248\ns_cbranch_scc1 {end}')
    load_ptr(a, 10, 'ws')
    gemm_entry(a)
    a('s_and_b32 s12, s2, 7\ns_lshr_b32 s13, s2, 3\ns_lshr_b32 s29, s12, 2\ns_and_b32 s12, s12, 3\ns_mul_i32 s12, s12, 31\ns_add_u32 s12, s12, s13')
    a(f's_cmp_ge_u32 s12, 121\ns_cbranch_scc1 {end}')
    sdiv(a, 's31', 's12', 6, 's30')
    a('s_sub_u32 s13, s12, 66')
    sdiv(a, 's14', 's13', 5, 's15')
    a('s_add_u32 s15, s15, 6\ns_cmp_ge_u32 s12, 66\ns_cselect_b32 s31, s14, s31\ns_cselect_b32 s30, s15, s30')
    a('s_waitcnt lgkmcnt(0)')
    a(f's_mul_i32 s12, s29, 1056\ns_mul_i32 s13, s30, 96\ns_add_u32 s13, s13, s12\ns_mul_i32 s13, s13, 6912')
    make_srd(a, 16, 10, SZ['ws'], 's13', WS_QKV + 2304)
    a(f's_mul_i32 s13, s31, 96\ns_add_u32 s13, s13, s12\ns_mul_i32 s13, s13, 6912')
    make_srd(a, 20, 10, SZ['ws'], 's13', WS_QKV)
    a(f's_mul_i32 s12, s29, 11\ns_add_u32 s12, s12, s30\ns_mul_i32 s12, s12, 1056\ns_mul_i32 s13, s31, 96\ns_add_u32 s12, s12, s13')
    a('s_mul_i32 s13, s12, 192')
    make_srd(a, 24, 10, SZ['ws'], 's13', WS_P)
    a('s_lshl_b32 s13, s12, 3')
    make_srd(a, 32, 10, SZ['ws'], 's13', WS_ST)
    A = Operand('K', 96, 16, 6912, 128, 64)
    B = Operand('K', 96, 20, 6912, 128, 64)
    g = Gemm(a, A, B, 2, 2, 18, 5, 's')
    XL = g.lds
    def comp():
        R = Regs(2)
        g.setup_compute(R, 1, 3)
        g.mainloop()
        MT, NT, acc = g.MT, g.NT, g.acc[0]
        m = R.alloc(NT); o = R.alloc(NT); l = R.alloc(NT); t = R.alloc(12, 4); vo = R.alloc(NT); va = R.alloc(2)
        def allred(v, tmp, op):
            for sw in ('v_permlane16_swap_b32', 'v_permlane32_swap_b32'):
                for j in range(NT): a(f'v_mov_b32 v{tmp+j}, v{v+j}')
                a('s_nop 1')
                for j in range(NT): a(f'{sw} v{v+j}, v{tmp+j}')
                for j in range(NT): a(f'{op} v{v+j}, v{v+j}, v{tmp+j}')
        for jt in range(NT):
            regs = [acc + 4 * (it * NT + jt) + r for it in range(MT) for r in range(4)]
            a(f'v_max3_f32 v{m+jt}, v{regs[0]}, v{regs[1]}, v{regs[2]}')
            rest = regs[3:]
            while len(rest) >= 2:
                a(f'v_max3_f32 v{m+jt}, v{m+jt}, v{rest[0]}, v{rest[1]}'); rest = rest[2:]
            if rest: a(f'v_max_f32 v{m+jt}, v{m+jt}, v{rest[0]}')
        allred(m, o, 'v_max_f32')
        a(f'v_and_b32 v{va}, 15, v1\ns_mul_i32 s12, s91, {NT*16}\nv_add_u32 v{va}, s12, v{va}')
        a(f's_mul_i32 s12, s90, 384\ns_xor_b32 s13, s90, 1\ns_mul_i32 s13, s13, 384')
        a(f's_add_u32 s12, s12, {XL}\ns_add_u32 s13, s13, {XL}')
        a(f'v_lshl_add_u32 v{t}, v{va}, 2, s12\nv_lshl_add_u32 v{t+1}, v{va}, 2, s13')
        for jt in range(NT): a(f'ds_write_b32 v{t}, v{m+jt} offset:{64*jt}')
        a('s_waitcnt lgkmcnt(0)\ns_barrier')
        for jt in range(NT): a(f'ds_read_b32 v{o+jt}, v{t+1} offset:{64*jt}')
        a(f's_mov_b32 s14, {f2u(LOG2E * D ** -0.5):#x}\ns_waitcnt lgkmcnt(0)')
        for jt in range(NT): a(f'v_max_f32 v{m+jt}, v{m+jt}, v{o+jt}\nv_mul_f32 v{m+jt}, s14, v{m+jt}')
        for jt in range(NT):
            regs = [acc + 4 * (it * NT + jt) + r for it in range(MT) for r in range(4)]
            for r in regs: a(f'v_fma_f32 v{r}, v{r}, s14, -v{m+jt}')
            for r in regs: a(f'v_exp_f32 v{r}, v{r}')
            a(f's_nop 0\nv_add_f32 v{l+jt}, v{regs[0]}, v{regs[1]}')
            for r in regs[2:]: a(f'v_add_f32 v{l+jt}, v{l+jt}, v{r}')
        allred(l, o, 'v_add_f32')
        for jt in range(NT): a(f'ds_write_b32 v{t}, v{l+jt} offset:{768+64*jt}')
        lane_group_offsets(a, 1, t + 9, t + 8)
        a(f's_mul_i32 s12, s90, {MT*32}\nv_add_u32 v{t+9}, s12, v{t+9}\ns_movk_i32 s15, 192')
        for jt in range(NT):
            a(f'v_add_u32 v{t+11}, {16*jt}, v{va}\nv_mad_u32_u24 v{vo+jt}, v{t+11}, s15, v{t+9}')
        a(f'v_mov_b32 v{va+1}, v{t+1}')
        pack_store(a, g, acc, 24, [vo + j for j in range(NT)], t)
        a('s_waitcnt lgkmcnt(0)\ns_barrier')
        for jt in range(NT): a(f'ds_read_b32 v{o+jt}, v{va+1} offset:{768+64*jt}')
        a(f'v_lshlrev_b32 v{va}, 3, v{va}\ns_waitcnt lgkmcnt(0)')
        lab = a.label('s_skip')
        a(f's_cmp_lg_u32 s90, 0\ns_cbranch_scc1 {lab}\nv_cmp_gt_u32 vcc, 16, v1\ns_and_saveexec_b64 s[12:13], vcc')
        for jt in range(NT):
            tt = g.fa[0] + 2 * jt
            a(f'v_mov_b32 v{tt}, v{m+jt}\nv_add_f32 v{tt+1}, v{l+jt}, v{o+jt}')
            a(f'buffer_store_dwordx2 {vr(tt,2)}, v{va}, s[32:35], 0 offen offset:{128*jt}')
        a(f'{lab}:')
        return R.hi
    hi = gemm_roles(a, g, comp, end)
    a(f'{end}:\ns_endpgm')
    return name, hi, (248, 512, g.lds + 1536)

def k_pv(a):
    name = 'pv_kernel'
    kernel_head(a, name)
    end = 'L_pv_end'
    a(f's_cmp_ge_u32 s2, 200\ns_cbranch_scc1 {end}')
    load_ptr(a, 10, 'ws')
    gemm_entry(a)
    a('s_and_b32 s12, s2, 7\ns_lshr_b32 s13, s2, 3\ns_lshr_b32 s29, s12, 2\ns_and_b32 s12, s12, 3\ns_mul_i32 s12, s12, 25\ns_add_u32 s12, s12, s13')
    a(f's_cmp_ge_u32 s12, 99\ns_cbranch_scc1 {end}')
    sdiv(a, 's31', 's12', 5, 's30')
    a('s_sub_u32 s13, s12, 55\ns_lshr_b32 s14, s13, 2\ns_and_b32 s15, s13, 3')
    a('s_add_u32 s15, s15, 5\ns_cmp_ge_u32 s12, 55\ns_cselect_b32 s31, s14, s31\ns_cselect_b32 s30, s15, s30')
    a('s_waitcnt lgkmcnt(0)')
    a(f's_mul_i32 s12, s29, {1056*6912}\ns_lshl_b32 s13, s30, 8\ns_add_u32 s12, s12, s13')
    make_srd(a, 16, 10, SZ['ws'], 's12', WS_QKV + 4608)
    a(f's_mul_i32 s12, s29, {11*1056}\ns_mul_i32 s14, s31, 96\ns_add_u32 s12, s12, s14\ns_mul_i32 s14, s12, 192')
    make_srd(a, 20, 10, SZ['ws'], 's14', WS_P)
    make_srd(a, 24, 10, SZ['ws'], 's13', WS_ATT)
    a('s_lshl_b32 s14, s12, 3')
    make_srd(a, 32, 10, SZ['ws'], 's14', WS_ST)
    A = Operand('T', 128, 16, 6912, 96 * 6912, 96)
    B = Operand('K', 96, 20, 192, 1056 * 192, 96)
    g = Gemm(a, A, B, 2, 2, 11, 3, 'pv')
    XL = g.lds
    def comp():
        R = Regs(2)
        g.setup_compute(R, 1, 3, nacc=3)
        MT, NT = g.MT, g.NT
        main, tmp = g.acc[0], g.acc[1:]
        f = R.alloc(NT); vf = R.alloc(); vq = R.alloc()
        a(f'v_and_b32 v{vq}, 15, v1\ns_mul_i32 s12, s91, {NT*16}\nv_add_u32 v{vq}, s12, v{vq}\nv_lshlrev_b32 v{vf}, 3, v{vq}')
        st = tmp[0]
        assert tmp[1] == tmp[0] + MT * NT * 4 and 22 * NT <= 2 * MT * NT * 4
        for r in range(11):
            a(f's_mov_b32 s12, {r*1056*8}')
            for jt in range(NT): a(f'buffer_load_dwordx2 {vr(st+2*(r*NT+jt),2)}, v{vf}, s[32:35], s12 offen offset:{128*jt}')
        for r in range(MT * NT * 4): a(f'v_mov_b32 v{main+r}, 0')
        a(f's_mul_i32 s12, s3, {11*NT*64}\ns_add_u32 s12, s12, {XL}\nv_and_b32 v{vf}, 15, v1\nv_lshl_add_u32 v{vf}, v{vf}, 2, s12')
        a('s_waitcnt vmcnt(0)')
        t = g.fa[0]
        for jt in range(NT):
            ms = [st + 2 * (r * NT + jt) for r in range(11)]
            a(f'v_max3_f32 v{t}, v{ms[0]}, v{ms[1]}, v{ms[2]}')
            for r in range(3, 11, 2): a(f'v_max3_f32 v{t}, v{t}, v{ms[r]}, v{ms[r+1]}')
            for x in ms: a(f'v_sub_f32 v{x}, v{x}, v{t}')
            for x in ms: a(f'v_exp_f32 v{x}, v{x}')
            a(f's_nop 0\nv_mul_f32 v{t+1}, v{ms[0]}, v{ms[0]+1}')
            for x in ms[1:]: a(f'v_fmac_f32 v{t+1}, v{x}, v{x+1}')
            a(f'v_rcp_f32 v{t+1}, v{t+1}\ns_nop 0')
            for r, x in enumerate(ms): a(f'v_mul_f32 v{x}, v{x}, v{t+1}\nds_write_b32 v{vf}, v{x} offset:{(r*NT+jt)*64}')
        a('s_waitcnt lgkmcnt(0)\ns_mov_b32 s95, 0\ns_barrier')
        for r in g.reads(0, 0): a(r)
        def fold(tp):
            return [f'v_fmac_f32 v{main+4*(it*NT+jt)+r}, v{tp+4*(it*NT+jt)+r}, v{f+jt}' for it in range(MT) for jt in range(NT) for r in range(4)]
        def fread(): return [f'ds_read_b32 v{f+jt}, v{vf} offset:{64*jt}' for jt in range(NT)] + [f'v_add_u32 v{vf}, {NT*64}, v{vf}']
        def extras(tp):
            fl = fold(tp); h = len(fl) // 2
            return {0: fread(), 1: fl[:h], 2: fl[h:]}
        par = g.stage_code(0, True, False, tmp[0], zero_first=True)
        lab = a.label('pv_mm')
        a(f's_mov_b32 s94, 4\n{lab}:')
        par = g.stage_code(par, False, False, tmp[1], zero_first=True, extra=extras(tmp[0]))
        par = g.stage_code(par, False, False, tmp[0], zero_first=True, extra=extras(tmp[1]))
        a(f's_sub_u32 s94, s94, 1\ns_cmp_lg_u32 s94, 0\ns_cbranch_scc1 {lab}')
        par = g.stage_code(par, False, False, tmp[1], zero_first=True, extra=extras(tmp[0]))
        par = g.stage_code(par, False, True, tmp[0], zero_first=True, extra=extras(tmp[1]))
        for x in fread(): a(x)
        a('s_nop 7\ns_waitcnt lgkmcnt(0)')
        for x in fold(tmp[0]): a(x)
        t = g.fa[0]; vo = [g.fb[0] + j for j in range(NT)]
        lane_group_offsets(a, 1, t + 9, t + 8)
        a(f's_mul_i32 s12, s90, {MT*32}\nv_add_u32 v{t+9}, s12, v{t+9}\ns_movk_i32 s14, 2304')
        a('s_mul_i32 s12, s31, 96\ns_lshl_b32 s13, s29, 10\ns_lshl_b32 s15, s29, 5\ns_add_u32 s15, s15, 1024')
        a(f'v_add_u32 v{vq}, s12, v{vq}\nv_mov_b32 v{t+12}, s13\nv_mov_b32 v{t+13}, s15')
        for jt in range(NT):
            a(f'v_add_u32 v{t+11}, {16*jt}, v{vq}\nv_cmp_gt_u32 vcc, 1024, v{t+11}\ns_nop 1\nv_cndmask_b32 v{t+14}, v{t+13}, v{t+12}, vcc')
            a(f'v_add_u32 v{t+11}, v{t+11}, v{t+14}\nv_mad_u32_u24 v{vo[jt]}, v{t+11}, s14, v{t+9}')
        pack_store(a, g, main, 24, vo, t)
        return R.hi
    hi = gemm_roles(a, g, comp, end)
    a(f'{end}:\ns_endpgm')
    return name, hi, (200, 512, g.lds + 4 * 11 * g.NT * 64)

def k_out(a):
    name = 'out_kernel'
    kernel_head(a, name)
    end = 'L_out_end'
    a(f's_cmp_ge_u32 s2, 204\ns_cbranch_scc1 {end}')
    load_ptr(a, 4, 'wo_img'); load_ptr(a, 6, 'wo_txt'); load_ptr(a, 10, 'ws'); load_ptr(a, 36, 'x_img'); load_ptr(a, 38, 'x_txt'); load_ptr(a, 40, 'out')
    gemm_entry(a)
    a('s_cmp_ge_u32 s2, 192\ns_cbranch_scc1 L_out_txt')
    hi = 0; lds = 0
    for txt in (0, 1):
        TJ = 64 if txt else 128
        if txt:
            a('L_out_txt:\ns_sub_u32 s30, s2, 192\ns_mov_b32 s31, 16')
        else:
            a('s_and_b32 s12, s2, 7\ns_lshr_b32 s13, s2, 3')
            sdiv(a, 's31', 's13', 6, 's30')
            a('s_and_b32 s14, s12, 1\ns_mul_i32 s14, s14, 6\ns_add_u32 s30, s30, s14\ns_lshr_b32 s12, s12, 1\ns_lshl_b32 s12, s12, 2\ns_add_u32 s31, s31, s12')
        a('s_waitcnt lgkmcnt(0)')
        a('s_mul_i32 s12, s30, 192')
        make_srd(a, 16, 6 if txt else 4, SZ['wo_img'], 's12')
        a(f's_mul_i32 s13, s31, {128*2304}')
        make_srd(a, 20, 10, SZ['ws'], 's13', WS_ATT)
        a('s_add_u32 s13, s13, s12')
        make_srd(a, 24, 40, SZ['out'], 's13')
        if txt: make_srd(a, 32, 38, SZ['x_txt'], 's12')
        else: make_srd(a, 32, 36, SZ['x_img'], 's13')
        a('s_lshl_b32 s12, s12, 1')
        make_srd(a, 44, 10, SZ['ws'], 's12', WS_MOD + (txt * 2 * 3456 + 2304) * 4)
        A = Operand('T', 96, 16, 2304, 64 * 2304, 64)
        B = Operand('K', TJ, 20, 2304, 128, 64)
        g = Gemm(a, A, B, 1, 4, 18, 5, 'outt' if txt else 'out')
        def comp():
            R = Regs(2)
            g.setup_compute(R, 1, 3)
            MT, NT, acc = g.MT, g.NT, g.acc[0]
            assert MT % 2 == 0
            xr = R.alloc(MT // 2 * NT * 4, 4); gt = R.alloc(MT // 2 * 8, 4); vo = R.alloc(NT); v16 = R.alloc(2); t = R.alloc(8, 4)
            lane_group_offsets(a, 1, v16, v16 + 1)
            a(f's_mul_i32 s12, s90, {MT*32}\nv_add_u32 v{v16}, s12, v{v16}\ns_movk_i32 s14, 2304')
            a(f'v_and_b32 v{t}, 15, v1\ns_mul_i32 s12, s91, {NT*16}\nv_add_u32 v{t}, s12, v{t}')
            for jt in range(NT):
                a(f'v_add_u32 v{t+1}, {16*jt}, v{t}\nv_mad_u32_u24 v{vo+jt}, v{t+1}, s14, v{v16}')
                for p in range(MT // 2):
                    a(f'buffer_load_dwordx4 {vr(xr+4*(jt*(MT//2)+p),4)}, v{vo+jt}, s[32:35], 0 offen offset:{p*64}')
            if txt: a('s_lshr_b32 s12, s91, 1')
            else: a('s_lshr_b32 s12, s31, 3')
            a(f's_mul_i32 s12, s12, {3456*4}\nv_lshlrev_b32 v{v16}, 1, v{v16}')
            for p in range(MT // 2):
                for h in range(2): a(f'buffer_load_dwordx4 {vr(gt+8*p+4*h,4)}, v{v16}, s[44:47], s12 offen offset:{p*128+h*16}')
            g.mainloop()
            a('s_waitcnt vmcnt(0)')
            k = 0
            for jt in range(NT):
                for p in range(MT // 2):
                    x = acc + 4 * (2 * p * NT + jt); y = acc + 4 * ((2 * p + 1) * NT + jt)
                    for r in range(4): a(f'v_permlane16_swap_b32 v{x+r}, v{y+r}')
                    xx = xr + 4 * (jt * (MT // 2) + p)
                    src = [x, x + 1, x + 2, x + 3, y, y + 1, y + 2, y + 3]
                    for d in range(4):
                        a(f'v_lshlrev_b32 v{t+2*d}, 16, v{xx+d}\nv_and_b32 v{t+2*d+1}, 0xffff0000, v{xx+d}')
                    for e in range(8): a(f'v_fmac_f32 v{t+e}, v{src[e]}, v{gt+8*p+e}')
                    for d in range(4): a(f'v_cvt_pk_bf16_f32 v{xx+d}, v{t+2*d}, v{t+2*d+1}')
                    a(f'buffer_store_dwordx4 {vr(xx,4)}, v{vo+jt}, s[24:27], 0 offen offset:{p*64}')
            return R.hi
        hi = max(hi, gemm_roles(a, g, comp, end)); lds = max(lds, g.lds)
    a(f'{end}:\ns_endpgm')
    return name, hi, (204, 512, lds)

def build(kernels, header_path='standalone__mm_dit__diffusion.s.ref'):
    a = Asm()
    infos = [k(a) for k in kernels]
    hdr = [l for l in open(header_path).read().split('\n') if l.startswith(';') and '@launch' not in l and 'Override launch' not in l and 'Harness parses' not in l]
    out = '\n'.join(hdr) + '\n'
    for name, vg, (grid, block, lds) in infos:
        out += f'; @launch kernel={name} grid=({grid},1,1) block=({block},1,1) lds={lds}\n'
    out += '.amdgcn_target "amdgcn-amd-amdhsa--gfx950"\n.text\n' + a.text() + '.section .rodata,"a"\n'
    seen = set()
    for name, vg, _ in infos:
        if name not in seen: out += kernel_desc(name, vg)
        seen.add(name)
    for name, vg, cfg in infos: print(name, 'vgprs', vg, cfg, file=sys.stderr)
    return out

if __name__ == '__main__':
    src = build([k_mod, k_ln, k_qkv, k_s, k_pv, k_out])
    open(sys.argv[1] if len(sys.argv) > 1 else 'standalone__mm_dit__diffusion.s', 'w').write(src)
```

```python
from asmlib import *

def swap23(p): return (p & ~0xC) | ((p & 4) << 1) | ((p & 8) >> 1)
SIG = [0, 2, 3, 1]

class Operand:
    def __init__(self, layout, n, srd, pitch, kstep, BK):
        self.layout, self.n, self.srd, self.pitch, self.kstep, self.BK = layout, n, srd, pitch, kstep, BK
        assert n % 16 == 0
        self.bytes = n * BK * 2
        self.units = self.bytes // 16
        self.ninstr = (self.units + 63) // 64
        self.lds_bytes = self.ninstr * 1024
        if layout == 'K':
            self.U = BK // 8
        else:
            self.U = n // 8
            S = n // 16
            g = 1
            while g < 8 and S % (2 * g) == 0: g *= 2
            self.g = g; self.lg = g.bit_length() - 1
    def swz(self, row):
        if self.layout == 'K':
            if self.BK == 64: return (row >> 1) & 7
            if self.BK in (32, 96): return SIG[(row >> 2) & 3]
            if self.BK == 128: return row & 15
            raise ValueError
        return (row & 7) >> (3 - self.lg)
    def src_off(self, q):
        row, u = divmod(q, self.U)
        if self.layout == 'K':
            return row * self.pitch + ((u ^ self.swz(row)) * 16)
        seg = (u >> 1) ^ self.swz(row)
        return swap23(row) * self.pitch + (seg * 2 + (u & 1)) * 16
    def frag_addr(self, lane, t, kk, h=0):
        g, c = lane >> 4, lane & 15
        if self.layout == 'K':
            row = 16 * t + c
            return row * self.BK * 2 + (((4 * kk + g) ^ self.swz(row)) * 16)
        r, cc = c >> 2, c & 3
        p = swap23(32 * kk + 8 * g + 4 * h + r)
        return p * self.n * 2 + ((t ^ self.swz(p)) * 32) + cc * 8
    def check_banks(self):
        for t in range(self.n // 16):
            for kk in range(self.BK // 32):
                for h in range(1 if self.layout == 'K' else 2):
                    ad = [self.frag_addr(l, t, kk, h) for l in range(64)]
                    c, m = conflict_cycles(ad, 16 if self.layout == 'K' else 8)
                    assert c == m, (self.layout, self.n, self.BK, t, kk, h, c, m)

def emit_divmod(a, vq, U, vrow, vu, maxq):
    if U & (U - 1) == 0:
        s = U.bit_length() - 1
        a(f'v_lshrrev_b32 v{vrow}, {s}, v{vq}\nv_and_b32 v{vu}, {U-1}, v{vq}')
        return
    for sh in range(8, 24):
        M = (1 << sh) // U + 1
        if M * maxq < (1 << 32) and M < (1 << 24) and all((q * M) >> sh == q // U for q in range(maxq + 1)): break
    else: raise ValueError
    a(f'v_mul_u32_u24 v{vrow}, {M}, v{vq}\nv_lshrrev_b32 v{vrow}, {sh}, v{vrow}')
    a(f'v_mul_u32_u24 v{vu}, {U}, v{vrow}\nv_sub_u32 v{vu}, v{vq}, v{vu}')

def emit_swz(a, op, vrow, vout, vt):
    if op.layout == 'K':
        if op.BK == 64: a(f'v_bfe_u32 v{vout}, v{vrow}, 1, 3')
        elif op.BK == 128: a(f'v_and_b32 v{vout}, 15, v{vrow}')
        else:
            a(f'v_bfe_u32 v{vt}, v{vrow}, 2, 2\nv_lshlrev_b32 v{vt}, 1, v{vt}\nv_mov_b32 v{vout}, 0x78\nv_bfe_u32 v{vout}, v{vout}, v{vt}, 2')
    else:
        if op.lg == 0: a(f'v_mov_b32 v{vout}, 0')
        else: a(f'v_bfe_u32 v{vout}, v{vrow}, {3-op.lg}, {op.lg}')

def emit_swap23(a, v, vt, vt2):
    a(f'v_and_b32 v{vt}, 4, v{v}\nv_and_b32 v{vt2}, 8, v{v}\nv_and_b32 v{v}, 0xfffffff3, v{v}')
    a(f'v_lshl_or_b32 v{v}, v{vt}, 1, v{v}\nv_lshrrev_b32 v{vt2}, 1, v{vt2}\nv_or_b32 v{v}, v{v}, v{vt2}')

def emit_src_off(a, op, n, vlane, vdst, t):
    q, row, u, x, y = t, t + 1, t + 2, t + 3, t + 4
    a(f'v_add_u32 v{q}, {64*n}, v{vlane}')
    emit_divmod(a, q, op.U, row, u, 64 * n + 63)
    emit_swz(a, op, row, x, y)
    a(f's_mov_b32 s94, {op.pitch}')
    if op.layout == 'K':
        a(f'v_xor_b32 v{u}, v{u}, v{x}\nv_lshlrev_b32 v{u}, 4, v{u}')
    else:
        a(f'v_lshlrev_b32 v{x}, 1, v{x}\nv_xor_b32 v{u}, v{u}, v{x}\nv_lshlrev_b32 v{u}, 4, v{u}')
        emit_swap23(a, row, x, y)
    a(f'v_mad_u32_u24 v{vdst}, v{row}, s94, v{u}')

class Gemm:
    def __init__(self, a, A, B, WI, WJ, nstages, NS, tag, last_kk=None):
        self.a, self.A, self.B, self.WI, self.WJ = a, A, B, WI, WJ
        assert WI * WJ == 4 and A.BK == B.BK
        self.BK = A.BK; self.NK = self.BK // 32
        self.MT = A.n // 16 // WI; self.NT = B.n // 16 // WJ
        assert self.MT * WI * 16 == A.n and self.NT * WJ * 16 == B.n
        self.S, self.NS, self.tag = nstages, NS, tag
        self.stage = A.lds_bytes + B.lds_bytes
        self.lds = self.stage * NS
        self.last_kk = last_kk or self.NK
        A.check_banks(); B.check_banks()
        self.vmax = 0
        self.ramp0 = 2; self.ramp = 2; self.burst = 1
        self.stamp = lambda n: None

    def loader(self, w, vlane, vbase):
        a, S, NS = self.a, self.S, self.NS
        items = [(self.A, n, n * 1024) for n in range(self.A.ninstr)] + \
                [(self.B, n, self.A.lds_bytes + n * 1024) for n in range(self.B.ninstr)]
        mine = self.assign()[w]
        R = Regs(vbase)
        t = R.alloc(5)
        classes = []
        plan = []
        for idx in mine:
            op, n, lo = items[idx]
            offs = [op.src_off(64 * n + l) for l in range(64)]
            for (op2, n0, v, offs0) in classes:
                d = offs[0] - offs0[0]
                if op2 is op and d >= 0 and all(x - y == d for x, y in zip(offs, offs0)):
                    plan.append((op, v, d, lo)); break
            else:
                v = R.alloc()
                emit_src_off(a, op, n, vlane, v, t)
                classes.append((op, n, v, offs)); plan.append((op, v, 0, lo))
        self.vmax = max(self.vmax, R.hi)
        per = len(plan)
        def issue():
            for (op, v, d, lo) in plan:
                so = 's80' if op is self.A else 's81'
                a(f's_add_u32 m0, s82, {lo}')
                if d:
                    a(f's_add_u32 s84, {so}, {d}'); so = 's84'
                else: a('s_nop 0')
                a(f'buffer_load_dwordx4 v{v}, {sr(op.srd,4)}, {so} offen lds')
            a(f's_add_u32 s80, s80, {self.A.kstep}\ns_add_u32 s81, s81, {self.B.kstep}')
            a(f's_add_u32 s82, s82, {self.stage}\ns_cmp_eq_u32 s82, {self.lds}\ns_cselect_b32 s82, 0, s82')
        a('s_mov_b32 s80, 0\ns_mov_b32 s81, 0\ns_mov_b32 s82, 0')
        assert per * (NS - 1) <= 63
        issued = 0
        def do_issue(n):
            nonlocal issued
            for _ in range(n): issue(); issued += 1
        do_issue(min(self.ramp0, S))
        self.stamp(1)
        a(f's_waitcnt vmcnt({per*(issued-1)})')
        self.stamp(2)
        a('s_barrier')
        s = -1
        while True:
            cap = min(S, s + 1 + NS)
            do_issue(min(self.ramp, cap - issued))
            if issued == cap or s + 1 >= S - 1: break
            s += 1
            a(f's_waitcnt vmcnt({per*(issued-(s+2))})\ns_barrier')
        nsteady = S - issued
        if nsteady > 0:
            assert issued == s + 1 + NS
            lab = a.label(f'{self.tag}_ld{w}')
            a(f's_mov_b32 s83, {nsteady}\n{lab}:')
            a(f's_waitcnt vmcnt({per*(NS-2)})\ns_barrier')
            issue()
            a(f's_sub_u32 s83, s83, 1\ns_cmp_lg_u32 s83, 0\ns_cbranch_scc1 {lab}')
            s += nsteady
        for s in range(s + 1, S - 1):
            a(f's_waitcnt vmcnt({per*(S-2-s)})\ns_barrier')

    def assign(self):
        nA, nB = self.A.ninstr, self.B.ninstr
        res = [[] for _ in range(4)]
        for n in range(nA): res[n % 4].append(n)
        off = nA % 4
        for n in range(nB): res[(n + off) % 4].append(nA + n)
        return res

    def setup_compute(self, R, vlane, swave, nacc=1):
        a = self.a
        MT, NT = self.MT, self.NT
        self.acc = [R.alloc(MT * NT * 4, 4) for _ in range(nacc)]
        self.fa = [R.alloc(MT * 4, 4) for _ in range(2)]
        self.fb = [R.alloc(NT * 4, 4) for _ in range(2)]
        lw = self.WJ.bit_length() - 1
        a(f's_lshr_b32 s90, s{swave}, {lw}\ns_and_b32 s91, s{swave}, {self.WJ-1}')
        self.bases = []
        self.rd = {}
        t0 = self.fa[0]
        for name, op, cnt, sw, W, reg0 in (('A', self.A, MT, 's90', self.WI, 0), ('B', self.B, NT, 's91', self.WJ, self.A.lds_bytes)):
            classes = []
            for t in range(cnt):
                for kk in range(self.NK):
                    for h in range(1 if op.layout == 'K' else 2):
                        ad = [op.frag_addr(l, w * cnt + t, kk, h) for w in range(W) for l in range(64)]
                        for (v, ad0) in classes:
                            d = ad[0] - ad0[0]
                            if 0 <= d < 65536 and all(x - y == d for x, y in zip(ad, ad0)):
                                self.rd[(name, t, kk, h)] = (v, d); break
                        else:
                            v = R.alloc()
                            self.emit_frag_addr(op, cnt, t, kk, h, vlane, sw, v, t0, reg0)
                            classes.append((v, ad)); self.bases.append(v)
                            self.rd[(name, t, kk, h)] = (v, 0)
    def emit_frag_addr(self, op, cnt, t, kk, h, vlane, sw, vd, tmp, reg0):
        a = self.a
        g, c, x, y, tb = tmp, tmp + 1, tmp + 2, tmp + 3, tmp + 4
        a(f's_mul_i32 s92, {sw}, {cnt}\ns_add_u32 s92, s92, {t}')
        a(f'v_lshrrev_b32 v{g}, 4, v{vlane}\nv_and_b32 v{c}, 15, v{vlane}')
        if op.layout == 'K':
            a(f's_lshl_b32 s93, s92, 4\nv_add_u32 v{c}, s93, v{c}')
            emit_swz(a, op, c, x, y)
            a(f'v_add_u32 v{g}, {4*kk}, v{g}\nv_xor_b32 v{g}, v{g}, v{x}\nv_lshlrev_b32 v{g}, 4, v{g}')
            a(f'v_mul_u32_u24 v{c}, {op.BK*2}, v{c}\nv_add3_u32 v{vd}, v{c}, v{g}, 0')
        else:
            a(f'v_lshlrev_b32 v{g}, 3, v{g}\nv_lshrrev_b32 v{x}, 2, v{c}\nv_add3_u32 v{g}, v{g}, v{x}, {32*kk+4*h}' if 32*kk+4*h <= 64 else
              f'v_lshlrev_b32 v{g}, 3, v{g}\nv_lshrrev_b32 v{x}, 2, v{c}\nv_add_u32 v{g}, v{g}, v{x}\nv_add_u32 v{g}, {32*kk+4*h}, v{g}')
            emit_swap23(a, g, x, y)
            emit_swz(a, op, g, x, y)
            a(f'v_xor_b32 v{x}, s92, v{x}\nv_lshlrev_b32 v{x}, 5, v{x}')
            a(f'v_and_b32 v{c}, 3, v{c}\nv_lshlrev_b32 v{c}, 3, v{c}')
            a(f'v_mul_u32_u24 v{g}, {op.n*2}, v{g}\nv_add3_u32 v{vd}, v{g}, v{x}, v{c}')
        if reg0: a(f'v_add_u32 v{vd}, {reg0}, v{vd}')

    def reads(self, kk, st):
        out = []
        la = []; lb = []
        for name, op, cnt, fr, lst in (('A', self.A, self.MT, self.fa[st], la), ('B', self.B, self.NT, self.fb[st], lb)):
            for t in range(cnt):
                if op.layout == 'K':
                    v, d = self.rd[(name, t, kk, 0)]
                    lst.append(f'ds_read_b128 {vr(fr+4*t,4)}, v{v} offset:{d}')
                else:
                    for h in range(2):
                        v, d = self.rd[(name, t, kk, h)]
                        lst.append(f'ds_read_b64_tr_b16 {vr(fr+4*t+2*h,2)}, v{v} offset:{d}')
        return la + lb
    def mfmas(self, st, acc, zero=False):
        out = []
        for it in range(self.MT):
            for jt in range(self.NT):
                d = vr(acc + 4 * (it * self.NT + jt), 4)
                out.append(f'v_mfma_f32_16x16x32_bf16 {d}, {vr(self.fa[st]+4*it,4)}, {vr(self.fb[st]+4*jt,4)}, {"0" if zero else d}')
        return out
    def interleave(self, mf, fill, per=1, start=1):
        a = self.a; fill = list(fill)
        for n, m in enumerate(mf):
            a(m)
            if n + 1 >= start:
                for _ in range(per):
                    if fill: a(fill.pop(0))
        for f in fill: a(f)
    def advance(self):
        pre = ['s_mov_b32 s93, s95', f's_add_u32 s95, s95, {self.stage}', f's_cmp_eq_u32 s95, {self.lds}',
               's_cselect_b32 s95, 0, s95', 's_sub_u32 s93, s95, s93']
        return pre + [f'v_add_u32 v{v}, s93, v{v}' for v in self.bases]

    def stage_code(self, par, first, last, acc, zero_first=False, extra=None):
        a = self.a
        nk = self.last_kk if last else self.NK
        for kk in range(nk):
            st = (par + kk) & 1
            mf = self.mfmas(st, acc, zero=(zero_first and kk == 0))
            fill = []
            if kk + 1 < nk:
                fill = self.reads(kk + 1, st ^ 1)
                if kk + 2 == nk and not last: fill = fill + self.advance()
                a('s_waitcnt lgkmcnt(0)')
            elif not last:
                a('s_waitcnt lgkmcnt(0)\ns_barrier')
                if nk == 1:
                    for x in self.advance(): a(x)
                fill = self.reads(0, st ^ 1)
            else:
                a('s_waitcnt lgkmcnt(0)')
            if extra and kk in extra: fill = fill + extra[kk]
            per = max(self.burst, -(-len(fill) // max(1, len(mf) - 1)))
            self.interleave(mf, fill, per=per)
        return (par + nk) & 1

    def mainloop(self):
        a = self.a
        for r in range(self.MT * self.NT * 4): a(f'v_mov_b32 v{self.acc[0]+r}, 0')
        a('s_mov_b32 s95, 0\ns_barrier')
        self.stamp(1)
        for r in self.reads(0, 0): a(r)
        period = 1 if self.NK % 2 == 0 else 2
        nloop = (self.S - 1) // period
        par = 0
        if nloop > 0:
            lab = a.label(f'{self.tag}_mm')
            a(f's_mov_b32 s94, {nloop}\n{lab}:')
            for _ in range(period): par = self.stage_code(par, False, False, self.acc[0])
            assert par == 0
            a(f's_sub_u32 s94, s94, 1\ns_cmp_lg_u32 s94, 0\ns_cbranch_scc1 {lab}')
        for s in range(nloop * period, self.S):
            par = self.stage_code(par, False, s == self.S - 1, self.acc[0])
        self.stamp(2)
        a('s_nop 7\ns_nop 1')
```

```python
import sys, struct
from asmlib import *
from gemm import Operand, emit_swz, emit_swap23

D = 1152
KA = ['x_img', 'x_txt', 'c', 'wqkv_img', 'wqkv_txt', 'wo_img', 'wo_txt', 'wmod_img', 'wmod_txt', 'out', 'dbg', 'ws']
PTR = {n: 36 + 2 * k for k, n in enumerate(KA)}
SZ = dict(x_img=4718592, x_txt=147456, c=4608, wqkv_img=7962624, wqkv_txt=7962624, wo_img=2654208, wo_txt=2654208,
          wmod_img=15925248, wmod_txt=15925248, out=4866048, dbg=256, ws=268435456)
MB = 1 << 20
RP = 2304
WS_FLAG = 0
WS_MODP = 1 * MB
WS_GATE = WS_MODP + 3 * 4 * 9216
WS_ST = 2 * MB
FTS = 4 * 36 * 1024
WS_HT = 40 * MB; WS_QT = WS_HT + FTS; WS_VT = WS_QT + FTS; WS_Q2 = WS_VT + FTS; WS_PT = WS_Q2 + FTS; WS_Y = WS_PT + FTS; WS_AT = WS_Y + FTS
WS_Z = WS_AT + FTS
WS_H = 4 * MB; WS_Q = 10 * MB; WS_K = 16 * MB; WS_V = 22 * MB; WS_P = 28 * MB; WS_U = 34 * MB
USZ = 1152 * RP
WS_DBG = 64 * MB
FS = 128
F_GV = 0
F_GG = 216
F_LN = 252
F_U = 384
F_K = 492
F_V = 690
F_P = 888
F_T = 1086; F_Q2 = 1140; F_VT = 1158; F_PT = 1176; F_Y = 1210; F_AT = 1246
NFLAG = 1536
PS = 1056
NS = 5; CH = 1040; STAGE = 28 * CH; RING = NS * STAGE; XL = RING; LDS = 163840
CB = LDS - 2048
CX = XL + 17920
SPIN = 0x100000
LOG2E = 1.4426950408889634
def f2u(x): return struct.unpack('<I', struct.pack('<f', x))[0]

import os
OPT = set(os.environ.get('OPT', '').split(','))
LDF = os.environ.get('LDF', 'sc1')
SW = int(os.environ.get('SW', 5)); SD = int(os.environ.get('SD', 2))
DEPTH = int(os.environ.get('DEPTH', 2))
CSLEEP = '' if 'nocsleep' in OPT else 's_sleep 1\n'
LSLEEP = '' if 'nolsleep' in OPT else 's_sleep 1\n'
COLD = tuple(os.environ.get('COLD', 'U').split(','))
PSL = int(os.environ.get('PSL', 4))
PFAT = int(os.environ.get('PFAT', 2))
SIGW = int(os.environ.get('SIGW', 2))
ALN = f".p2align {os.environ.get('ALIGN', 6)}\n" + 's_nop 0\n' * int(os.environ.get('APAD', 0))
class Mega:
    def __init__(self, instr=False, flags=True):
        self.a = Asm(); self.instr = instr; self.flags = flags

    def srd(self, srd, ptr, off, limit):
        a = self.a; p = PTR[ptr]
        a(f's_add_u32 s{srd}, s{p}, {off}\ns_addc_u32 s{srd+1}, s{p+1}, 0\ns_mov_b32 s{srd+2}, {limit}\ns_mov_b32 s{srd+3}, 0x20000')
    def sdiv(self, dst, src, c, rem=None):
        self.a(f's_mul_hi_u32 {dst}, {src}, {(1 << 32) // c + 1}')
        if rem: self.a(f's_mul_i32 {rem}, {dst}, {c}\ns_sub_u32 {rem}, {src}, {rem}')
    def lin(self, dst, terms, const=0):
        a = self.a; a(f's_mov_b32 {dst}, {const}')
        for r, c in terms: a(f's_mul_i32 s75, {r}, {c}\ns_add_u32 {dst}, {dst}, s75')
    def stamp(self, n):
        if self.instr: self.a(f's_memrealtime s[72:73]\ns_memtime s[96:97]\ns_waitcnt lgkmcnt(0)\nv_writelane_b32 v15, s72, {n}\nv_writelane_b32 v15, s96, {32+n}')
    def stamp_store(self):
        if not self.instr: return
        a = self.a
        self.stamp(31)
        a(f's_lshl_b32 s72, s2, 3\ns_add_u32 s72, s72, s3\ns_lshl_b32 s72, s72, 8\ns_add_u32 s72, s72, {WS_DBG}')
        a('v_lshlrev_b32 v14, 2, v1\nbuffer_store_dword v15, v14, s[12:15], s72 offen')
    def flag_lanes(self, vd, vt, ranges):
        a = self.a
        first = True; acc = 0
        if len(ranges) == 1:
            st, cnt = ranges[0]
            if isinstance(cnt, int): a(f'v_min_u32 v{vd}, {cnt-1}, v1')
            else: a(f's_sub_u32 s75, {cnt}, 1\nv_min_u32 v{vd}, s75, v1')
            a(f'v_add_u32 v{vd}, {st}, v{vd}\nv_lshlrev_b32 v{vd}, 7, v{vd}')
            return
        tot = sum(c for _, c in ranges)
        a(f'v_min_u32 v{vt}, {tot-1}, v1')
        for st, cnt in ranges:
            if isinstance(st, int): a(f's_mov_b32 s75, {st - acc}')
            else: a(f's_sub_u32 s75, {st}, {acc}')
            if first: a(f'v_mov_b32 v{vd}, s75')
            else: a(f'v_mov_b32 v{vt+1}, s75\nv_cmp_le_u32 vcc, {acc}, v{vt}\ns_nop 1\nv_cndmask_b32 v{vd}, v{vd}, v{vt+1}, vcc')
            first = False; acc += cnt
        a(f'v_add_lshl_u32 v{vd}, v{vd}, v{vt}, 7')
    def poll_sub(self, lab, vo, vt):
        a = self.a
        a(f'{lab}:\ns_mov_b32 s74, 0x10000\n{lab}_l:')
        a(f'buffer_load_dwordx4 {vr(vt,4)}, v{vo}, s[12:15], 0 offen sc1\ns_waitcnt vmcnt(0)')
        a(f'v_min3_u32 v{vt}, v{vt}, v{vt+1}, v{vt+2}\nv_min_u32 v{vt}, v{vt}, v{vt+3}\nv_cmp_ne_u32 vcc, 0, v{vt}')
        a(f's_cmp_eq_u64 vcc, exec\ns_cbranch_scc1 {lab}_d\ns_sub_u32 s74, s74, 1\ns_cmp_eq_u32 s74, 0\ns_cbranch_scc1 {lab}_d\ns_sleep {PSL}\ns_branch {lab}_l')
        a(f'{lab}_d:\ns_setpc_b64 s[68:69]')
    def ready_sub(self, lab, vt):
        a = self.a
        a(f'{lab}:\ns_mov_b32 s74, 0x10000\nv_mov_b32 v{vt+1}, 0\n{lab}_l:')
        a(f'global_load_dword v{vt}, v{vt+1}, {sr(PTR["dbg"],2)} sc1\ns_waitcnt vmcnt(0)\nv_cmp_eq_u32 vcc, 12, v{vt}')
        a(f's_cbranch_vccnz {lab}_d\ns_sub_u32 s74, s74, 1\ns_cmp_eq_u32 s74, 0\ns_cbranch_scc1 {lab}_d\ns_sleep {PSL}\ns_branch {lab}_l')
        a(f'{lab}_d:\ns_setpc_b64 s[68:69]')

    def ld_params(self, t):
        a = self.a
        def ws(srd, off, lim=None): self.srd(srd, 'ws', off, lim if lim is not None else 0x4000000)
        def wsl(srd, base, sreg, lim=None):
            a(f's_add_u32 s67, {sreg}, {base}'); ws(srd, 's67', lim)
        def wgt(srd, name, sreg, const=0):
            a(f's_add_u32 s67, {sreg}, {const}\ns_sub_u32 s66, {SZ[name]}, s67'); self.srd(srd, name, 's67', 's66')
        if t == 'U':
            wgt(16, 'wo_img', 's65'); a(f's_mul_i32 s70, s62, {96*6912}'); wgt(20, 'wqkv_img', 's70', 4608); return 'T', RP, 6912, 18
        if t == 'M':
            wgt(16, 'wqkv_img', 's65', 0); wsl(20, WS_H, 's63', 's64'); return 'T', 6912, RP, 18
        if t == 'V':
            wsl(16, WS_U, 's65'); wsl(20, WS_H, 's63', 's64'); return 'T', RP, RP, 18
        if t == 'S':
            self.lin('s70', [('s60', 1056 * RP), ('s61', 128 * RP)])
            a(f's_mov_b32 s71, {128*RP}\ns_cmp_eq_u32 s61, 8\ns_cselect_b32 s71, {32*RP}, s71')
            wsl(16, WS_K, 's70', 's71'); wsl(20, WS_Q, 's63', 's64'); return 'K', RP, RP, 18
        if t == 'PV':
            a(f's_mul_i32 s70, s60, {1056*RP}\ns_add_u32 s70, s70, s65')
            wsl(16, WS_V, 's70'); wsl(20, WS_P, 's63', 's64'); return 'T', RP, RP, 17
        raise ValueError(t)
    def dep_ranges(self, t, aux=False):
        a = self.a
        if t == 'M':
            self.lin('s70', [('s60', 64), ('s62', 6)], F_LN)
            a('s_cmp_eq_u32 s62, 10\ns_cselect_b32 s71, 4, 6'); return [('s70', 's71')]
        if t == 'V':
            self.lin('s70', [('s61', 12)], F_U); return [('s70', 12)]
        if t == 'S':
            a('s_lshl_b32 s70, s61, 2'); self.sdiv('s71', 's70', 3)
            self.lin('s70', [('s60', 99), ('s71', 9)], F_K)
            a(f's_cmp_eq_u32 s61, 8\ns_cselect_b32 s70, {F_T+18}, s70')
            self.lin('s66', [('s60', 99), ('s62', 9)], F_K)
            return [('s70', 18), ('s66', 9)]
        if t == 'PV':
            self.lin('s70', [('s60', 99), ('s62', 9)], F_P); self.lin('s71', [('s60', 99), ('s61', 11)], F_V)
            a(f's_lshl_b32 s67, s61, 1\ns_add_u32 s66, s67, {F_VT}\ns_add_u32 s67, s67, {F_GG}')
            return [('s70', 9), ('s71', 11), ('s66', 2), ('s67', 2)]
        return None
    def sig_index(self, t, aux=False):
        m = {'U': ([('s61', 12), ('s62', 1)], F_U), 'M': ([('s60', 99), ('s62', 9), ('s61', 1)], F_K),
             'V': ([('s60', 99), ('s61', 11), ('s62', 1)], F_V), 'S': ([('s60', 99), ('s62', 9), ('s61', 1)], F_P),
             'T': ([('s61', 1)], F_T), 'Q2': ([('s61', 1)], F_Q2), 'VT': ([('s61', 1)], F_VT), 'ST': ([('s60', 17), ('s61', 1)], F_PT),
             'Y': ([('s60', 18), ('s61', 1)], F_Y), 'AT': ([('s61', 1)], F_AT), 'LN': ([('s2', 1)], F_LN - 112)}[t]
        self.lin('s88', [(r, c * FS) for r, c in m[0]] + [('s3', 4)], m[1] * FS)
    def set_bij(self, rows):
        a = self.a
        if rows == 'img':
            self.lin('s63', [('s60', 1056 * RP), ('s62', 96 * RP)])
            a(f's_mov_b32 s64, {96*RP}\ns_cmp_eq_u32 s62, 10\ns_cselect_b32 s64, {64*RP}, s64')
        else:
            self.lin('s63', [('s60', 1056 * RP)], 1024 * RP); a(f's_mov_b32 s64, {32*RP}')
        a('s_lshl_b32 s65, s61, 8')

    LV = dict(rowT=2, inT=3, rowKA=4, rowKB=5, inK=6, inKB=7, vF=8, oA=9, oB=10, vA=24, vB=28, t=20, fd=16)
    def ld_static(self):
        a = self.a; L = self.LV; t = L['t']
        a(f's_sub_u32 s84, s3, 4\ns_mul_i32 s85, s84, {4*CH}\ns_mov_b32 s82, s85\ns_mul_i32 s5, s84, {CH}\ns_sub_u32 s5, {16*CH}, s5\ns_mov_b32 m0, s82')
        a(f'v_bfe_u32 v{L["rowT"]}, v1, 2, 2\nv_lshl_add_u32 v{L["rowT"]}, s84, 4, v{L["rowT"]}')
        a(f'v_lshrrev_b32 v{t}, 4, v1\nv_and_b32 v{t+1}, 3, v1\nv_lshlrev_b32 v{t+1}, 4, v{t+1}\nv_lshl_add_u32 v{L["inT"]}, v{t}, 6, v{t+1}')
        a(f'v_bfe_u32 v{t}, v1, 2, 3\nv_lshl_add_u32 v{L["rowKA"]}, s84, 5, v{t}\ns_mul_i32 s75, s84, 24\nv_add_u32 v{L["rowKB"]}, s75, v{t}')
        a(f'v_bfe_u32 v{t}, v1, 4, 1\nv_mul_u32_u24 v{t}, 48, v{t}\nv_xor_b32 v{t+1}, v{t+1}, v{t}\nv_lshrrev_b32 v{t}, 5, v1\nv_lshl_add_u32 v{L["inK"]}, v{t}, 6, v{t+1}')
        a(f's_and_b32 s75, s84, 1\ns_mul_i32 s75, s75, 48\nv_xor_b32 v{L["inKB"]}, s75, v{L["inK"]}\nv_mov_b32 v{L["vF"]}, 0')
    def order_valu(self, n, dst, t, u0, limit):
        a = self.a; u, dl, sd = t, t + 1, t + 2
        a(f'v_add_u32 v{u}, {u0}, v{n}\nv_mov_b32 v{sd}, {SD}')
        a(f'v_mul_u32_u24 v{dl}, {(1<<16)//SW+1}, v{u}\nv_lshrrev_b32 v{dl}, 16, v{dl}\nv_mul_u32_u24 v{dl}, {SW}, v{dl}\nv_sub_u32 v{u}, v{u}, v{dl}')
        a(f'v_cmp_ge_u32 vcc, {SD}, v{u}\nv_cmp_eq_u32 s[66:67], 0, v{u}\nv_sub_u32 v{u}, v{n}, v{u}\nv_cndmask_b32 v{dl}, 0, -1, vcc')
        a(f'v_cmp_gt_u32 vcc, {0 if "nostag" in OPT else limit}, v{u}\nv_cndmask_b32 v{dl}, v{dl}, v{sd}, s[66:67]\ns_nop 0\nv_cndmask_b32 v{dl}, 0, v{dl}, vcc')
        a(f'v_add_u32 v{dst}, v{n}, v{dl}')
    def ld_setup(self, t):
        a = self.a; L = self.LV; tm = L['t']; vA, vB = L['vA'], L['vB']
        S = 17 if t in ('PV', 'Y') else 18
        cold = t in COLD and 'norot' not in OPT
        if cold:
            self.lin('s84', [('s61', 2), ('s60', 1), ('s62', 3)]); self.sdiv('s75', 's84', 18, 's83')
            a(f'v_add_u32 v{L["oB"]}, s83, v1\nv_subrev_u32 v{tm}, 18, v{L["oB"]}\nv_min_u32 v{L["oB"]}, v{L["oB"]}, v{tm}')
        else:
            a('s_add_u32 s84, s61, s62')
            self.order_valu(1, L['oB'], tm, 's84', (S & ~1) - SD)
        lay, pA, pB, S2 = self.ld_params(t)
        assert S == S2
        a(f's_mov_b32 s76, {pA}\ns_mov_b32 s77, {pB}\ns_mov_b32 s78, {pA * 64 if lay == "T" else 128}')
        a(f'v_mul_u32_u24 v{L["oA"]}, s78, v{L["oB"]}\nv_lshlrev_b32 v{L["oB"]}, 7, v{L["oB"]}')
        if lay == 'T':
            a(f'v_mad_u32_u24 v{vA}, v{L["rowT"]}, s76, v{L["inT"]}')
            for m in range(1, 4): a(f'v_add_u32 v{vA+m}, {m*(4*pA - CH)}, v{vA}')
        else:
            a(f'v_mad_u32_u24 v{vA}, v{L["rowKA"]}, s76, v{L["inK"]}\nv_xor_b32 v{tm}, 48, v{vA}')
            for m in range(1, 4): a(f'v_add_u32 v{vA+m}, {m*(8*pA - CH)}, v{tm if m & 1 else vA}')
        a(f'v_readlane_b32 s100, v{L["oA"]}, 0\nv_readlane_b32 s101, v{L["oB"]}, 0\ns_mov_b32 s98, 1')
        a(f'v_mad_u32_u24 v{vB}, v{L["rowKB"]}, s77, v{L["inKB"]}\nv_xor_b32 v{tm}, 48, v{vB}')
        for m in range(1, 3): a(f'v_add_u32 v{vB+m}, {m*(8*pB - CH)}, v{tm if m & 1 else vB}')
        assert pA % 64 == 0 and pB % 64 == 0
    def min4(self, v): self.a(f'v_min3_u32 v{v}, v{v}, v{v+1}, v{v+2}\nv_min_u32 v{v}, v{v}, v{v+3}')
    def ld_issue(self, kind='n'):
        a = self.a; L = self.LV
        ld = lambda v, srd, so, m: a(f'buffer_load_dwordx4 v{v+m}, {srd}, {so} offen offset:{m*CH} {LDF} lds') if 'noload' not in OPT else a('s_nop 0')
        if kind == 'y':
            ld(L['vA'], 's[16:19]', 's99', 0)
            a(f's_add_u32 s82, s82, {STAGE}\ns_cmp_ge_u32 s82, {RING}')
            ld(L['vA'], 's[16:19]', 's99', 1)
            a('s_cselect_b32 s82, s85, s82')
            ld(L['vA'], 's[16:19]', 's99', 2); ld(L['vA'], 's[16:19]', 's99', 3)
            a('s_mov_b32 m0, s82\ns_nop 0')
            return
        for m in range(4): ld(L['vA'], 's[16:19]', 's100', m)
        if kind == 'x': a('s_add_u32 s99, s100, 2304')
        a(f's_add_u32 m0, s82, s5\nv_readlane_b32 s100, v{L["oA"]}, s98')
        ld(L['vB'], 's[20:23]', 's101', 0)
        a(f's_add_u32 s82, s82, {STAGE}\ns_cmp_ge_u32 s82, {RING}')
        ld(L['vB'], 's[20:23]', 's101', 1)
        a('s_cselect_b32 s82, s85, s82')
        ld(L['vB'], 's[20:23]', 's101', 2)
        a(f's_mov_b32 m0, s82\nv_readlane_b32 s101, v{L["oB"]}, s98\ns_add_u32 s98, s98, 1')
    def ld_subs(self):
        a = self.a; L = self.LV
        loop = lambda l: a(f's_sub_u32 s83, s83, 1\ns_cmp_lg_u32 s83, 0\ns_cbranch_scc1 {l}\ns_setpc_b64 s[86:87]')
        a('L_issue:'); self.ld_issue(); loop('L_issue')
        a('L_steady:\ns_waitcnt vmcnt(14)\ns_barrier'); self.ld_issue(); loop('L_steady')
        a('L_issue2:'); self.ld_issue('x'); self.ld_issue('y'); a('s_setpc_b64 s[86:87]')
        a('L_steady2:\ns_waitcnt vmcnt(11)\ns_barrier'); self.ld_issue('x')
        a('s_waitcnt vmcnt(11)\ns_barrier'); self.ld_issue('y'); loop('L_steady2')
        self.poll_sub('L_lpoll', L['vF'], L['fd'])
        self.ready_sub('L_lready', L['fd'])
    def ld_call(self, what, n=None):
        if n is not None:
            if n == 0: return
            self.a(f's_mov_b32 s83, {n}')
        self.a(f's_call_b64 s[86:87], {what}')
    def w4(self, fn):
        lab = self.a.label('w4'); self.a(f's_cmp_lg_u32 s3, 4\ns_cbranch_scc1 {lab}'); fn(); self.a(f'{lab}:')
    def ld_late_start(self, t, aux, k, ready=False):
        a = self.a; L = self.LV
        def poll():
            r = self.dep_ranges(t, aux)
            if ready: a('s_call_b64 s[68:69], L_lready')
            if r: self.flag_lanes(L['vF'], L['t'], r); a('s_call_b64 s[68:69], L_lpoll')
        self.ld_setup(t)
        if self.flags and (t != 'U' or ready): self.w4(poll)
        a('s_barrier')
        self.stamp(k)
        if t == 'M':
            self.ld_call('L_issue2'); a('s_waitcnt vmcnt(4)\ns_barrier'); self.ld_call('L_issue2'); return
        self.ld_call('L_issue', 2)
        a('s_waitcnt vmcnt(7)\ns_barrier')
        self.ld_call('L_issue', 2)
    def ld_body(self, t, nxt, pre=None, ready=False, k=0):
        a = self.a; L = self.LV; vt = L['fd']
        M = t == 'M'
        left = {'PV': 13, 'Y': 13, 'M': 32}.get(t, 14)
        run = (lambda n: self.ld_call('L_steady2', n // 2)) if M else (lambda n: self.ld_call('L_steady', n))
        if not nxt:
            run(left)
            w = (11, 4) if M else (14, 7)
            a(f's_waitcnt vmcnt({w[0]})\ns_barrier\ns_waitcnt vmcnt({w[1]})\ns_barrier\ns_waitcnt vmcnt(0)\ns_barrier\ns_barrier')
            return
        if pre: pre()
        if self.flags:
            if ready:
                run(left - 8); left = 5
                self.w4(lambda: a(f'v_mov_b32 v{vt+1}, 0\nglobal_load_dword v{vt}, v{vt+1}, {sr(PTR["dbg"],2)} sc1'))
                run(3)
                lab = a.label('rdy_ok')
                self.w4(lambda: a(f'v_cmp_eq_u32 vcc, 12, v{vt}\ns_cbranch_vccnz {lab}\ns_call_b64 s[68:69], L_lready\n{lab}:'))
            run(left - 2)
            def ask():
                self.flag_lanes(L['vF'], L['t'], self.dep_ranges(nxt, False))
                a(f'buffer_load_dwordx4 {vr(vt,4)}, v{L["vF"]}, s[12:15], 0 offen sc1')
            self.w4(ask)
            run(2)
            def chk():
                lab = a.label('dep_ok'); a(f's_waitcnt vmcnt({11 if M else 14})'); self.min4(vt)
                a(f'v_cmp_ne_u32 vcc, 0, v{vt}\ns_cmp_eq_u64 vcc, exec\ns_cbranch_scc1 {lab}')
                a(f's_call_b64 s[68:69], L_lpoll\n{lab}:')
            self.w4(chk)
        else: run(left)
        self.stamp(k)
        self.ld_setup(nxt)
        if nxt == 'M': self.ld_call('L_steady2', 2)
        elif M:
            for _ in range(2): a('s_waitcnt vmcnt(11)'); self.ld_call('L_steady', 1)
            self.ld_call('L_steady', 2)
        else: self.ld_call('L_steady', 4)

    VA = 2; VB = 3; DT = 4; DK = 5; TA = 6; VROW = 10; VCOL = 11; VONE = 12; VZERO = 13
    ACC = 16; TMP = [64, 112]; FA = [160, 176]; FB = [192, 204]; FREE = 216
    def cp_static(self):
        a = self.a
        a('s_lshr_b32 s90, s3, 1\ns_and_b32 s91, s3, 1\ns_mov_b32 s89, -1\ns_mov_b32 s98, 0\ns_mov_b32 s88, 0')
        g, c, x, y = 200, 201, 202, 203
        a(f'v_lshrrev_b32 v{g}, 4, v1\nv_lshrrev_b32 v{x}, 1, v1\nv_xor_b32 v{x}, v{x}, v1\nv_bfe_u32 v{x}, v{x}, 2, 1\nv_mul_u32_u24 v{x}, 3, v{x}\nv_xor_b32 v{x}, v{x}, v{g}')
        a(f'v_and_b32 v{c}, 7, v1\nv_lshlrev_b32 v{c}, 6, v{c}\nv_lshl_add_u32 v{x}, v{x}, 4, v{c}\nv_bfe_u32 v{c}, v1, 3, 1\nv_mul_u32_u24 v{c}, {CH}, v{c}\nv_add_u32 v{x}, v{x}, v{c}')
        a(f's_mul_i32 s92, s91, {6*CH}\ns_add_u32 s92, s92, {16*CH}\nv_add_u32 v{self.VB}, s92, v{x}')
        a(f's_mul_i32 s93, s90, {8*CH}\ns_sub_u32 s93, s93, s92\nv_mov_b32 v{self.DK}, s93')
        a(f'v_mul_u32_u24 v{g}, {2*CH}, v{g}\nv_bfe_u32 v{c}, v1, 2, 2\nv_lshl_add_u32 v{g}, v{c}, 6, v{g}\nv_and_b32 v{c}, 3, v1\nv_lshl_add_u32 v{g}, v{c}, 3, v{g}')
        a(f's_lshl_b32 s93, s90, 9\nv_add_u32 v{g}, s93, v{g}\nv_sub_u32 v{self.DT}, v{g}, v{self.VB}')
        a(f'v_and_b32 v{x}, 12, v1\nv_bfe_u32 v{y}, v1, 4, 1\ns_mul_i32 s92, s91, 48\nv_add3_u32 v{self.VROW}, v{x}, v{y}, s92')
        a(f'v_and_b32 v{x}, 3, v1\nv_lshlrev_b32 v{x}, 5, v{x}\nv_lshrrev_b32 v{y}, 5, v1\nv_lshl_add_u32 v{x}, v{y}, 4, v{x}\ns_lshl_b32 s92, s90, 7\nv_add_u32 v{self.VCOL}, s92, v{x}')
        a(f'v_bfe_i32 v8, v1, 0, 1\nv_bfe_i32 v9, v1, 1, 1\nv_mov_b32 v{self.VONE}, 1\nv_mov_b32 v{self.VZERO}, 0')
    def reads(self, lay, kk, st):
        B = [f'ds_read_b128 {vr(self.FB[st]+4*jt,4)}, v{self.VB} offset:{jt*2*CH + kk*512}' for jt in range(3)]
        A = []
        for it in range(4):
            if lay == 'K': A.append(f'ds_read_b128 {vr(self.FA[st]+4*it,4)}, v{self.VA} offset:{it*2*CH + kk*512}')
            else:
                for h in range(2):
                    A.append(f'ds_read_b64_tr_b16 {vr(self.FA[st]+4*it+2*h,2)}, v{self.VA} offset:{(h+8*kk)*CH + (it>>1)*256 + (it&1)*32}')
        k = 1 if lay == 'K' else 2
        return A[:k] + B + A[k:]
    def mfmas(self, st, acc, zero=False):
        out = []
        for it in range(4):
            for jt in range(3):
                d = vr(acc + 4 * (it * 3 + jt), 4)
                out.append(f'v_mfma_f32_16x16x32_bf16 {d}, {vr(self.FA[st]+4*it,4)}, {vr(self.FB[st]+4*jt,4)}, {"0" if zero else d}')
        return out
    def advance(self, lay):
        return [f'v_add_u32 v{self.TA}, {STAGE}, v{self.VB}', f'v_add_u32 v{self.TA+1}, {(STAGE-RING) & 0xffffffff:#x}, v{self.VB}',
                f'v_min_u32 v{self.VB}, v{self.TA+1}, v{self.TA}', f'v_add_u32 v{self.VA}, v{self.VB}, v{self.DT if lay == "T" else self.DK}']
    def rebase(self, lay, sign):
        if sign > 0: self.a(self.advance(lay)[3])
    @staticmethod
    def regs_of(txt):
        import re
        out = []
        for m in re.finditer(r'v\[(\d+):(\d+)\]|v(\d+)', txt):
            out.append(set(range(int(m.group(1)), int(m.group(2)) + 1)) if m.group(1) else {int(m.group(3))})
        return out
    def emit_waits(self, seq, pending):
        a = self.a
        for ins in seq:
            rs = self.regs_of(ins)
            if ins.startswith('ds_read'):
                a(ins); pending.append(rs[0]); continue
            use = set().union(*rs) if rs else set()
            last = max((k for k, d in enumerate(pending) if d & use), default=-1)
            if last >= 0:
                n = len(pending) - 1 - last
                assert n <= 15
                a(f's_waitcnt lgkmcnt({n})'); del pending[:last + 1]
            a(ins)
        return pending
    def weave(self, mf, rd, other):
        if 'nomfma' in OPT: mf = ['s_nop 0'] * len(mf)
        if 'noread' in OPT: rd = []
        n = len(mf); gaps = [[] for _ in range(n)]
        for k, r in enumerate(rd): gaps[min(n - 1, k * (n - 1) // max(1, len(rd)) if len(rd) < n else k)].append(r)
        return gaps, mf
    def substep(self, mf, rd, tail, other=(), bar=False):
        gaps, mf = self.weave(mf, rd, other)
        n = len(mf); other = list(other)
        for k, x in enumerate(other): gaps[k * n // len(other)].append(x)
        gaps[n - 1] += list(tail)
        seq = []
        if bar and 'bar0' in OPT: seq = ['s_barrier']
        elif bar: gaps[0].insert(0, 's_barrier')
        for m, g in zip(mf, gaps): seq += [m] + g
        return seq
    def stage(self, lay, acc, zero=False, ex0=(), ex1=(), half=False, end=()):
        adv = self.advance(lay)
        if half: return self.substep(self.mfmas(0, acc, zero), [], list(end), adv + list(ex0), bar=True)
        return self.substep(self.mfmas(0, acc, zero), self.reads(lay, 1, 1), adv[2:], adv[:2] + list(ex0)) + \
               self.substep(self.mfmas(1, acc), self.reads(lay, 0, 0), list(end), ex1, bar=True)
    def loop(self, pre, body):
        pend = self.emit_waits(pre, [])
        start = [set(x) for x in pend]
        return start, pend
    def signal_now(self):
        if not self.flags: return
        self.a(f's_waitcnt vmcnt(0)\ns_mov_b64 exec, 1\nbuffer_store_dword v{self.VONE}, v{self.VZERO}, s[12:15], s88 offen sc1\ns_mov_b64 exec, -1')
    ACC2 = 112; PK = 64; VO = 220
    def hook(self, lab):
        self.hooks.append(f'{lab}_h:\ns_call_b64 s[68:69], L_hook\ns_branch {lab}_n')
        return f's_cmp_eq_u32 s94, s89\ns_cbranch_scc1 {lab}_h\n{lab}_n:'
    def gemm_sub(self, lab, lay, merged=False):
        a = self.a
        a(f'{lab}:')
        self.rebase(lay, 1)
        pend = self.emit_waits(self.reads(lay, 0, 0) if 'noread' not in OPT else [], [])
        start = list(pend)
        a(f'{lab}_c:')
        for r in range(48): a(f'v_mov_b32 v{self.ACC+r}, 0')
        cnt = ['s_sub_u32 s94, s94, 1', 's_cmp_lg_u32 s94, 0']
        if merged:
            for r in range(48): a(f'v_mov_b32 v{self.ACC2+r}, 0')
            a(f's_mov_b32 s94, 18\n{ALN}{lab}_l:')
            adv = self.advance(lay); onlyA = lambda kk, st: [r for r in self.reads(lay, kk, st) if f'v{self.VA} ' in r]
            seq = self.substep(self.mfmas(0, self.ACC), self.reads(lay, 1, 1), adv[2:], adv[:2]) + \
                  self.substep(self.mfmas(1, self.ACC), onlyA(0, 0), [], [self.hook(lab + 'a')], bar=True) + \
                  self.substep(self.mfmas(0, self.ACC2), onlyA(1, 1), adv[2:], adv[:2]) + \
                  self.substep(self.mfmas(1, self.ACC2), self.reads(lay, 0, 0), [], cnt, bar=True)
        else:
            a(f's_mov_b32 s94, 9\n{ALN}{lab}_l:')
            seq = self.stage(lay, self.ACC, ex1=[self.hook(lab + 'a')]) + self.stage(lay, self.ACC, ex1=cnt)
        pend = self.emit_waits(seq, pend)
        assert pend == start
        a(f's_cbranch_scc1 {lab}_l')
        a('s_waitcnt lgkmcnt(0)\ns_nop 6\ns_setpc_b64 s[86:87]')
    def pack(self, acc, dst):
        for jt in range(3):
            for p in range(2):
                Z = dst + 8 * jt + 4 * p
                x = acc + 4 * (2 * p * 3 + jt); y = acc + 4 * ((2 * p + 1) * 3 + jt)
                self.a(f'v_cvt_pk_bf16_f32 v{Z}, v{x}, v{x+1}\nv_cvt_pk_bf16_f32 v{Z+1}, v{x+2}, v{x+3}')
                self.a(f'v_cvt_pk_bf16_f32 v{Z+2}, v{y}, v{y+1}\nv_cvt_pk_bf16_f32 v{Z+3}, v{y+2}, v{y+3}')
    def hook_sub(self):
        a = self.a
        a('L_hook:\ns_mov_b32 s89, -1\ns_cmp_eq_u32 s98, 9\ns_cbranch_scc1 L_hook9\ns_branch L_hook7')
        for lab, P, srd in (('L_st6', self.PK + 24, 28), ('L_st3', self.PK, 24)):
            a(f'{lab}:')
            self.xpose(P, 226)
            for k in range(6): a(f'buffer_store_dwordx4 {vr(P+4*k,4)}, v{self.VO+k}, {sr(srd,4)}, 0 offen sc1')
        a('s_setpc_b64 s[68:69]')
        a('L_hook7:'); self.signal_now(); a('s_setpc_b64 s[68:69]')
        a('L_hook9:'); self.prefetch_qk(); a('s_setpc_b64 s[68:69]')
    def ops(self, op, it): self.a(f's_mov_b32 s98, {op}\ns_mov_b32 s89, {it}')
    def xpose(self, P, T, inverse=False, nj=3):
        a = self.a
        def swaps():
            for jt in range(nj):
                for r in (0, 4):
                    for d in range(2): a(f'v_permlane16_swap_b32 v{P+8*jt+r+d}, v{P+8*jt+r+2+d}')
        a('s_nop 1')
        if inverse: swaps()
        for bit, M, qp in ((2, 8, '[1,0,3,2]'), (4, 9, '[2,3,0,1]')):
            lo = [r for r in range(8 * nj) if not r & bit]
            for k, r in enumerate(lo): a(f'v_bfi_b32 v{T+k}, v{M}, v{P+r}, v{P+r+bit}')
            for k, r in enumerate(lo): a(f'v_mov_b32_dpp v{T+12+k}, v{T+k} quad_perm:{qp} row_mask:0xf bank_mask:0xf')
            for k, r in enumerate(lo): a(f'v_bfi_b32 v{P+r}, v{M}, v{T+12+k}, v{P+r}\nv_bfi_b32 v{P+r+bit}, v{M}, v{P+r+bit}, v{T+12+k}')
        if not inverse:
            a('s_nop 1'); swaps()
    def row_offsets(self, vo, t, jump):
        a = self.a
        a(f's_movk_i32 s92, {RP}')
        for k in range(6):
            a(f'v_add_u32 v{t}, {16*(k>>1)+2*(k&1)}, v{self.VROW}\nv_mad_u32_u24 v{vo+k}, v{t}, s92, v{self.VCOL}')
            if jump: a(f'v_lshrrev_b32 v{t}, 5, v{t}\nv_mad_u32_u24 v{vo+k}, v{t}, {jump}, v{vo+k}')
    def store_tile(self, acc, srd, vo, t):
        self.pack(acc, t); self.xpose(t, t + 24)
        for k in range(6): self.a(f'buffer_store_dwordx4 {vr(t+4*k,4)}, v{vo+k}, {sr(srd,4)}, 0 offen sc1')
    def store_sub(self):
        a = self.a
        a('L_store:')
        self.row_offsets(216, 222, 's79')
        self.store_tile(self.ACC, 24, 216, 160)
        a('s_setpc_b64 s[86:87]')
    def allred(self, v, tmp, op, n=3):
        a = self.a
        for sw in ('v_permlane16_swap_b32', 'v_permlane32_swap_b32'):
            for j in range(n): a(f'v_mov_b32 v{tmp+j}, v{v+j}')
            a('s_nop 1')
            for j in range(n): a(f'{sw} v{v+j}, v{tmp+j}')
            for j in range(n): a(f'{op} v{v+j}, v{v+j}, v{tmp+j}')
    def softmax_sub(self):
        a = self.a; acc = self.ACC
        m, o, l, pr = 224, 227, 230, 234
        a('L_softmax:\ns_cmp_lg_u32 s61, 8\ns_cbranch_scc1 L_sm_go\ns_cmp_lg_u32 s90, 0\ns_cbranch_scc1 L_sm_ret')
        for r in range(24, 48): a(f'v_mov_b32 v{acc+r}, 0xff800000')
        a('L_sm_go:')
        allred = self.allred
        R = [[acc + 4 * (it * 3 + jt) + r for it in range(4) for r in range(4)] for jt in range(3)]
        for jt in range(3): a(f'v_max_f32 v{m+jt}, v{R[jt][0]}, v{R[jt][1]}')
        for k in range(2, 16, 2):
            for jt in range(3): a(f'v_max3_f32 v{m+jt}, v{m+jt}, v{R[jt][k]}, v{R[jt][k+1]}')
        allred(m, o, 'v_max_f32')
        a(f's_mov_b32 s92, {f2u(LOG2E * D ** -0.5):#x}')
        for jt in range(3): a(f'v_mul_f32 v{m+jt}, s92, v{m+jt}')
        for jt in range(3):
            for r in R[jt]: a(f'v_fma_f32 v{r}, v{r}, s92, -v{m+jt}')
            for r in R[jt]: a(f'v_exp_f32 v{r}, v{r}')
        self.row_offsets(216, 222, None)
        self.store_tile(acc, 24, 216, 160)
        for jt in range(3): a(f'v_add_f32 v{l+jt}, v{R[jt][0]}, v{R[jt][1]}')
        for k in range(2, 16):
            for jt in range(3): a(f'v_add_f32 v{l+jt}, v{l+jt}, v{R[jt][k]}')
        allred(l, o, 'v_add_f32')
        a(f'v_and_b32 v{o}, 15, v1\ns_mul_i32 s92, s91, 48\nv_add_u32 v{o}, s92, v{o}\ns_mul_i32 s92, s90, {1056*8}\ns_movk_i32 s93, {RP}')
        a('s_mov_b64 exec, 0xffff')
        for jt in range(3):
            a(f'v_mov_b32 v{pr+2*jt}, v{m+jt}\nv_mov_b32 v{pr+2*jt+1}, v{l+jt}')
            a(f'v_add_u32 v{o+1}, {16*jt}, v{o}\nv_mul_u32_u24 v{o+2}, s93, v{o+1}\nv_lshlrev_b32 v{o+1}, 3, v{o+1}\nv_cmp_gt_u32 vcc, s64, v{o+2}')
            a(f'v_mov_b32 v{o+2}, 0x7fffffff\ns_nop 0\nv_cndmask_b32 v{240+jt}, v{o+2}, v{o+1}, vcc')
            a(f'buffer_store_dwordx2 {vr(pr+2*jt,2)}, v{240+jt}, s[28:31], s92 offen sc1')
        a('s_mov_b64 exec, -1\nL_sm_ret:\ns_setpc_b64 s[86:87]')
    XR = 216; GT = 240; F = 248; VF = 251
    def pv_sub(self):
        a = self.a; main = self.ACC; tmp = self.TMP; f = self.F; vf = self.VF
        a('L_pv:')
        st = 64
        t = 100
        a(f'v_and_b32 v{vf}, 15, v1\ns_mul_i32 s92, s91, 48\nv_add_lshl_u32 v{t}, v{vf}, s92, 3\nv_lshrrev_b32 v{t+1}, 4, v1')
        a(f's_add_u32 s93, s61, s62\ns_movk_i32 s92, {1056*8}')
        for m in range(4):
            n = t + 2
            a(f'v_add_u32 v{n}, {4*m}, v{t+1}')
            self.order_valu(n, n, t + 3, 's93', 16 - SD)
            a(f'v_mad_u32_u24 v{n}, v{n}, s92, v{t}')
            for jt in range(3): a(f'buffer_load_dwordx2 {vr(st+2*(m*3+jt),2)}, v{n}, s[28:31], 0 offen offset:{128*jt} sc1')
        a(f's_mov_b32 s93, {16*1056*8}')
        for jt in range(3): a(f'buffer_load_dwordx2 {vr(st+2*(12+jt),2)}, v{t}, s[28:31], s93 offen offset:{128*jt} sc1')
        self.rebase('T', 1)
        for r in range(48): a(f'v_mov_b32 v{main+r}, 0')
        for r in range(48): a(f'v_mov_b32 v{tmp[1]+r}, 0')
        a(f's_mul_i32 s92, s3, {17*192}\ns_add_u32 s92, s92, {XL}\nv_lshl_add_u32 v{vf}, v{vf}, 2, s92\nv_mul_u32_u24 v{t+1}, 192, v{t+1}\nv_add_u32 v{t+1}, v{t+1}, v{vf}')
        a('s_waitcnt vmcnt(0)')
        mx, o = t + 4, t + 8
        M = [[st + 2 * (m * 3 + jt) for m in range(5)] for jt in range(3)]
        for jt in range(3): a(f'v_max3_f32 v{mx+jt}, v{M[jt][0]}, v{M[jt][1]}, v{M[jt][2]}')
        for jt in range(3): a(f'v_max3_f32 v{mx+jt}, v{mx+jt}, v{M[jt][3]}, v{M[jt][4]}')
        self.allred(mx, o, 'v_max_f32')
        for jt in range(3):
            for x in M[jt]: a(f'v_sub_f32 v{x}, v{x}, v{mx+jt}')
        for jt in range(3):
            for x in M[jt]: a(f'v_exp_f32 v{x}, v{x}')
        for jt in range(3): a(f'v_mul_f32 v{mx+jt}, v{M[jt][0]}, v{M[jt][0]+1}')
        for m in range(1, 4):
            for jt in range(3): a(f'v_fmac_f32 v{mx+jt}, v{M[jt][m]}, v{M[jt][m]+1}')
        self.allred(mx, o, 'v_add_f32')
        for jt in range(3): a(f'v_fmac_f32 v{mx+jt}, v{M[jt][4]}, v{M[jt][4]+1}')
        for jt in range(3): a(f'v_rcp_f32 v{mx+jt}, v{mx+jt}')
        a('s_nop 0')
        for m in range(5):
            for jt in range(3):
                x = M[jt][m]
                a(f'v_mul_f32 v{x}, v{x}, v{mx+jt}\nds_write_b32 v{t+1 if m < 4 else vf}, v{x} offset:{m*768+jt*64}')
        self.stamp(23)
        a('s_waitcnt lgkmcnt(0)\ns_barrier')
        self.stamp(24)
        def fold(tp):
            if 'pk' in OPT:
                return [f'v_pk_fma_f32 {vr(main+4*(it*3+jt)+r,2)}, {vr(tp+4*(it*3+jt)+r,2)}, {vr(f+(jt&2),2)}, {vr(main+4*(it*3+jt)+r,2)} ' + ('op_sel:[0,1,0]' if jt & 1 else 'op_sel_hi:[1,0,1]')
                        for it in range(4) for jt in range(3) for r in (0, 2)]
            return [f'v_fmac_f32 v{main+4*(it*3+jt)+r}, v{tp+4*(it*3+jt)+r}, v{f+jt}' for it in range(4) for jt in range(3) for r in range(4)]
        fread = [f'ds_read_b32 v{f+jt}, v{vf} offset:{64*jt}' for jt in range(3)] + [f'v_add_u32 v{vf}, 192, v{vf}']
        pend = self.emit_waits((self.reads('T', 0, 0) if 'noread' not in OPT else []) + fread[:3], [])
        start = list(pend)
        a(f's_mov_b32 s94, 8\n{ALN}L_pv_l:')
        seq = []
        for p in range(2):
            fl = fold(tmp[p ^ 1]); h = len(fl) * 5 // 12
            seq += self.stage('T', tmp[p], zero=True, ex0=['s_nop 0'] * 0 + fl[:h], ex1=fl[h:] + (['s_sub_u32 s94, s94, 1', 's_cmp_lg_u32 s94, 0'] if p else []), end=fread)
        pend = self.emit_waits(seq, pend)
        assert pend == start
        a('s_cbranch_scc1 L_pv_l')
        self.emit_waits(self.stage('T', tmp[0], zero=True, ex0=fold(tmp[1]), half=True, end=fread), pend)
        self.rebase('T', -1)
        a('s_waitcnt lgkmcnt(0)\ns_nop 5\ns_setpc_b64 s[86:87]')
        self.fold = fold
    def gate_loads(self, gt, va, jts):
        a = self.a
        for n, jt in enumerate(jts):
            a(f'v_lshrrev_b32 v{va}, 4, v1\nv_lshlrev_b32 v{va}, 4, v{va}\ns_lshl_b32 s92, s90, 8')
            if jt is not None:
                a(f's_mul_i32 s93, s91, 48\ns_add_u32 s93, s93, {16*jt}\ns_lshr_b32 s93, s93, 5\ns_mul_i32 s93, s93, 4608\ns_add_u32 s92, s92, s93')
            for it in range(4): a(f'buffer_load_dwordx4 {vr(gt+16*n+4*it,4)}, v{va}, s[4:7], s92 offen offset:{64*it} sc1')
    def resid_epi(self, acc, xr, gt, zr, vo, t):
        a = self.a
        for jt in range(3):
            for it in range(4):
                q = acc + 4 * (it * 3 + jt); o = 8 * jt + 2 * it; u = t + 4 * (it & 1)
                if zr is not None:
                    for d in range(2): a(f'v_lshlrev_b32 v{u+2*d}, 16, v{zr+o+d}\nv_and_b32 v{u+2*d+1}, 0xffff0000, v{zr+o+d}')
                    for r in range(4): a(f'v_add_f32 v{q+r}, v{q+r}, v{u+r}')
                for d in range(2): a(f'v_lshlrev_b32 v{u+2*d}, 16, v{xr+o+d}\nv_and_b32 v{u+2*d+1}, 0xffff0000, v{xr+o+d}')
                for r in range(4): a(f'v_fmac_f32 v{u+r}, v{q+r}, v{gt(jt)+4*it+r}')
                for d in range(2): a(f'v_cvt_pk_bf16_f32 v{xr+o+d}, v{u+2*d}, v{u+2*d+1}')
        self.xpose(xr, t)
        for k in range(6): a(f'buffer_store_dwordx4 {vr(xr+4*k,4)}, v{vo+k}, s[24:27], 0 offen sc1')

    def cp_task(self, t, aux, late, nxt_early, cont=False, join=None):
        a = self.a
        def wsl(srd, base, sregs, lim):
            a(f's_mov_b32 s67, {base}')
            for s in sregs: a(f's_add_u32 s67, s67, {s}')
            self.srd(srd, 'ws', 's67', lim)
        JUMP = 1024 * RP
        if t in ('U', 'M', 'V', 'T', 'VT'):
            if late: a('s_barrier\ns_barrier')
            self.stamp(16)
            a(f's_call_b64 s[86:87], {"L_qk" if t == "M" else "L_tk"}{"_c" if cont else ""}')
            if join: a(f'{join}:')
            self.stamp(17)
            a('s_mov_b32 s79, 0')
            if t == 'U':
                self.lin('s70', [('s62', 96 * RP)]); wsl(24, WS_U, ['s70', 's65'], 96 * RP)
            elif t == 'M': wsl(24, WS_Q, ['s63', 's65'], 's64'); wsl(28, WS_K, ['s63', 's65'], 's64')
            elif t == 'V': wsl(24, WS_V, ['s63', 's65'], 's64')
            self.sig_index(t, aux)
            if nxt_early:
                if t == 'U': a('s_waitcnt vmcnt(0)')
                self.pack(self.ACC, self.PK)
                if t == 'M': self.pack(self.ACC2, self.PK + 24)
                a(f's_call_b64 s[68:69], L_st{6 if t == "M" else 3}')
                self.ops(7, (18 if nxt_early == 'M' else 9) - SIGW)
            else:
                a('s_call_b64 s[86:87], L_store')
                if t == 'M':
                    for r in range(48): a(f'v_mov_b32 v{self.ACC+r}, v{self.ACC2+r}')
                    a('s_mov_b32 s24, s28\ns_mov_b32 s25, s29\ns_call_b64 s[86:87], L_store')
                self.signal_now()
            self.stamp(18)
            return
        elif t == 'S':
            if late: a('s_barrier\ns_barrier')
            self.stamp(19); a('s_call_b64 s[86:87], L_kk'); self.stamp(20)
            wsl(24, WS_P, ['s63', 's65'], 's64')
            self.st_base(2)
            a('s_call_b64 s[86:87], L_softmax'); self.stamp(21)
        elif t in ('PV', 'Y'):
            self.st_base(0)
            if t == 'PV':
                self.lin('s70', [('s60', 1024 * RP), ('s62', 96 * RP)]); a('s_add_u32 s70, s70, s65')
                self.srd(24, 'out', 's70', 's64'); self.srd(32, 'x_img', 's70', 's64')
                a('s_sub_u32 s26, s26, s65\ns_sub_u32 s34, s34, s65')
                self.lin('s70', [('s60', 4608), ('s65', 2)]); wsl(4, WS_GATE, ['s70'], 512)
                self.row_offsets(240, 246, None)
                for k in range(6): a(f'buffer_load_dwordx4 {vr(self.XR+4*k,4)}, v{240+k}, s[32:35], 0 offen nt')
                a('s_waitcnt vmcnt(0)')
                self.xpose(self.XR, 160, inverse=True)
            a('s_barrier'); self.stamp(22); a('s_call_b64 s[86:87], L_pv'); self.stamp(25)
            if t == 'PV':
                self.gate_loads(192, 246, [None])
                for x in self.fold(self.TMP[0]): a(x)
                a('s_waitcnt vmcnt(0)')
                self.resid_epi(self.ACC, self.XR, lambda jt: 192, None, 240, 160)
        if t not in ('PV', 'OT'):
            self.sig_index(t, aux)
            self.signal_now()
    def st_base(self, imul):
        a = self.a
        a(f's_mul_i32 s70, s60, {1056*RP}\ns_sub_u32 s70, s63, s70'); self.sdiv('s71', 's70', RP // 8)
        self.lin('s70', [('s60', 17 * 1056 * 8), ('s61', imul * 1056 * 8), ('s71', 1)], WS_ST)
        self.srd(28, 'ws', 's70', 0x100000)
    GW = 32; GS = 80; GA = 104; GT_ = 120; LX = 140; GC = 204
    def lds_arrive(self, va, vone):
        self.a(f's_mov_b64 exec, 1\nds_add_u32 v{va}, v{vone}\ns_mov_b64 exec, -1')
    def lds_wait4(self, va, vt):
        a = self.a; lab = a.label('lw')
        a(f's_mov_b32 s74, {SPIN}\n{lab}:\nds_read_b32 v{vt}, v{va}\ns_waitcnt lgkmcnt(0)\nv_cmp_le_u32 vcc, 4, v{vt}')
        a(f's_cbranch_vccnz {lab}_d\ns_sub_u32 s74, s74, 1\ns_cmp_lg_u32 s74, 0\ns_cbranch_scc1 {lab}\n{lab}_d:')
    def gemv_job(self, kind):
        a = self.a
        a(f's_lshr_b32 s71, s3, 2\ns_mov_b32 s79, {XL + (4096 if kind == "gate" else 0)}')
        self.lin('s80', [('s71', 4)], CX + (8 if kind == 'gate' else 0))
        if kind == 'img':
            a('s_mov_b32 s81, s92'); self.sdiv('s92', 's81', 3, 's93')
            a('s_mov_b32 s66, 1\ns_lshl_b32 s67, s92, 7\ns_mul_i32 s70, s93, 384\ns_movk_i32 s78, 9216')
            self.lin('s76', [('s93', 4 * 9216), ('s92', 256)], WS_MODP)
            self.lin('s77', [('s81', FS)], F_GV * FS)
        elif kind == 'txt':
            a('s_mov_b32 s66, 3\ns_lshl_b32 s67, s92, 7\ns_mov_b32 s70, 0\ns_movk_i32 s78, 9216')
            self.lin('s76', [('s92', 256)], WS_MODP + 2 * 9216)
            self.lin('s77', [('s92', FS)], (F_GV + 108) * FS)
        else:
            a('s_mov_b32 s66, 3\ns_lshl_b32 s67, s92, 7\ns_add_u32 s67, s67, 4608\ns_movk_i32 s78, 4608\ns_mov_b32 s70, 0')
            self.lin('s76', [('s71', 2 * 4608), ('s92', 256)], WS_GATE)
            self.lin('s77', [('s71', 18 * FS), ('s92', FS)], F_GG * FS)
    def gemv_loads(self, W, C):
        a = self.a; T = self.GT_
        a('s_lshl_b32 s75, s70, 1')
        for b in range(2):
            for k in range(3): a(f'buffer_load_dwordx2 {vr(C+6*b+2*k,2)}, v{T+2}, s[20:23], s75 offen offset:{2304*b+8*k}')
        a('s_mul_i32 s81, s70, 13824')
        for i in range(12):
            a(f'buffer_load_dwordx4 {vr(W+4*i,4)}, v{T}, s[16:19], s81 offen nt')
            if i < 11: a(f's_add_u32 s81, s81, 13824')
    def gemv_subs(self):
        a = self.a
        W, S, ACC, T, X, C = self.GW, self.GS, self.GA, self.GT_, self.LX, self.GC
        a('L_gv_ld:\ns_and_b32 s75, s3, 3\ns_mul_i32 s75, s75, 96\ns_add_u32 s70, s70, s75')
        a(f'v_and_b32 v{T}, 7, v1\nv_lshrrev_b32 v{T+1}, 3, v1\nv_lshlrev_b32 v{T}, 4, v{T}\ns_mov_b32 s75, {12*13824}\nv_mad_u32_u24 v{T}, v{T+1}, s75, v{T}\nv_add_u32 v{T}, s67, v{T}')
        a(f'v_mul_u32_u24 v{T+2}, 24, v{T+1}')
        a(f's_cmp_eq_u32 s71, 1\ns_cselect_b32 s16, s{PTR["wmod_txt"]}, s{PTR["wmod_img"]}\ns_cselect_b32 s17, s{PTR["wmod_txt"]+1}, s{PTR["wmod_img"]+1}')
        a(f's_mov_b32 s18, {SZ["wmod_img"]}\ns_cmp_eq_u32 s66, 0\ns_cselect_b32 s18, 0, s18\ns_mov_b32 s19, 0x20000')
        self.srd(20, 'c', 0, SZ['c'])
        self.gemv_loads(W, C)
        a(f'v_bfe_u32 v176, v0, 4, 4\nv_and_b32 v177, 15, v0\nv_mul_u32_u24 v176, {RP}, v176\nv_lshl_add_u32 v176, v177, 4, v176')
        for i in range(9): a(f'buffer_load_dwordx4 {vr(X+4*i,4)}, v176, s[24:27], s83 offen offset:{i*256} nt')
        a('s_setpc_b64 s[86:87]')
        a('L_gv_go2:\ns_waitcnt vmcnt(9)\nL_gv_go:\ns_cmp_eq_u32 s66, 0\ns_cbranch_scc1 L_gv_ret')
        for r in range(16): a(f'v_mov_b32 v{ACC+r}, 0')
        W2 = 140; C2 = 188
        a('L_gv_l:\ns_cmp_le_u32 s66, 1\ns_cbranch_scc1 L_gv_last\ns_add_u32 s70, s70, 384')
        self.gemv_loads(W2, C2)
        a('s_waitcnt vmcnt(18)\nL_gv_last:\ns_waitcnt vmcnt(21)')
        q = T + 8; e = 216
        for i in range(12):
            for b in range(2):
                src = C + 6 * b + i // 2
                a(f'v_and_b32 v{S+2*i+b}, 0xffff0000, v{src}' if i & 1 else f'v_lshlrev_b32 v{S+2*i+b}, 16, v{src}')
        for r in range(24): a(f'v_mul_f32 v{e+r}, {f2u(-LOG2E):#x}, v{S+r}')
        for r in range(24): a(f'v_exp_f32 v{e+r}, v{e+r}')
        for r in range(24): a(f'v_add_f32 v{e+r}, 1.0, v{e+r}')
        for r in range(24): a(f'v_rcp_f32 v{e+r}, v{e+r}')
        for r in range(24): a(f'v_mul_f32 v{S+r}, v{S+r}, v{e+r}')
        for i in range(12):
            a(f's_waitcnt vmcnt({20-i})') if i < 3 else a(f's_cbranch_scc0 L_gv_w{i}\ns_waitcnt vmcnt({20-i})\nL_gv_w{i}:')
            for d in range(4):
                w = W + 4 * i + d
                a(f'v_lshlrev_b32 v{q+2*d}, 16, v{w}\nv_and_b32 v{q+2*d+1}, 0xffff0000, v{w}')
            for d in range(4):
                a(f'v_pk_fma_f32 {vr(ACC+4*d,2)}, {vr(q+2*d,2)}, {vr(S+2*i,2)}, {vr(ACC+4*d,2)} op_sel_hi:[0,1,1]')
                a(f'v_pk_fma_f32 {vr(ACC+4*d+2,2)}, {vr(q+2*d,2)}, {vr(S+2*i,2)}, {vr(ACC+4*d+2,2)} op_sel:[1,0,0]')
        a('s_cmp_le_u32 s66, 1\ns_cbranch_scc1 L_gv_done\ns_sub_u32 s66, s66, 1\ns_waitcnt vmcnt(0)')
        for r in range(48): a(f'v_mov_b32 v{W+r}, v{W2+r}')
        for r in range(12): a(f'v_mov_b32 v{C+r}, v{C2+r}')
        a('s_branch L_gv_l\nL_gv_done:')
        self.stamp(27)
        for v in range(8): a(f'v_permlane32_swap_b32 v{ACC+v}, v{ACC+v+8}')
        for v in range(8): a(f'v_add_f32 v{ACC+v}, v{ACC+v}, v{ACC+v+8}')
        a('s_nop 1')
        for v in range(4): a(f'v_permlane16_swap_b32 v{ACC+v}, v{ACC+v+4}')
        for v in range(4): a(f'v_add_f32 v{ACC+v}, v{ACC+v}, v{ACC+v+4}')
        a('s_nop 1')
        for v in range(4): a(f'v_add_f32_dpp v{ACC+4+v}, v{ACC+v}, v{ACC+v} row_ror:8 row_mask:0xf bank_mask:0xf')
        RED = XL
        a(f's_lshl_b32 s81, s3, 9\ns_add_u32 s81, s81, s79\nv_and_b32 v{T}, 7, v1\nv_lshlrev_b32 v{T}, 6, v{T}\nv_lshrrev_b32 v{T+1}, 4, v1\nv_lshl_add_u32 v{T}, v{T+1}, 4, v{T}\nv_add_u32 v{T}, s81, v{T}')
        a(f'v_mov_b32 v{T+4}, s80\nv_mov_b32 v{T+5}, 1\nv_mov_b32 v{T+6}, 0\nds_write_b128 v{T}, {vr(ACC+4,4)}')
        self.lds_arrive(T + 4, T + 5)
        a('s_and_b32 s75, s3, 3\ns_cmp_lg_u32 s75, 3\ns_cbranch_scc1 L_gv_ret')
        self.lds_wait4(T + 4, T)
        a(f's_lshl_b32 s81, s71, 11\ns_add_u32 s81, s81, s79\nv_lshl_add_u32 v{T}, v1, 3, s81')
        for w in range(4): a(f'ds_read_b64 {vr(ACC+2*w,2)}, v{T} offset:{512*w}')
        a(f'v_lshlrev_b32 v{T}, 2, v1\ns_add_u32 s78, s78, s76\ns_waitcnt lgkmcnt(0)')
        a(f'v_pk_add_f32 {vr(ACC,2)}, {vr(ACC,2)}, {vr(ACC+2,2)}\nv_pk_add_f32 {vr(ACC+4,2)}, {vr(ACC+4,2)}, {vr(ACC+6,2)}\nv_pk_add_f32 {vr(ACC,2)}, {vr(ACC,2)}, {vr(ACC+4,2)}')
        a(f'buffer_store_dword v{ACC}, v{T}, s[12:15], s76 offen sc1\nbuffer_store_dword v{ACC+1}, v{T}, s[12:15], s78 offen sc1')
        if self.flags:
            a('s_call_b64 s[68:69], L_cready')
            a(f's_mov_b64 exec, 15\nbuffer_store_dword v{T+5}, v{T}, s[12:15], s77 offen sc1\ns_mov_b64 exec, -1')
        a('L_gv_ret:\ns_setpc_b64 s[86:87]')
    def ln(self):
        a = self.a; X = self.LX; F = 32
        a('s_waitcnt vmcnt(0)')
        for i in range(9):
            for d in range(4):
                a(f'v_lshlrev_b32 v{F+8*i+2*d}, 16, v{X+4*i+d}\nv_and_b32 v{F+8*i+2*d+1}, 0xffff0000, v{X+4*i+d}')
        def rowsum(v, t):
            for r in (8, 4, 2, 1):
                a(f's_nop 1\nv_add_f32_dpp v{t}, v{v}, v{v} row_ror:{r} row_mask:0xf bank_mask:0xf')
                v, t = t, v
            return v
        a0, a1, a2, a3 = 180, 181, 182, 183
        a(f'v_pk_add_f32 {vr(a0,2)}, {vr(F,2)}, {vr(F+2,2)}')
        for e in range(4, 72, 2): a(f'v_pk_add_f32 {vr(a0,2)}, {vr(a0,2)}, {vr(F+e,2)}')
        a(f'v_add_f32 v{a0}, v{a0}, v{a1}')
        v = rowsum(a0, a1)
        a(f'v_mul_f32 v{a0}, {f2u(-1.0/1152):#x}, v{v}')
        for e in range(0, 72, 2): a(f'v_pk_add_f32 {vr(F+e,2)}, {vr(F+e,2)}, {vr(a0,2)} op_sel_hi:[1,0]')
        a(f'v_pk_mul_f32 {vr(a2,2)}, {vr(F,2)}, {vr(F,2)}')
        for e in range(2, 72, 2): a(f'v_pk_fma_f32 {vr(a2,2)}, {vr(F+e,2)}, {vr(F+e,2)}, {vr(a2,2)}')
        a(f'v_add_f32 v{a1}, v{a2}, v{a3}')
        v = rowsum(a1, a2)
        a(f'v_mov_b32 v{a0}, {f2u(1e-5):#x}\nv_fmac_f32 v{a0}, {f2u(1.0/1152):#x}, v{v}\nv_rsq_f32 v{a0}, v{a0}\ns_nop 0')
        for e in range(0, 72, 2): a(f'v_pk_mul_f32 {vr(F+e,2)}, {vr(F+e,2)}, {vr(a0,2)} op_sel_hi:[1,0]')
        self.stamp(15)
        a('s_lshr_b32 s80, s10, 7\ns_lshr_b32 s81, s10, 6\ns_bfe_u32 s75, s10, 0x10001\ns_cmp_eq_u32 s80, 1\ns_cselect_b32 s81, s75, s81')
        self.lin('s76', [('s80', 2 * 9216), ('s81', 9216)], WS_MODP)
        M = 184
        a(f'v_lshlrev_b32 v{a0}, 4, v0\nv_cmp_gt_u32 vcc, 64, v0\nv_mov_b32 v{a1}, 0x7fffffff\ns_nop 0\nv_cndmask_b32 v{a1}, v{a1}, v{a0}, vcc')
        if self.flags:
            a('s_cmp_lg_u32 s3, 0\ns_cbranch_scc1 L_ln_w\ns_call_b64 s[68:69], L_cready\ns_mul_i32 s82, s80, 108')
            a(f's_cmp_eq_u32 s80, 1\ns_cselect_b32 s83, 36, 54\ns_cselect_b32 s84, 0, {54*FS}')
            self.flag_lanes(14, 160, [('s82', 's83')]); a('s_call_b64 s[68:69], L_cpoll')
            a(f'v_add_u32 v14, s84, v14\ns_call_b64 s[68:69], L_cpoll\nv_mov_b32 v14, {CX+20}\nv_mov_b32 v{a2}, 4')
            self.lds_arrive(14, a2)
            a(f'L_ln_w:\nv_mov_b32 v14, {CX+20}')
            self.lds_wait4(14, a2)
        self.stamp(14)
        for sp in range(3):
            if sp == 1: a(f's_lshl_b32 s75, s80, 30\nv_or_b32 v{a1}, s75, v{a1}\nv_or_b32 v{a3}, s75, v{a0}');
            for k in range(3):
                a(f's_add_u32 s75, s76, {sp*4*9216 + k*4096}\nbuffer_load_dwordx4 {vr(M+12*sp+4*k,4)}, v{a1 if k == 2 else (a3 if sp else a0)}, s[12:15], s75 offen sc1')
        TAB = XL + 8192
        a(f'v_add_u32 v{a2}, {TAB}, v{a0}\nv_mov_b32 v14, {CX+16}')
        a(f's_and_b32 s75, s10, 63\ns_mul_i32 s76, s75, {16*RP}\ns_mul_i32 s75, s81, {1056*RP}\ns_add_u32 s75, s75, {WS_H}')
        a(f's_cmp_eq_u32 s80, 1\ns_cselect_b32 s75, {WS_HT}, s75\ns_movk_i32 s77, 256\ns_cselect_b32 s77, 4096, s77\ns_add_u32 s76, s76, s75')
        a('s_cmp_eq_u32 s80, 0\ns_cbranch_scc1 L_ln_rm\nv_and_b32 v176, 0xf0, v0\nv_lshl_add_u32 v176, v177, 8, v176\nL_ln_rm:')
        a('s_waitcnt vmcnt(0)')
        for r in range(0, 12, 2): a(f'v_pk_add_f32 {vr(M+r,2)}, {vr(M+r,2)}, {vr(M+12+r,2)}')
        for r in range(0, 12, 2): a(f'v_pk_add_f32 {vr(M+r,2)}, {vr(M+r,2)}, {vr(M+24+r,2)}')
        for k in range(2): a(f'ds_write_b128 v{a2}, {vr(M+4*k,4)} offset:{k*4096}')
        a(f's_cmp_lg_u32 s3, 0\ns_cbranch_scc1 L_tab2\nds_write_b128 v{a2}, {vr(M+8,4)} offset:8192\nL_tab2:')
        self.lds_arrive(14, self.VONE)
        a(f'v_lshlrev_b32 v{a2}, 5, v177\nv_add_u32 v{a2}, {TAB}, v{a2}')
        self.lds_wait4(14, a3)
        B = [104, 184]
        def rd(i0, p):
            for i in range(i0, i0 + 2):
                if i < 9:
                    k = i - i0
                    for h in range(2):
                        a(f'ds_read_b128 {vr(B[p]+16*k+4*h,4)}, v{a2} offset:{i*512+h*16}\nds_read_b128 {vr(B[p]+16*k+8+4*h,4)}, v{a2} offset:{4608+i*512+h*16}')
        rd(0, 0)
        for n, i0 in enumerate(range(0, 9, 2)):
            p = n & 1
            rd(i0 + 2, p ^ 1)
            left = 4 * max(0, min(9, i0 + 4) - (i0 + 2))
            a(f's_waitcnt lgkmcnt({left})')
            for i in range(i0, min(9, i0 + 2)):
                sh = B[p] + 16 * (i - i0); sc = sh + 8
                for e in range(0, 8, 2): a(f'v_pk_add_f32 {vr(sh+e,2)}, {vr(sh+e,2)}, {vr(F+8*i+e,2)}')
                for e in range(0, 8, 2): a(f'v_pk_fma_f32 {vr(sh+e,2)}, {vr(F+8*i+e,2)}, {vr(sc+e,2)}, {vr(sh+e,2)}')
                for d in range(4): a(f'v_cvt_pk_bf16_f32 v{X+4*i+d}, v{sh+2*d}, v{sh+2*d+1}')
                a(f'buffer_store_dwordx4 {vr(X+4*i,4)}, v176, s[12:15], s76 offen sc1\ns_add_u32 s76, s76, s77')
        self.sig_index('LN')
        self.signal_now()

    def idx_main(self):
        a = self.a
        a('s_and_b32 s92, s2, 7\ns_lshr_b32 s93, s2, 3\ns_lshr_b32 s60, s92, 2\ns_and_b32 s92, s92, 3\ns_mul_i32 s92, s92, 25\ns_add_u32 s92, s92, s93')
        self.sdiv('s62', 's92', 5, 's61')
        a('s_sub_u32 s93, s92, 55\ns_lshr_b32 s70, s93, 2\ns_and_b32 s71, s93, 3\ns_add_u32 s71, s71, 5')
        a('s_cmp_ge_u32 s92, 55\ns_cselect_b32 s62, s70, s62\ns_cselect_b32 s61, s71, s61')
        self.set_bij('img')
    def idx_u(self):
        a = self.a
        self.sdiv('s70', 's92', 36, 's71'); self.sdiv('s62', 's71', 3, 's61')
        a('s_mul_i32 s70, s70, 3\ns_add_u32 s61, s61, s70\ns_mov_b32 s60, 0\ns_lshl_b32 s65, s61, 8')
    AUXOPS = ['end', 'G', 'T', 'Q2', 'VT', 'ST', 'Y', 'AT', 'OT']
    AUXPROG = [(0, 'T Q2 Y OT'), (18, 'T VT ST AT'), (36, 'T G ST Y'), (52, 'T G Y'), (54, '')]
    SB = 64; SA = [212, 228]; SBASE = [2, 5]
    def idx_aux(self, t):
        a = self.a
        if t in ('T', 'Q2', 'OT'): a('s_mov_b32 s61, s9')
        elif t in ('VT', 'AT'): a('s_sub_u32 s61, s9, 18')
        elif t == 'ST': a('s_sub_u32 s70, s9, 18'); self.sdiv('s60', 's70', 17, 's61')
        elif t == 'Y': a('s_cmp_ge_u32 s9, 36\ns_cselect_b32 s60, 1, 0\ns_mul_i32 s70, s60, 36\ns_sub_u32 s61, s9, s70')
        a('s_lshl_b32 s65, s61, 7')
    def sk_loader(self, t):
        a = self.a; L = self.LV; tm = L['t']
        def wgt(name, sreg, const=0):
            a(f's_add_u32 s67, {sreg}, {const}\ns_sub_u32 s66, {SZ[name]}, s67'); self.srd(16, name, 's67', 's66')
        def poll(r): self.flag_lanes(L['vF'], tm, r); a('s_call_b64 s[68:69], L_lpoll')
        lay, pitch, n = 'T', RP, 18
        if t == 'T': wgt('wqkv_txt', 's65'); pitch = 6912; dep = [(F_LN + 128, 4)]
        elif t == 'Q2':
            a(f's_mul_i32 s70, s61, {64*6912}'); wgt('wqkv_img', 's70', 2304); lay, pitch = 'K', 6912; dep = [(F_T, 18)]
        elif t == 'VT': wgt('wo_img', 's65'); dep = [(F_T + 36, 18)]
        elif t == 'AT': wgt('wqkv_img', 's65', 4608); pitch = 6912; dep = [(F_Y, 36)]
        elif t == 'OT': wgt('wo_txt', 's65'); a(f's_add_u32 s70, s61, {F_GG+18}'); dep = [(F_AT, 18), ('s70', 1)]
        elif t == 'ST':
            if self.flags:
                self.lin('s70', [('s60', 64), ('s61', 4)], F_LN)
                a(f's_mov_b32 s71, 4\ns_cmp_eq_u32 s61, 16\ns_cselect_b32 s70, {F_T+18}, s70\ns_cselect_b32 s71, 18, s71'); poll([('s70', 's71')])
            self.lin('s67', [('s60', 1056 * RP), ('s61', 64 * RP)], WS_H)
            a(f's_mov_b32 s66, {64*RP}\ns_cmp_eq_u32 s61, 16\ns_cselect_b32 s70, {WS_K - WS_H}, 0\ns_cselect_b32 s66, {32*RP}, s66\ns_mov_b32 s71, {F_Q2}\ns_cselect_b32 s71, {F_T}, s71\ns_add_u32 s67, s67, s70')
            self.srd(16, 'ws', 's67', 's66'); lay = 'K'; dep = [('s71', 18)]
        elif t == 'Y':
            if self.flags:
                self.lin('s70', [('s60', 64)], F_LN); poll([('s70', 64)])
                a(f's_add_u32 s70, s61, {F_T+36}'); poll([('s70', 1)])
            self.lin('s67', [('s60', 1056 * RP), ('s65', 1)], WS_H); self.srd(16, 'ws', 's67', 1056 * RP)
            self.lin('s71', [('s60', 17)], F_PT); n = 17; dep = [('s71', 17)]
        v = L['vA']
        a(f's_sub_u32 s84, s3, 4\ns_mov_b32 s76, {pitch}\ns_mul_i32 s80, s84, {2*PS}\ns_lshl_b32 s84, s84, 4\nv_and_b32 v{tm}, 3, v1\nv_lshlrev_b32 v{tm}, 4, v{tm}')
        if lay == 'T':
            a(f'v_lshrrev_b32 v{tm+1}, 5, v1\nv_bfe_u32 v{tm+2}, v1, 2, 2\nv_lshl_add_u32 v{tm+1}, v{tm+1}, 2, v{tm+2}\nv_bfe_u32 v{tm+2}, v1, 4, 1')
        else:
            a(f'v_bfe_u32 v{tm+1}, v1, 2, 3\nv_lshrrev_b32 v{tm+2}, 5, v1')
        a(f'v_lshl_add_u32 v{tm}, v{tm+2}, 6, v{tm}\nv_add_u32 v{tm+1}, s84, v{tm+1}\nv_mad_u32_u24 v{v}, v{tm+1}, s76, v{tm}\nv_add_u32 v{v+1}, {8*pitch - PS}, v{v}')
        a(f's_mov_b32 s78, {64*pitch if lay == "T" else 128}\ns_mov_b32 s83, {n}\ns_call_b64 s[86:87], {"L_panel_nt" if t in ("T", "OT") else "L_panel"}')
        if self.flags: self.w4(lambda: poll(dep))
        a('s_waitcnt vmcnt(0)\ns_barrier\ns_barrier')
    def panel_subs(self):
        a = self.a; v = self.LV['vA']
        for lab, fl in (('L_panel', 'sc1'), ('L_panel_nt', 'nt')):
            a(f'{lab}:\ns_mov_b32 s81, 0\n{lab}_l:\ns_mov_b32 m0, s80\ns_add_u32 s80, s80, {8*PS}')
            a(f'buffer_load_dwordx4 v{v}, s[16:19], s81 offen {fl} lds\nbuffer_load_dwordx4 v{v+1}, s[16:19], s81 offen offset:{PS} {fl} lds')
            a(f's_add_u32 s81, s81, s78\ns_sub_u32 s83, s83, 1\ns_cmp_lg_u32 s83, 0\ns_cbranch_scc1 {lab}_l\ns_setpc_b64 s[86:87]')
    def sk_static(self):
        a = self.a; T, K = self.SBASE; x, y = 208, 209
        a(f'v_lshrrev_b32 v{x}, 4, v1\nv_mul_u32_u24 v{T}, {PS}, v{x}\nv_bfe_u32 v{y}, v1, 2, 2\nv_lshl_add_u32 v{T}, v{y}, 6, v{T}\nv_and_b32 v{y}, 3, v1\nv_lshl_add_u32 v{T}, v{y}, 3, v{T}')
        a(f'v_bfe_u32 v{y}, v1, 3, 1\nv_mul_u32_u24 v{K}, {PS}, v{y}\nv_and_b32 v{y}, 7, v1\nv_lshl_add_u32 v{K}, v{y}, 6, v{K}\nv_lshl_add_u32 v{K}, v{x}, 4, v{K}')
        for b in (T, K):
            for k in (1, 2): a(f'v_add_u32 v{b+k}, {k*48*PS}, v{b}')
        a(f's_mul_i32 s92, s3, {36*1024}\nv_lshl_add_u32 v246, v1, 4, s92\nv_bfe_u32 v{y}, v1, 4, 1\nv_lshlrev_b32 v{y}, 9, v{y}\nv_lshrrev_b32 v{x}, 5, v1\nv_lshl_add_u32 v{y}, v{x}, 8, v{y}')
        a(f'v_and_b32 v{x}, 15, v1\nv_lshl_add_u32 v{y}, v{x}, 4, v{y}\nv_add_u32 v247, s92, v{y}')
        a(f'v_and_b32 v{x}, 12, v1\nv_bfe_u32 v{y}, v1, 4, 1\ns_lshl_b32 s92, s3, 4\nv_add3_u32 v{x}, v{x}, v{y}, s92\nv_mul_u32_u24 v{x}, {RP}, v{x}')
        a(f'v_and_b32 v{y}, 127, v{self.VCOL}\nv_add_u32 v248, v{x}, v{y}\nv_add_u32 v249, {2*RP}, v248')
    def sk_sub(self, lab, lay, fold=False):
        a = self.a; SB = self.SB; nk = 33 if fold else 36
        base = self.SBASE[0 if lay == 'T' else 1]
        def rd(kk):
            st = self.SA[kk & 1]; b = base + kk // 12; k = kk % 12
            if lay == 'K': return [f'ds_read_b128 {vr(st+4*t,4)}, v{b} offset:{(8*(k>>1)+2*t)*PS + (k&1)*512}' for t in range(4)]
            return [f'ds_read_b64_tr_b16 {vr(st+4*t+2*h,2)}, v{b} offset:{4*k*PS + h*512 + (t>>1)*256 + (t&1)*32}' for t in range(4) for h in range(2)]
        a(f'{lab}:')
        for kk in range(nk):
            if kk % 4 == 0: a(f's_mov_b32 s92, {kk*1024}')
            a(f'buffer_load_dwordx4 {vr(SB+4*kk,4)}, v246, s[20:23], s92 offen offset:{(kk%4)*1024} sc1')
        if fold: self.sk_factors(nk)
        seq = rd(0)
        for kk in range(nk):
            st = self.SA[kk & 1]
            acc = 16 if not fold else (48, 196)[(kk >> 1) & 1]
            zero = kk == 0 if not fold else kk % 2 == 0
            nxt = rd(kk + 1) if kk + 1 < nk else []
            ex = []
            if fold and kk % 2 == 1 and kk > 1 or fold and kk == nk - 1:
                r = (kk >> 1) - 1; pv = (48, 196)[r & 1]
                ex = [(f'v_mul_f32 v{16+e}, v{pv+e}, v{32+r}' if r == 0 else f'v_fmac_f32 v{16+e}, v{pv+e}, v{32+r}') for e in range(16)]
                if kk == nk - 1: ex = ['s_nop 7'] + ex
            seq.append(f's_waitcnt vmcnt({nk-1-kk})')
            for t in range(4):
                d = vr(acc + 4 * t, 4)
                seq.append(f'v_mfma_f32_16x16x32_bf16 {d}, {vr(st+4*t,4)}, {vr(SB+4*kk,4)}, {"0" if zero else d}')
                seq += nxt[t * len(nxt) // 4:(t + 1) * len(nxt) // 4]
            seq += ex
        self.emit_waits(seq, [])
        a('s_nop 7\ns_setpc_b64 s[86:87]')
    def sk_factors(self, nk):
        a = self.a; st = 208; m = 250
        dst = lambda r: st + 2 * r if r < 16 else 252
        a(f'v_and_b32 v{m}, 15, v1\ns_lshl_b32 s92, s3, 4\nv_add_lshl_u32 v{m}, v{m}, s92, 3')
        for r in range(17): a(f's_mov_b32 s92, {r*1056*8}\nbuffer_load_dwordx2 {vr(dst(r),2)}, v{m}, s[28:31], s92 offen sc1')
        a(f's_waitcnt vmcnt(0)\nv_max3_f32 v{m}, v{dst(0)}, v{dst(1)}, v{dst(2)}')
        for r in range(3, 17, 2): a(f'v_max3_f32 v{m}, v{m}, v{dst(r)}, v{dst(r+1)}')
        for r in range(17): a(f'v_sub_f32 v{dst(r)}, v{dst(r)}, v{m}')
        for r in range(17): a(f'v_exp_f32 v{dst(r)}, v{dst(r)}')
        a(f'v_mul_f32 v{m+1}, v{dst(0)}, v{dst(0)+1}')
        for r in range(1, 17): a(f'v_fmac_f32 v{m+1}, v{dst(r)}, v{dst(r)+1}')
        a(f'v_rcp_f32 v{m+1}, v{m+1}\ns_nop 0')
        for r in range(17): a(f'v_mul_f32 v{32+r if r < 16 else m}, v{dst(r)}, v{m+1}')
    def sk_pack(self, P=64):
        for t in range(4): self.a(f'v_cvt_pk_bf16_f32 v{P+2*t}, v{16+4*t}, v{17+4*t}\nv_cvt_pk_bf16_f32 v{P+2*t+1}, v{18+4*t}, v{19+4*t}')
    def sk_epi_subs(self):
        a = self.a
        a('L_sk_ft:'); self.sk_pack(); a('s_nop 1')
        for r in (0, 4):
            for d in range(2): a(f'v_permlane16_swap_b32 v{64+r+d}, v{66+r+d}')
        for p in range(2): a(f'buffer_store_dwordx4 {vr(64+4*p,4)}, v247, s[12:15], s70 offen offset:{1024*p} sc1')
        a('s_setpc_b64 s[68:69]')
        a('L_sk_row:'); self.sk_pack(72); self.xpose(72, 80, nj=1)
        a(f's_lshr_b32 s92, s3, 1\ns_mul_i32 s92, s92, {1024*RP}\ns_add_u32 s92, s92, s71')
        for p in range(2): a(f'buffer_store_dwordx4 {vr(72+4*p,4)}, v{248+p}, s[12:15], s92 offen sc1')
        a('s_setpc_b64 s[68:69]')
    def sk_compute(self, t):
        a = self.a
        half = t in ('ST', 'Y')
        lab = a.label('sk')
        src = {'T': WS_HT, 'Q2': WS_QT, 'VT': WS_VT, 'ST': WS_Q2, 'Y': WS_PT, 'AT': WS_Y, 'OT': WS_AT}[t]
        if half:
            self.lin('s67', [('s60', FTS // 2)], src)
            if t == 'ST': a(f's_cmp_eq_u32 s61, 16\ns_cselect_b32 s70, {WS_Q2 - WS_QT}, 0\ns_sub_u32 s67, s67, s70')
            self.srd(20, 'ws', 's67', FTS // 2)
            self.lin('s67', [('s60', 17 * 1056 * 8), ('s61', 1056 * 8 if t == 'ST' else 0)], WS_ST + 1024 * 8); self.srd(28, 'ws', 's67', 0x100000)
        else: self.srd(20, 'ws', src, FTS)
        ft = lambda base, bmul=0: self.lin('s70', [('s61', 2048), ('s60', bmul)], base)
        if t == 'OT':
            a(f's_add_u32 s70, s65, {SZ["x_img"]}\ns_sub_u32 s71, {64*RP}, s65')
            self.srd(24, 'out', 's70', 's71'); self.srd(32, 'x_txt', 's65', 's71')
            for p in range(2): a(f'buffer_load_dwordx4 {vr(48+4*p,4)}, v{248+p}, s[32:35], 0 offen')
            a('s_waitcnt vmcnt(0)'); self.xpose(48, 64, inverse=True, nj=1)
        a('s_barrier')
        self.stamp(16)
        if half: a(f's_cmp_ge_u32 s3, 2\ns_cbranch_scc1 {lab}_s')
        if t == 'AT':
            self.lin('s70', [('s3', 18 * 4096), ('s61', 4096)], WS_Z); a('v_lshlrev_b32 v250, 4, v1')
            for it in range(4): a(f'buffer_load_dwordx4 {vr(32+4*it,4)}, v250, s[12:15], s70 offen offset:{1024*it} sc1')
        if t == 'OT':
            a('s_lshr_b32 s71, s3, 1'); self.lin('s70', [('s71', 4608), ('s61', 256)], WS_GATE + 2 * 4608); a('v_and_b32 v250, 48, v1')
            for it in range(4): a(f'buffer_load_dwordx4 {vr(32+4*it,4)}, v250, s[12:15], s70 offen offset:{64*it} sc1')
        a(f's_call_b64 s[86:87], {"L_sky" if t == "Y" else "L_skk" if t in ("Q2", "ST") else "L_skt"}\ns_barrier')
        self.stamp(17)
        if t == 'T':
            a(f's_cmp_ge_u32 s61, 18\ns_cbranch_scc1 {lab}_k'); ft(WS_QT); a(f's_call_b64 s[68:69], L_sk_ft\ns_branch {lab}_e\n{lab}_k:')
            a(f's_add_u32 s71, s65, {WS_K + 1024*RP - 2304}\ns_cmp_lt_u32 s61, 36\ns_cbranch_scc1 {lab}_r')
            ft(WS_VT - 36 * 2048); a(f's_call_b64 s[68:69], L_sk_ft\ns_add_u32 s71, s65, {WS_H + 1024*RP - 4608}')
            a(f'{lab}_r:\ns_call_b64 s[68:69], L_sk_row')
        elif t == 'Q2': ft(WS_Q2); a('s_call_b64 s[68:69], L_sk_ft')
        elif t == 'VT': a(f's_add_u32 s71, s65, {WS_V + 1024*RP}\ns_call_b64 s[68:69], L_sk_row')
        elif t == 'AT':
            for e in range(16): a(f'v_add_f32 v{16+e}, v{16+e}, v{32+e}')
            ft(WS_AT); a('s_call_b64 s[68:69], L_sk_ft')
        elif t == 'Y':
            ft(WS_Y, FTS // 2); a('s_call_b64 s[68:69], L_sk_ft')
            for e in range(16): a(f'v_mul_f32 v{48+e}, v{48+e}, v250')
            self.lin('s70', [('s60', 36 * 4096), ('s3', 18 * 4096), ('s61', 4096)], WS_Z); a('v_lshlrev_b32 v250, 4, v1')
            for it in range(4): a(f'buffer_store_dwordx4 {vr(48+4*it,4)}, v250, s[12:15], s70 offen offset:{1024*it} sc1')
        elif t == 'ST':
            a(f's_cmp_lg_u32 s61, 16\ns_cbranch_scc1 {lab}_m')
            for e in range(8, 16): a(f'v_mov_b32 v{16+e}, 0xff800000')
            a(f'{lab}_m:\nv_max_f32 v32, v16, v17')
            for e in range(2, 16, 2): a(f'v_max3_f32 v32, v32, v{16+e}, v{17+e}')
            self.allred(32, 34, 'v_max_f32', 1)
            a(f's_mov_b32 s92, {f2u(LOG2E * D ** -0.5):#x}\nv_mul_f32 v32, s92, v32')
            for e in range(16): a(f'v_fma_f32 v{16+e}, v{16+e}, s92, -v32')
            for e in range(16): a(f'v_exp_f32 v{16+e}, v{16+e}')
            ft(WS_PT, FTS // 2); a('s_call_b64 s[68:69], L_sk_ft\nv_add_f32 v33, v16, v17')
            for e in range(2, 16): a(f'v_add_f32 v33, v33, v{16+e}')
            self.allred(33, 34, 'v_add_f32', 1)
            a('s_lshl_b32 s92, s3, 7\nv_lshlrev_b32 v34, 3, v1\ns_mov_b64 exec, 0xffff\nbuffer_store_dwordx2 v[32:33], v34, s[28:31], s92 offen sc1\ns_mov_b64 exec, -1')
        elif t == 'OT':
            for it in range(4):
                for d in range(2): a(f'v_lshlrev_b32 v{64+2*d}, 16, v{48+2*it+d}\nv_and_b32 v{65+2*d}, 0xffff0000, v{48+2*it+d}')
                for r in range(4): a(f'v_fmac_f32 v{64+r}, v{16+4*it+r}, v{32+4*it+r}')
                for d in range(2): a(f'v_cvt_pk_bf16_f32 v{48+2*it+d}, v{64+2*d}, v{65+2*d}')
            self.xpose(48, 64, nj=1)
            for p in range(2): a(f'buffer_store_dwordx4 {vr(48+4*p,4)}, v{248+p}, s[24:27], 0 offen sc1')
        if half: a(f's_branch {lab}_e\n{lab}_s:\ns_barrier')
        a(f'{lab}_e:')
        if t != 'OT': self.sig_index(t); self.signal_now()
    def aux_interp(self, side, only):
        a = self.a; p = f'L_{side}x'
        a('s_mov_b32 s8, 0\ns_mov_b32 s60, 0')
        if side == 'c': self.sk_static()
        for lim, prog in self.AUXPROG:
            ops = [o for o in prog.split() if only is None or o in only]
            code = sum(self.AUXOPS.index(o) << (4 * k) for k, o in enumerate(ops))
            a(f's_cmp_ge_u32 s9, {lim}\ns_cselect_b32 s8, {code}, s8')
        a(f'{p}_next:\ns_and_b32 s92, s8, 15\ns_lshr_b32 s8, s8, 4')
        for k, o in enumerate(self.AUXOPS[1:], 1): a(f's_cmp_eq_u32 s92, {k}\ns_cbranch_scc1 {p}_{o}')
        a('s_branch L_fin')
        for k, o in enumerate(self.AUXOPS[1:], 1):
            a(f'{p}_{o}:')
            if o == 'G':
                a('s_sub_u32 s92, s9, 36'); self.gemv_job('gate')
                self.srd(24, 'ws', 0, 0)
                a('s_mov_b32 s83, 0\ns_call_b64 s[86:87], L_gv_ld\ns_call_b64 s[86:87], L_gv_go\ns_barrier')
            else:
                self.idx_aux(o)
                self.sk_compute(o) if side == 'c' else self.sk_loader(o)
            self.stamp(k + 3)
            a(f's_branch {p}_next')
        if side == 'c':
            self.sk_sub('L_skt', 'T'); self.sk_sub('L_skk', 'K'); self.sk_sub('L_sky', 'T', True); self.sk_epi_subs()
        else: self.panel_subs()
    def kernel(self, name, only=None):
        a = self.a
        has = lambda t: only is None or t in only
        kernel_head(a, name)
        a('s_load_dwordx8 s[36:43], s[0:1], 0\ns_load_dwordx8 s[44:51], s[0:1], 32\ns_load_dwordx8 s[52:59], s[0:1], 64')
        a('s_cmp_ge_u32 s2, 256\ns_cbranch_scc1 L_end')
        a('s_getpc_b64 s[6:7]\nL_pc:\ns_lshr_b32 s92, s2, 3\ns_lshl_b32 s92, s92, 11\nv_subrev_u32 v2, 384, v0\nv_lshl_add_u32 v3, v2, 4, s92')
        a('s_mov_b32 s4, s6\ns_mov_b32 s5, s7\ns_mov_b32 s6, L_end - L_pc\ns_mov_b32 s7, 0x20000\nv_cmp_gt_u32 vcc, 128, v2')
        a('s_cbranch_vccz L_nocpf\nbuffer_load_dwordx4 v[248:251], v3, s[4:7], 0 offen\nL_nocpf:')
        a('v_lshrrev_b32 v1, 6, v0\nv_mov_b32 v15, 0\nv_readfirstlane_b32 s3, v1\nv_and_b32 v1, 63, v0')
        a(f'v_lshlrev_b32 v2, 2, v1\nv_add_u32 v2, {CX}, v2\nds_write_b32 v2, v15\nv_mov_b32 v176, 0')
        a('s_sub_u32 s9, s2, 200\ns_sub_u32 s10, s2, 112\ns_mov_b32 s92, s10')
        self.gemv_job('img')
        a('s_cmp_ge_u32 s10, 108\ns_cselect_b32 s66, 0, s66')
        if not has('GV'): a('s_mov_b32 s66, 0')
        a(f's_and_b32 s83, s10, 127\ns_mul_i32 s83, s83, {16*RP}')
        a('s_waitcnt lgkmcnt(0)')
        self.srd(12, 'ws', 0, SZ['ws'])
        self.stamp(0)
        a('s_cmp_ge_u32 s10, 128')
        a(f's_cselect_b32 s24, s{PTR["x_txt"]}, s{PTR["x_img"]}\ns_cselect_b32 s25, s{PTR["x_txt"]+1}, s{PTR["x_img"]+1}')
        a(f's_mov_b32 s26, {SZ["x_img"]}\ns_cselect_b32 s26, {SZ["x_txt"]}, s26\ns_mov_b32 s27, 0x20000\ns_cmp_ge_u32 s10, 132\ns_cselect_b32 s26, 0, s26')
        a('s_cmp_ge_u32 s3, 4\ns_cbranch_scc1 L_loader')
        main = ['M', 'V', 'S']
        self.hooks = []
        if 'dup' in OPT: main = ['V', 'V', 'V', 'V', 'S']
        elif 'vs' in OPT: main = ['V', 'M', 'V', 'M', 'S']
        else: main = [t for t in main if has(t)]
        chain = only is None or 'dup' in OPT or 'vs' in OPT
        def uworker():
            a('s_and_b32 s92, s2, 7\ns_mul_i32 s92, s92, 14\ns_lshr_b32 s93, s2, 3\ns_add_u32 s92, s92, s93')
            a('s_cmp_lt_u32 s92, 108\ns_cselect_b32 s8, 1, 0\ns_cmp_lt_u32 s2, 112\ns_cselect_b32 s8, s8, 0')
            if not has('U'): a('s_mov_b32 s8, 0')
        def spare(): a('s_cmp_ge_u32 s92, 99\ns_cbranch_scc1 L_fin')
        a('s_cmp_ge_u32 s10, 132\ns_cbranch_scc1 L_c_nogv\ns_call_b64 s[86:87], L_gv_ld\nL_c_nogv:')
        self.stamp(1)
        a('s_barrier')
        self.cp_static()
        a('s_cmp_ge_u32 s10, 132\ns_cbranch_scc1 L_c_noln\ns_call_b64 s[86:87], L_gv_go')
        self.stamp(2)
        if has('LN'): self.ln()
        a('L_c_noln:')
        self.stamp(3)
        body = self.a
        subs = Asm(); subs.uid = 10000; self.a = subs
        self.gemv_subs(); self.ready_sub('L_cready', 128); self.poll_sub('L_cpoll', 14, 160)
        self.gemm_sub('L_tk', 'T'); self.gemm_sub('L_qk', 'T', True); self.hook_sub(); self.store_sub(); self.gemm_sub('L_kk', 'K'); self.softmax_sub(); self.pv_sub()
        for h in self.hooks: subs(h)
        lsubs = Asm(); lsubs.uid = 20000; self.a = lsubs
        self.ld_subs()
        self.a = a = body
        a('s_cmp_ge_u32 s2, 200\ns_cbranch_scc1 L_caux')
        uworker()
        self.srd(24, 'ws', 0, 0); self.srd(28, 'ws', 0, 0)
        a('s_cmp_eq_u32 s8, 0\ns_cbranch_scc1 L_c_nou')
        self.idx_u(); self.row_offsets(self.VO, 216, None); self.ops(9, 9 - PFAT); self.cp_task('U', False, True, chain and main[0])
        self.stamp(4)
        if chain:
            self.idx_main(); a(f's_call_b64 s[86:87], {"L_qk" if main[0] == "M" else "L_tk"}_c\ns_branch L_c_k')
        a('L_c_nou:')
        self.idx_main(); spare(); self.row_offsets(self.VO, 216, None)
        for k, t in enumerate(main):
            self.cp_task(t, False, k == 0 or not chain, chain and k + 1 < len(main) and main[k + 1], cont=chain and k > 0 and t != 'S' and main[k - 1] != 'S', join='L_c_k' if k == 0 and chain else None)
            self.stamp(5 + k)
        if has('PV'): self.cp_task('PV', False, True, False)
        a('s_branch L_fin')
        a.lines += subs.lines
        a('L_caux:\ns_barrier'); self.aux_interp('c', only)
        a('L_loader:')
        if self.flags:
            assert NFLAG * FS == 12 * 16384
            a('s_cmp_lt_u32 s2, 244\ns_cbranch_scc1 L_noinit\ns_sub_u32 s84, s2, 244\ns_lshl_b32 s84, s84, 14')
            a(f'v_mov_b32 v16, 0\nv_mov_b32 v17, 0\nv_mov_b32 v18, 0\nv_mov_b32 v19, 0\nv_lshlrev_b32 v20, 4, v0\nv_subrev_u32 v20, 4096, v20')
            for k in range(4): a(f'buffer_store_dwordx4 v[16:19], v20, s[12:15], s84 offen sc1\ns_add_u32 s84, s84, 4096')
            a('L_noinit:')
        self.ld_static()
        a('s_cmp_lt_u32 s2, 244\ns_cbranch_scc1 L_noinit1\ns_waitcnt vmcnt(0)\nL_noinit1:\ns_barrier')
        if self.flags:
            a('s_cmp_lt_u32 s2, 244\ns_cbranch_scc1 L_noinit2\ns_cmp_lg_u32 s3, 4\ns_cbranch_scc1 L_noinit2')
            a(f'v_mov_b32 v20, 0\nv_mov_b32 v21, 1\ns_mov_b64 exec, 1\nglobal_atomic_add v20, v21, {sr(PTR["dbg"],2)} sc1\ns_mov_b64 exec, -1\nL_noinit2:')
        a('s_cmp_lt_u32 s2, 220\ns_cbranch_scc1 L_l_nogv\ns_sub_u32 s92, s2, 220')
        self.gemv_job('txt')
        if not has('GV'): a('s_mov_b32 s66, 0')
        a('s_mov_b32 s26, 0\ns_call_b64 s[86:87], L_gv_ld\ns_call_b64 s[86:87], L_gv_go')
        a('L_l_nogv:')
        self.stamp(26)
        a('s_cmp_ge_u32 s2, 200\ns_cbranch_scc1 L_laux')
        uworker()
        a('s_cmp_eq_u32 s8, 0\ns_cbranch_scc1 L_l_nou')
        self.idx_u(); self.ld_late_start('U', False, 1)
        if chain:
            self.ld_body('U', main[0], self.idx_main, True, 2); a('s_branch L_l_k')
        else: self.ld_body('U', None)
        a('L_l_nou:')
        self.idx_main(); spare()
        for k, t in enumerate(main):
            if k == 0 or not chain: self.ld_late_start(t, False, 2, ready=True)
            if k == 0: a('L_l_k:')
            self.ld_body(t, main[k + 1] if chain and k + 1 < len(main) else None, k=3 + k)
        if not main: a('L_l_k:')
        if has('PV'): self.ld_late_start('PV', False, 10); self.ld_body('PV', None)
        a('s_branch L_fin')
        a.lines += lsubs.lines
        a('L_laux:')
        if self.flags: self.w4(lambda: a('s_call_b64 s[68:69], L_lready'))
        a('s_barrier')
        self.aux_interp('l', only)
        a('L_fin:')
        self.stamp_store()
        a('L_end:\ns_endpgm')
    def prefetch_qk(self):
        if 'nopf' in OPT: return
        a = self.a
        a(f's_cmp_ge_u32 s2, 72\ns_cbranch_scc1 L_pfqk\ns_lshl_b32 s84, s2, 2\ns_add_u32 s84, s84, s3\ns_mul_i32 s84, s84, {4*6912}\ns_add_u32 s83, s84, 2304')
        self.srd(32, 'wqkv_img', 0, SZ['wqkv_img'])
        a('v_lshrrev_b32 v216, 4, v1\nv_and_b32 v217, 15, v1\nv_mul_u32_u24 v216, 6912, v216\nv_lshl_add_u32 v216, v217, 4, v216')
        for k, so in enumerate(('s83', 's84')):
            for i in range(9): a(f'buffer_load_dwordx4 {vr(64+36*k+4*i,4)}, v216, s[32:35], {so} offen offset:{i*256}')
        a('L_pfqk:')

def post(text):
    import re
    if 'nochk' in OPT:
        text = re.sub(r'  s_cbranch_vccnz L_chk_\d+_s\n', '', text).replace('L_spin:\n', 'L_spin:\n  s_setpc_b64 s[68:69]\n')
    if 'nofree' in OPT:
        text = text.replace('  s_cbranch_vccnz L_run_slow\n', '').replace('  s_cbranch_vccz L_run_go\nL_run_slow:', '  s_branch L_run_go\nL_run_slow:')
    if 'nocw' in OPT: text = text.replace('  ds_write_b32 v253, v252\n', '')
    if 'nocr' in OPT: text = text.replace('  ds_read_b32 v255, v254\n', '')
    if 'nolw' in OPT: text = text.replace('  ds_write_b32 v10, v12\n', '')
    if 'nolr' in OPT: text = text.replace('  ds_read_b32 v24, v9\n', '')
    if 'noldr' in OPT: text = text.replace('L_lprog0:\n', 'L_lprog0:\n  s_endpgm\n')
    if 'nocmp' in OPT: text = text.replace('L_cprog0:\n', 'L_cprog0:\n  s_endpgm\n')
    if 'nobar' in OPT: text = text.replace('  s_barrier\n', '')
    return text
def relabel(text, suffix):
    import re
    return re.sub(r'\b(L_\w+)', lambda m: m.group(1) + suffix, text)

def build(mode='fused', instr=False, cls=Mega):
    hdr = [l for l in open('standalone__mm_dit__diffusion.s.ref').read().split('\n')
           if l.startswith(';') and '@launch' not in l and 'Override launch' not in l and 'Harness parses' not in l]
    out = '\n'.join(hdr) + '\n'
    if mode == 'fused':
        name = 'standalone__mm_dit__diffusion_kernel'
        m = cls(instr, True); m.kernel(name)
        out += f'; @launch grid=(256,1,1) block=(512,1,1) lds={LDS}\n'
        out += '.amdgcn_target "amdgcn-amd-amdhsa--gfx950"\n.text\n' + m.a.text() + '.section .rodata,"a"\n' + kernel_desc(name, 256, 102)
        return out
    if mode.startswith('only:'):
        name = 'standalone__mm_dit__diffusion_kernel'
        m = cls(instr, False); m.kernel(name, set(mode[5:].split('+')))
        out += f'; @launch grid=(256,1,1) block=(512,1,1) lds={LDS}\n'
        out += '.amdgcn_target "amdgcn-amd-amdhsa--gfx950"\n.text\n' + m.a.text() + '.section .rodata,"a"\n' + kernel_desc(name, 256, 102)
        return out
    steps = [{'U', 'GV', 'G'}, {'LN'}, {'M', 'V', 'T'}, {'S', 'VT', 'Q2'}, {'PV', 'ST'}, {'Y'}, {'AT'}, {'OT'}]
    text = ''; desc = ''
    for k, st in enumerate(steps):
        name = f'step{k}_kernel'
        m = cls(instr, False); m.kernel(name, st)
        text += relabel(m.a.text(), f'_{k}'); desc += kernel_desc(name, 256, 102)
        out += f'; @launch kernel={name} grid=(256,1,1) block=(512,1,1) lds={LDS}\n'
    out += '.amdgcn_target "amdgcn-amd-amdhsa--gfx950"\n.text\n' + text + '.section .rodata,"a"\n' + desc
    return out

if __name__ == '__main__':
    mode = sys.argv[2] if len(sys.argv) > 2 else 'fused'
    open(sys.argv[1], 'w').write(post(build(mode, len(sys.argv) > 3)))
```

```python
import sys, struct
from asmlib import *
from gemm import Operand, emit_swz, emit_swap23

D = 1152
KA = ['x_img', 'x_txt', 'c', 'wqkv_img', 'wqkv_txt', 'wo_img', 'wo_txt', 'wmod_img', 'wmod_txt', 'out', 'dbg', 'ws']
PTR = {n: 36 + 2 * k for k, n in enumerate(KA)}
SZ = dict(x_img=4718592, x_txt=147456, c=4608, wqkv_img=7962624, wqkv_txt=7962624, wo_img=2654208, wo_txt=2654208,
          wmod_img=15925248, wmod_txt=15925248, out=4866048, dbg=256, ws=268435456)
MB = 1 << 20
RP = 2304
WS_FLAG = 0
WS_MODP = 151552
WS_GATE = WS_MODP + 3 * 4 * 9216
WS_ST = 327680
FTS = 4 * 36 * 1024
WS_HT = 655360; WS_QT = WS_HT + FTS; WS_VT = WS_QT + FTS; WS_Q2 = WS_VT + FTS; WS_PT = WS_Q2 + FTS; WS_Y = WS_PT + FTS; WS_AT = WS_Y + FTS
WS_Z = WS_AT + FTS
assert WS_Z + 4 * 18 * 4096 <= 2 * MB and WS_GATE + 12 * 4608 <= WS_ST and WS_ST + 34 * 1056 * 8 + 1024 <= WS_HT
BS = 2 * 1056 * RP
WS_H = 2 * MB; WS_Q = WS_H + BS; WS_K = WS_Q + BS; WS_V = WS_K + BS; WS_P = WS_V + BS; WS_U = WS_P + BS
USZ = 1152 * RP
WS_DBG = 64 * MB
FS = 128
F_GG = 0
F_LN = 108
F_U = 240
F_K = 348
F_V = 546
F_P = 744
F_T = 942; F_VT = 996; F_PT = 1014; F_Y = 1048; F_AT = 1084
NFLAG = 1184
assert WS_MODP == NFLAG * FS and WS_GATE == 4 * 65536
PS = 1056
NS = 5; CH = 1040; STAGE = 28 * CH; RING = NS * STAGE; XL = RING; LDS = 163840
CB = LDS - 2048
GL = XL + 13312
CX = XL + 17920
SPIN = 0x100000
LOG2E = 1.4426950408889634
def f2u(x): return struct.unpack('<I', struct.pack('<f', x))[0]

import os
OPT = set(os.environ.get('OPT', '').split(','))
LDF = os.environ.get('LDF', 'sc1')
SW = int(os.environ.get('SW', 5)); SD = int(os.environ.get('SD', 2))
DEPTH = int(os.environ.get('DEPTH', 2))
CSLEEP = '' if 'nocsleep' in OPT else 's_sleep 1\n'
LSLEEP = '' if 'nolsleep' in OPT else 's_sleep 1\n'
COLD = tuple(os.environ.get('COLD', 'U,W').split(','))
PSL = int(os.environ.get('PSL', 4))
PFAT = int(os.environ.get('PFAT', 5))
SIGW = int(os.environ.get('SIGW', 2))
ALN = f".p2align {os.environ.get('ALIGN', 6)}\n" + 's_nop 0\n' * int(os.environ.get('APAD', 0))
SKAH = int(os.environ.get('SKAH', 12))
class Mega:
    def __init__(self, instr=False, flags=True):
        self.a = Asm(); self.instr = instr; self.flags = flags

    def srd(self, srd, ptr, off, limit):
        a = self.a; p = PTR[ptr]
        a(f's_add_u32 s{srd}, s{p}, {off}\ns_addc_u32 s{srd+1}, s{p+1}, 0\ns_mov_b32 s{srd+2}, {limit}\ns_mov_b32 s{srd+3}, 0x20000')
    def sdiv(self, dst, src, c, rem=None):
        self.a(f's_mul_hi_u32 {dst}, {src}, {(1 << 32) // c + 1}')
        if rem: self.a(f's_mul_i32 {rem}, {dst}, {c}\ns_sub_u32 {rem}, {src}, {rem}')
    def lin(self, dst, terms, const=0):
        a = self.a; a(f's_mov_b32 {dst}, {const}')
        for r, c in terms: a(f's_mul_i32 s75, {r}, {c}\ns_add_u32 {dst}, {dst}, s75')
    def stamp(self, n):
        if self.instr: self.a(f's_memrealtime s[72:73]\ns_memtime s[96:97]\ns_waitcnt lgkmcnt(0)\nv_writelane_b32 v15, s72, {n}\nv_writelane_b32 v15, s96, {32+n}')
    def stamp_store(self):
        if not self.instr: return
        a = self.a
        self.stamp(31)
        a(f's_lshl_b32 s72, s2, 3\ns_add_u32 s72, s72, s3\ns_lshl_b32 s72, s72, 8\ns_add_u32 s72, s72, {WS_DBG}')
        a('v_lshlrev_b32 v14, 2, v1\nbuffer_store_dword v15, v14, s[12:15], s72 offen')
    def flag_lanes(self, vd, vt, ranges):
        a = self.a
        first = True; acc = 0
        if len(ranges) == 1:
            st, cnt = ranges[0]
            if isinstance(cnt, int): a(f'v_min_u32 v{vd}, {cnt-1}, v1')
            else: a(f's_sub_u32 s75, {cnt}, 1\nv_min_u32 v{vd}, s75, v1')
            a(f'v_add_u32 v{vd}, {st}, v{vd}\nv_lshlrev_b32 v{vd}, 7, v{vd}')
            return
        tot = sum(c for _, c in ranges)
        a(f'v_min_u32 v{vt}, {tot-1}, v1')
        for st, cnt in ranges:
            if isinstance(st, int): a(f's_mov_b32 s75, {st - acc}')
            else: a(f's_sub_u32 s75, {st}, {acc}')
            if first: a(f'v_mov_b32 v{vd}, s75')
            else: a(f'v_mov_b32 v{vt+1}, s75\nv_cmp_le_u32 vcc, {acc}, v{vt}\ns_nop 1\nv_cndmask_b32 v{vd}, v{vd}, v{vt+1}, vcc')
            first = False; acc += cnt
        a(f'v_add_lshl_u32 v{vd}, v{vd}, v{vt}, 7')
    def poll_sub(self, lab, vo, vt):
        a = self.a
        a(f'{lab}:\ns_mov_b32 s74, 0x10000\n{lab}_l:')
        a(f'buffer_load_dwordx4 {vr(vt,4)}, v{vo}, s[12:15], 0 offen sc1\ns_waitcnt vmcnt(0)')
        a(f'v_min3_u32 v{vt}, v{vt}, v{vt+1}, v{vt+2}\nv_min_u32 v{vt}, v{vt}, v{vt+3}\nv_cmp_ne_u32 vcc, 0, v{vt}')
        a(f's_cmp_eq_u64 vcc, exec\ns_cbranch_scc1 {lab}_d\ns_sub_u32 s74, s74, 1\ns_cmp_eq_u32 s74, 0\ns_cbranch_scc1 {lab}_d\ns_sleep {PSL}\ns_branch {lab}_l')
        a(f'{lab}_d:\ns_setpc_b64 s[68:69]')
    def ready_sub(self, lab, vt):
        a = self.a
        a(f'{lab}:\ns_mov_b32 s74, 0x10000\nv_mov_b32 v{vt+1}, 0\n{lab}_l:')
        a(f'global_load_dword v{vt}, v{vt+1}, {sr(PTR["dbg"],2)} sc1\ns_waitcnt vmcnt(0)\nv_cmp_le_u32 vcc, 4, v{vt}')
        a(f's_cbranch_vccnz {lab}_d\ns_sub_u32 s74, s74, 1\ns_cmp_eq_u32 s74, 0\ns_cbranch_scc1 {lab}_d\ns_sleep {PSL}\ns_branch {lab}_l')
        a(f'{lab}_d:\ns_setpc_b64 s[68:69]')

    def ld_params(self, t):
        a = self.a
        def ws(srd, off, lim=None): self.srd(srd, 'ws', off, lim if lim is not None else 0x4000000)
        def wsl(srd, base, sreg, lim=None):
            a(f's_add_u32 s67, {sreg}, {base}'); ws(srd, 's67', lim)
        def wgt(srd, name, sreg, const=0):
            a(f's_add_u32 s67, {sreg}, {const}\ns_sub_u32 s66, {SZ[name]}, s67'); self.srd(srd, name, 's67', 's66')
        if t in 'UW':
            wgt(16, 'wo_img', 's65'); a(f's_mul_i32 s70, s62, {96*6912}'); wgt(20, 'wqkv_img', 's70', 4608); return 'T', RP, 6912, 18
        if t == 'M':
            wgt(16, 'wqkv_img', 's65', 0); wsl(20, WS_H, 's63', 's64'); return 'T', 6912, RP, 18
        if t == 'V':
            wsl(16, WS_U, 's65'); wsl(20, WS_H, 's63', 's64'); return 'T', RP, RP, 18
        if t == 'S':
            self.lin('s70', [('s60', 1056 * RP), ('s61', 128 * RP)])
            a(f's_mov_b32 s71, {128*RP}\ns_cmp_eq_u32 s61, 8\ns_cselect_b32 s71, {32*RP}, s71')
            wsl(16, WS_K, 's70', 's71'); wsl(20, WS_Q, 's63', 's64'); return 'K', RP, RP, 18
        if t == 'PV':
            a(f's_mul_i32 s70, s60, {1056*RP}\ns_add_u32 s70, s70, s65')
            wsl(16, WS_V, 's70'); wsl(20, WS_P, 's63', 's64'); return 'T', RP, RP, 17
        raise ValueError(t)
    def dep_ranges(self, t, aux=False):
        a = self.a
        if t == 'M':
            self.lin('s70', [('s60', 64), ('s62', 6)], F_LN)
            a('s_cmp_eq_u32 s62, 10\ns_cselect_b32 s71, 4, 6'); return [('s70', 's71')]
        if t == 'V':
            self.lin('s70', [('s61', 12)], F_U); return [('s70', 12)]
        if t == 'S':
            a('s_lshl_b32 s70, s61, 2'); self.sdiv('s71', 's70', 3)
            self.lin('s70', [('s60', 99), ('s71', 9)], F_K)
            a(f's_cmp_eq_u32 s61, 8\ns_cselect_b32 s70, {F_T+18}, s70')
            self.lin('s66', [('s60', 99), ('s62', 9)], F_K)
            return [('s70', 18), ('s66', 9)]
        if t == 'PV':
            self.lin('s70', [('s60', 99), ('s62', 9)], F_P); self.lin('s71', [('s60', 99), ('s61', 11)], F_V)
            return [('s70', 9), ('s71', 11)]
        return None
    def sig_index(self, t, aux=False):
        m = {'U': ([('s61', 12), ('s62', 1)], F_U), 'M': ([('s60', 99), ('s62', 9), ('s61', 1)], F_K),
             'V': ([('s60', 99), ('s61', 11), ('s62', 1)], F_V), 'S': ([('s60', 99), ('s62', 9), ('s61', 1)], F_P),
             'T': ([('s61', 1)], F_T), 'VT': ([('s61', 1)], F_VT), 'ST': ([('s60', 17), ('s61', 1)], F_PT),
             'Y': ([('s60', 18), ('s61', 1)], F_Y), 'AT': ([('s61', 1)], F_AT), 'LN': ([('s10', 1)], F_LN)}[t]
        self.lin('s88', [(r, c * FS) for r, c in m[0]] + [('s3', 4)], m[1] * FS)
    def set_bij(self, rows):
        a = self.a
        if rows == 'img':
            self.lin('s63', [('s60', 1056 * RP), ('s62', 96 * RP)])
            a(f's_mov_b32 s64, {96*RP}\ns_cmp_eq_u32 s62, 10\ns_cselect_b32 s64, {64*RP}, s64')
        else:
            self.lin('s63', [('s60', 1056 * RP)], 1024 * RP); a(f's_mov_b32 s64, {32*RP}')
        a('s_lshl_b32 s65, s61, 8')

    LV = dict(rowT=2, inT=3, rowKA=4, rowKB=5, inK=6, inKB=7, vF=8, oA=9, oB=10, vA=24, vB=28, t=20, fd=16)
    def ld_static(self):
        a = self.a; L = self.LV; t = L['t']
        a(f's_sub_u32 s84, s3, 4\ns_mul_i32 s85, s84, {4*CH}\ns_mov_b32 s82, s85\ns_mul_i32 s5, s84, {CH}\ns_sub_u32 s5, {16*CH}, s5\ns_mov_b32 m0, s82')
        a(f'v_bfe_u32 v{L["rowT"]}, v1, 2, 2\nv_lshl_add_u32 v{L["rowT"]}, s84, 4, v{L["rowT"]}')
        a(f'v_lshrrev_b32 v{t}, 4, v1\nv_and_b32 v{t+1}, 3, v1\nv_lshlrev_b32 v{t+1}, 4, v{t+1}\nv_lshl_add_u32 v{L["inT"]}, v{t}, 6, v{t+1}')
        a(f'v_bfe_u32 v{t}, v1, 2, 3\nv_lshl_add_u32 v{L["rowKA"]}, s84, 5, v{t}\ns_mul_i32 s75, s84, 24\nv_add_u32 v{L["rowKB"]}, s75, v{t}')
        a(f'v_bfe_u32 v{t}, v1, 4, 1\nv_mul_u32_u24 v{t}, 48, v{t}\nv_xor_b32 v{t+1}, v{t+1}, v{t}\nv_lshrrev_b32 v{t}, 5, v1\nv_lshl_add_u32 v{L["inK"]}, v{t}, 6, v{t+1}')
        a(f's_and_b32 s75, s84, 1\ns_mul_i32 s75, s75, 48\nv_xor_b32 v{L["inKB"]}, s75, v{L["inK"]}\nv_mov_b32 v{L["vF"]}, 0')
    def order_valu(self, n, dst, t, u0, limit):
        a = self.a; u, dl, sd = t, t + 1, t + 2
        a(f'v_add_u32 v{u}, {u0}, v{n}\nv_mov_b32 v{sd}, {SD}')
        a(f'v_mul_u32_u24 v{dl}, {(1<<16)//SW+1}, v{u}\nv_lshrrev_b32 v{dl}, 16, v{dl}\nv_mul_u32_u24 v{dl}, {SW}, v{dl}\nv_sub_u32 v{u}, v{u}, v{dl}')
        a(f'v_cmp_ge_u32 vcc, {SD}, v{u}\nv_cmp_eq_u32 s[66:67], 0, v{u}\nv_sub_u32 v{u}, v{n}, v{u}\nv_cndmask_b32 v{dl}, 0, -1, vcc')
        a(f'v_cmp_gt_u32 vcc, {0 if "nostag" in OPT else limit}, v{u}\nv_cndmask_b32 v{dl}, v{dl}, v{sd}, s[66:67]\ns_nop 0\nv_cndmask_b32 v{dl}, 0, v{dl}, vcc')
        a(f'v_add_u32 v{dst}, v{n}, v{dl}')
    def ld_setup(self, t):
        a = self.a; L = self.LV; tm = L['t']; vA, vB = L['vA'], L['vB']
        S = 17 if t in ('PV', 'Y') else 18
        cold = t in COLD and 'norot' not in OPT
        if cold:
            self.lin('s84', [('s61', 2), ('s60', 1), ('s62', 3)]); self.sdiv('s75', 's84', 18, 's83')
            a(f'v_add_u32 v{L["oB"]}, s83, v1\nv_subrev_u32 v{tm}, 18, v{L["oB"]}\nv_min_u32 v{L["oB"]}, v{L["oB"]}, v{tm}')
        else:
            a('s_add_u32 s84, s61, s62')
            self.order_valu(1, L['oB'], tm, 's84', (S & ~1) - SD)
        lay, pA, pB, S2 = self.ld_params(t)
        assert S == S2
        ftB = t in ('S', 'PV')
        a(f's_mov_b32 s7, 2304\ns_mov_b32 s76, {pA}\ns_mov_b32 s77, {pB}\ns_mov_b32 s78, {pA * 64 if lay == "T" else 2048}')
        a(f'v_mul_u32_u24 v{L["oA"]}, s78, v{L["oB"]}\nv_lshlrev_b32 v{L["oB"]}, {11 if ftB else 7}, v{L["oB"]}')
        if lay == 'T':
            a(f'v_mad_u32_u24 v{vA}, v{L["rowT"]}, s76, v{L["inT"]}')
            for m in range(1, 4): a(f'v_add_u32 v{vA+m}, {m*(4*pA - CH)}, v{vA}')
        else:
            a(f's_sub_u32 s84, s3, 4\ns_mul_i32 s84, s84, {2*36864}\ns_add_u32 s84, s84, 64\nv_lshl_add_u32 v{vA}, v1, 4, s84')
            for m in range(1, 4): a(f'v_add_u32 v{vA+m}, {((m>>1)*36864 + (m&1)*1024 - m*CH) & 0xffffffff:#x}, v{vA}')
            a('s_sub_u32 s16, s16, 64\ns_subb_u32 s17, s17, 0\ns_add_u32 s18, s18, 64')
        a(f'v_readlane_b32 s100, v{L["oA"]}, 0\nv_readlane_b32 s101, v{L["oB"]}, 0\ns_mov_b32 s98, 1')
        if ftB:
            for m in range(3):
                a(f's_sub_u32 s84, s3, 4\ns_mul_i32 s84, s84, 3\ns_add_u32 s84, s84, {m}\ns_lshr_b32 s75, s84, 1\ns_mul_i32 s75, s75, {36864 - 2048}\ns_lshl_b32 s84, s84, 10')
                a(f's_add_u32 s84, s84, s75\ns_add_u32 s84, s84, {(64 - m*CH) & 0xffffffff:#x}\nv_lshl_add_u32 v{vB+m}, v1, 4, s84')
            a('s_sub_u32 s20, s20, 64\ns_subb_u32 s21, s21, 0\ns_add_u32 s22, s22, 64')
        else:
            a(f'v_mad_u32_u24 v{vB}, v{L["rowKB"]}, s77, v{L["inKB"]}\nv_xor_b32 v{tm}, 48, v{vB}')
            for m in range(1, 3): a(f'v_add_u32 v{vB+m}, {m*(8*pB - CH)}, v{tm if m & 1 else vB}')
        assert pA % 64 == 0 and pB % 64 == 0
    def min4(self, v): self.a(f'v_min3_u32 v{v}, v{v}, v{v+1}, v{v+2}\nv_min_u32 v{v}, v{v}, v{v+3}')
    def ld_issue(self, kind='n'):
        a = self.a; L = self.LV
        ld = lambda v, srd, so, m: a(f'buffer_load_dwordx4 v{v+m}, {srd}, {so} offen offset:{m*CH} {LDF} lds') if 'noload' not in OPT else a('s_nop 0')
        if kind == 'y':
            ld(L['vA'], 's[16:19]', 's99', 0)
            a(f's_add_u32 s82, s82, {STAGE}\ns_cmp_ge_u32 s82, {RING}')
            ld(L['vA'], 's[16:19]', 's99', 1)
            a('s_cselect_b32 s82, s85, s82')
            ld(L['vA'], 's[16:19]', 's99', 2); ld(L['vA'], 's[16:19]', 's99', 3)
            a('s_mov_b32 m0, s82\ns_nop 0')
            return
        for m in range(4): ld(L['vA'], 's[16:19]', 's100', m)
        if kind == 'x': a('s_add_u32 s99, s100, s7')
        a(f's_add_u32 m0, s82, s5\nv_readlane_b32 s100, v{L["oA"]}, s98')
        ld(L['vB'], 's[20:23]', 's101', 0)
        a(f's_add_u32 s82, s82, {STAGE}\ns_cmp_ge_u32 s82, {RING}')
        ld(L['vB'], 's[20:23]', 's101', 1)
        a('s_cselect_b32 s82, s85, s82')
        ld(L['vB'], 's[20:23]', 's101', 2)
        a(f's_mov_b32 m0, s82\nv_readlane_b32 s101, v{L["oB"]}, s98\ns_add_u32 s98, s98, 1')
    def ld_subs(self):
        a = self.a; L = self.LV
        loop = lambda l: a(f's_sub_u32 s83, s83, 1\ns_cmp_lg_u32 s83, 0\ns_cbranch_scc1 {l}\ns_setpc_b64 s[86:87]')
        a('L_issue:'); self.ld_issue(); loop('L_issue')
        a('L_steady:\ns_waitcnt vmcnt(14)\ns_barrier'); self.ld_issue(); loop('L_steady')
        a('L_issue2:'); self.ld_issue('x'); self.ld_issue('y'); a('s_setpc_b64 s[86:87]')
        a('L_steady2:\ns_waitcnt vmcnt(11)\ns_barrier'); self.ld_issue('x')
        a('s_waitcnt vmcnt(11)\ns_barrier'); self.ld_issue('y'); loop('L_steady2')
        self.poll_sub('L_lpoll', L['vF'], L['fd'])
        self.ready_sub('L_lready', L['fd'])
    def ld_call(self, what, n=None):
        if n is not None:
            if n == 0: return
            self.a(f's_mov_b32 s83, {n}')
        self.a(f's_call_b64 s[86:87], {what}')
    def w4(self, fn):
        lab = self.a.label('w4'); self.a(f's_cmp_lg_u32 s3, 4\ns_cbranch_scc1 {lab}'); fn(); self.a(f'{lab}:')
    def ld_late_start(self, t, aux, k, ready=False):
        a = self.a; L = self.LV
        def poll():
            r = self.dep_ranges(t, aux)
            if ready: a('s_call_b64 s[68:69], L_lready')
            if r: self.flag_lanes(L['vF'], L['t'], r); a('s_call_b64 s[68:69], L_lpoll')
        self.ld_setup(t)
        if self.flags and (t not in 'UW' or ready): self.w4(poll)
        a('s_barrier')
        self.stamp(k)
        if t in 'MW':
            self.ld_call('L_issue2'); a('s_waitcnt vmcnt(4)\ns_barrier'); self.ld_call('L_issue2'); return
        self.ld_call('L_issue', 2)
        a('s_waitcnt vmcnt(7)\ns_barrier')
        self.ld_call('L_issue', 2)
    def ld_body(self, t, nxt, pre=None, ready=False, k=0):
        a = self.a; L = self.LV; vt = L['fd']
        M = t in 'MW'
        left = {'PV': 13, 'M': 32, 'W': 32}.get(t, 14)
        run = (lambda n: self.ld_call('L_steady2', n // 2)) if M else (lambda n: self.ld_call('L_steady', n))
        def ask(r):
            self.flag_lanes(L['vF'], L['t'], r())
            a(f'buffer_load_dwordx4 {vr(vt,4)}, v{L["vF"]}, s[12:15], 0 offen sc1')
        def chk():
            lab = a.label('dep_ok'); a(f's_waitcnt vmcnt({11 if M else 14})'); self.min4(vt)
            a(f'v_cmp_ne_u32 vcc, 0, v{vt}\ns_cmp_eq_u64 vcc, exec\ns_cbranch_scc1 {lab}')
            a(f's_call_b64 s[68:69], L_lpoll\n{lab}:')
        w = (11, 4) if M else (14, 7)
        drain = f's_waitcnt vmcnt({w[0]})\ns_barrier\ns_waitcnt vmcnt({w[1]})\ns_barrier\ns_waitcnt vmcnt(0)\ns_barrier\ns_barrier'
        if not nxt:
            if t == 'PV':
                def gdep():
                    a(f's_lshl_b32 s66, s61, 1\ns_add_u32 s66, s66, {F_VT}\ns_mul_i32 s67, s61, 6'); return [('s67', 6), ('s66', 2)]
                def gate():
                    if self.flags: chk()
                    self.lin('s67', [('s60', 4608), ('s65', 2)], WS_GATE); self.srd(24, 'ws', 's67', 2 * 4 * 4608 + 512)
                    t_ = L['t']
                    a(f'v_lshrrev_b32 v{t_+1}, 5, v1\nv_mul_u32_u24 v{t_+1}, {4*4608 - 512}, v{t_+1}\nv_lshl_add_u32 v{t_}, v1, 4, v{t_+1}\ns_mov_b32 m0, {GL}\ns_mov_b32 s67, {2*4*4608 - 1024}')
                    a(f'buffer_load_dwordx4 v{t_}, s[24:27], 0 offen sc1 lds\nbuffer_load_dwordx4 v{t_}, s[24:27], s67 offen offset:1024 sc1 lds\ns_mov_b32 m0, s82')
                run(left - 3)
                if self.flags: self.w4(lambda: ask(gdep))
                run(2); self.w4(gate); run(1)
            else: run(left)
            if t == 'S' and self.gate_job:
                a('s_cmp_ge_u32 s2, 108\ns_cbranch_scc1 L_nogate\ns_mov_b32 s92, s2'); self.gemv_job('gate', 2); self.srd(24, 'ws', 0, 0)
                a('s_mov_b32 s83, 0\ns_mov_b32 s11, 3\ns_mov_b32 s66, 2\ns_mov_b32 s77, 4\ns_mov_b32 s6, -1\ns_call_b64 s[86:87], L_gemv\ns_waitcnt vmcnt(14)\ns_barrier')
                self.gemv_loads(self.GW, self.GC, {2: 's_waitcnt vmcnt(15)\ns_barrier', 5: 's_waitcnt vmcnt(11)\ns_barrier', 8: 's_barrier'})
                a('s_call_b64 s[86:87], L_gemv2\ns_branch L_gated\nL_nogate:')
                a(drain + '\nL_gated:')
            else: a(drain)
            if ready:
                if self.flags: self.w4(lambda: a('s_call_b64 s[68:69], L_lready'))
                a('s_barrier')
            return
        if pre: pre()
        if ready and self.flags:
            run(left - 8); left = 5
            self.w4(lambda: a(f'v_mov_b32 v{vt+1}, 0\nglobal_load_dword v{vt}, v{vt+1}, {sr(PTR["dbg"],2)} sc1'))
            run(3)
            lab = a.label('rdy_ok')
            self.w4(lambda: a(f'v_cmp_le_u32 vcc, 4, v{vt}\ns_cbranch_vccnz {lab}\ns_call_b64 s[68:69], L_lready\n{lab}:'))
        if t == 'M' and 'bg' in OPT:
            for n in range(4):
                self.bg_prefetch(n); run(4); left -= 4
        lab = a.label('nx')
        if self.flags:
            run(left - 2)
            ask(lambda: self.dep_ranges(nxt, False))
            run(2)
            a(f's_waitcnt vmcnt({w[0]})'); self.min4(vt)
            a(f'v_cmp_ne_u32 s[94:95], 0, v{vt}')
        else: run(left)
        self.stamp(k)
        self.ld_setup(nxt)
        if self.flags:
            a(f's_cmp_eq_u64 s[94:95], exec\ns_cbranch_scc1 {lab}_g\n{drain}\ns_call_b64 s[68:69], L_lpoll')
            if nxt == 'M': self.ld_call('L_issue2'); a('s_waitcnt vmcnt(4)\ns_barrier'); self.ld_call('L_issue2')
            else: self.ld_call('L_issue', 2); a('s_waitcnt vmcnt(7)\ns_barrier'); self.ld_call('L_issue', 2)
            a(f's_branch {lab}_e\n{lab}_g:')
        if nxt == 'M': self.ld_call('L_steady2', 2)
        elif M:
            for _ in range(2): a('s_waitcnt vmcnt(11)'); self.ld_call('L_steady', 1)
            self.ld_call('L_steady', 2)
        else: self.ld_call('L_steady', 4)
        a(f's_barrier\n{lab}_e:')
    def bg_prefetch(self, n):
        a = self.a
        a('s_lshl_b32 s92, s2, 2\ns_add_u32 s92, s92, s3\ns_sub_u32 s92, s92, 4\nv_lshlrev_b32 v32, 4, v1')
        if n < 2:
            self.srd(24, 'wqkv_txt', 0, SZ['wqkv_txt'])
            a(f's_mul_i32 s92, s92, 10240\ns_add_u32 s92, s92, {5120*n}\ns_min_u32 s92, s92, {SZ["wqkv_txt"]-5120}\ns_add_u32 s93, s92, 4096')
            for i in range(5): a(f'buffer_load_dwordx4 v[36:39], v32, s[24:27], {"s92" if i < 4 else "s93"} offen offset:{1024*(i&3)}')
        else:
            self.srd(24, 'wmod_img' if n == 2 else 'wmod_txt', 0, SZ['wmod_img'])
            a('s_mul_i32 s92, s92, 3\ns_mov_b32 exec_hi, 0xf')
            for i in range(3):
                a(f's_add_u32 s93, s92, {i}\ns_and_b32 s84, s93, 1\ns_lshr_b32 s93, s93, 1\ns_min_u32 s93, s93, 1151\ns_mul_i32 s93, s93, 13824\ns_mul_i32 s84, s84, 1152\ns_add_u32 s93, s93, s84\ns_add_u32 s93, s93, 4608')
                a('buffer_load_dwordx4 v[36:39], v32, s[24:27], s93 offen\nbuffer_load_dwordx4 v[36:39], v32, s[24:27], s93 offen offset:576')
            a('s_mov_b32 exec_hi, -1')

    VA = 2; VB = 3; DT = 4; DK = 5; TA = 6; VROW = 10; VCOL = 11; VONE = 12; VZERO = 13
    ACC = 16; TMP = [64, 112]; FA = [160, 176]; FB = [192, 204]; FREE = 216
    def cp_static(self):
        a = self.a
        a('s_lshr_b32 s90, s3, 1\ns_and_b32 s91, s3, 1\ns_mov_b32 s89, -1\ns_mov_b32 s98, 0\ns_mov_b32 s88, 0')
        g, c, x, y = 196, 197, 198, 199
        a(f'v_lshrrev_b32 v{g}, 4, v1\nv_lshrrev_b32 v{x}, 1, v1\nv_xor_b32 v{x}, v{x}, v1\nv_bfe_u32 v{x}, v{x}, 2, 1\nv_mul_u32_u24 v{x}, 3, v{x}\nv_xor_b32 v{x}, v{x}, v{g}')
        a(f'v_and_b32 v{c}, 7, v1\nv_lshlrev_b32 v{c}, 6, v{c}\nv_lshl_add_u32 v{x}, v{x}, 4, v{c}\nv_bfe_u32 v{c}, v1, 3, 1\nv_mul_u32_u24 v{c}, {CH}, v{c}\nv_add_u32 v{x}, v{x}, v{c}')
        a(f's_mul_i32 s92, s91, {6*CH}\ns_add_u32 s92, s92, {16*CH}\nv_add_u32 v{self.VB}, s92, v{x}')
        a(f's_mul_i32 s93, s90, {8*CH}\ns_sub_u32 s93, s93, s92\nv_mov_b32 v{self.DK}, s93')
        a(f'v_mul_u32_u24 v{g}, {2*CH}, v{g}\nv_bfe_u32 v{c}, v1, 2, 2\nv_lshl_add_u32 v{g}, v{c}, 6, v{g}\nv_and_b32 v{c}, 3, v1\nv_lshl_add_u32 v{g}, v{c}, 3, v{g}')
        a(f's_lshl_b32 s93, s90, 9\nv_add_u32 v{g}, s93, v{g}\nv_sub_u32 v{self.DT}, v{g}, v{self.VB}')
        a(f'v_and_b32 v{x}, 12, v1\nv_bfe_u32 v{y}, v1, 4, 1\ns_mul_i32 s92, s91, 48\nv_add3_u32 v{self.VROW}, v{x}, v{y}, s92')
        a(f'v_and_b32 v{x}, 3, v1\nv_lshlrev_b32 v{x}, 5, v{x}\nv_lshrrev_b32 v{y}, 5, v1\nv_lshl_add_u32 v{x}, v{y}, 4, v{x}\ns_lshl_b32 s92, s90, 7\nv_add_u32 v{self.VCOL}, s92, v{x}')
        a(f'v_bfe_i32 v8, v1, 0, 1\nv_bfe_i32 v9, v1, 1, 1\nv_mov_b32 v{self.VONE}, 1\nv_mov_b32 v{self.VZERO}, 0')
    def reads(self, lay, kk, st):
        B = [f'ds_read_b128 {vr(self.FB[st]+4*jt,4)}, v{self.VB} offset:{jt*2*CH + kk*(512 if lay == "T" else CH)}' for jt in range(3)]
        A = []
        for it in range(4):
            if lay == 'K': A.append(f'ds_read_b128 {vr(self.FA[st]+4*it,4)}, v{self.VA} offset:{it*2*CH + kk*CH}')
            else:
                for h in range(2):
                    A.append(f'ds_read_b64_tr_b16 {vr(self.FA[st]+4*it+2*h,2)}, v{self.VA} offset:{(h+8*kk)*CH + (it>>1)*256 + (it&1)*32}')
        k = 1 if lay == 'K' else 2
        return A[:k] + B + A[k:]
    def to_ft(self):
        self.a(f'v_add_u32 v{self.VB}, v{self.VB}, v14\nv_sub_u32 v{self.DT}, v{self.DT}, v14\nv_mov_b32 v14, 0')
    def mfmas(self, st, acc, zero=False):
        out = []
        for it in range(4):
            for jt in range(3):
                d = vr(acc + 4 * (it * 3 + jt), 4)
                out.append(f'v_mfma_f32_16x16x32_bf16 {d}, {vr(self.FA[st]+4*it,4)}, {vr(self.FB[st]+4*jt,4)}, {"0" if zero else d}')
        return out
    def advance(self, lay):
        return [f'v_add_u32 v{self.TA}, {STAGE}, v{self.VB}', f'v_add_u32 v{self.TA+1}, {(STAGE-RING) & 0xffffffff:#x}, v{self.VB}',
                f'v_min_u32 v{self.VB}, v{self.TA+1}, v{self.TA}', f'v_add_u32 v{self.VA}, v{self.VB}, v{self.DK if lay == "K" else self.DT}']
    def rebase(self, lay, sign):
        if sign > 0: self.a(self.advance(lay)[3])
    @staticmethod
    def regs_of(txt):
        import re
        out = []
        for m in re.finditer(r'v\[(\d+):(\d+)\]|v(\d+)', txt):
            out.append(set(range(int(m.group(1)), int(m.group(2)) + 1)) if m.group(1) else {int(m.group(3))})
        return out
    def emit_waits(self, seq, pending):
        a = self.a
        for ins in seq:
            rs = self.regs_of(ins)
            if ins.startswith('ds_read'):
                a(ins); pending.append(rs[0]); continue
            use = set().union(*rs) if rs else set()
            last = max((k for k, d in enumerate(pending) if d & use), default=-1)
            if last >= 0:
                n = len(pending) - 1 - last
                assert n <= 15
                a(f's_waitcnt lgkmcnt({n})'); del pending[:last + 1]
            a(ins)
        return pending
    def weave(self, mf, rd, other):
        if 'nomfma' in OPT: mf = ['s_nop 0'] * len(mf)
        if 'noread' in OPT: rd = []
        n = len(mf); gaps = [[] for _ in range(n)]
        for k, r in enumerate(rd): gaps[min(n - 1, k * (n - 1) // max(1, len(rd)) if len(rd) < n else k)].append(r)
        return gaps, mf
    def substep(self, mf, rd, tail, other=(), bar=False):
        gaps, mf = self.weave(mf, rd, other)
        n = len(mf); other = list(other)
        for k, x in enumerate(other): gaps[k * n // len(other)].append(x)
        gaps[n - 1] += list(tail)
        seq = []
        if bar and 'bar0' in OPT: seq = ['s_barrier']
        elif bar: gaps[0].insert(0, 's_barrier')
        for m, g in zip(mf, gaps): seq += [m] + g
        return seq
    def stage(self, lay, acc, zero=False, ex0=(), ex1=(), half=False, end=()):
        adv = self.advance(lay)
        if half: return self.substep(self.mfmas(0, acc, zero), [], list(end), adv + list(ex0), bar=True)
        return self.substep(self.mfmas(0, acc, zero), self.reads(lay, 1, 1), adv[2:], adv[:2] + list(ex0)) + \
               self.substep(self.mfmas(1, acc), self.reads(lay, 0, 0), list(end), ex1, bar=True)
    def loop(self, pre, body):
        pend = self.emit_waits(pre, [])
        start = [set(x) for x in pend]
        return start, pend
    def signal_now(self):
        if not self.flags: return
        self.a(f's_waitcnt vmcnt(0)\ns_mov_b64 exec, 1\nbuffer_store_dword v{self.VONE}, v{self.VZERO}, s[12:15], s88 offen sc1\ns_mov_b64 exec, -1')
    ACC2 = 112; PK = 64; VO = 240
    def hook(self, lab):
        self.hooks.append(f'{lab}_h:\ns_call_b64 s[68:69], L_hook\ns_branch {lab}_n')
        return f's_cmp_eq_u32 s94, s89\ns_cbranch_scc1 {lab}_h\n{lab}_n:'
    def gemm_sub(self, lab, lay, merged=False):
        a = self.a
        a(f'{lab}:')
        self.rebase(lay, 1)
        pend = self.emit_waits(self.reads(lay, 0, 0) if 'noread' not in OPT else [], [])
        start = list(pend)
        a(f'{lab}_c:')
        for r in range(48): a(f'v_mov_b32 v{self.ACC+r}, 0')
        cnt = ['s_sub_u32 s94, s94, 1', 's_cmp_lg_u32 s94, 0']
        if merged:
            for r in range(48): a(f'v_mov_b32 v{self.ACC2+r}, 0')
            a(f's_mov_b32 s94, 18\n{ALN}{lab}_l:')
            adv = self.advance(lay); onlyA = lambda kk, st: [r for r in self.reads(lay, kk, st) if f'v{self.VA} ' in r]
            seq = self.substep(self.mfmas(0, self.ACC), self.reads(lay, 1, 1), adv[2:], adv[:2]) + \
                  self.substep(self.mfmas(1, self.ACC), onlyA(0, 0), [], [self.hook(lab + 'a')], bar=True) + \
                  self.substep(self.mfmas(0, self.ACC2), onlyA(1, 1), adv[2:], adv[:2]) + \
                  self.substep(self.mfmas(1, self.ACC2), self.reads(lay, 0, 0), [], cnt, bar=True)
        else:
            a(f's_mov_b32 s94, 9\n{ALN}{lab}_l:')
            seq = self.stage(lay, self.ACC, ex1=[self.hook(lab + 'a')]) + self.stage(lay, self.ACC, ex1=cnt)
        pend = self.emit_waits(seq, pend)
        assert pend == start
        a(f's_cbranch_scc1 {lab}_l')
        a('s_waitcnt lgkmcnt(0)\ns_nop 6\ns_setpc_b64 s[86:87]')
    def pack(self, acc, dst):
        for jt in range(3):
            for p in range(2):
                Z = dst + 8 * jt + 4 * p
                x = acc + 4 * (2 * p * 3 + jt); y = acc + 4 * ((2 * p + 1) * 3 + jt)
                self.a(f'v_cvt_pk_bf16_f32 v{Z}, v{x}, v{x+1}\nv_cvt_pk_bf16_f32 v{Z+1}, v{x+2}, v{x+3}')
                self.a(f'v_cvt_pk_bf16_f32 v{Z+2}, v{y}, v{y+1}\nv_cvt_pk_bf16_f32 v{Z+3}, v{y+2}, v{y+3}')
    def hook_sub(self):
        a = self.a
        a('L_hook:\ns_mov_b32 s89, -1'); self.signal_now(); a('s_setpc_b64 s[68:69]')
        a('L_st3:')
        self.xpose(self.PK, 112)
        for k in range(6): a(f'buffer_store_dwordx4 {vr(self.PK+4*k,4)}, v{self.VO+k}, s[24:27], 0 offen sc1')
        a('s_setpc_b64 s[68:69]\nL_st6:')
        self.store_ft(self.PK + 24, 28); self.store_ft(self.PK, 24)
        a('s_setpc_b64 s[68:69]')
    def store_ft(self, P, srd):
        a = self.a; v = [self.VROW, self.TA, self.TA + 1]
        a(f'v_add_u32 v{v[1]}, 36864, v{v[0]}\nv_add_u32 v{v[2]}, {2*36864}, v{v[0]}')
        for k in range(6):
            for d in range(2): a(f'v_permlane16_swap_b32 v{P+4*k+d}, v{P+4*k+2+d}')
            a(f'buffer_store_dwordx4 {vr(P+4*k,4)}, v{v[k>>1]}, {sr(srd,4)}, 0 offen offset:{1024*(k&1)} sc1')
    def ft_static(self):
        a = self.a; x, y = 216, 217
        a(f'v_bfe_u32 v{y}, v1, 4, 1\nv_lshlrev_b32 v{y}, 9, v{y}\nv_lshrrev_b32 v{x}, 5, v1\nv_lshl_add_u32 v{y}, v{x}, 8, v{y}\nv_and_b32 v{x}, 15, v1\nv_lshl_add_u32 v{y}, v{x}, 4, v{y}')
        a(f's_mul_i32 s92, s91, {3*36864}\ns_lshl_b32 s93, s90, 11\ns_add_u32 s92, s92, s93\nv_add_u32 v{self.VROW}, s92, v{y}')
        a(f's_mul_i32 s92, s91, {6*CH}\ns_add_u32 s92, s92, {16*CH}\nv_lshl_add_u32 v14, v1, 4, s92\nv_sub_u32 v14, v14, v{self.VB}')
    def ops(self, op, it): self.a(f's_mov_b32 s98, {op}\ns_mov_b32 s89, {it}')
    def xpose(self, P, T, inverse=False, nj=3):
        a = self.a
        def swaps():
            for jt in range(nj):
                for r in (0, 4):
                    for d in range(2): a(f'v_permlane16_swap_b32 v{P+8*jt+r+d}, v{P+8*jt+r+2+d}')
        a('s_nop 1')
        if inverse: swaps()
        for bit, M, qp in ((2, 8, '[1,0,3,2]'), (4, 9, '[2,3,0,1]')):
            lo = [r for r in range(8 * nj) if not r & bit]
            for k, r in enumerate(lo): a(f'v_bfi_b32 v{T+k}, v{M}, v{P+r}, v{P+r+bit}')
            for k, r in enumerate(lo): a(f'v_mov_b32_dpp v{T+12+k}, v{T+k} quad_perm:{qp} row_mask:0xf bank_mask:0xf')
            for k, r in enumerate(lo): a(f'v_bfi_b32 v{P+r}, v{M}, v{T+12+k}, v{P+r}\nv_bfi_b32 v{P+r+bit}, v{M}, v{P+r+bit}, v{T+12+k}')
        if not inverse:
            a('s_nop 1'); swaps()
    def row_offsets(self, vo, t, jump):
        a = self.a
        a(f's_movk_i32 s92, {RP}')
        for k in range(6):
            a(f'v_add_u32 v{t}, {16*(k>>1)+2*(k&1)}, v{self.VROW}\nv_mad_u32_u24 v{vo+k}, v{t}, s92, v{self.VCOL}')
            if jump: a(f'v_lshrrev_b32 v{t}, 5, v{t}\nv_mad_u32_u24 v{vo+k}, v{t}, {jump}, v{vo+k}')
    def store_tile(self, acc, srd, vo, t):
        self.pack(acc, t); self.xpose(t, t + 24)
        for k in range(6): self.a(f'buffer_store_dwordx4 {vr(t+4*k,4)}, v{vo+k}, {sr(srd,4)}, 0 offen sc1')
    def store_sub(self):
        a = self.a
        a('L_store:')
        self.row_offsets(216, 222, 's79')
        self.store_tile(self.ACC, 24, 216, 160)
        a('s_setpc_b64 s[86:87]')
    def allred(self, v, tmp, op, n=3):
        a = self.a
        for sw in ('v_permlane16_swap_b32', 'v_permlane32_swap_b32'):
            for j in range(n): a(f'v_mov_b32 v{tmp+j}, v{v+j}')
            a('s_nop 1')
            for j in range(n): a(f'{sw} v{v+j}, v{tmp+j}')
            for j in range(n): a(f'{op} v{v+j}, v{v+j}, v{tmp+j}')
    def softmax_sub(self):
        a = self.a; acc = self.ACC
        m, o, l, pr = 64, 67, 70, 74
        a('L_softmax:\ns_cmp_lg_u32 s61, 8\ns_cbranch_scc1 L_sm_go\ns_cmp_lg_u32 s90, 0\ns_cbranch_scc1 L_sm_ret')
        for r in range(24, 48): a(f'v_mov_b32 v{acc+r}, 0xff800000')
        a('L_sm_go:')
        allred = self.allred
        R = [[acc + 4 * (it * 3 + jt) + r for it in range(4) for r in range(4)] for jt in range(3)]
        for jt in range(3): a(f'v_max_f32 v{m+jt}, v{R[jt][0]}, v{R[jt][1]}')
        for k in range(2, 16, 2):
            for jt in range(3): a(f'v_max3_f32 v{m+jt}, v{m+jt}, v{R[jt][k]}, v{R[jt][k+1]}')
        allred(m, o, 'v_max_f32')
        a(f's_mov_b32 s92, {f2u(LOG2E * D ** -0.5):#x}')
        for jt in range(3): a(f'v_mul_f32 v{m+jt}, s92, v{m+jt}')
        for jt in range(3):
            for r in R[jt]: a(f'v_fma_f32 v{r}, v{r}, s92, -v{m+jt}')
            for r in R[jt]: a(f'v_exp_f32 v{r}, v{r}')
        a('s_nop 0')
        self.pack(acc, 160); self.store_ft(160, 24)
        for jt in range(3): a(f'v_add_f32 v{l+jt}, v{R[jt][0]}, v{R[jt][1]}')
        for k in range(2, 16):
            for jt in range(3): a(f'v_add_f32 v{l+jt}, v{l+jt}, v{R[jt][k]}')
        allred(l, o, 'v_add_f32')
        a(f's_mul_i32 s92, s91, 48\nv_add_lshl_u32 v{o}, v1, s92, 3\nv_mov_b32 v{pr}, v{m}\nv_mov_b32 v{pr+1}, v{l}')
        a(f's_mov_b64 exec, 0xffff0000\ns_mov_b32 exec_hi, 0\nv_mov_b32 v{pr}, v{m+1}\nv_mov_b32 v{pr+1}, v{l+1}')
        a(f's_mov_b32 exec_lo, 0\ns_mov_b32 exec_hi, 0xffff\nv_mov_b32 v{pr}, v{m+2}\nv_mov_b32 v{pr+1}, v{l+2}\ns_mov_b32 exec_lo, -1')
        a(f'buffer_store_dwordx2 {vr(pr,2)}, v{o}, s[28:31], 0 offen sc1')
        a('s_mov_b64 exec, -1\nL_sm_ret:\ns_setpc_b64 s[86:87]')
    XR = 216; GT = 240; F = 248; VF = 251; LS = 252
    def pv_sub(self):
        a = self.a; main = self.ACC; tmp = self.TMP; f = self.F; vf = self.VF
        a('L_pv:')
        st = 64
        t = 100
        a(f'v_and_b32 v{vf}, 15, v1\ns_mul_i32 s92, s91, 48\nv_add_lshl_u32 v{t}, v{vf}, s92, 3\nv_lshrrev_b32 v{t+1}, 4, v1')
        a(f's_add_u32 s93, s61, s62\ns_movk_i32 s92, {1056*8}')
        ad = 96
        for m in range(4):
            n = ad + m
            a(f'v_add_u32 v{n}, {4*m}, v{t+1}')
            self.order_valu(n, n, t + 3, 's93', 16 - SD)
            a(f'v_mad_u32_u24 v{n}, v{n}, s92, v{t}')
        self.to_ft(); self.rebase('P', 1)
        for r in range(48): a(f'v_mov_b32 v{main+r}, 0')
        for r in range(48): a(f'v_mov_b32 v{tmp[1]+r}, 0')
        a(f's_mul_i32 s92, s3, {17*192}\ns_add_u32 s92, s92, {XL}\nv_lshl_add_u32 v{vf}, v{vf}, 2, s92\nv_mul_u32_u24 v{t+1}, 192, v{t+1}\nv_add_u32 v{t+1}, v{t+1}, v{vf}')
        a(f's_mov_b32 s93, {16*1056*8}')
        self.signal_now()
        self.stamp(7)
        a('s_barrier')
        self.stamp(22)
        for m in range(4):
            for jt in range(3): a(f'buffer_load_dwordx2 {vr(st+2*(m*3+jt),2)}, v{ad+m}, s[28:31], 0 offen offset:{128*jt} sc1')
        for jt in range(3): a(f'buffer_load_dwordx2 {vr(st+2*(12+jt),2)}, v{t}, s[28:31], s93 offen offset:{128*jt} sc1')
        a('s_waitcnt vmcnt(0)')
        mx, o, L = t + 4, t + 8, self.LS
        M = [[st + 2 * (m * 3 + jt) for m in range(5)] for jt in range(3)]
        for jt in range(3): a(f'v_max3_f32 v{mx+jt}, v{M[jt][0]}, v{M[jt][1]}, v{M[jt][2]}')
        for jt in range(3): a(f'v_max3_f32 v{mx+jt}, v{mx+jt}, v{M[jt][3]}, v{M[jt][4]}')
        self.allred(mx, o, 'v_max_f32')
        for m in range(5):
            for jt in range(3): a(f'v_sub_f32 v{M[jt][m]}, v{M[jt][m]}, v{mx+jt}')
        for m in range(5):
            for jt in range(3): a(f'v_exp_f32 v{M[jt][m]}, v{M[jt][m]}')
        for m in range(5):
            for jt in range(3): a(f'ds_write_b32 v{t+1 if m < 4 else vf}, v{M[jt][m]} offset:{m*768+jt*64}')
        for jt in range(3): a(f'v_mul_f32 v{L+jt}, v{M[jt][4]}, v{M[jt][4]+1}')
        for jt in range(3): a(f'v_mul_f32 v{L+jt}, 0.25, v{L+jt}')
        for m in range(4):
            for jt in range(3): a(f'v_fmac_f32 v{L+jt}, v{M[jt][m]}, v{M[jt][m]+1}')
        self.stamp(23)
        a('s_waitcnt lgkmcnt(0)\ns_barrier')
        self.stamp(24)
        def fold(tp):
            if 'pk' in OPT:
                return [f'v_pk_fma_f32 {vr(main+4*(it*3+jt)+r,2)}, {vr(tp+4*(it*3+jt)+r,2)}, {vr(f+(jt&2),2)}, {vr(main+4*(it*3+jt)+r,2)} ' + ('op_sel:[0,1,0]' if jt & 1 else 'op_sel_hi:[1,0,1]')
                        for it in range(4) for jt in range(3) for r in (0, 2)]
            return [f'v_fmac_f32 v{main+4*(it*3+jt)+r}, v{tp+4*(it*3+jt)+r}, v{f+jt}' for it in range(4) for jt in range(3) for r in range(4)]
        fread = [f'ds_read_b32 v{f+jt}, v{vf} offset:{64*jt}' for jt in range(3)] + [f'v_add_u32 v{vf}, 192, v{vf}']
        pend = self.emit_waits((self.reads('P', 0, 0) if 'noread' not in OPT else []) + fread[:3], [])
        start = list(pend)
        a(f's_mov_b32 s94, 8\n{ALN}L_pv_l:')
        seq = []
        for p in range(2):
            fl = fold(tmp[p ^ 1]); h = len(fl) * 5 // 12
            seq += self.stage('P', tmp[p], zero=True, ex0=['s_nop 0'] * 0 + fl[:h], ex1=fl[h:] + (['s_sub_u32 s94, s94, 1', 's_cmp_lg_u32 s94, 0'] if p else []), end=fread)
        pend = self.emit_waits(seq, pend)
        assert pend == start
        a('s_cbranch_scc1 L_pv_l')
        self.emit_waits(self.stage('P', tmp[0], zero=True, ex0=fold(tmp[1]), half=True, end=fread), pend)
        self.rebase('P', -1)
        a('s_waitcnt lgkmcnt(0)\ns_nop 5\ns_setpc_b64 s[86:87]')
        self.fold = fold
    def gate_loads(self, gt, va, jts):
        a = self.a
        for n, jt in enumerate(jts):
            a(f'v_lshrrev_b32 v{va}, 4, v1\nv_lshlrev_b32 v{va}, 4, v{va}\ns_lshl_b32 s92, s90, 8')
            if jt is not None:
                a(f's_mul_i32 s93, s91, 48\ns_add_u32 s93, s93, {16*jt}\ns_lshr_b32 s93, s93, 5\ns_mul_i32 s93, s93, 4608\ns_add_u32 s92, s92, s93')
            for it in range(4): a(f'buffer_load_dwordx4 {vr(gt+16*n+4*it,4)}, v{va}, s[4:7], s92 offen offset:{64*it} sc1')
    def resid_epi(self, acc, xr, gt, zr, vo, t):
        a = self.a
        for jt in range(3):
            for it in range(4):
                q = acc + 4 * (it * 3 + jt); o = 8 * jt + 2 * it; u = t + 4 * (it & 1)
                if zr is not None:
                    for d in range(2): a(f'v_lshlrev_b32 v{u+2*d}, 16, v{zr+o+d}\nv_and_b32 v{u+2*d+1}, 0xffff0000, v{zr+o+d}')
                    for r in range(4): a(f'v_add_f32 v{q+r}, v{q+r}, v{u+r}')
                for d in range(2): a(f'v_lshlrev_b32 v{u+2*d}, 16, v{xr+o+d}\nv_and_b32 v{u+2*d+1}, 0xffff0000, v{xr+o+d}')
                for r in range(4): a(f'v_fmac_f32 v{u+r}, v{q+r}, v{gt(jt)+4*it+r}')
                for d in range(2): a(f'v_cvt_pk_bf16_f32 v{xr+o+d}, v{u+2*d}, v{u+2*d+1}')
        self.xpose(xr, t)
        for k in range(6): a(f'buffer_store_dwordx4 {vr(xr+4*k,4)}, v{vo+k}, s[24:27], 0 offen sc1')

    def cp_task(self, t, aux, late, nxt_early, cont=False, join=None, pv=False):
        a = self.a
        def wsl(srd, base, sregs, lim):
            a(f's_mov_b32 s67, {base}')
            for s in sregs: a(f's_add_u32 s67, s67, {s}')
            self.srd(srd, 'ws', 's67', lim)
        JUMP = 1024 * RP
        if t in 'UWMV':
            two = t in 'MW'
            if t in 'UW':
                self.lin('s70', [('s62', 96 * RP)]); wsl(24, WS_U, ['s70', 's65'], 96 * RP); wsl(28, WS_U + 256, ['s70', 's65'], 96 * RP)
            elif t == 'M': a('s_lshl_b32 s70, s61, 12'); wsl(24, WS_Q, ['s63', 's70'], 's64'); wsl(28, WS_K, ['s63', 's70'], 's64')
            else: wsl(24, WS_V, ['s63', 's65'], 's64')
            a('s_barrier\ns_barrier' if late else 's_barrier')
            self.stamp(28 if t == 'U' else 12 if two else 16)
            a(f's_call_b64 s[86:87], {"L_qk" if two else "L_tk"}{"_c" if cont else ""}')
            self.stamp(29 if t == 'U' else 13 if two else 17)
            self.pack(self.ACC, self.PK)
            if two: self.pack(self.ACC2, self.PK + 24)
            a(f's_call_b64 s[68:69], L_st{6 if two else 3}')
            self.sig_index(t, aux)
            if nxt_early: self.ops(7, (18 if nxt_early == 'M' else 9) - SIGW)
            else:
                if aux: a('s_waitcnt vmcnt(0)\ns_barrier')
                self.signal_now()
            self.stamp(18)
            return
        elif t == 'S':
            a('s_lshl_b32 s70, s61, 12'); wsl(24, WS_P, ['s63', 's70'], 's64'); self.to_ft()
            self.lin('s70', [('s60', 17 * 1056 * 8), ('s61', 2 * 1056 * 8), ('s90', 1056 * 8), ('s62', 96 * 8)], WS_ST)
            self.sdiv('s71', 's64', RP // 8); self.srd(28, 'ws', 's70', 's71')
            a('s_barrier\ns_barrier' if late else 's_barrier')
            self.stamp(19); a('s_call_b64 s[86:87], L_kk'); self.stamp(20)
            if pv: self.x_loads()
            a('s_call_b64 s[86:87], L_softmax'); self.stamp(21)
            self.sig_index(t, aux)
            if not pv: self.signal_now()
            return
        elif t == 'PV':
            if not pv: self.x_loads(); a('s_waitcnt vmcnt(0)')
            self.lin('s70', [('s60', 17 * 1056 * 8), ('s62', 96 * 8)], WS_ST); self.srd(28, 'ws', 's70', 0x100000)
            a('s_sub_u32 s71, s64, s65'); self.srd(24, 'out', 's79', 's71')
            a('s_waitcnt vmcnt(7)\ns_cmp_lg_u32 s61, 8\ns_cbranch_scc1 L_pv_x\ns_waitcnt vmcnt(0)\nL_pv_x:')
            self.xpose(self.XR, 112, inverse=True)
            a('s_call_b64 s[86:87], L_pv'); self.stamp(25)
            if t == 'PV':
                a(f'v_and_b32 v246, 48, v1\ns_lshl_b32 s92, s90, 8\ns_add_u32 s92, s92, {GL}\nv_add_u32 v246, s92, v246')
                for sp in range(3):
                    for it in range(4): a(f'ds_read_b128 {vr((192, 112, 128)[sp]+4*it,4)}, v246 offset:{512*sp+64*it}')
                self.allred(self.LS, 160, 'v_add_f32')
                for jt in range(3): a(f'v_rcp_f32 v{self.LS+jt}, v{self.LS+jt}')
                for x in self.fold(self.TMP[0]): a(x)
                for r in range(48): a(f'v_mul_f32 v{self.ACC+r}, v{self.ACC+r}, v{self.LS+(r//4)%3}')
                a('s_waitcnt lgkmcnt(0)')
                for e in range(16): a(f'v_add_f32 v{192+e}, v{192+e}, v{112+e}\nv_add_f32 v{192+e}, v{192+e}, v{128+e}')
                self.resid_epi(self.ACC, self.XR, lambda jt: 192, None, 240, 160)
    def x_loads(self):
        a = self.a
        self.lin('s79', [('s60', 1024 * RP), ('s62', 96 * RP), ('s65', 1)])
        a('s_sub_u32 s71, s64, s65'); self.srd(32, 'x_img', 's79', 's71')
        for k in range(6): a(f'buffer_load_dwordx4 {vr(self.XR+4*k,4)}, v{self.VO+k}, s[32:35], 0 offen nt')

    GW = 32; GS = 80; GA = 104; GT_ = 120; LX = 140; GC = 204
    def lds_arrive(self, va, vone):
        self.a(f's_mov_b64 exec, 1\nds_add_u32 v{va}, v{vone}\ns_mov_b64 exec, -1')
    def lds_wait4(self, va, vt, n=4):
        a = self.a; lab = a.label('lw')
        a(f's_mov_b32 s74, {SPIN}\n{lab}:\nds_read_b32 v{vt}, v{va}\ns_waitcnt lgkmcnt(0)\nv_cmp_le_u32 vcc, {n}, v{vt}')
        a(f's_cbranch_vccnz {lab}_d\ns_sleep 2\ns_sub_u32 s74, s74, 1\ns_cmp_lg_u32 s74, 0\ns_cbranch_scc1 {lab}\n{lab}_d:')
    def gemv_job(self, kind, ls=0):
        a = self.a
        a('s_lshr_b32 s71, s3, 2')
        self.lin('s79', [('s71', 2048)], XL + (4096 if ls else 0))
        self.lin('s80', [('s71', 4)], CX + (0, 8, 40)[ls])
        if kind == 'mod':
            a('s_mov_b32 s71, s81\ns_mov_b32 s81, s92'); self.sdiv('s92', 's81', 3, 's93')
            a('s_lshl_b32 s67, s92, 7\ns_mul_i32 s70, s93, 384\ns_movk_i32 s78, 9216')
            self.lin('s76', [('s93', 4 * 9216), ('s71', 2 * 9216), ('s92', 256)], WS_MODP)
            a('s_mov_b32 s77, 4\ns_mov_b32 s6, -1')
        else:
            a('s_mov_b32 s81, s92'); self.sdiv('s70', 's81', 3, 's93'); self.sdiv('s71', 's70', 18, 's92')
            a('s_mov_b32 s66, 1\ns_lshl_b32 s67, s92, 7\ns_add_u32 s67, s67, 4608\ns_movk_i32 s78, 4608\ns_mul_i32 s70, s93, 384\ns_lshl_b32 s6, s81, 7')
            self.lin('s76', [('s93', 4 * 4608), ('s71', 2 * 4608), ('s92', 256)], WS_GATE)
    def gemv_loads(self, W, C, mid={}):
        a = self.a; T = self.GT_
        a('s_lshl_b32 s75, s70, 1')
        for b in range(2):
            for k in range(3): a(f'buffer_load_dwordx2 {vr(C+6*b+2*k,2)}, v{T+2}, s[20:23], s75 offen offset:{2304*b+8*k}')
        a('s_mul_i32 s81, s70, 13824')
        for i in range(12):
            if i in mid: a(mid[i])
            a(f'buffer_load_dwordx4 {vr(W+4*i,4)}, v{T}, s[16:19], s81 offen nt')
            if i < 11: a(f's_add_u32 s81, s81, 13824')
    def gemv_subs(self):
        a = self.a
        W, S, ACC, T, X, C = self.GW, self.GS, self.GA, self.GT_, self.LX, self.GC
        a(f'L_gemv:\nv_bfe_u32 v202, v0, 4, 4\nv_and_b32 v203, 15, v0\nv_mul_u32_u24 v202, {RP}, v202\nv_lshl_add_u32 v202, v203, 4, v202')
        a('s_cmp_eq_u32 s66, 0\ns_cbranch_scc1 L_gv_x\ns_and_b32 s75, s3, 3\ns_mul_i32 s75, s75, 96\ns_add_u32 s70, s70, s75')
        a(f'v_and_b32 v{T}, 7, v1\nv_lshrrev_b32 v{T+1}, 3, v1\nv_lshlrev_b32 v{T}, 4, v{T}\ns_mov_b32 s75, {12*13824}\nv_mad_u32_u24 v{T}, v{T+1}, s75, v{T}\nv_add_u32 v{T}, s67, v{T}')
        a(f'v_mul_u32_u24 v{T+2}, 24, v{T+1}')
        a(f's_cmp_eq_u32 s71, 1\ns_cselect_b32 s16, s{PTR["wmod_txt"]}, s{PTR["wmod_img"]}\ns_cselect_b32 s17, s{PTR["wmod_txt"]+1}, s{PTR["wmod_img"]+1}')
        a(f's_mov_b32 s18, {SZ["wmod_img"]}\ns_mov_b32 s19, 0x20000')
        self.srd(20, 'c', 0, SZ['c'])
        a('s_cmp_eq_u32 s66, 2\ns_cbranch_scc1 L_gv_ret')
        self.gemv_loads(W, C)
        a('L_gemv2:')
        for r in range(16): a(f'v_mov_b32 v{ACC+r}, 0')
        a('s_waitcnt vmcnt(12)')
        q = T + 8; e = 216
        for i in range(12):
            for b in range(2):
                src = C + 6 * b + i // 2
                a(f'v_and_b32 v{S+2*i+b}, 0xffff0000, v{src}' if i & 1 else f'v_lshlrev_b32 v{S+2*i+b}, 16, v{src}')
        for r in range(24): a(f'v_mul_f32 v{e+r}, {f2u(-LOG2E):#x}, v{S+r}')
        for r in range(24): a(f'v_exp_f32 v{e+r}, v{e+r}')
        for r in range(24): a(f'v_add_f32 v{e+r}, 1.0, v{e+r}')
        for r in range(24): a(f'v_rcp_f32 v{e+r}, v{e+r}')
        for r in range(24): a(f'v_mul_f32 v{S+r}, v{S+r}, v{e+r}')
        a('L_gv_x:')
        for i in range(9): a(f'buffer_load_dwordx4 {vr(X+4*i,4)}, v202, s[24:27], s83 offen offset:{i*256} nt')
        if 'pf' in OPT: a(f'v_mov_b32 v200, {CX+32}\nv_mov_b32 v201, 1'); self.lds_arrive(200, 201)
        a('s_cmp_lg_u32 s66, 0\ns_cbranch_scc0 L_gv_ret\nL_gv_m:')
        for i in range(12):
            a(f's_waitcnt vmcnt({20-i})')
            for d in range(4):
                w = W + 4 * i + d
                a(f'v_lshlrev_b32 v{q+2*d}, 16, v{w}\nv_and_b32 v{q+2*d+1}, 0xffff0000, v{w}')
            for d in range(4):
                a(f'v_pk_fma_f32 {vr(ACC+4*d,2)}, {vr(q+2*d,2)}, {vr(S+2*i,2)}, {vr(ACC+4*d,2)} op_sel_hi:[0,1,1]')
                a(f'v_pk_fma_f32 {vr(ACC+4*d+2,2)}, {vr(q+2*d,2)}, {vr(S+2*i,2)}, {vr(ACC+4*d+2,2)} op_sel:[1,0,0]')
        self.stamp(27)
        for v in range(8): a(f'v_permlane32_swap_b32 v{ACC+v}, v{ACC+v+8}')
        for v in range(8): a(f'v_add_f32 v{ACC+v}, v{ACC+v}, v{ACC+v+8}')
        a('s_nop 1')
        for v in range(4): a(f'v_permlane16_swap_b32 v{ACC+v}, v{ACC+v+4}')
        for v in range(4): a(f'v_add_f32 v{ACC+v}, v{ACC+v}, v{ACC+v+4}')
        a('s_nop 1')
        for v in range(4): a(f'v_add_f32_dpp v{ACC+4+v}, v{ACC+v}, v{ACC+v} row_ror:8 row_mask:0xf bank_mask:0xf')
        RED = XL
        a(f's_and_b32 s81, s3, 3\ns_lshl_b32 s81, s81, 9\ns_add_u32 s81, s81, s79\nv_and_b32 v{T}, 7, v1\nv_lshlrev_b32 v{T}, 6, v{T}\nv_lshrrev_b32 v{T+1}, 4, v1\nv_lshl_add_u32 v{T}, v{T+1}, 4, v{T}\nv_add_u32 v{T}, s81, v{T}')
        a(f'v_mov_b32 v{T+4}, s80\nv_mov_b32 v{T+5}, 1\nv_mov_b32 v{T+6}, 0\nds_write_b128 v{T}, {vr(ACC+4,4)}')
        self.lds_arrive(T + 4, T + 5)
        a(f's_and_b32 s75, s3, 3\ns_cmp_lg_u32 s75, s11\ns_cbranch_scc1 L_gv_ret\nL_gv_red:\nv_mov_b32 v{T+4}, s80\nv_mov_b32 v{T+5}, 1')
        a('L_gv_red2:')
        self.lds_wait4(T + 4, T, 's77')
        a(f'v_lshl_add_u32 v{T}, v1, 3, s79')
        for w in range(4): a(f'ds_read_b64 {vr(ACC+2*w,2)}, v{T} offset:{512*w}')
        a(f'v_lshlrev_b32 v{T}, 2, v1\ns_add_u32 s78, s78, s76\ns_waitcnt lgkmcnt(0)')
        a(f'v_pk_add_f32 {vr(ACC,2)}, {vr(ACC,2)}, {vr(ACC+2,2)}\nv_pk_add_f32 {vr(ACC+4,2)}, {vr(ACC+4,2)}, {vr(ACC+6,2)}\nv_pk_add_f32 {vr(ACC,2)}, {vr(ACC,2)}, {vr(ACC+4,2)}')
        a(f'v_max_u32 v{ACC}, 1, v{ACC}\nv_max_u32 v{ACC+1}, 1, v{ACC+1}')
        a(f'buffer_store_dword v{ACC}, v{T}, s[12:15], s76 offen sc1\nbuffer_store_dword v{ACC+1}, v{T}, s[12:15], s78 offen sc1')
        if self.flags:
            a('s_cmp_eq_u32 s6, -1\ns_cbranch_scc1 L_gv_ret\ns_waitcnt vmcnt(0)')
            a(f's_mov_b64 exec, 15\nbuffer_store_dword v{T+5}, v{T}, s[12:15], s6 offen sc1\ns_mov_b64 exec, -1')
        a('L_gv_ret:\ns_setpc_b64 s[86:87]')
    def ln(self):
        a = self.a; X = self.LX; F = 32
        a('v_mov_b32 v176, v202\nv_mov_b32 v177, v203\ns_waitcnt vmcnt(0)')
        for i in range(9):
            for d in range(4):
                a(f'v_lshlrev_b32 v{F+8*i+2*d}, 16, v{X+4*i+d}\nv_and_b32 v{F+8*i+2*d+1}, 0xffff0000, v{X+4*i+d}')
        def rowsum(v, t):
            for r in (8, 4, 2, 1):
                a(f's_nop 1\nv_add_f32_dpp v{t}, v{v}, v{v} row_ror:{r} row_mask:0xf bank_mask:0xf')
                v, t = t, v
            return v
        a0, a1, a2, a3 = 180, 181, 182, 183
        a(f'v_pk_add_f32 {vr(a0,2)}, {vr(F,2)}, {vr(F+2,2)}')
        for e in range(4, 72, 2): a(f'v_pk_add_f32 {vr(a0,2)}, {vr(a0,2)}, {vr(F+e,2)}')
        a(f'v_add_f32 v{a0}, v{a0}, v{a1}')
        v = rowsum(a0, a1)
        a(f'v_mul_f32 v{a0}, {f2u(-1.0/1152):#x}, v{v}')
        for e in range(0, 72, 2): a(f'v_pk_add_f32 {vr(F+e,2)}, {vr(F+e,2)}, {vr(a0,2)} op_sel_hi:[1,0]')
        a(f'v_pk_mul_f32 {vr(a2,2)}, {vr(F,2)}, {vr(F,2)}')
        for e in range(2, 72, 2): a(f'v_pk_fma_f32 {vr(a2,2)}, {vr(F+e,2)}, {vr(F+e,2)}, {vr(a2,2)}')
        a(f'v_add_f32 v{a1}, v{a2}, v{a3}')
        v = rowsum(a1, a2)
        a(f'v_mov_b32 v{a0}, {f2u(1e-5):#x}\nv_fmac_f32 v{a0}, {f2u(1.0/1152):#x}, v{v}\nv_rsq_f32 v{a0}, v{a0}\ns_nop 0')
        for e in range(0, 72, 2): a(f'v_pk_mul_f32 {vr(F+e,2)}, {vr(F+e,2)}, {vr(a0,2)} op_sel_hi:[1,0]')
        self.stamp(15)
        a('s_lshr_b32 s80, s10, 7\ns_lshr_b32 s81, s10, 6\ns_bfe_u32 s75, s10, 0x10001\ns_cmp_eq_u32 s80, 1\ns_cselect_b32 s81, s75, s81')
        self.lin('s76', [('s80', 2 * 9216), ('s81', 9216)], WS_MODP)
        M = 184
        a(f'v_lshlrev_b32 v{a0}, 4, v0\nv_lshlrev_b32 v{a1}, 4, v1')
        if self.flags: a(f'v_mov_b32 v14, {CX+20}'); self.lds_wait4(14, a2)
        a('s_mov_b32 s74, 0x10000\nL_ln_p:')
        for sp in range(3):
            for k in range(3):
                a(f's_add_u32 s75, s76, {sp*4*9216 + k*4096}\nbuffer_load_dwordx4 {vr(M+12*sp+4*k,4)}, v{a1 if k == 2 else a0}, s[12:15], s75 offen sc1')
        a(f's_waitcnt vmcnt(0)\nv_min_u32 v{a2}, v{M}, v{M+1}')
        for r in range(2, 36, 2): a(f'v_min3_u32 v{a2}, v{a2}, v{M+r}, v{M+r+1}')
        a(f'v_cmp_eq_u32 vcc, 0, v{a2}\ns_cbranch_vccz L_ln_g\ns_sub_u32 s74, s74, 1\ns_cmp_eq_u32 s74, 0\ns_cbranch_scc1 L_ln_g\ns_sleep {PSL}\ns_branch L_ln_p\nL_ln_g:')
        self.stamp(14)
        TAB = XL + 8192
        a(f'v_add_u32 v{a2}, {TAB}, v{a0}\nv_mov_b32 v14, {CX+16}')
        a(f's_and_b32 s75, s10, 63\ns_mul_i32 s76, s75, {16*RP}\ns_mul_i32 s75, s81, {1056*RP}\ns_add_u32 s75, s75, {WS_H}')
        a(f's_cmp_eq_u32 s80, 1\ns_cselect_b32 s75, {WS_HT}, s75\ns_add_u32 s76, s76, s75')
        a('s_lshl_b32 s75, s80, 30\nv_or_b32 v176, s75, v176')
        a('s_waitcnt vmcnt(0)')
        for r in range(0, 12, 2): a(f'v_pk_add_f32 {vr(M+r,2)}, {vr(M+r,2)}, {vr(M+12+r,2)}')
        for r in range(0, 12, 2): a(f'v_pk_add_f32 {vr(M+r,2)}, {vr(M+r,2)}, {vr(M+24+r,2)}')
        for k in range(2): a(f'ds_write_b128 v{a2}, {vr(M+4*k,4)} offset:{k*4096}')
        a(f's_cmp_lg_u32 s3, 0\ns_cbranch_scc1 L_tab2\nds_write_b128 v{a2}, {vr(M+8,4)} offset:8192\nL_tab2:')
        self.lds_arrive(14, self.VONE)
        a(f'v_lshlrev_b32 v{a2}, 5, v177\nv_add_u32 v{a2}, {TAB}, v{a2}')
        self.lds_wait4(14, a3)
        B = [104, 184]
        def rd(i0, p):
            for i in range(i0, i0 + 2):
                if i < 9:
                    k = i - i0
                    for h in range(2):
                        a(f'ds_read_b128 {vr(B[p]+16*k+4*h,4)}, v{a2} offset:{i*512+h*16}\nds_read_b128 {vr(B[p]+16*k+8+4*h,4)}, v{a2} offset:{4608+i*512+h*16}')
        rd(0, 0)
        for n, i0 in enumerate(range(0, 9, 2)):
            p = n & 1
            rd(i0 + 2, p ^ 1)
            left = 4 * max(0, min(9, i0 + 4) - (i0 + 2))
            a(f's_waitcnt lgkmcnt({left})')
            for i in range(i0, min(9, i0 + 2)):
                sh = B[p] + 16 * (i - i0); sc = sh + 8
                for e in range(0, 8, 2): a(f'v_pk_add_f32 {vr(sh+e,2)}, {vr(sh+e,2)}, {vr(F+8*i+e,2)}')
                for e in range(0, 8, 2): a(f'v_pk_fma_f32 {vr(sh+e,2)}, {vr(F+8*i+e,2)}, {vr(sc+e,2)}, {vr(sh+e,2)}')
                for d in range(4): a(f'v_cvt_pk_bf16_f32 v{X+4*i+d}, v{sh+2*d}, v{sh+2*d+1}')
                a(f'buffer_store_dwordx4 {vr(X+4*i,4)}, v176, s[12:15], s76 offen offset:{i*256} sc1')
        a(f's_cmp_eq_u32 s80, 0\ns_cbranch_scc1 L_ln_rm\nv_and_b32 v176, 0xf0, v0\nv_lshl_add_u32 v176, v177, 8, v176\nv_mov_b32 v14, {CX+24}')
        for i in range(9): a(f'ds_write_b128 v176, {vr(X+4*i,4)} offset:{i*4096}')
        self.lds_arrive(14, self.VONE)
        self.lds_wait4(14, a3)
        for i in range(9): a(f'ds_read_b128 {vr(X+4*i,4)}, v{a0} offset:{i*4096}')
        for i in range(9): a(f's_waitcnt lgkmcnt({8-i})\nbuffer_store_dwordx4 {vr(X+4*i,4)}, v{a0}, s[12:15], s76 offen sc1\ns_add_u32 s76, s76, 4096')
        a('L_ln_rm:')
        self.sig_index('LN')
        self.signal_now()

    def idx_main(self):
        a = self.a
        a('s_and_b32 s92, s2, 7\ns_lshr_b32 s93, s2, 3\ns_lshr_b32 s60, s92, 2\ns_and_b32 s92, s92, 3\ns_mul_i32 s92, s92, 25\ns_add_u32 s92, s92, s93')
        self.sdiv('s62', 's92', 5, 's61')
        a('s_sub_u32 s93, s92, 55\ns_lshr_b32 s70, s93, 2\ns_and_b32 s71, s93, 3\ns_add_u32 s71, s71, 5')
        a('s_cmp_ge_u32 s92, 55\ns_cselect_b32 s62, s70, s62\ns_cselect_b32 s61, s71, s61')
        self.set_bij('img')
    def idx_u(self, skip):
        a = self.a
        a(f's_cmp_ge_u32 s2, 112\ns_cbranch_scc1 {skip}\ns_and_b32 s92, s2, 7\ns_mul_i32 s92, s92, 14\ns_lshr_b32 s93, s2, 3\ns_add_u32 s92, s92, s93\ns_cmp_ge_u32 s92, 108\ns_cbranch_scc1 {skip}')
        self.sdiv('s70', 's92', 36, 's71'); self.sdiv('s62', 's71', 3, 's61')
        a('s_mul_i32 s70, s70, 3\ns_add_u32 s61, s61, s70\ns_mov_b32 s60, 0\ns_lshl_b32 s65, s61, 8')
    AUXOPS = ['end', 'T', 'VT', 'Y', 'AT', 'OT', 'X', 'G']
    AUXPROG = [(0, 'X T Y OT'), (18, 'X T Y AT'), (36, 'X T VT G G'), (42, 'X G T VT G G'), (54, 'G G G')]
    SB = 64; SA = [212, 228]; SBASE = [2, 5]
    def idx_aux(self, t):
        a = self.a
        if t in ('T', 'Q2', 'OT'): a('s_mov_b32 s61, s9')
        elif t in ('VT', 'AT'): a(f's_sub_u32 s61, s9, {36 if t == "VT" else 18}')
        else: self.sdiv('s60', 's9', 18, 's61')
        a('s_lshl_b32 s65, s61, 7')
    def sk_loader(self, t):
        a = self.a; L = self.LV; tm = L['t']
        def wgt(name, sreg, const=0):
            a(f's_add_u32 s67, {sreg}, {const}\ns_sub_u32 s66, {SZ[name]}, s67'); self.srd(16, name, 's67', 's66')
        def poll(r): self.flag_lanes(L['vF'], tm, r); a('s_call_b64 s[68:69], L_lpoll')
        lay, pitch, n = 'T', RP, 18
        if t == 'T': wgt('wqkv_txt', 's65'); pitch = 6912; dep = [(F_LN + 128, 4)]
        elif t == 'VT': wgt('wo_img', 's65'); dep = [(F_T + 36, 18)]
        elif t == 'AT': wgt('wqkv_img', 's65', 4608); pitch = 6912; dep = [(F_Y, 36)]
        elif t == 'OT': wgt('wo_txt', 's65'); dep = [(F_AT, 18)]
        elif t == 'Y':
            if self.flags: self.lin('s70', [('s60', 64)], F_LN); poll([('s70', 64)])
            self.lin('s67', [('s60', 1056 * RP), ('s65', 1)], WS_H); self.srd(16, 'ws', 's67', 1056 * RP)
            n = 16; dep = [('s71', 17)]
        v = L['vA']
        a(f's_sub_u32 s84, s3, 4\ns_mov_b32 s76, {pitch}\ns_mul_i32 s80, s84, {2*PS}\ns_lshl_b32 s84, s84, 4\nv_and_b32 v{tm}, 3, v1\nv_lshlrev_b32 v{tm}, 4, v{tm}')
        if lay == 'T':
            a(f'v_lshrrev_b32 v{tm+1}, 5, v1\nv_bfe_u32 v{tm+2}, v1, 2, 2\nv_lshl_add_u32 v{tm+1}, v{tm+1}, 2, v{tm+2}\nv_bfe_u32 v{tm+2}, v1, 4, 1')
        a(f'v_lshl_add_u32 v{tm}, v{tm+2}, 6, v{tm}\nv_add_u32 v{tm+1}, s84, v{tm+1}\nv_mad_u32_u24 v{v}, v{tm+1}, s76, v{tm}\nv_add_u32 v{v+1}, {8*pitch - PS}, v{v}')
        a(f's_mov_b32 s78, {64*pitch if lay == "T" else 2048}\ns_mov_b32 s83, {n}\ns_call_b64 s[86:87], {"L_panel_nt" if t in ("T", "OT") else "L_panel"}')
        if t == 'Y':
            def stdep():
                a('s_lshl_b32 s70, s61, 1'); self.sdiv('s71', 's70', 3); a('s_min_u32 s71, s71, 9')
                self.lin('s70', [('s60', 99), ('s71', 9)], F_K)
                a(f's_cmp_eq_u32 s61, 16\ns_cselect_b32 s70, {F_T+18}, s70'); poll([('s70', 18), (F_T, 18)])
            if self.flags: self.w4(stdep)
            a('s_waitcnt vmcnt(0)\ns_barrier')
            if self.flags: a(f's_add_u32 s70, s61, {F_T+36}'); poll([('s70', 1)])
            a('s_mov_b32 s83, 1\ns_call_b64 s[86:87], L_panel_l')
            self.lin('s71', [('s60', 17)], F_PT)
        if t == 'OT':
            self.lin('s70', [('s61', 3)], F_GG + 54)
            if self.flags: self.w4(lambda: poll([('s70', 3)]))
            a('s_barrier')
        if self.flags: self.w4(lambda: poll(dep))
        a('s_waitcnt vmcnt(0)\ns_barrier\ns_barrier')
    def panel_subs(self):
        a = self.a; v = self.LV['vA']
        for lab, fl in (('L_panel', 'sc1'), ('L_panel_nt', 'nt')):
            a(f'{lab}:\ns_mov_b32 s81, 0\n{lab}_l:\ns_mov_b32 m0, s80\ns_add_u32 s80, s80, {8*PS}')
            a(f'buffer_load_dwordx4 v{v}, s[16:19], s81 offen {fl} lds\nbuffer_load_dwordx4 v{v+1}, s[16:19], s81 offen offset:{PS} {fl} lds')
            a(f's_add_u32 s81, s81, s78\ns_sub_u32 s83, s83, 1\ns_cmp_lg_u32 s83, 0\ns_cbranch_scc1 {lab}_l\ns_setpc_b64 s[86:87]')
    def sk_static(self):
        a = self.a; T, K = self.SBASE; x, y = 208, 209
        a(f'v_lshrrev_b32 v{x}, 4, v1\nv_mul_u32_u24 v{T}, {PS}, v{x}\nv_bfe_u32 v{y}, v1, 2, 2\nv_lshl_add_u32 v{T}, v{y}, 6, v{T}\nv_and_b32 v{y}, 3, v1\nv_lshl_add_u32 v{T}, v{y}, 3, v{T}')
        a(f'v_lshlrev_b32 v{K}, 4, v1')
        for b in (T, K):
            for k in (1, 2): a(f'v_add_u32 v{b+k}, {k*48*PS}, v{b}')
        a(f's_mul_i32 s92, s3, {36*1024}\nv_lshl_add_u32 v246, v1, 4, s92\nv_bfe_u32 v{y}, v1, 4, 1\nv_lshlrev_b32 v{y}, 9, v{y}\nv_lshrrev_b32 v{x}, 5, v1\nv_lshl_add_u32 v{y}, v{x}, 8, v{y}')
        a(f'v_and_b32 v{x}, 15, v1\nv_lshl_add_u32 v{y}, v{x}, 4, v{y}\nv_add_u32 v247, s92, v{y}')
        a(f'v_and_b32 v{x}, 12, v1\nv_bfe_u32 v{y}, v1, 4, 1\ns_lshl_b32 s92, s3, 4\nv_add3_u32 v{x}, v{x}, v{y}, s92\nv_mul_u32_u24 v{x}, {RP}, v{x}')
        a(f'v_and_b32 v{y}, 127, v{self.VCOL}\nv_add_u32 v248, v{x}, v{y}\nv_add_u32 v249, {2*RP}, v248')
    def sk_sub(self, lab, lay, fold=False):
        a = self.a; SB = self.SB; nk = 33 if fold else 36
        base = self.SBASE[0 if lay == 'T' else 1]
        def rd(kk):
            st = self.SA[kk & 1]; b = base + kk // 12; k = kk % 12
            if lay == 'K': return [f'ds_read_b128 {vr(st+4*t,4)}, v{b} offset:{(8*(k>>1)+2*t+(k&1))*PS}' for t in range(4)]
            return [f'ds_read_b64_tr_b16 {vr(st+4*t+2*h,2)}, v{b} offset:{4*k*PS + h*512 + (t>>1)*256 + (t&1)*32}' for t in range(4) for h in range(2)]
        a(f'{lab}:')
        AH = SKAH
        def ldb(kk):
            return ([f's_mov_b32 s92, {kk*1024}'] if kk % 4 == 0 else []) + [f'buffer_load_dwordx4 {vr(SB+4*kk,4)}, v246, s[20:23], s92 offen offset:{(kk%4)*1024} sc1']
        if fold: self.sk_factors(lambda: [a(x) for kk in range(AH) for x in ldb(kk)], AH)
        else:
            for kk in range(AH):
                for x in ldb(kk): a(x)
        seq = rd(0)
        for kk in range(nk):
            st = self.SA[kk & 1]
            acc = 16 if not fold else (48, 196)[(kk >> 1) & 1]
            zero = kk == 0 if not fold else kk % 2 == 0
            nxt = rd(kk + 1) if kk + 1 < nk else []
            ex = []
            if fold and kk % 2 == 1 and kk > 1 or fold and kk == nk - 1:
                r = (kk >> 1) - 1; pv = (48, 196)[r & 1]
                ex = [(f'v_mul_f32 v{16+e}, v{pv+e}, v{32+r}' if r == 0 else f'v_fmac_f32 v{16+e}, v{pv+e}, v{32+r}') for e in range(16)]
                if kk == nk - 1: ex = ['s_nop 7'] + ex
            seq.append(f's_waitcnt vmcnt({min(AH, nk-kk)-1})')
            for t in range(4):
                d = vr(acc + 4 * t, 4)
                seq.append(f'v_mfma_f32_16x16x32_bf16 {d}, {vr(st+4*t,4)}, {vr(SB+4*kk,4)}, {"0" if zero else d}')
                seq += nxt[t * len(nxt) // 4:(t + 1) * len(nxt) // 4]
            seq += ex
            if kk + AH < nk: seq += ldb(kk + AH)
        self.emit_waits(seq, [])
        a('s_nop 7\ns_setpc_b64 s[86:87]')
    def sk_factors(self, mid, nmid):
        a = self.a; st = 208; m = 250
        dst = lambda r: st + 2 * r if r < 16 else 252
        a(f'v_and_b32 v{m}, 15, v1\ns_lshl_b32 s92, s3, 4\nv_add_lshl_u32 v{m}, v{m}, s92, 3')
        for r in range(17): a(f's_mov_b32 s92, {r*1056*8}\nbuffer_load_dwordx2 {vr(dst(r),2)}, v{m}, s[28:31], s92 offen sc1')
        mid()
        a(f's_waitcnt vmcnt({nmid})\nv_max3_f32 v{m}, v{dst(0)}, v{dst(1)}, v{dst(2)}')
        for r in range(3, 17, 2): a(f'v_max3_f32 v{m}, v{m}, v{dst(r)}, v{dst(r+1)}')
        for r in range(17): a(f'v_sub_f32 v{dst(r)}, v{dst(r)}, v{m}')
        for r in range(17): a(f'v_exp_f32 v{dst(r)}, v{dst(r)}')
        a(f'v_mul_f32 v{m+1}, v{dst(0)}, v{dst(0)+1}')
        for r in range(1, 17): a(f'v_fmac_f32 v{m+1}, v{dst(r)}, v{dst(r)+1}')
        a(f'v_rcp_f32 v{m+1}, v{m+1}\ns_nop 0')
        for r in range(17): a(f'v_mul_f32 v{32+r if r < 16 else m}, v{dst(r)}, v{m+1}')
    def sk_pack(self, P=64):
        for t in range(4): self.a(f'v_cvt_pk_bf16_f32 v{P+2*t}, v{16+4*t}, v{17+4*t}\nv_cvt_pk_bf16_f32 v{P+2*t+1}, v{18+4*t}, v{19+4*t}')
    def sk_epi_subs(self):
        a = self.a
        a('L_sk_ft:'); self.sk_pack(); a('s_nop 1')
        for r in (0, 4):
            for d in range(2): a(f'v_permlane16_swap_b32 v{64+r+d}, v{66+r+d}')
        for p in range(2): a(f'buffer_store_dwordx4 {vr(64+4*p,4)}, v247, s[12:15], s70 offen offset:{1024*p} sc1')
        a('s_setpc_b64 s[68:69]')
        a('L_sk_row:'); self.sk_pack(72); self.xpose(72, 80, nj=1)
        a(f's_lshr_b32 s92, s3, 1\ns_mul_i32 s92, s92, {1024*RP}\ns_add_u32 s92, s92, s71')
        for p in range(2): a(f'buffer_store_dwordx4 {vr(72+4*p,4)}, v{248+p}, s[12:15], s92 offen sc1')
        a('s_setpc_b64 s[68:69]')
    def st_compute(self):
        a = self.a; lab = 'L_std'
        ft = lambda base, bmul=0: self.lin('s70', [('s61', 2048), ('s60', bmul)], base)
        self.lin('s67', [('s60', FTS // 2)], WS_QT); self.srd(20, 'ws', 's67', FTS // 2)
        self.lin('s67', [('s60', 1056 * RP), ('s61', 64 * RP)], WS_K)
        a(f's_mov_b32 s66, {64*RP}\ns_cmp_eq_u32 s61, 16\ns_cselect_b32 s66, {32*RP}, s66'); self.srd(16, 'ws', 's67', 's66')
        self.lin('s67', [('s60', 17 * 1056 * 8), ('s61', 1056 * 8)], WS_ST + 1024 * 8); self.srd(28, 'ws', 's67', 0x100000)
        A0 = 48
        a(f's_mul_i32 s92, s3, 9216\nv_lshl_add_u32 v{A0}, v1, 4, s92')
        for t in range(1, 4): a(f'v_add_u32 v{A0+t}, {t*36864}, v{A0}')
        a(f's_and_b32 s92, s3, 1\ns_mul_i32 s93, s92, 36864\nv_add_u32 v{A0+4}, s93, v{A0}\ns_sub_u32 s93, 36864, s93\nv_add_u32 v{A0+5}, s93, v{A0}')
        R0 = 136 * PS
        a(f's_lshl_b32 s92, s92, 13\ns_add_u32 s92, s92, {R0}\nv_lshl_add_u32 v{A0+6}, v1, 4, s92\nv_xor_b32 v{A0+7}, s92, v{A0+6}\ns_sub_u32 s92, {2*R0 + 8192}, s92\nv_lshl_add_u32 v{A0+7}, v1, 4, s92\nv_mov_b32 v{A0+8}, {CX+48}\nv_mov_b32 v{A0+9}, {CX+52}')
        a(f's_barrier\ns_cmp_eq_u32 s61, 17\ns_cbranch_scc1 {lab}_x')
        if not self.do_st: a(f's_branch {lab}_x')
        self.stamp(18)
        B = lambda kk, j: 64 + 8 * kk + 4 * j
        A = lambda kk, t: 136 + 16 * (kk % 6) + 4 * t
        def ld(kk):
            if kk % 4 == 0: a(f's_mov_b32 s92, {kk*1024}')
            for j in range(2): a(f'buffer_load_dwordx4 {vr(B(kk,j),4)}, v{A0+4+j}, s[20:23], s92 offen offset:{(kk%4)*1024} sc1')
            for t in range(4): a(f'buffer_load_dwordx4 {vr(A(kk,t),4)}, v{A0+t}, s[16:19], s92 offen offset:{(kk%4)*1024} sc1')
        for kk in range(6): ld(kk)
        for kk in range(9):
            a(f's_waitcnt vmcnt({6*(min(9, kk+6)-kk-1)})')
            for j in range(2):
                for t in range(4):
                    d = vr(16 + 16 * j + 4 * t, 4)
                    a(f'v_mfma_f32_16x16x32_bf16 {d}, {vr(A(kk,t),4)}, {vr(B(kk,j),4)}, {"0" if kk == 0 else d}')
            if kk + 6 < 9: ld(kk + 6)
        a(f's_nop 7\ns_cmp_lt_u32 s3, 2\ns_cbranch_scc1 {lab}_o')
        for q in range(8): a(f'ds_write_b128 v{A0+6}, {vr(16+4*q,4)} offset:{1024*q}')
        self.lds_arrive(A0 + 8, self.VONE)
        a(f's_branch {lab}_e\n{lab}_o:')
        self.lds_wait4(A0 + 8, 60, 2)
        for q in range(8): a(f'ds_read_b128 {vr(64+4*q,4)}, v{A0+6} offset:{1024*q}')
        a('s_waitcnt lgkmcnt(0)')
        for e in range(32): a(f'v_add_f32 v{16+e}, v{16+e}, v{64+e}')
        for q in range(4): a(f'ds_write_b128 v{A0+6}, {vr(32+4*q,4)} offset:{1024*q}')
        self.lds_arrive(A0 + 9, self.VONE)
        self.lds_wait4(A0 + 9, 60, 2)
        for q in range(4): a(f'ds_read_b128 {vr(64+4*q,4)}, v{A0+7} offset:{1024*q}')
        a('s_waitcnt lgkmcnt(0)')
        for e in range(16): a(f'v_add_f32 v{16+e}, v{16+e}, v{64+e}')
        a(f's_cmp_lg_u32 s61, 16\ns_cbranch_scc1 {lab}_m')
        for e in range(8, 16): a(f'v_mov_b32 v{16+e}, 0xff800000')
        a(f'{lab}_m:\nv_max_f32 v32, v16, v17')
        for e in range(2, 16, 2): a(f'v_max3_f32 v32, v32, v{16+e}, v{17+e}')
        self.allred(32, 34, 'v_max_f32', 1)
        a(f's_mov_b32 s92, {f2u(LOG2E * D ** -0.5):#x}\nv_mul_f32 v32, s92, v32')
        for e in range(16): a(f'v_fma_f32 v{16+e}, v{16+e}, s92, -v32')
        for e in range(16): a(f'v_exp_f32 v{16+e}, v{16+e}')
        ft(WS_PT, FTS // 2); a('s_call_b64 s[68:69], L_sk_ft\nv_add_f32 v33, v16, v17')
        for e in range(2, 16): a(f'v_add_f32 v33, v33, v{16+e}')
        self.allred(33, 34, 'v_add_f32', 1)
        a('s_lshl_b32 s92, s3, 7\nv_lshlrev_b32 v34, 3, v1\ns_mov_b64 exec, 0xffff\nbuffer_store_dwordx2 v[32:33], v34, s[28:31], s92 offen sc1\ns_mov_b64 exec, -1')
        a(f'{lab}_e:')
        self.sig_index('ST'); self.signal_now()
        self.stamp(19)
        a(f'{lab}_x:')
    def sk_compute(self, t):
        a = self.a
        half = t == 'Y'
        if half: self.st_compute()
        lab = a.label('sk')
        src = {'T': WS_HT, 'VT': WS_VT, 'ST': WS_QT, 'Y': WS_PT, 'AT': WS_Y, 'OT': WS_AT}[t]
        if half:
            self.lin('s67', [('s60', FTS // 2)], src)
            self.srd(20, 'ws', 's67', FTS // 2)
            self.lin('s67', [('s60', 17 * 1056 * 8), ], WS_ST + 1024 * 8); self.srd(28, 'ws', 's67', 0x100000)
        else: self.srd(20, 'ws', src, FTS)
        ft = lambda base, bmul=0: self.lin('s70', [('s61', 2048), ('s60', bmul)], base)
        if t == 'OT':
            a(f's_add_u32 s70, s65, {SZ["x_img"]}\ns_sub_u32 s71, {64*RP}, s65')
            self.srd(24, 'out', 's70', 's71'); self.srd(32, 'x_txt', 's65', 's71')
            for p in range(2): a(f'buffer_load_dwordx4 {vr(48+4*p,4)}, v{248+p}, s[32:35], 0 offen')
            a('s_waitcnt vmcnt(0)'); self.xpose(48, 64, inverse=True, nj=1)
            a('s_barrier')
            a('s_lshr_b32 s71, s3, 1'); self.lin('s70', [('s71', 4608), ('s61', 256)], WS_GATE + 2 * 4608); a('v_and_b32 v250, 48, v1')
            for sp in range(3):
                for it in range(4): a(f'buffer_load_dwordx4 {vr((32, 160, 176)[sp]+4*it,4)}, v250, s[12:15], s70 offen offset:{64*it} sc1')
                a(f's_add_u32 s70, s70, {4*4608}')
            a('s_waitcnt vmcnt(0)')
            for e in range(16): a(f'v_add_f32 v{32+e}, v{32+e}, v{160+e}\nv_add_f32 v{32+e}, v{32+e}, v{176+e}')
        a('s_barrier')
        self.stamp(16)
        if half: a(f's_cmp_ge_u32 s3, {2 if self.do_y else 0}\ns_cbranch_scc1 {lab}_s')
        if t == 'AT':
            self.lin('s70', [('s3', 18 * 4096), ('s61', 4096)], WS_Z); a('v_lshlrev_b32 v250, 4, v1')
            for it in range(4): a(f'buffer_load_dwordx4 {vr(32+4*it,4)}, v250, s[12:15], s70 offen offset:{1024*it} sc1')
        a(f's_call_b64 s[86:87], {"L_sky" if t == "Y" else "L_skt"}\ns_barrier')
        self.stamp(17)
        if t == 'T':
            a(f's_cmp_ge_u32 s61, 18\ns_cbranch_scc1 {lab}_k'); ft(WS_QT); a(f's_call_b64 s[68:69], L_sk_ft\ns_branch {lab}_e\n{lab}_k:')
            a(f's_cmp_ge_u32 s61, 36\ns_cbranch_scc1 {lab}_v\ns_lshr_b32 s71, s3, 1')
            self.lin('s70', [('s61', 2048), ('s71', 1024 * RP)], WS_K + 1024 * RP - 18 * 2048); a(f's_call_b64 s[68:69], L_sk_ft\ns_branch {lab}_e\n{lab}_v:')
            ft(WS_VT - 36 * 2048); a(f's_call_b64 s[68:69], L_sk_ft\ns_add_u32 s71, s65, {WS_H + 1024*RP - 4608}')
            a('s_call_b64 s[68:69], L_sk_row')
        elif t == 'VT': a(f's_add_u32 s71, s65, {WS_V + 1024*RP}\ns_call_b64 s[68:69], L_sk_row')
        elif t == 'AT':
            for e in range(16): a(f'v_add_f32 v{16+e}, v{16+e}, v{32+e}')
            ft(WS_AT); a('s_call_b64 s[68:69], L_sk_ft')
        elif t == 'Y':
            ft(WS_Y, FTS // 2); a('s_call_b64 s[68:69], L_sk_ft')
            for e in range(16): a(f'v_mul_f32 v{48+e}, v{48+e}, v250')
            self.lin('s70', [('s60', 36 * 4096), ('s3', 18 * 4096), ('s61', 4096)], WS_Z); a('v_lshlrev_b32 v250, 4, v1')
            for it in range(4): a(f'buffer_store_dwordx4 {vr(48+4*it,4)}, v250, s[12:15], s70 offen offset:{1024*it} sc1')
        elif t == 'OT':
            for it in range(4):
                for d in range(2): a(f'v_lshlrev_b32 v{64+2*d}, 16, v{48+2*it+d}\nv_and_b32 v{65+2*d}, 0xffff0000, v{48+2*it+d}')
                for r in range(4): a(f'v_fmac_f32 v{64+r}, v{16+4*it+r}, v{32+4*it+r}')
                for d in range(2): a(f'v_cvt_pk_bf16_f32 v{48+2*it+d}, v{64+2*d}, v{65+2*d}')
            self.xpose(48, 64, nj=1)
            for p in range(2): a(f'buffer_store_dwordx4 {vr(48+4*p,4)}, v{248+p}, s[24:27], 0 offen sc1')
        if half: a(f's_branch {lab}_e\n{lab}_s:\ns_barrier')
        a(f'{lab}_e:')
        if t != 'OT': self.sig_index(t); self.signal_now()
    def aux_interp(self, side, only):
        a = self.a; p = f'L_{side}x'; self.do_st = only is None or 'ST' in only; self.do_y = only is None or 'Y' in only
        a('s_mov_b32 s8, 0\ns_mov_b32 s60, 0\ns_mov_b32 s10, 0\ns_sub_u32 s62, s9, 42\ns_sub_u32 s92, s9, 18\ns_cmp_lt_u32 s9, 42\ns_cselect_b32 s62, s92, s62')
        if side == 'c': self.sk_static()
        for lim, prog in self.AUXPROG:
            ops = [o for o in prog.split() if only is None or o in only or (o == 'Y' and 'ST' in only)]
            code = sum(self.AUXOPS.index(o) << (4 * k) for k, o in enumerate(ops))
            a(f's_cmp_ge_u32 s9, {lim}\ns_cselect_b32 s8, {code}, s8')
        a(f'{p}_next:\ns_and_b32 s92, s8, 15\ns_lshr_b32 s8, s8, 4')
        for k, o in enumerate(self.AUXOPS[1:], 1): a(f's_cmp_eq_u32 s92, {k}\ns_cbranch_scc1 {p}_{o}')
        a('s_branch L_fin')
        for k, o in enumerate(self.AUXOPS[1:], 1):
            a(f'{p}_{o}:')
            if o in 'XG':
                if o == 'G':
                    a(f's_barrier\ns_lshl_b32 s92, s62, 1\ns_add_u32 s92, s92, {int(side == "l")}\ns_add_u32 s10, s10, 1')
                    a('s_mov_b32 s93, 18\ns_cmp_lt_u32 s62, 18\ns_cselect_b32 s93, 2, s93\ns_cmp_lt_u32 s62, 12\ns_cselect_b32 s93, 24, s93\ns_add_u32 s62, s62, s93')
                    self.gemv_job('gate', 2); a('s_lshl_b32 s77, s10, 2')
                else: a(f's_lshl_b32 s92, s9, 1\ns_add_u32 s92, s92, {int(side == "l")}\ns_mov_b32 s81, 1\ns_mov_b32 s66, 1'); self.gemv_job('mod', 1)
                self.srd(24, 'ws', 0, 0)
                a('s_mov_b32 s83, 0\ns_mov_b32 s11, 3\ns_call_b64 s[86:87], L_gemv\ns_barrier')
            else:
                self.idx_aux(o)
                self.sk_compute(o) if side == 'c' else self.sk_loader(o)
            self.stamp(k + 3)
            a(f's_branch {p}_next')
        if side == 'c':
            self.sk_sub('L_skt', 'T'); self.sk_sub('L_sky', 'T', True); self.sk_epi_subs()
        else: self.panel_subs()
    def kernel(self, name, only=None):
        a = self.a
        has = lambda t: only is None or t in only
        kernel_head(a, name)
        a('s_load_dwordx8 s[36:43], s[0:1], 0\ns_load_dwordx8 s[44:51], s[0:1], 32\ns_load_dwordx8 s[52:59], s[0:1], 64')
        a('s_cmp_ge_u32 s2, 256\ns_cbranch_scc1 L_end')
        a('s_getpc_b64 s[6:7]\nL_pc:\ns_lshr_b32 s92, s2, 3\ns_lshl_b32 s92, s92, 11\nv_subrev_u32 v2, 384, v0\nv_lshl_add_u32 v3, v2, 4, s92')
        a('s_mov_b32 s4, s6\ns_mov_b32 s5, s7\ns_mov_b32 s6, L_end - L_pc\ns_mov_b32 s7, 0x20000\nv_cmp_gt_u32 vcc, 128, v2')
        a('s_cbranch_vccz L_nocpf\nbuffer_load_dwordx4 v[248:251], v3, s[4:7], 0 offen\nL_nocpf:')
        a('v_lshrrev_b32 v1, 6, v0\nv_mov_b32 v15, 0\nv_readfirstlane_b32 s3, v1\nv_and_b32 v1, 63, v0')
        a(f'v_lshlrev_b32 v2, 2, v1\nv_add_u32 v2, {CX}, v2\nds_write_b32 v2, v15\nv_mov_b32 v202, 0')
        a('s_sub_u32 s9, s2, 200\ns_sub_u32 s10, s2, 112\ns_mov_b32 s92, s10\ns_mov_b32 s81, 0\ns_cmp_lt_u32 s10, 108\ns_cselect_b32 s66, 1, 0')
        self.gemv_job('mod')
        a(f's_mov_b32 s79, {XL}\ns_mov_b32 s80, {CX}\ns_mov_b32 s11, 7')
        for i, g in ((195, 128), (199, 129), (240, 83), (241, 87), (242, 200), (243, 200), (254, 130), (255, 131)):
            a(f's_cmp_eq_u32 s2, {i}\ns_cselect_b32 s10, {g}, s10')
        if not has('GV'): a('s_mov_b32 s66, 0')
        a(f's_and_b32 s83, s10, 127\ns_mul_i32 s83, s83, {16*RP}')
        a('s_waitcnt lgkmcnt(0)\ns_barrier')
        self.srd(12, 'ws', 0, SZ['ws'])
        self.stamp(0)
        a('s_cmp_ge_u32 s10, 128')
        a(f's_cselect_b32 s24, s{PTR["x_txt"]}, s{PTR["x_img"]}\ns_cselect_b32 s25, s{PTR["x_txt"]+1}, s{PTR["x_img"]+1}')
        a(f's_mov_b32 s26, {SZ["x_img"]}\ns_cselect_b32 s26, {SZ["x_txt"]}, s26\ns_mov_b32 s27, 0x20000\ns_cmp_ge_u32 s10, 132\ns_cselect_b32 s26, 0, s26')
        self.prefetch_u()
        a('s_cmp_ge_u32 s3, 4\ns_cbranch_scc1 L_loader')
        main = ['M', 'V', 'S']
        self.hooks = []; self.gate_job = False
        if 'dup' in OPT: main = ['V', 'V', 'V', 'V', 'S']
        elif 'vs' in OPT: main = ['V', 'M', 'V', 'M', 'S']
        else: main = [t for t in main if has(t)]
        chain = only is None or 'dup' in OPT or 'vs' in OPT
        def spare(): a('s_cmp_ge_u32 s92, 99\ns_cbranch_scc1 L_fin')
        a('s_cmp_ge_u32 s10, 132\ns_cbranch_scc1 L_c_nogv\ns_call_b64 s[86:87], L_gemv\nL_c_nogv:')
        self.stamp(1)
        self.cp_static()
        a('s_cmp_ge_u32 s10, 132\ns_cbranch_scc1 L_c_noln')
        if has('LN'): self.ln()
        a('L_c_noln:')
        self.stamp(3)
        body = self.a
        subs = Asm(); subs.uid = 10000; self.a = subs
        self.gemv_subs();
        self.gemm_sub('L_tk', 'T'); self.gemm_sub('L_qk', 'T', True); self.hook_sub(); self.gemm_sub('L_kk', 'K'); self.softmax_sub(); self.pv_sub()
        for h in self.hooks: subs(h)
        lsubs = Asm(); lsubs.uid = 20000; self.a = lsubs
        self.ld_subs()
        self.a = a = body
        self.row_offsets(self.VO, 216, None); self.ft_static()
        a('s_cmp_ge_u32 s2, 200\ns_cbranch_scc1 L_caux')
        if has('U'):
            self.idx_u('L_c_nou')
            self.cp_task('U', False, True, chain and main[0])
            self.stamp(4)
            if chain: self.idx_main(); a('s_branch L_c_k')
        a('L_c_nou:')
        self.idx_main(); spare()
        if chain: a('s_barrier\nL_c_k:')
        for k, t in enumerate(main):
            self.cp_task(t, False, not chain, chain and k + 1 < len(main) and main[k + 1], pv=only is None)
            self.stamp(5 + k)
        if has('PV'): self.cp_task('PV', False, True, False, pv=only is None)
        a('s_branch L_fin')
        a.lines += subs.lines
        a('L_caux:\ns_barrier')
        self.aux_interp('c', only)
        a('L_loader:')
        if self.flags:
            a('s_sub_u32 s84, s2, 87\ns_and_b32 s75, s84, 0xffffffe7\ns_cmp_lg_u32 s75, 0\ns_cbranch_scc1 L_noinit\ns_mul_i32 s84, s84, 8192')
            a(f'v_mov_b32 v16, 0\nv_mov_b32 v17, 0\nv_mov_b32 v18, 0\nv_mov_b32 v19, 0\nv_lshlrev_b32 v20, 4, v0\nv_subrev_u32 v20, 4096, v20')
            for k in range(16): a(f'buffer_store_dwordx4 v[16:19], v20, s[12:15], s84 offen sc1\ns_add_u32 s84, s84, 4096')
            a(f'v_mov_b32 v20, {CX+28}\nv_mov_b32 v21, 1\ns_waitcnt vmcnt(0)\ns_mov_b64 exec, 1\nds_add_rtn_u32 v22, v20, v21\ns_waitcnt lgkmcnt(0)\nv_cmp_eq_u32 vcc, 3, v22')
            a(f's_cbranch_vccz L_noinit1\nv_mov_b32 v20, 0\nglobal_atomic_add v20, v21, {sr(PTR["dbg"],2)} sc1\nL_noinit1:\ns_mov_b64 exec, -1\nL_noinit:')
        def w4job():
            a('s_cmp_ge_u32 s10, 132\ns_cbranch_scc1 L_w4j')
            if self.flags:
                a(f's_call_b64 s[68:69], L_lready\nv_mov_b32 v20, {CX+20}\nv_mov_b32 v21, 4'); self.lds_arrive(20, 21)
            a('s_cmp_eq_u32 s66, 0\ns_cbranch_scc1 L_w4j\nv_mov_b32 v124, s80\ns_call_b64 s[86:87], L_gv_red2\nL_w4j:')
        self.prefetch_qk()
        self.w4(w4job)
        self.ld_static()
        self.stamp(26)
        a('s_cmp_ge_u32 s2, 200\ns_cbranch_scc1 L_laux')
        if has('U'):
            self.idx_u('L_l_nou'); self.ld_late_start('U', False, 1)
            if chain: self.ld_body('U', main[0], self.idx_main, True, 2); a('s_branch L_l_k')
            else: self.ld_body('U', None)
        a('L_l_nou:')
        self.idx_main(); spare()
        for k, t in enumerate(main):
            if k == 0 or not chain: self.ld_late_start(t, False, 2, ready=True)
            if k == 0: a('L_l_k:')
            self.ld_body(t, main[k + 1] if chain and k + 1 < len(main) else None, k=3 + k)
        if has('PV'): self.ld_late_start('PV', False, 10); self.ld_body('PV', None)
        a('s_branch L_fin')
        a.lines += lsubs.lines
        a('L_laux:')
        if self.flags: self.w4(lambda: a('s_call_b64 s[68:69], L_lready'))
        a('s_barrier')
        self.aux_interp('l', only)
        a('L_fin:')
        self.stamp_store()
        a('L_end:\ns_endpgm')
    def rows4(self, srd, pitch, offs):
        a = self.a
        a(f'v_lshrrev_b32 v216, 4, v1\nv_and_b32 v217, 15, v1\nv_mul_u32_u24 v216, {pitch}, v216\nv_lshl_add_u32 v216, v217, 4, v216')
        for k, so in enumerate(offs):
            for i in range(9): a(f'buffer_load_dwordx4 {vr(252,4)}, v216, {sr(srd,4)}, {so} offen offset:{i*256}')
    def prefetch_u(self):
        if 'pfu' not in OPT: return
        a = self.a
        a('s_sub_u32 s84, s2, 116\ns_cmp_ge_u32 s84, 72\ns_cbranch_scc1 L_pfu\ns_lshl_b32 s84, s84, 2\ns_and_b32 s85, s3, 3\ns_add_u32 s84, s84, s85')
        a(f's_cmp_ge_u32 s3, 4\ns_cselect_b32 s32, s{PTR["wo_img"]}, s{PTR["wqkv_img"]}\ns_cselect_b32 s33, s{PTR["wo_img"]+1}, s{PTR["wqkv_img"]+1}')
        a(f's_mov_b32 s34, {SZ["wqkv_img"]}\ns_cselect_b32 s34, {SZ["wo_img"]}, s34\ns_mov_b32 s35, 0x20000\ns_movk_i32 s85, 6912\ns_cselect_b32 s85, 2304, s85\ns_cselect_b32 s82, 0, 4608')
        a('s_mul_i32 s84, s84, s85\ns_lshl_b32 s84, s84, 2\ns_add_u32 s84, s84, s82')
        self.rows4(32, 's85', ['s84'])
        a('L_pfu:')
    def prefetch_qk(self):
        if 'pf' not in OPT: return
        a = self.a
        a(f's_cmp_lt_u32 s2, 220\ns_cbranch_scc1 L_pfqk\ns_cmp_eq_u32 s3, 4\ns_cbranch_scc1 L_pfqk\ns_sub_u32 s84, s2, 220\ns_mul_i32 s84, s84, 3\ns_add_u32 s84, s84, s3\ns_sub_u32 s84, s84, 5')
        self.srd(32, 'wqkv_img', 0, SZ['wqkv_img'])
        a(f's_cmp_ge_u32 s10, 132\ns_cbranch_scc1 L_pfqk1\nv_mov_b32 v20, {CX+32}'); self.lds_wait4(20, 21)
        a(f'L_pfqk1:\ns_mul_i32 s85, s84, {4*6912}\ns_add_u32 s82, s85, 2304')
        self.rows4(32, 6912, ['s85', 's82'])
        a('s_add_u32 s84, s84, 108\ns_cmp_lt_u32 s84, 288\ns_cbranch_scc1 L_pfqk1\nL_pfqk:')

def post(text):
    import re
    if 'nochk' in OPT:
        text = re.sub(r'  s_cbranch_vccnz L_chk_\d+_s\n', '', text).replace('L_spin:\n', 'L_spin:\n  s_setpc_b64 s[68:69]\n')
    if 'nofree' in OPT:
        text = text.replace('  s_cbranch_vccnz L_run_slow\n', '').replace('  s_cbranch_vccz L_run_go\nL_run_slow:', '  s_branch L_run_go\nL_run_slow:')
    if 'nocw' in OPT: text = text.replace('  ds_write_b32 v253, v252\n', '')
    if 'nocr' in OPT: text = text.replace('  ds_read_b32 v255, v254\n', '')
    if 'nolw' in OPT: text = text.replace('  ds_write_b32 v10, v12\n', '')
    if 'nolr' in OPT: text = text.replace('  ds_read_b32 v24, v9\n', '')
    if 'noldr' in OPT: text = text.replace('L_lprog0:\n', 'L_lprog0:\n  s_endpgm\n')
    if 'nocmp' in OPT: text = text.replace('L_cprog0:\n', 'L_cprog0:\n  s_endpgm\n')
    if 'nobar' in OPT: text = text.replace('  s_barrier\n', '')
    return text
def relabel(text, suffix):
    import re
    return re.sub(r'\b(L_\w+)', lambda m: m.group(1) + suffix, text)

def build(mode='fused', instr=False, cls=Mega):
    hdr = [l for l in open('standalone__mm_dit__diffusion.s.ref').read().split('\n')
           if l.startswith(';') and '@launch' not in l and 'Override launch' not in l and 'Harness parses' not in l]
    out = '\n'.join(hdr) + '\n'
    if mode == 'fused':
        name = 'standalone__mm_dit__diffusion_kernel'
        m = cls(instr, True); m.kernel(name)
        out += f'; @launch grid=(256,1,1) block=(512,1,1) lds={LDS}\n'
        out += '.amdgcn_target "amdgcn-amd-amdhsa--gfx950"\n.text\n' + m.a.text() + '.section .rodata,"a"\n' + kernel_desc(name, 256, 102)
        return out
    if mode.startswith('only:'):
        name = 'standalone__mm_dit__diffusion_kernel'
        m = cls(instr, False); m.kernel(name, set(mode[5:].split('+')))
        out += f'; @launch grid=(256,1,1) block=(512,1,1) lds={LDS}\n'
        out += '.amdgcn_target "amdgcn-amd-amdhsa--gfx950"\n.text\n' + m.a.text() + '.section .rodata,"a"\n' + kernel_desc(name, 256, 102)
        return out
    steps = [{'U', 'GV', 'G', 'X'}, {'LN'}, {'M', 'V', 'T'}, {'S', 'VT', 'Q2'}, {'PV', 'ST'}, {'Y'}, {'AT'}, {'OT'}]
    text = ''; desc = ''
    for k, st in enumerate(steps):
        name = f'step{k}_kernel'
        m = cls(instr, False); m.kernel(name, st)
        text += relabel(m.a.text(), f'_{k}'); desc += kernel_desc(name, 256, 102)
        out += f'; @launch kernel={name} grid=(256,1,1) block=(512,1,1) lds={LDS}\n'
    out += '.amdgcn_target "amdgcn-amd-amdhsa--gfx950"\n.text\n' + text + '.section .rodata,"a"\n' + desc
    return out

if __name__ == '__main__':
    mode = sys.argv[2] if len(sys.argv) > 2 else 'fused'
    open(sys.argv[1], 'w').write(post(build(mode, len(sys.argv) > 3)))
```

```python
import sys, struct
from asmlib import *
from gemm import Operand, emit_swz, emit_swap23

D = 1152
KA = ['x_img', 'x_txt', 'c', 'wqkv_img', 'wqkv_txt', 'wo_img', 'wo_txt', 'wmod_img', 'wmod_txt', 'out', 'dbg', 'ws']
PTR = {n: 36 + 2 * k for k, n in enumerate(KA)}
SZ = dict(x_img=4718592, x_txt=147456, c=4608, wqkv_img=7962624, wqkv_txt=7962624, wo_img=2654208, wo_txt=2654208,
          wmod_img=15925248, wmod_txt=15925248, out=4866048, dbg=256, ws=268435456)
MB = 1 << 20
RP = 2304
WS_FLAG = 0
WS_MODP = 151552
WS_GATE = WS_MODP + 3 * 4 * 9216
WS_ST = 327680
FTS = 4 * 36 * 1024
WS_HT = 655360; WS_QT = WS_HT + FTS; WS_VT = WS_QT + FTS; WS_Q2 = WS_VT + FTS; WS_PT = WS_Q2 + FTS; WS_Y = WS_PT + FTS; WS_AT = WS_Y + FTS
WS_Z = WS_AT + FTS
assert WS_Z + 4 * 18 * 4096 <= 2 * MB and WS_GATE + 12 * 4608 <= WS_ST and WS_ST + 34 * 1056 * 8 + 1024 <= WS_HT
BS = 2 * 1056 * RP
WS_H = 2 * MB; WS_Q = WS_H + BS; WS_K = WS_Q + BS; WS_V = WS_K + BS; WS_P = WS_V + BS; WS_U = WS_P + BS
USZ = 1152 * RP
WS_DBG = 64 * MB
FS = 128
F_GG = 0
F_LN = 108
F_U = 240
F_K = 348
F_V = 546
F_P = 744
F_T = 942; F_VT = 996; F_PT = 1014; F_Y = 1048; F_AT = 1084
NFLAG = 1184
assert WS_MODP == NFLAG * FS and WS_GATE == 4 * 65536
PS = 1056
NS = 5; CH = 1040; STAGE = 28 * CH; RING = NS * STAGE; XL = RING; LDS = 163840
CB = LDS - 2048
GL = XL + 13312
CX = XL + 17920
SPIN = 0x100000
LOG2E = 1.4426950408889634
def f2u(x): return struct.unpack('<I', struct.pack('<f', x))[0]

import os
OPT = set(os.environ.get('OPT', '').split(','))
LDF = os.environ.get('LDF', 'sc1')
SW = int(os.environ.get('SW', 5)); SD = int(os.environ.get('SD', 3))
DEPTH = int(os.environ.get('DEPTH', 2))
CSLEEP = '' if 'nocsleep' in OPT else 's_sleep 1\n'
LSLEEP = '' if 'nolsleep' in OPT else 's_sleep 1\n'
COLD = tuple(os.environ.get('COLD', 'none').split(','))
PSL = int(os.environ.get('PSL', 4))
PFAT = int(os.environ.get('PFAT', 5))
SIGW = int(os.environ.get('SIGW', 1))
ALN = f".p2align {os.environ.get('ALIGN', 6)}\n" + 's_nop 0\n' * int(os.environ.get('APAD', 0))
SKAH = int(os.environ.get('SKAH', 12))
PFD = int(os.environ.get('PFD', 4))
PFR = int(os.environ.get('PFR', 2))
XROT = tuple(os.environ.get('XROT', 'M,U').split(','))
PW = int(os.environ.get('PW', 3)); PD = int(os.environ.get('PD', 1))
NPEEL = int(os.environ.get('NPEEL', 2))
XAT = int(os.environ.get('XAT', 8))
class Mega:
    def __init__(self, instr=False, flags=True):
        self.a = Asm(); self.instr = instr; self.flags = flags

    def srd(self, srd, ptr, off, limit):
        a = self.a; p = PTR[ptr]
        a(f's_add_u32 s{srd}, s{p}, {off}\ns_addc_u32 s{srd+1}, s{p+1}, 0\ns_mov_b32 s{srd+2}, {limit}\ns_mov_b32 s{srd+3}, 0x20000')
    def sdiv(self, dst, src, c, rem=None):
        self.a(f's_mul_hi_u32 {dst}, {src}, {(1 << 32) // c + 1}')
        if rem: self.a(f's_mul_i32 {rem}, {dst}, {c}\ns_sub_u32 {rem}, {src}, {rem}')
    def lin(self, dst, terms, const=0):
        a = self.a; a(f's_mov_b32 {dst}, {const}')
        for r, c in terms: a(f's_mul_i32 s75, {r}, {c}\ns_add_u32 {dst}, {dst}, s75')
    def stamp(self, n):
        if self.instr: self.a(f's_memrealtime s[72:73]\ns_memtime s[96:97]\ns_waitcnt lgkmcnt(0)\nv_writelane_b32 v15, s72, {n}\nv_writelane_b32 v15, s96, {32+n}')
    def stamp_store(self):
        if not self.instr: return
        a = self.a
        self.stamp(31)
        a(f's_lshl_b32 s72, s2, 3\ns_add_u32 s72, s72, s3\ns_lshl_b32 s72, s72, 8\ns_add_u32 s72, s72, {WS_DBG}')
        a('v_lshlrev_b32 v14, 2, v1\nbuffer_store_dword v15, v14, s[12:15], s72 offen')
    def flag_lanes(self, vd, vt, ranges):
        a = self.a
        first = True; acc = 0
        if len(ranges) == 1:
            st, cnt = ranges[0]
            if isinstance(cnt, int): a(f'v_min_u32 v{vd}, {cnt-1}, v1')
            else: a(f's_sub_u32 s75, {cnt}, 1\nv_min_u32 v{vd}, s75, v1')
            a(f'v_add_u32 v{vd}, {st}, v{vd}\nv_lshlrev_b32 v{vd}, 7, v{vd}')
            return
        tot = sum(c for _, c in ranges)
        a(f'v_min_u32 v{vt}, {tot-1}, v1')
        for st, cnt in ranges:
            if isinstance(st, int): a(f's_mov_b32 s75, {st - acc}')
            else: a(f's_sub_u32 s75, {st}, {acc}')
            if first: a(f'v_mov_b32 v{vd}, s75')
            else: a(f'v_mov_b32 v{vt+1}, s75\nv_cmp_le_u32 vcc, {acc}, v{vt}\ns_nop 1\nv_cndmask_b32 v{vd}, v{vd}, v{vt+1}, vcc')
            first = False; acc += cnt
        a(f'v_add_lshl_u32 v{vd}, v{vd}, v{vt}, 7')
    def poll_sub(self, lab, vo, vt):
        a = self.a
        a(f'{lab}:\ns_mov_b32 s74, 0x10000\n{lab}_l:')
        a(f'buffer_load_dwordx4 {vr(vt,4)}, v{vo}, s[12:15], 0 offen sc1\ns_waitcnt vmcnt(0)')
        a(f'v_min3_u32 v{vt}, v{vt}, v{vt+1}, v{vt+2}\nv_min_u32 v{vt}, v{vt}, v{vt+3}\nv_cmp_ne_u32 vcc, 0, v{vt}')
        a(f's_cmp_eq_u64 vcc, exec\ns_cbranch_scc1 {lab}_d\ns_sub_u32 s74, s74, 1\ns_cmp_eq_u32 s74, 0\ns_cbranch_scc1 {lab}_d\ns_sleep {PSL}\ns_branch {lab}_l')
        a(f'{lab}_d:\ns_setpc_b64 s[68:69]')
    def ready_sub(self, lab, vt):
        a = self.a
        a(f'{lab}:\ns_mov_b32 s74, 0x10000\nv_mov_b32 v{vt+1}, 0\n{lab}_l:')
        a(f'global_load_dword v{vt}, v{vt+1}, {sr(PTR["dbg"],2)} sc1\ns_waitcnt vmcnt(0)\nv_cmp_le_u32 vcc, 4, v{vt}')
        a(f's_cbranch_vccnz {lab}_d\ns_sub_u32 s74, s74, 1\ns_cmp_eq_u32 s74, 0\ns_cbranch_scc1 {lab}_d\ns_sleep {PSL}\ns_branch {lab}_l')
        a(f'{lab}_d:\ns_setpc_b64 s[68:69]')

    def ld_params(self, t):
        a = self.a
        def ws(srd, off, lim=None): self.srd(srd, 'ws', off, lim if lim is not None else 0x4000000)
        def wsl(srd, base, sreg, lim=None):
            a(f's_add_u32 s67, {sreg}, {base}'); ws(srd, 's67', lim)
        def wgt(srd, name, sreg, const=0):
            a(f's_add_u32 s67, {sreg}, {const}\ns_sub_u32 s66, {SZ[name]}, s67'); self.srd(srd, name, 's67', 's66')
        if t in 'UW':
            wgt(16, 'wo_img', 's65'); a(f's_mul_i32 s70, s62, {96*6912}'); wgt(20, 'wqkv_img', 's70', 4608); return 'T', RP, 6912, 18
        if t == 'M':
            wgt(16, 'wqkv_img', 's65', 0); wsl(20, WS_H, 's63', 's64'); return 'T', 6912, RP, 18
        if t == 'V':
            wsl(16, WS_U, 's65'); wsl(20, WS_H, 's63', 's64'); return 'T', RP, RP, 18
        if t == 'S':
            self.lin('s70', [('s60', 1056 * RP), ('s61', 128 * RP)])
            a(f's_mov_b32 s71, {128*RP}\ns_cmp_eq_u32 s61, 8\ns_cselect_b32 s71, {32*RP}, s71')
            wsl(16, WS_K, 's70', 's71'); wsl(20, WS_Q, 's63', 's64'); return 'K', RP, RP, 18
        if t == 'PV':
            a(f's_mul_i32 s70, s60, {1056*RP}\ns_add_u32 s70, s70, s65')
            wsl(16, WS_V, 's70'); wsl(20, WS_P, 's63', 's64'); return 'T', RP, RP, 17
        raise ValueError(t)
    def dep_ranges(self, t, aux=False):
        a = self.a
        if t == 'M':
            self.lin('s70', [('s60', 64), ('s62', 6)], F_LN)
            a('s_cmp_eq_u32 s62, 10\ns_cselect_b32 s71, 4, 6'); return [('s70', 's71')]
        if t == 'V':
            self.lin('s70', [('s61', 12)], F_U); return [('s70', 12)]
        if t == 'S':
            a('s_lshl_b32 s70, s61, 2'); self.sdiv('s71', 's70', 3)
            self.lin('s70', [('s60', 99), ('s71', 9)], F_K)
            a(f's_cmp_eq_u32 s61, 8\ns_cselect_b32 s70, {F_T+18}, s70')
            self.lin('s66', [('s60', 99), ('s62', 9)], F_K)
            return [('s70', 18), ('s66', 9)]
        if t == 'PV':
            self.lin('s70', [('s60', 99), ('s62', 9)], F_P); self.lin('s71', [('s60', 99), ('s61', 11)], F_V)
            return [('s70', 9), ('s71', 11)]
        return None
    def sig_index(self, t, aux=False):
        m = {'U': ([('s61', 12), ('s62', 1)], F_U), 'M': ([('s60', 99), ('s62', 9), ('s61', 1)], F_K),
             'V': ([('s60', 99), ('s61', 11), ('s62', 1)], F_V), 'S': ([('s60', 99), ('s62', 9), ('s61', 1)], F_P),
             'T': ([('s61', 1)], F_T), 'VT': ([('s61', 1)], F_VT), 'ST': ([('s60', 17), ('s61', 1)], F_PT),
             'Y': ([('s60', 18), ('s61', 1)], F_Y), 'AT': ([('s61', 1)], F_AT), 'LN': ([('s10', 1)], F_LN)}[t]
        self.lin('s88', [(r, c * FS) for r, c in m[0]] + [('s3', 4)], m[1] * FS)
    def set_bij(self, rows):
        a = self.a
        if rows == 'img':
            self.lin('s63', [('s60', 1056 * RP), ('s62', 96 * RP)])
            a(f's_mov_b32 s64, {96*RP}\ns_cmp_eq_u32 s62, 10\ns_cselect_b32 s64, {64*RP}, s64')
        else:
            self.lin('s63', [('s60', 1056 * RP)], 1024 * RP); a(f's_mov_b32 s64, {32*RP}')
        a('s_lshl_b32 s65, s61, 8')

    LV = dict(rowT=2, inT=3, rowKA=4, rowKB=5, inK=6, inKB=7, vF=8, oA=9, oB=10, vA=24, vB=28, t=20, fd=16)
    def ld_static(self):
        a = self.a; L = self.LV; t = L['t']
        a(f's_sub_u32 s84, s3, 4\ns_mul_i32 s85, s84, {4*CH}\ns_mov_b32 s82, s85\ns_mul_i32 s5, s84, {CH}\ns_sub_u32 s5, {16*CH}, s5\ns_mov_b32 m0, s82')
        a(f'v_bfe_u32 v{L["rowT"]}, v1, 2, 2\nv_lshl_add_u32 v{L["rowT"]}, s84, 4, v{L["rowT"]}')
        a(f'v_lshrrev_b32 v{t}, 4, v1\nv_and_b32 v{t+1}, 3, v1\nv_lshlrev_b32 v{t+1}, 4, v{t+1}\nv_lshl_add_u32 v{L["inT"]}, v{t}, 6, v{t+1}')
        a(f'v_bfe_u32 v{t}, v1, 2, 3\nv_lshl_add_u32 v{L["rowKA"]}, s84, 5, v{t}\ns_mul_i32 s75, s84, 24\nv_add_u32 v{L["rowKB"]}, s75, v{t}')
        a(f'v_bfe_u32 v{t}, v1, 4, 1\nv_mul_u32_u24 v{t}, 48, v{t}\nv_xor_b32 v{t+1}, v{t+1}, v{t}\nv_lshrrev_b32 v{t}, 5, v1\nv_lshl_add_u32 v{L["inK"]}, v{t}, 6, v{t+1}')
        a(f's_and_b32 s75, s84, 1\ns_mul_i32 s75, s75, 48\nv_xor_b32 v{L["inKB"]}, s75, v{L["inK"]}\nv_mov_b32 v{L["vF"]}, 0')
    def order_valu(self, n, dst, t, u0, limit, SW=SW, SD=SD):
        a = self.a; u, dl, sd = t, t + 1, t + 2
        a(f'v_add_u32 v{u}, {u0}, v{n}\nv_mov_b32 v{sd}, {SD}')
        a(f'v_mul_u32_u24 v{dl}, {(1<<16)//SW+1}, v{u}\nv_lshrrev_b32 v{dl}, 16, v{dl}\nv_mul_u32_u24 v{dl}, {SW}, v{dl}\nv_sub_u32 v{u}, v{u}, v{dl}')
        a(f'v_cmp_ge_u32 vcc, {SD}, v{u}\nv_cmp_eq_u32 s[66:67], 0, v{u}\nv_sub_u32 v{u}, v{n}, v{u}\nv_cndmask_b32 v{dl}, 0, -1, vcc')
        a(f'v_cmp_gt_u32 vcc, {0 if "nostag" in OPT else limit}, v{u}\nv_cndmask_b32 v{dl}, v{dl}, v{sd}, s[66:67]\ns_nop 0\nv_cndmask_b32 v{dl}, 0, v{dl}, vcc')
        a(f'v_add_u32 v{dst}, v{n}, v{dl}')
    def pv_order(self, q, t):
        a = self.a
        a(f'v_subrev_u32 v{q}, 1, v{q}\ns_add_u32 s84, s62, {PW}')
        self.order_valu(q, q, t, 's84', 7 - PD, PW, PD)
        a(f's_add_u32 s84, s61, 1\nv_add_u32 v{t}, 1, v{q}\nv_and_b32 v{t}, 8, v{t}\nv_add_u32 v{q}, s84, v{q}\nv_and_b32 v{q}, 7, v{q}\nv_max_u32 v{q}, v{q}, v{t}')
    def ld_setup(self, t):
        a = self.a; L = self.LV; tm = L['t']; vA, vB = L['vA'], L['vB']
        S = 17 if t in ('PV', 'Y') else 18
        cold = t in COLD and 'norot' not in OPT
        if cold:
            self.lin('s84', [('s61', 2), ('s60', 1), ('s62', 3)]); self.sdiv('s75', 's84', 18, 's83')
            a(f'v_add_u32 v{L["oB"]}, s83, v1\nv_subrev_u32 v{tm}, 18, v{L["oB"]}\nv_min_u32 v{L["oB"]}, v{L["oB"]}, v{tm}')
        else:
            a('s_add_u32 s84, s61, s62')
            if t == 'PV':
                a(f'v_lshrrev_b32 v{L["oB"]}, 1, v1'); self.pv_order(L['oB'], tm)
                a(f'v_and_b32 v{tm}, 1, v1\nv_lshl_add_u32 v{L["oB"]}, v{L["oB"]}, 1, v{tm}')
            else: self.order_valu(1, L['oB'], tm, 's84', 18 - SD)
            if t in XROT:
                a(f's_and_b32 s84, s2, 7\ns_mul_i32 s84, s84, 9\ns_lshr_b32 s84, s84, 2\nv_add_u32 v{L["oB"]}, s84, v{L["oB"]}\nv_subrev_u32 v{tm}, 18, v{L["oB"]}\nv_min_u32 v{L["oB"]}, v{L["oB"]}, v{tm}')
        lay, pA, pB, S2 = self.ld_params(t)
        assert S == S2
        ftB = t in ('S', 'PV')
        a(f's_mov_b32 s7, 2304\ns_mov_b32 s76, {pA}\ns_mov_b32 s77, {pB}\ns_mov_b32 s78, {pA * 64 if lay == "T" else 2048}')
        a(f'v_mul_u32_u24 v{L["oA"]}, s78, v{L["oB"]}\nv_lshlrev_b32 v{L["oB"]}, {11 if ftB else 7}, v{L["oB"]}')
        if lay == 'T':
            a(f'v_mad_u32_u24 v{vA}, v{L["rowT"]}, s76, v{L["inT"]}')
            for m in range(1, 4): a(f'v_add_u32 v{vA+m}, {m*(4*pA - CH)}, v{vA}')
        else:
            a(f's_sub_u32 s84, s3, 4\ns_mul_i32 s84, s84, {2*36864}\ns_add_u32 s84, s84, 64\nv_lshl_add_u32 v{vA}, v1, 4, s84')
            for m in range(1, 4): a(f'v_add_u32 v{vA+m}, {((m>>1)*36864 + (m&1)*1024 - m*CH) & 0xffffffff:#x}, v{vA}')
            a('s_sub_u32 s16, s16, 64\ns_subb_u32 s17, s17, 0\ns_add_u32 s18, s18, 64')
        a(f'v_readlane_b32 s100, v{L["oA"]}, 0\nv_readlane_b32 s101, v{L["oB"]}, 0\ns_mov_b32 s98, 1')
        if ftB:
            for m in range(3):
                a(f's_sub_u32 s84, s3, 4\ns_mul_i32 s84, s84, 3\ns_add_u32 s84, s84, {m}\ns_lshr_b32 s75, s84, 1\ns_mul_i32 s75, s75, {36864 - 2048}\ns_lshl_b32 s84, s84, 10')
                a(f's_add_u32 s84, s84, s75\ns_add_u32 s84, s84, {(64 - m*CH) & 0xffffffff:#x}\nv_lshl_add_u32 v{vB+m}, v1, 4, s84')
            a('s_sub_u32 s20, s20, 64\ns_subb_u32 s21, s21, 0\ns_add_u32 s22, s22, 64')
        else:
            a(f'v_mad_u32_u24 v{vB}, v{L["rowKB"]}, s77, v{L["inKB"]}\nv_xor_b32 v{tm}, 48, v{vB}')
            for m in range(1, 3): a(f'v_add_u32 v{vB+m}, {m*(8*pB - CH)}, v{tm if m & 1 else vB}')
        assert pA % 64 == 0 and pB % 64 == 0
    def min4(self, v): self.a(f'v_min3_u32 v{v}, v{v}, v{v+1}, v{v+2}\nv_min_u32 v{v}, v{v}, v{v+3}')
    def ld_issue(self, kind='n'):
        a = self.a; L = self.LV
        ld = lambda v, srd, so, m: a(f'buffer_load_dwordx4 v{v+m}, {srd}, {so} offen offset:{m*CH} {LDF} lds') if 'noload' not in OPT else a('s_nop 0')
        if kind == 'y':
            ld(L['vA'], 's[16:19]', 's99', 0)
            a(f's_add_u32 s82, s82, {STAGE}\ns_cmp_ge_u32 s82, {RING}')
            ld(L['vA'], 's[16:19]', 's99', 1)
            a('s_cselect_b32 s82, s85, s82')
            ld(L['vA'], 's[16:19]', 's99', 2); ld(L['vA'], 's[16:19]', 's99', 3)
            a('s_mov_b32 m0, s82\ns_nop 0')
            return
        for m in range(4): ld(L['vA'], 's[16:19]', 's100', m)
        if kind == 'x': a('s_add_u32 s99, s100, s7')
        a(f's_add_u32 m0, s82, s5\nv_readlane_b32 s100, v{L["oA"]}, s98')
        ld(L['vB'], 's[20:23]', 's101', 0)
        a(f's_add_u32 s82, s82, {STAGE}\ns_cmp_ge_u32 s82, {RING}')
        ld(L['vB'], 's[20:23]', 's101', 1)
        a('s_cselect_b32 s82, s85, s82')
        ld(L['vB'], 's[20:23]', 's101', 2)
        a(f's_mov_b32 m0, s82\nv_readlane_b32 s101, v{L["oB"]}, s98\ns_add_u32 s98, s98, 1')
    def ld_subs(self):
        a = self.a; L = self.LV
        loop = lambda l: a(f's_sub_u32 s83, s83, 1\ns_cmp_lg_u32 s83, 0\ns_cbranch_scc1 {l}\ns_setpc_b64 s[86:87]')
        a('L_issue:'); self.ld_issue(); loop('L_issue')
        a('L_steady:\ns_waitcnt vmcnt(14)\ns_barrier'); self.ld_issue(); loop('L_steady')
        a('L_issue2:'); self.ld_issue('x'); self.ld_issue('y'); a('s_setpc_b64 s[86:87]')
        a('L_steady2:\ns_waitcnt vmcnt(11)\ns_barrier'); self.ld_issue('x')
        a('s_waitcnt vmcnt(11)\ns_barrier'); self.ld_issue('y'); loop('L_steady2')
        self.poll_sub('L_lpoll', L['vF'], L['fd'])
        self.ready_sub('L_lready', L['fd'])
    def ld_call(self, what, n=None):
        if n is not None:
            if n == 0: return
            self.a(f's_mov_b32 s83, {n}')
        self.a(f's_call_b64 s[86:87], {what}')
    def w4(self, fn):
        lab = self.a.label('w4'); self.a(f's_cmp_lg_u32 s3, 4\ns_cbranch_scc1 {lab}'); fn(); self.a(f'{lab}:')
    def ld_late_start(self, t, aux, k, ready=False):
        a = self.a; L = self.LV
        def poll():
            r = self.dep_ranges(t, aux)
            if ready: a('s_call_b64 s[68:69], L_lready')
            if r: self.flag_lanes(L['vF'], L['t'], r); a('s_call_b64 s[68:69], L_lpoll')
        self.ld_setup(t)
        if self.flags and (t not in 'UW' or ready): self.w4(poll)
        a('s_barrier')
        self.stamp(k)
        if t in 'MW':
            self.ld_call('L_issue2'); a('s_waitcnt vmcnt(4)\ns_barrier'); self.ld_call('L_issue2'); return
        self.ld_call('L_issue', 2)
        a('s_waitcnt vmcnt(7)\ns_barrier')
        self.ld_call('L_issue', 2)
    def ld_pv_start(self):
        a = self.a; L = self.LV; vt = L['fd']
        st, t, ad, vf = 64, 100, 96, 112
        self.ld_setup('PV')
        self.lin('s70', [('s60', 17 * 1056 * 8), ('s62', 96 * 8)], WS_ST); self.srd(28, 'ws', 's70', 0x100000)
        a(f'v_and_b32 v{vf}, 15, v1\ns_and_b32 s92, s3, 1\ns_mul_i32 s92, s92, 48\nv_add_lshl_u32 v{t}, v{vf}, s92, 3\nv_lshrrev_b32 v{t+1}, 4, v1\ns_movk_i32 s92, {1056*8}')
        for m in range(2):
            n = ad + 2 * m
            a(f'v_add_u32 v{n}, {4*m}, v{t+1}'); self.pv_order(n, t + 3)
            a(f'v_lshlrev_b32 v{n}, 1, v{n}\nv_mad_u32_u24 v{n}, v{n}, s92, v{t}\nv_add_u32 v{n+1}, s92, v{n}')
        a(f's_mul_i32 s92, s3, {9*192}\ns_add_u32 s92, s92, {XL+4096-4*9*192}\nv_lshl_add_u32 v{vf}, v{vf}, 2, s92\nv_mul_u32_u24 v{t+1}, 192, v{t+1}\nv_add_u32 v{t+1}, v{t+1}, v{vf}')
        def stats():
            a(f's_mov_b32 s93, {16*1056*8}')
            for m in range(4):
                for jt in range(3): a(f'buffer_load_dwordx2 {vr(st+2*(m*3+jt),2)}, v{ad+m}, s[28:31], 0 offen offset:{128*jt} sc1')
            for jt in range(3): a(f'buffer_load_dwordx2 {vr(st+2*(12+jt),2)}, v{t}, s[28:31], s93 offen offset:{128*jt} sc1')
        if self.flags:
            self.lin('s70', [('s60', 99), ('s62', 9)], F_P); self.lin('s71', [('s60', 99), ('s61', 11)], F_V)
            def first():
                a('s_cmp_eq_u32 s61, 8\ns_cselect_b32 s66, s70, s71'); self.flag_lanes(L['vF'], L['t'], [('s71', 11), ('s66', 1)]); a('s_call_b64 s[68:69], L_lpoll')
            self.w4(first)
            a(f'v_and_b32 v{L["vF"]}, 7, v1\ns_add_u32 s66, s61, 1\nv_add_u32 v{L["vF"]}, s66, v{L["vF"]}\nv_subrev_u32 v{L["t"]}, 9, v{L["vF"]}\nv_min_u32 v{L["vF"]}, v{L["vF"]}, v{L["t"]}\nv_add_lshl_u32 v{L["vF"]}, v{L["vF"]}, s70, 7')
        a('s_barrier')
        self.stamp(10)
        self.ld_call('L_issue', 2)
        if self.flags: a(f'buffer_load_dwordx4 {vr(vt,4)}, v{L["vF"]}, s[12:15], 0 offen sc1')
        a(f's_waitcnt vmcnt({7 + self.flags})\ns_barrier')
        if self.flags:
            a('s_waitcnt vmcnt(0)'); self.min4(vt)
            a(f'v_cmp_eq_u32 vcc, 0, v{vt}\ns_cbranch_vccz L_pv_fast\ns_barrier\ns_call_b64 s[68:69], L_lpoll')
            stats(); self.ld_call('L_issue', 2); a('s_branch L_pv_tab\nL_pv_fast:')
        stats(); self.ld_call('L_issue', 1); a('s_waitcnt vmcnt(22)\ns_barrier'); self.ld_call('L_issue', 1)
        a('L_pv_tab:')
        self.stamp(11)
        a('s_waitcnt vmcnt(14)')
        mx, o = t + 4, t + 8
        M = [[st + 2 * (m * 3 + jt) for m in range(5)] for jt in range(3)]
        for jt in range(3): a(f'v_max3_f32 v{mx+jt}, v{M[jt][0]}, v{M[jt][2]}, v{M[jt][4]}')
        self.allred(mx, o, 'v_max_f32')
        for m in (0, 2, 4):
            for jt in range(3): a(f'v_sub_f32 v{M[jt][m]}, v{M[jt][m]}, v{mx+jt}')
        for m in (0, 2, 4):
            for jt in range(3): a(f'v_exp_f32 v{M[jt][m]}, v{M[jt][m]}')
        for jt in range(3): a(f'v_mul_f32 v{mx+jt}, v{M[jt][0]}, v{M[jt][0]+1}')
        for m in range(1, 4):
            for jt in range(3): a(f'v_fmac_f32 v{mx+jt}, v{M[jt][m & 2]}, v{M[jt][m]+1}')
        self.allred(mx, o, 'v_add_f32')
        for jt in range(3): a(f'v_fmac_f32 v{mx+jt}, v{M[jt][4]}, v{M[jt][4]+1}')
        for jt in range(3): a(f'v_rcp_f32 v{mx+jt}, v{mx+jt}')
        a('s_nop 0')
        for m in (0, 2, 4):
            for jt in range(3): a(f'v_mul_f32 v{M[jt][m]}, v{M[jt][m]}, v{mx+jt}\nds_write_b32 v{t+1 if m < 4 else vf}, v{M[jt][m]} offset:{m*384+jt*64}')
        a('s_waitcnt vmcnt(7) lgkmcnt(0)')
        self.stamp(12)
        a('s_barrier'); self.ld_call('L_issue', 2)
    def ld_body(self, t, nxt, pre=None, ready=False, k=0):
        a = self.a; L = self.LV; vt = L['fd']
        M = t in 'MW'
        left = {'PV': 11, 'M': 32, 'W': 32}.get(t, 14)
        run = (lambda n: self.ld_call('L_steady2', n // 2)) if M else (lambda n: self.ld_call('L_steady', n))
        def ask(r):
            self.flag_lanes(L['vF'], L['t'], r())
            a(f'buffer_load_dwordx4 {vr(vt,4)}, v{L["vF"]}, s[12:15], 0 offen sc1')
        def chk():
            lab = a.label('dep_ok'); a(f's_waitcnt vmcnt({11 if M else 14})'); self.min4(vt)
            a(f'v_cmp_ne_u32 vcc, 0, v{vt}\ns_cmp_eq_u64 vcc, exec\ns_cbranch_scc1 {lab}')
            a(f's_call_b64 s[68:69], L_lpoll\n{lab}:')
        w = (11, 4) if M else (14, 7)
        drain = f's_waitcnt vmcnt({w[0]})\ns_barrier\ns_waitcnt vmcnt({w[1]})\ns_barrier\ns_waitcnt vmcnt(0)\ns_barrier\ns_barrier'
        if not nxt:
            if t == 'PV':
                def gdep():
                    a(f's_lshl_b32 s66, s61, 1\ns_add_u32 s66, s66, {F_VT}\ns_mul_i32 s67, s61, 6'); return [('s67', 6), ('s66', 2)]
                def gate():
                    if self.flags: chk()
                    self.lin('s67', [('s60', 4608), ('s65', 2)], WS_GATE); self.srd(24, 'ws', 's67', 2 * 4 * 4608 + 512)
                    t_ = L['t']
                    a(f'v_lshrrev_b32 v{t_+1}, 5, v1\nv_mul_u32_u24 v{t_+1}, {4*4608 - 512}, v{t_+1}\nv_lshl_add_u32 v{t_}, v1, 4, v{t_+1}\ns_mov_b32 m0, {GL}\ns_mov_b32 s67, {2*4*4608 - 1024}')
                    a(f'buffer_load_dwordx4 v{t_}, s[24:27], 0 offen sc1 lds\nbuffer_load_dwordx4 v{t_}, s[24:27], s67 offen offset:1024 sc1 lds\ns_mov_b32 m0, s82')
                run(left - 3)
                if self.flags: self.w4(lambda: ask(gdep))
                run(2); self.w4(gate); run(1)
            else: run(left)
            if t == 'S' and self.gate_job:
                a('s_cmp_ge_u32 s2, 108\ns_cbranch_scc1 L_nogate\ns_mov_b32 s92, s2'); self.gemv_job('gate', 2); self.srd(24, 'ws', 0, 0)
                a('s_mov_b32 s83, 0\ns_mov_b32 s11, 3\ns_mov_b32 s66, 2\ns_mov_b32 s77, 4\ns_mov_b32 s6, -1\ns_call_b64 s[86:87], L_gemv\ns_waitcnt vmcnt(14)\ns_barrier')
                self.gemv_loads(self.GW, self.GC, {2: 's_waitcnt vmcnt(15)\ns_barrier', 5: 's_waitcnt vmcnt(11)\ns_barrier', 8: 's_barrier'})
                a('s_call_b64 s[86:87], L_gemv2\ns_branch L_gated\nL_nogate:')
                a(drain + '\nL_gated:')
            else: a(drain)
            if ready:
                if self.flags: self.w4(lambda: a('s_call_b64 s[68:69], L_lready'))
                a('s_barrier')
            return
        if pre: pre()
        if ready and self.flags:
            run(left - 8); left = 5
            self.w4(lambda: a(f'v_mov_b32 v{vt+1}, 0\nglobal_load_dword v{vt}, v{vt+1}, {sr(PTR["dbg"],2)} sc1'))
            run(3)
            lab = a.label('rdy_ok')
            self.w4(lambda: a(f'v_cmp_le_u32 vcc, 4, v{vt}\ns_cbranch_vccnz {lab}\ns_call_b64 s[68:69], L_lready\n{lab}:'))
        if t == 'M' and 'bg' in OPT:
            for n in range(4):
                self.bg_prefetch(n); run(4); left -= 4
        lab = a.label('nx')
        if self.flags:
            run(left - 2)
            ask(lambda: self.dep_ranges(nxt, False))
            run(2)
            a(f's_waitcnt vmcnt({w[0]})'); self.min4(vt)
            a(f'v_cmp_ne_u32 s[94:95], 0, v{vt}')
        else: run(left)
        self.stamp(k)
        self.ld_setup(nxt)
        if self.flags:
            a(f's_cmp_eq_u64 s[94:95], exec\ns_cbranch_scc1 {lab}_g\n{drain}\ns_call_b64 s[68:69], L_lpoll')
            if nxt == 'M': self.ld_call('L_issue2'); a('s_waitcnt vmcnt(4)\ns_barrier'); self.ld_call('L_issue2')
            else: self.ld_call('L_issue', 2); a('s_waitcnt vmcnt(7)\ns_barrier'); self.ld_call('L_issue', 2)
            a(f's_branch {lab}_e\n{lab}_g:')
        if nxt == 'M': self.ld_call('L_steady2', 2)
        elif M:
            for _ in range(2): a('s_waitcnt vmcnt(11)'); self.ld_call('L_steady', 1)
            self.ld_call('L_steady', 2)
        else: self.ld_call('L_steady', 4)
        a(f's_barrier\n{lab}_e:')
    def bg_prefetch(self, n):
        a = self.a
        a('s_lshl_b32 s92, s2, 2\ns_add_u32 s92, s92, s3\ns_sub_u32 s92, s92, 4\nv_lshlrev_b32 v32, 4, v1')
        if n < 2:
            self.srd(24, 'wqkv_txt', 0, SZ['wqkv_txt'])
            a(f's_mul_i32 s92, s92, 10240\ns_add_u32 s92, s92, {5120*n}\ns_min_u32 s92, s92, {SZ["wqkv_txt"]-5120}\ns_add_u32 s93, s92, 4096')
            for i in range(5): a(f'buffer_load_dwordx4 v[36:39], v32, s[24:27], {"s92" if i < 4 else "s93"} offen offset:{1024*(i&3)}')
        else:
            self.srd(24, 'wmod_img' if n == 2 else 'wmod_txt', 0, SZ['wmod_img'])
            a('s_mul_i32 s92, s92, 3\ns_mov_b32 exec_hi, 0xf')
            for i in range(3):
                a(f's_add_u32 s93, s92, {i}\ns_and_b32 s84, s93, 1\ns_lshr_b32 s93, s93, 1\ns_min_u32 s93, s93, 1151\ns_mul_i32 s93, s93, 13824\ns_mul_i32 s84, s84, 1152\ns_add_u32 s93, s93, s84\ns_add_u32 s93, s93, 4608')
                a('buffer_load_dwordx4 v[36:39], v32, s[24:27], s93 offen\nbuffer_load_dwordx4 v[36:39], v32, s[24:27], s93 offen offset:576')
            a('s_mov_b32 exec_hi, -1')

    VA = 2; VB = 3; DT = 4; DK = 5; TA = 6; VROW = 10; VCOL = 11; VONE = 12; VZERO = 13
    ACC = 16; TMP = [64, 112]; FA = [160, 176]; FB = [192, 204]; FREE = 216
    def cp_static(self):
        a = self.a
        a('s_lshr_b32 s90, s3, 1\ns_and_b32 s91, s3, 1\ns_mov_b32 s89, -1\ns_mov_b32 s98, 0\ns_mov_b32 s88, 0')
        g, c, x, y = 196, 197, 198, 199
        a(f'v_lshrrev_b32 v{g}, 4, v1\nv_lshrrev_b32 v{x}, 1, v1\nv_xor_b32 v{x}, v{x}, v1\nv_bfe_u32 v{x}, v{x}, 2, 1\nv_mul_u32_u24 v{x}, 3, v{x}\nv_xor_b32 v{x}, v{x}, v{g}')
        a(f'v_and_b32 v{c}, 7, v1\nv_lshlrev_b32 v{c}, 6, v{c}\nv_lshl_add_u32 v{x}, v{x}, 4, v{c}\nv_bfe_u32 v{c}, v1, 3, 1\nv_mul_u32_u24 v{c}, {CH}, v{c}\nv_add_u32 v{x}, v{x}, v{c}')
        a(f's_mul_i32 s92, s91, {6*CH}\ns_add_u32 s92, s92, {16*CH}\nv_add_u32 v{self.VB}, s92, v{x}')
        a(f's_mul_i32 s93, s90, {8*CH}\ns_sub_u32 s93, s93, s92\nv_mov_b32 v{self.DK}, s93')
        a(f'v_mul_u32_u24 v{g}, {2*CH}, v{g}\nv_bfe_u32 v{c}, v1, 2, 2\nv_lshl_add_u32 v{g}, v{c}, 6, v{g}\nv_and_b32 v{c}, 3, v1\nv_lshl_add_u32 v{g}, v{c}, 3, v{g}')
        a(f's_lshl_b32 s93, s90, 9\nv_add_u32 v{g}, s93, v{g}\nv_sub_u32 v{self.DT}, v{g}, v{self.VB}')
        a(f'v_and_b32 v{x}, 12, v1\nv_bfe_u32 v{y}, v1, 4, 1\ns_mul_i32 s92, s91, 48\nv_add3_u32 v{self.VROW}, v{x}, v{y}, s92')
        a(f'v_and_b32 v{x}, 3, v1\nv_lshlrev_b32 v{x}, 5, v{x}\nv_lshrrev_b32 v{y}, 5, v1\nv_lshl_add_u32 v{x}, v{y}, 4, v{x}\ns_lshl_b32 s92, s90, 7\nv_add_u32 v{self.VCOL}, s92, v{x}')
        a(f'v_bfe_i32 v8, v1, 0, 1\nv_bfe_i32 v9, v1, 1, 1\nv_mov_b32 v{self.VONE}, 1\nv_mov_b32 v{self.VZERO}, 0')
    def reads(self, lay, kk, st):
        B = [f'ds_read_b128 {vr(self.FB[st]+4*jt,4)}, v{self.VB} offset:{jt*2*CH + kk*(512 if lay == "T" else CH)}' for jt in range(3)]
        A = []
        for it in range(4):
            if lay == 'K': A.append(f'ds_read_b128 {vr(self.FA[st]+4*it,4)}, v{self.VA} offset:{it*2*CH + kk*CH}')
            else:
                for h in range(2):
                    A.append(f'ds_read_b64_tr_b16 {vr(self.FA[st]+4*it+2*h,2)}, v{self.VA} offset:{(h+8*kk)*CH + (it>>1)*256 + (it&1)*32}')
        k = 1 if lay == 'K' else 2
        return A[:k] + B + A[k:]
    def to_ft(self):
        self.a(f'v_add_u32 v{self.VB}, v{self.VB}, v14\nv_sub_u32 v{self.DT}, v{self.DT}, v14\nv_mov_b32 v14, 0')
    def mfmas(self, st, acc, zero=False):
        out = []
        for it in range(4):
            for jt in range(3):
                d = vr(acc + 4 * (it * 3 + jt), 4)
                out.append(f'v_mfma_f32_16x16x32_bf16 {d}, {vr(self.FA[st]+4*it,4)}, {vr(self.FB[st]+4*jt,4)}, {"0" if zero else d}')
        return out
    def advance(self, lay):
        return [f'v_add_u32 v{self.TA}, {STAGE}, v{self.VB}', f'v_add_u32 v{self.TA+1}, {(STAGE-RING) & 0xffffffff:#x}, v{self.VB}',
                f'v_min_u32 v{self.VB}, v{self.TA+1}, v{self.TA}', f'v_add_u32 v{self.VA}, v{self.VB}, v{self.DK if lay == "K" else self.DT}']
    def rebase(self, lay, sign):
        if sign > 0: self.a(self.advance(lay)[3])
    @staticmethod
    def regs_of(txt):
        import re
        out = []
        for m in re.finditer(r'v\[(\d+):(\d+)\]|v(\d+)', txt):
            out.append(set(range(int(m.group(1)), int(m.group(2)) + 1)) if m.group(1) else {int(m.group(3))})
        return out
    def emit_waits(self, seq, pending):
        a = self.a
        for ins in seq:
            rs = self.regs_of(ins)
            if ins.startswith('ds_read'):
                a(ins); pending.append(rs[0]); continue
            use = set().union(*rs) if rs else set()
            last = max((k for k, d in enumerate(pending) if d & use), default=-1)
            if last >= 0:
                n = len(pending) - 1 - last
                assert n <= 15
                a(f's_waitcnt lgkmcnt({n})'); del pending[:last + 1]
            a(ins)
        return pending
    def weave(self, mf, rd, other):
        if 'nomfma' in OPT: mf = ['s_nop 0'] * len(mf)
        if 'noread' in OPT: rd = []
        n = len(mf); gaps = [[] for _ in range(n)]
        for k, r in enumerate(rd): gaps[min(n - 1, k * (n - 1) // max(1, len(rd)) if len(rd) < n else k)].append(r)
        return gaps, mf
    def substep(self, mf, rd, tail, other=(), bar=False):
        gaps, mf = self.weave(mf, rd, other)
        n = len(mf); other = list(other)
        for k, x in enumerate(other): gaps[k * n // len(other)].append(x)
        gaps[n - 1] += list(tail)
        seq = []
        if bar and 'bar0' in OPT: seq = ['s_barrier']
        elif bar: gaps[0].insert(0, 's_barrier')
        for m, g in zip(mf, gaps): seq += [m] + g
        return seq
    def stage(self, lay, acc, zero=False, ex0=(), ex1=(), half=False, end=()):
        adv = self.advance(lay)
        if half: return self.substep(self.mfmas(0, acc, zero), [], list(end), adv + list(ex0), bar=True)
        return self.substep(self.mfmas(0, acc, zero), self.reads(lay, 1, 1), adv[2:], adv[:2] + list(ex0)) + \
               self.substep(self.mfmas(1, acc), self.reads(lay, 0, 0), list(end), ex1, bar=True)
    def loop(self, pre, body):
        pend = self.emit_waits(pre, [])
        start = [set(x) for x in pend]
        return start, pend
    def signal_now(self):
        if not self.flags: return
        self.a(f's_waitcnt vmcnt(0)\ns_mov_b64 exec, 1\nbuffer_store_dword v{self.VONE}, v{self.VZERO}, s[12:15], s88 offen sc1\ns_mov_b64 exec, -1')
    ACC2 = 112; ACCT = 64; VO = 240
    def hook(self, lab):
        self.hooks.append(f'{lab}_h:\ns_call_b64 s[68:69], L_hook\ns_branch {lab}_n')
        return f's_cmp_eq_u32 s94, s89\ns_cbranch_scc1 {lab}_h\n{lab}_n:'
    def capture(self, fn):
        keep = self.a; self.a = Asm(); fn(); out = [l.strip() for l in self.a.lines if not l.strip().startswith('s_nop')]; self.a = keep
        return out
    def gemm_sub(self, lab, lay, acc, merged=False, epi=None, npeel=2):
        a = self.a
        nit = 18 if merged else 9
        adv = self.advance(lay); onlyA = lambda kk, st: [r for r in self.reads(lay, kk, st) if f'v{self.VA} ' in r]
        def body(ex, zero=False):
            if merged:
                return self.substep(self.mfmas(0, acc, zero), self.reads(lay, 1, 1), adv[2:], adv[:2] + ex[0]) + \
                       self.substep(self.mfmas(1, acc), onlyA(0, 0), [], ex[1], bar=True) + \
                       self.substep(self.mfmas(0, self.ACC2, zero), onlyA(1, 1), adv[2:], adv[:2] + ex[2]) + \
                       self.substep(self.mfmas(1, self.ACC2), self.reads(lay, 0, 0), [], ex[3], bar=True)
            return self.stage(lay, acc, zero=zero, ex0=ex[0], ex1=ex[1]) + self.stage(lay, acc, ex0=ex[2], ex1=ex[3])
        first = self.reads(lay, 0, 0) if 'noread' not in OPT else []
        a(f'{lab}:')
        self.rebase(lay, 1)
        start = self.emit_waits(first, [])
        for r in range(48): a(f'v_mov_b32 v{acc+r}, 0')
        if merged:
            for r in range(48): a(f'v_mov_b32 v{self.ACC2+r}, 0')
        a(f's_mov_b32 s94, {nit}')
        if epi and 'weave' in OPT:
            a(f's_branch {lab}_l\n{ALN}{lab}_w:')
            self.rebase(lay, 1)
            pend = self.emit_waits(first, [])
            n = 4 * npeel
            for k in range(npeel):
                pend = self.emit_waits(body([epi[(4*k+q)*len(epi)//n:(4*k+q+1)*len(epi)//n] for q in range(4)], zero=k == 0), pend)
            assert pend == start
            a(f's_mov_b32 s94, {nit - npeel}')
        a(f'{ALN}{lab}_l:')
        pend = self.emit_waits(body([[], [self.hook(lab + 'a')], [], ['s_sub_u32 s94, s94, 1', 's_cmp_lg_u32 s94, 0']]), list(start))
        assert pend == start
        a(f's_cbranch_scc1 {lab}_l')
        a('s_waitcnt lgkmcnt(0)\ns_nop 6\ns_setpc_b64 s[86:87]')
    def epi_rows(self):
        self.pack(self.ACCT, 160); self.xpose(160, self.ACCT)
        for k in range(6): self.a(f'buffer_store_dwordx4 {vr(160+4*k,4)}, v{self.VO+k}, s[24:27], 0 offen sc1')
    def epi_qk(self):
        self.pack(self.ACC2, 160); self.store_ft(160, 28); self.pack(self.ACC, self.ACC2); self.store_ft(self.ACC2, 24)
    def pack(self, acc, dst):
        for jt in range(3):
            for p in range(2):
                Z = dst + 8 * jt + 4 * p
                x = acc + 4 * (2 * p * 3 + jt); y = acc + 4 * ((2 * p + 1) * 3 + jt)
                self.a(f'v_cvt_pk_bf16_f32 v{Z}, v{x}, v{x+1}\nv_cvt_pk_bf16_f32 v{Z+1}, v{x+2}, v{x+3}')
                self.a(f'v_cvt_pk_bf16_f32 v{Z+2}, v{y}, v{y+1}\nv_cvt_pk_bf16_f32 v{Z+3}, v{y+2}, v{y+3}')
    def hook_sub(self):
        a = self.a
        a('L_hook:\ns_mov_b32 s89, -1\ns_bitcmp0_b32 s98, 0\ns_cbranch_scc1 L_hook_x'); self.signal_now()
        a('L_hook_x:\ns_bitcmp0_b32 s98, 1\ns_cbranch_scc1 L_hook_r'); self.x_loads()
        if 'pfv' in OPT:
            self.sdiv('s70', 's62', 6, 's71'); self.lin('s70', [('s71', 192 * RP), ('s3', 48 * RP), ('s65', 1)], WS_U)
            a(f'v_lshrrev_b32 v246, 4, v1\nv_mul_u32_u24 v246, {RP}, v246\nv_and_b32 v247, 15, v1\nv_lshl_add_u32 v246, v247, 4, v246')
            for k in range(12): a(f'buffer_load_dwordx4 v[252:255], v246, s[12:15], s70 offen sc1\ns_add_u32 s70, s70, {4*RP}')
        a('L_hook_r:\ns_setpc_b64 s[68:69]')
        if not self.chain or 'weave' not in OPT:
            a('L_st3:'); self.epi_rows(); a('s_setpc_b64 s[68:69]\nL_st6:'); self.epi_qk(); a('s_setpc_b64 s[68:69]')
    def store_ft(self, P, srd):
        a = self.a; v = [self.VROW, 246, 247]
        a(f'v_add_u32 v{v[1]}, 36864, v{v[0]}\nv_add_u32 v{v[2]}, {2*36864}, v{v[0]}')
        for k in range(6):
            for d in range(2): a(f'v_permlane16_swap_b32 v{P+4*k+d}, v{P+4*k+2+d}')
            a(f'buffer_store_dwordx4 {vr(P+4*k,4)}, v{v[k>>1]}, {sr(srd,4)}, 0 offen offset:{1024*(k&1)} sc1')
    def ft_static(self):
        a = self.a; x, y = 216, 217
        a(f'v_bfe_u32 v{y}, v1, 4, 1\nv_lshlrev_b32 v{y}, 9, v{y}\nv_lshrrev_b32 v{x}, 5, v1\nv_lshl_add_u32 v{y}, v{x}, 8, v{y}\nv_and_b32 v{x}, 15, v1\nv_lshl_add_u32 v{y}, v{x}, 4, v{y}')
        a(f's_mul_i32 s92, s91, {3*36864}\ns_lshl_b32 s93, s90, 11\ns_add_u32 s92, s92, s93\nv_add_u32 v{self.VROW}, s92, v{y}')
        a(f's_mul_i32 s92, s91, {6*CH}\ns_add_u32 s92, s92, {16*CH}\nv_lshl_add_u32 v14, v1, 4, s92\nv_sub_u32 v14, v14, v{self.VB}')
    def ops(self, op, it): self.a(f's_mov_b32 s98, {op}\ns_mov_b32 s89, {it}')
    def xpose(self, P, T, inverse=False, nj=3):
        a = self.a
        def swaps():
            for jt in range(nj):
                for r in (0, 4):
                    for d in range(2): a(f'v_permlane16_swap_b32 v{P+8*jt+r+d}, v{P+8*jt+r+2+d}')
        a('s_nop 1')
        if inverse: swaps()
        for bit, M, qp in ((2, 8, '[1,0,3,2]'), (4, 9, '[2,3,0,1]')):
            lo = [r for r in range(8 * nj) if not r & bit]
            for k, r in enumerate(lo): a(f'v_bfi_b32 v{T+k}, v{M}, v{P+r}, v{P+r+bit}')
            for k, r in enumerate(lo): a(f'v_mov_b32_dpp v{T+12+k}, v{T+k} quad_perm:{qp} row_mask:0xf bank_mask:0xf')
            for k, r in enumerate(lo): a(f'v_bfi_b32 v{P+r}, v{M}, v{T+12+k}, v{P+r}\nv_bfi_b32 v{P+r+bit}, v{M}, v{P+r+bit}, v{T+12+k}')
        if not inverse:
            a('s_nop 1'); swaps()
    def row_offsets(self, vo, t, jump):
        a = self.a
        a(f's_movk_i32 s92, {RP}')
        for k in range(6):
            a(f'v_add_u32 v{t}, {16*(k>>1)+2*(k&1)}, v{self.VROW}\nv_mad_u32_u24 v{vo+k}, v{t}, s92, v{self.VCOL}')
            if jump: a(f'v_lshrrev_b32 v{t}, 5, v{t}\nv_mad_u32_u24 v{vo+k}, v{t}, {jump}, v{vo+k}')
    def store_tile(self, acc, srd, vo, t):
        self.pack(acc, t); self.xpose(t, t + 24)
        for k in range(6): self.a(f'buffer_store_dwordx4 {vr(t+4*k,4)}, v{vo+k}, {sr(srd,4)}, 0 offen sc1')
    def store_sub(self):
        a = self.a
        a('L_store:')
        self.row_offsets(216, 222, 's79')
        self.store_tile(self.ACC, 24, 216, 160)
        a('s_setpc_b64 s[86:87]')
    def allred(self, v, tmp, op, n=3):
        a = self.a
        for sw in ('v_permlane16_swap_b32', 'v_permlane32_swap_b32'):
            for j in range(n): a(f'v_mov_b32 v{tmp+j}, v{v+j}')
            a('s_nop 1')
            for j in range(n): a(f'{sw} v{v+j}, v{tmp+j}')
            for j in range(n): a(f'{op} v{v+j}, v{v+j}, v{tmp+j}')
    def softmax_sub(self):
        a = self.a; acc = self.ACC
        m, o, l, pr = 64, 67, 70, 74
        a('L_softmax:\ns_cmp_lg_u32 s61, 8\ns_cbranch_scc1 L_sm_go\ns_cmp_lg_u32 s90, 0\ns_cbranch_scc1 L_sm_ret')
        for r in range(24, 48): a(f'v_mov_b32 v{acc+r}, 0xff800000')
        a('L_sm_go:')
        allred = self.allred
        R = [[acc + 4 * (it * 3 + jt) + r for it in range(4) for r in range(4)] for jt in range(3)]
        for jt in range(3): a(f'v_max_f32 v{m+jt}, v{R[jt][0]}, v{R[jt][1]}')
        for k in range(2, 16, 2):
            for jt in range(3): a(f'v_max3_f32 v{m+jt}, v{m+jt}, v{R[jt][k]}, v{R[jt][k+1]}')
        allred(m, o, 'v_max_f32')
        a(f's_cmp_eq_u32 s61, 8\ns_cbranch_scc1 L_sm_x\ns_mul_i32 s92, s3, 768\ns_add_u32 s92, s92, {XL}\nv_lshl_add_u32 v{pr}, v1, 2, s92')
        for jt in range(3): a(f'ds_write_b32 v{pr}, v{m+jt} offset:{256*jt}')
        a(f's_lshl_b32 s92, s91, 2\ns_add_u32 s92, s92, {CX+56}\nv_mov_b32 v{pr+1}, s92'); self.lds_arrive(pr + 1, self.VONE)
        a(f's_xor_b32 s92, s3, 2\ns_mul_i32 s92, s92, 768\ns_add_u32 s92, s92, {XL}\nv_lshl_add_u32 v{pr}, v1, 2, s92')
        self.lds_wait4(pr + 1, pr + 2, 2, sleep=False)
        for jt in range(3): a(f'ds_read_b32 v{o+jt}, v{pr} offset:{256*jt}')
        a('s_waitcnt lgkmcnt(0)')
        for jt in range(3): a(f'v_max_f32 v{m+jt}, v{m+jt}, v{o+jt}')
        a(f'L_sm_x:\ns_mov_b32 s92, {f2u(LOG2E * D ** -0.5):#x}')
        for jt in range(3): a(f'v_mul_f32 v{m+jt}, s92, v{m+jt}')
        for jt in range(3):
            for r in R[jt]: a(f'v_fma_f32 v{r}, v{r}, s92, -v{m+jt}')
            for r in R[jt]: a(f'v_exp_f32 v{r}, v{r}')
        a('s_nop 0')
        self.pack(acc, 160); self.store_ft(160, 4)
        for jt in range(3): a(f'v_add_f32 v{l+jt}, v{R[jt][0]}, v{R[jt][1]}')
        for k in range(2, 16):
            for jt in range(3): a(f'v_add_f32 v{l+jt}, v{l+jt}, v{R[jt][k]}')
        allred(l, o, 'v_add_f32')
        a(f's_mul_i32 s92, s91, 48\nv_add_lshl_u32 v{o}, v1, s92, 3\nv_mov_b32 v{pr}, v{m}\nv_mov_b32 v{pr+1}, v{l}')
        a(f's_mov_b64 exec, 0xffff0000\ns_mov_b32 exec_hi, 0\nv_mov_b32 v{pr}, v{m+1}\nv_mov_b32 v{pr+1}, v{l+1}')
        a(f's_mov_b32 exec_lo, 0\ns_mov_b32 exec_hi, 0xffff\nv_mov_b32 v{pr}, v{m+2}\nv_mov_b32 v{pr+1}, v{l+2}\ns_mov_b32 exec_lo, -1')
        a(f'buffer_store_dwordx2 {vr(pr,2)}, v{o}, s[28:31], 0 offen sc1')
        a('s_mov_b64 exec, -1\nL_sm_ret:\ns_setpc_b64 s[86:87]')
    XR = 216; GT = 240; F = 248; VF = 251; LS = 252
    def pv_sub(self):
        a = self.a; main = self.ACC; tmp = self.TMP; f = self.F; vf = self.VF
        a('L_pv:')
        self.to_ft(); self.rebase('P', 1)
        for r in range(48): a(f'v_mov_b32 v{main+r}, 0')
        for r in range(48): a(f'v_mov_b32 v{tmp[1]+r}, 0')
        a(f'v_and_b32 v{vf}, 15, v1\ns_mul_i32 s92, s3, {9*192}\ns_add_u32 s92, s92, {XL+4096}\nv_lshl_add_u32 v{vf}, v{vf}, 2, s92\nv_mov_b32 v{vf+1}, {CX+64}')
        self.stamp(23)
        a('s_barrier')
        self.stamp(24)
        def fold(tp):
            if 'pk' in OPT:
                return [f'v_pk_fma_f32 {vr(main+4*(it*3+jt)+r,2)}, {vr(tp+4*(it*3+jt)+r,2)}, {vr(f+(jt&2),2)}, {vr(main+4*(it*3+jt)+r,2)} ' + ('op_sel:[0,1,0]' if jt & 1 else 'op_sel_hi:[1,0,1]')
                        for it in range(4) for jt in range(3) for r in (0, 2)]
            return [f'v_fmac_f32 v{main+4*(it*3+jt)+r}, v{tp+4*(it*3+jt)+r}, v{f+jt}' for it in range(4) for jt in range(3) for r in range(4)]
        fread = [f'ds_read_b32 v{f+jt}, v{vf} offset:{64*jt}' for jt in range(3)] + [f'v_add_u32 v{vf}, 192, v{vf}']
        pend = self.emit_waits((self.reads('P', 0, 0) if 'noread' not in OPT else []) + [x.replace(f'v{vf} ', f'v{vf+1} ') for x in fread[:3]], [])
        start = list(pend)
        a(f's_mov_b32 s94, 4\n{ALN}L_pv_l:')
        seq = []
        for p in range(2):
            fl = fold(tmp[p ^ 1])
            seq += self.stage('P', tmp[p], zero=True, ex0=fl[:10], ex1=fl[10:24])
            seq += self.stage('P', tmp[p], ex0=fl[24:36], ex1=fl[36:] + (['s_sub_u32 s94, s94, 1', 's_cmp_lg_u32 s94, 0'] if p else []), end=fread)
        pend = self.emit_waits(seq, pend)
        assert pend == start
        a('s_cbranch_scc1 L_pv_l')
        self.emit_waits(self.stage('P', tmp[0], zero=True, ex0=fold(tmp[1]), half=True, end=fread), pend)
        self.rebase('P', -1)
        a('s_waitcnt lgkmcnt(0)\ns_nop 5\ns_setpc_b64 s[86:87]')
        self.fold = fold
    def gate_loads(self, gt, va, jts):
        a = self.a
        for n, jt in enumerate(jts):
            a(f'v_lshrrev_b32 v{va}, 4, v1\nv_lshlrev_b32 v{va}, 4, v{va}\ns_lshl_b32 s92, s90, 8')
            if jt is not None:
                a(f's_mul_i32 s93, s91, 48\ns_add_u32 s93, s93, {16*jt}\ns_lshr_b32 s93, s93, 5\ns_mul_i32 s93, s93, 4608\ns_add_u32 s92, s92, s93')
            for it in range(4): a(f'buffer_load_dwordx4 {vr(gt+16*n+4*it,4)}, v{va}, s[4:7], s92 offen offset:{64*it} sc1')
    def resid_epi(self, acc, xr, gt, zr, vo, t):
        a = self.a
        for jt in range(3):
            for it in range(4):
                q = acc + 4 * (it * 3 + jt); o = 8 * jt + 2 * it; u = t + 4 * (it & 1)
                if zr is not None:
                    for d in range(2): a(f'v_lshlrev_b32 v{u+2*d}, 16, v{zr+o+d}\nv_and_b32 v{u+2*d+1}, 0xffff0000, v{zr+o+d}')
                    for r in range(4): a(f'v_add_f32 v{q+r}, v{q+r}, v{u+r}')
                for d in range(2): a(f'v_lshlrev_b32 v{u+2*d}, 16, v{xr+o+d}\nv_and_b32 v{u+2*d+1}, 0xffff0000, v{xr+o+d}')
                for r in range(4): a(f'v_fmac_f32 v{u+r}, v{q+r}, v{gt(jt)+4*it+r}')
                for d in range(2): a(f'v_cvt_pk_bf16_f32 v{xr+o+d}, v{u+2*d}, v{u+2*d+1}')
        self.xpose(xr, t)
        for k in range(6): a(f'buffer_store_dwordx4 {vr(xr+4*k,4)}, v{vo+k}, s[24:27], 0 offen sc1')

    def cp_task(self, t, aux, late, nxt_early, cont=False, join=None, pv=False):
        a = self.a
        def wsl(srd, base, sregs, lim):
            a(f's_mov_b32 s67, {base}')
            for s in sregs: a(f's_add_u32 s67, s67, {s}')
            self.srd(srd, 'ws', 's67', lim)
        JUMP = 1024 * RP
        weave = 'weave' in OPT
        if t in 'UMV':
            two = t == 'M'
            a('s_barrier\ns_barrier' if late else 's_barrier')
            self.stamp(28 if t == 'U' else 12 if two else 16)
            a(f's_call_b64 s[86:87], {"L_qk" if two else "L_tk"}{"_w" if cont and weave else ""}')
            if join: a(f'{join}:')
            self.stamp(29 if t == 'U' else 13 if two else 17)
            if t == 'U': self.lin('s70', [('s62', 96 * RP)]); wsl(24, WS_U, ['s70', 's65'], 96 * RP)
            elif t == 'M': a('s_lshl_b32 s70, s61, 12'); wsl(24, WS_Q, ['s63', 's70'], 's64'); wsl(28, WS_K, ['s63', 's70'], 's64')
            else: wsl(24, WS_V, ['s63', 's65'], 's64')
            if not (nxt_early and weave): a(f's_call_b64 s[68:69], L_st{6 if two else 3}')
            self.sig_index(t, aux)
            if nxt_early == 'M': self.ops(3, XAT)
            elif nxt_early: self.ops(1, 9 - SIGW)
            else: self.signal_now()
            self.stamp(18)
            return
        elif t == 'S':
            self.to_ft()
            self.lin('s70', [('s60', 17 * 1056 * 8), ('s61', 2 * 1056 * 8), ('s90', 1056 * 8), ('s62', 96 * 8)], WS_ST)
            self.sdiv('s71', 's64', RP // 8); self.srd(28, 'ws', 's70', 's71')
            a('s_lshl_b32 s70, s61, 12'); wsl(4, WS_P, ['s63', 's70'], 's64')
            a('s_barrier\ns_barrier' if late else 's_barrier')
            self.stamp(19); a(f's_call_b64 s[86:87], L_kk{"_w" if cont and weave else ""}'); self.stamp(20)
            a('s_call_b64 s[86:87], L_softmax'); self.stamp(21)
            self.sig_index(t, aux)
            self.signal_now()
            return
        elif t == 'PV':
            if not pv: self.x_loads(); a('s_waitcnt vmcnt(0)')
            a('s_barrier'); self.stamp(22)
            a('s_sub_u32 s71, s64, s65'); self.srd(24, 'out', 's79', 's71')
            self.xpose(self.XR, 112, inverse=True)
            a('s_call_b64 s[86:87], L_pv'); self.stamp(25)
            if t == 'PV':
                a(f'v_and_b32 v246, 48, v1\ns_lshl_b32 s92, s90, 8\ns_add_u32 s92, s92, {GL}\nv_add_u32 v246, s92, v246')
                for sp in range(3):
                    for it in range(4): a(f'ds_read_b128 {vr((192, 112, 128)[sp]+4*it,4)}, v246 offset:{512*sp+64*it}')
                for x in self.fold(self.TMP[0]): a(x)
                a('s_waitcnt lgkmcnt(0)')
                for e in range(16): a(f'v_add_f32 v{192+e}, v{192+e}, v{112+e}\nv_add_f32 v{192+e}, v{192+e}, v{128+e}')
                self.resid_epi(self.ACC, self.XR, lambda jt: 192, None, 240, 160)
    def x_loads(self):
        a = self.a
        self.lin('s79', [('s60', 1024 * RP), ('s62', 96 * RP), ('s65', 1)])
        a('s_sub_u32 s71, s64, s65'); self.srd(32, 'x_img', 's79', 's71')
        for k in range(6): a(f'buffer_load_dwordx4 {vr(self.XR+4*k,4)}, v{self.VO+k}, s[32:35], 0 offen nt')

    GW = 32; GS = 80; GA = 104; GT_ = 120; LX = 140; GC = 204
    def lds_arrive(self, va, vone):
        self.a(f's_mov_b64 exec, 1\nds_add_u32 v{va}, v{vone}\ns_mov_b64 exec, -1')
    def lds_wait4(self, va, vt, n=4, sleep=True):
        a = self.a; lab = a.label('lw')
        a(f's_mov_b32 s74, {SPIN}\n{lab}:\nds_read_b32 v{vt}, v{va}\ns_waitcnt lgkmcnt(0)\nv_cmp_le_u32 vcc, {n}, v{vt}')
        a(f's_cbranch_vccnz {lab}_d\n' + ('s_sleep 1\n' if sleep else '') + f's_sub_u32 s74, s74, 1\ns_cmp_lg_u32 s74, 0\ns_cbranch_scc1 {lab}\n{lab}_d:')
    def gemv_job(self, kind, ls=0):
        a = self.a
        a('s_lshr_b32 s71, s3, 2')
        self.lin('s79', [('s71', 2048)], XL + (8192 if ls else 0))
        self.lin('s80', [('s71', 4)], CX + (0, 8, 40)[ls])
        if kind == 'mod':
            a('s_mov_b32 s71, s81\ns_mov_b32 s81, s92'); self.sdiv('s92', 's81', 3, 's93')
            a('s_lshl_b32 s67, s92, 7\ns_mul_i32 s70, s93, 384\ns_movk_i32 s78, 9216')
            self.lin('s76', [('s93', 4 * 9216), ('s71', 2 * 9216), ('s92', 256)], WS_MODP)
            a('s_mov_b32 s77, 4\ns_mov_b32 s6, -1')
        else:
            a('s_mov_b32 s81, s92'); self.sdiv('s70', 's81', 3, 's93'); self.sdiv('s71', 's70', 18, 's92')
            a('s_mov_b32 s66, 1\ns_lshl_b32 s67, s92, 7\ns_add_u32 s67, s67, 4608\ns_movk_i32 s78, 4608\ns_mul_i32 s70, s93, 384\ns_lshl_b32 s6, s81, 7')
            self.lin('s76', [('s93', 4 * 4608), ('s71', 2 * 4608), ('s92', 256)], WS_GATE)
    def gemv_loads(self, W, C, mid={}):
        a = self.a; T = self.GT_
        a('s_lshl_b32 s75, s70, 1')
        for b in range(2):
            for k in range(3): a(f'buffer_load_dwordx2 {vr(C+6*b+2*k,2)}, v{T+2}, s[20:23], s75 offen offset:{2304*b+8*k}')
        a('s_mul_i32 s81, s70, 13824')
        for i in range(12):
            if i in mid: a(mid[i])
            a(f'buffer_load_dwordx4 {vr(W+4*i,4)}, v{T}, s[16:19], s81 offen nt')
            if i < 11: a(f's_add_u32 s81, s81, 13824')
    def gemv_subs(self):
        a = self.a
        W, S, ACC, T, X, C = self.GW, self.GS, self.GA, self.GT_, self.LX, self.GC
        a(f'L_gemv:\nv_bfe_u32 v202, v0, 4, 4\nv_and_b32 v203, 15, v0\nv_mul_u32_u24 v202, {RP}, v202\nv_lshl_add_u32 v202, v203, 4, v202')
        a('s_cmp_eq_u32 s66, 0\ns_cbranch_scc1 L_gv_x\ns_and_b32 s75, s3, 3\ns_mul_i32 s75, s75, 96\ns_add_u32 s70, s70, s75')
        a(f'v_and_b32 v{T}, 7, v1\nv_lshrrev_b32 v{T+1}, 3, v1\nv_lshlrev_b32 v{T}, 4, v{T}\ns_mov_b32 s75, {12*13824}\nv_mad_u32_u24 v{T}, v{T+1}, s75, v{T}\nv_add_u32 v{T}, s67, v{T}')
        a(f'v_mul_u32_u24 v{T+2}, 24, v{T+1}')
        a(f's_cmp_eq_u32 s71, 1\ns_cselect_b32 s16, s{PTR["wmod_txt"]}, s{PTR["wmod_img"]}\ns_cselect_b32 s17, s{PTR["wmod_txt"]+1}, s{PTR["wmod_img"]+1}')
        a(f's_mov_b32 s18, {SZ["wmod_img"]}\ns_mov_b32 s19, 0x20000')
        self.srd(20, 'c', 0, SZ['c'])
        a('s_cmp_eq_u32 s66, 2\ns_cbranch_scc1 L_gv_ret')
        self.gemv_loads(W, C)
        a('L_gemv2:')
        for r in range(16): a(f'v_mov_b32 v{ACC+r}, 0')
        a('s_waitcnt vmcnt(12)')
        q = T + 8; e = 216
        for i in range(12):
            for b in range(2):
                src = C + 6 * b + i // 2
                a(f'v_and_b32 v{S+2*i+b}, 0xffff0000, v{src}' if i & 1 else f'v_lshlrev_b32 v{S+2*i+b}, 16, v{src}')
        for r in range(24): a(f'v_mul_f32 v{e+r}, {f2u(-LOG2E):#x}, v{S+r}')
        for r in range(24): a(f'v_exp_f32 v{e+r}, v{e+r}')
        for r in range(24): a(f'v_add_f32 v{e+r}, 1.0, v{e+r}')
        for r in range(24): a(f'v_rcp_f32 v{e+r}, v{e+r}')
        for r in range(24): a(f'v_mul_f32 v{S+r}, v{S+r}, v{e+r}')
        for i in range(12):
            a(f's_waitcnt vmcnt({11-i})')
            for d in range(4):
                w = W + 4 * i + d
                a(f'v_lshlrev_b32 v{q+2*d}, 16, v{w}\nv_and_b32 v{q+2*d+1}, 0xffff0000, v{w}')
            for d in range(4):
                a(f'v_pk_fma_f32 {vr(ACC+4*d,2)}, {vr(q+2*d,2)}, {vr(S+2*i,2)}, {vr(ACC+4*d,2)} op_sel_hi:[0,1,1]')
                a(f'v_pk_fma_f32 {vr(ACC+4*d+2,2)}, {vr(q+2*d,2)}, {vr(S+2*i,2)}, {vr(ACC+4*d+2,2)} op_sel:[1,0,0]')
        self.stamp(27)
        for v in range(8): a(f'v_permlane32_swap_b32 v{ACC+v}, v{ACC+v+8}')
        for v in range(8): a(f'v_add_f32 v{ACC+v}, v{ACC+v}, v{ACC+v+8}')
        a('s_nop 1')
        for v in range(4): a(f'v_permlane16_swap_b32 v{ACC+v}, v{ACC+v+4}')
        for v in range(4): a(f'v_add_f32 v{ACC+v}, v{ACC+v}, v{ACC+v+4}')
        a('s_nop 1')
        for v in range(4): a(f'v_add_f32_dpp v{ACC+4+v}, v{ACC+v}, v{ACC+v} row_ror:8 row_mask:0xf bank_mask:0xf')
        RED = XL
        a(f's_and_b32 s81, s3, 3\ns_lshl_b32 s81, s81, 9\ns_add_u32 s81, s81, s79\nv_and_b32 v{T}, 7, v1\nv_lshlrev_b32 v{T}, 6, v{T}\nv_lshrrev_b32 v{T+1}, 4, v1\nv_lshl_add_u32 v{T}, v{T+1}, 4, v{T}\nv_add_u32 v{T}, s81, v{T}')
        a(f'v_mov_b32 v{T+4}, s80\nv_mov_b32 v{T+5}, 1\nv_mov_b32 v{T+6}, 0\nds_write_b128 v{T}, {vr(ACC+4,4)}')
        self.lds_arrive(T + 4, T + 5)
        a('L_gv_x:')
        for i in range(9): a(f'buffer_load_dwordx4 {vr(X+4*i,4)}, v202, s[24:27], s83 offen offset:{i*256} nt')
        a(f's_cmp_eq_u32 s66, 0\ns_cbranch_scc1 L_gv_ret\ns_and_b32 s75, s3, 3\ns_cmp_lg_u32 s75, s11\ns_cbranch_scc1 L_gv_ret')
        if self.flags: a(f'v_mov_b32 v{T+1}, {CX+20}'); self.lds_wait4(T + 1, T)
        a('L_gv_red2:')
        self.lds_wait4(T + 4, T, 's77')
        a(f'v_lshl_add_u32 v{T}, v1, 3, s79')
        for w in range(4): a(f'ds_read_b64 {vr(ACC+2*w,2)}, v{T} offset:{512*w}')
        a(f'v_lshlrev_b32 v{T}, 2, v1\ns_add_u32 s78, s78, s76\ns_waitcnt lgkmcnt(0)')
        a(f'v_pk_add_f32 {vr(ACC,2)}, {vr(ACC,2)}, {vr(ACC+2,2)}\nv_pk_add_f32 {vr(ACC+4,2)}, {vr(ACC+4,2)}, {vr(ACC+6,2)}\nv_pk_add_f32 {vr(ACC,2)}, {vr(ACC,2)}, {vr(ACC+4,2)}')
        a(f'v_max_u32 v{ACC}, 1, v{ACC}\nv_max_u32 v{ACC+1}, 1, v{ACC+1}')
        a(f'buffer_store_dword v{ACC}, v{T}, s[12:15], s76 offen sc1\nbuffer_store_dword v{ACC+1}, v{T}, s[12:15], s78 offen sc1')
        if self.flags:
            a('s_cmp_eq_u32 s6, -1\ns_cbranch_scc1 L_gv_ret\ns_waitcnt vmcnt(0)')
            a(f's_mov_b64 exec, 15\nbuffer_store_dword v{T+5}, v{T}, s[12:15], s6 offen sc1\ns_mov_b64 exec, -1')
        a('L_gv_ret:\ns_setpc_b64 s[86:87]')
    def ln(self):
        a = self.a; X = self.LX; F = 32
        a('v_mov_b32 v176, v202\nv_mov_b32 v177, v203\ns_waitcnt vmcnt(0)')
        for i in range(9):
            for d in range(4):
                a(f'v_lshlrev_b32 v{F+8*i+2*d}, 16, v{X+4*i+d}\nv_and_b32 v{F+8*i+2*d+1}, 0xffff0000, v{X+4*i+d}')
        def rowsum(v, t):
            for r in (8, 4, 2, 1):
                a(f's_nop 1\nv_add_f32_dpp v{t}, v{v}, v{v} row_ror:{r} row_mask:0xf bank_mask:0xf')
                v, t = t, v
            return v
        a0, a1, a2, a3 = 180, 181, 182, 183
        a(f'v_pk_add_f32 {vr(a0,2)}, {vr(F,2)}, {vr(F+2,2)}')
        for e in range(4, 72, 2): a(f'v_pk_add_f32 {vr(a0,2)}, {vr(a0,2)}, {vr(F+e,2)}')
        a(f'v_add_f32 v{a0}, v{a0}, v{a1}')
        v = rowsum(a0, a1)
        a(f'v_mul_f32 v{a0}, {f2u(-1.0/1152):#x}, v{v}')
        for e in range(0, 72, 2): a(f'v_pk_add_f32 {vr(F+e,2)}, {vr(F+e,2)}, {vr(a0,2)} op_sel_hi:[1,0]')
        a(f'v_pk_mul_f32 {vr(a2,2)}, {vr(F,2)}, {vr(F,2)}')
        for e in range(2, 72, 2): a(f'v_pk_fma_f32 {vr(a2,2)}, {vr(F+e,2)}, {vr(F+e,2)}, {vr(a2,2)}')
        a(f'v_add_f32 v{a1}, v{a2}, v{a3}')
        v = rowsum(a1, a2)
        a(f'v_mov_b32 v{a0}, {f2u(1e-5):#x}\nv_fmac_f32 v{a0}, {f2u(1.0/1152):#x}, v{v}\nv_rsq_f32 v{a0}, v{a0}\ns_nop 0')
        for e in range(0, 72, 2): a(f'v_pk_mul_f32 {vr(F+e,2)}, {vr(F+e,2)}, {vr(a0,2)} op_sel_hi:[1,0]')
        self.stamp(15)
        a('s_lshr_b32 s80, s10, 7\ns_lshr_b32 s81, s10, 6\ns_bfe_u32 s75, s10, 0x10001\ns_cmp_eq_u32 s80, 1\ns_cselect_b32 s81, s75, s81')
        self.lin('s76', [('s80', 2 * 9216), ('s81', 9216)], WS_MODP)
        M = 184
        a(f'v_lshlrev_b32 v{a0}, 4, v0\nv_lshlrev_b32 v{a1}, 4, v1')
        if self.flags: a(f'v_mov_b32 v14, {CX+20}'); self.lds_wait4(14, a2)
        a('s_mov_b32 s74, 0x10000\nL_ln_p:')
        for sp in range(3):
            for k in range(3):
                a(f's_add_u32 s75, s76, {sp*4*9216 + k*4096}\nbuffer_load_dwordx4 {vr(M+12*sp+4*k,4)}, v{a1 if k == 2 else a0}, s[12:15], s75 offen sc1')
        a(f's_waitcnt vmcnt(0)\nv_min_u32 v{a2}, v{M}, v{M+1}')
        for r in range(2, 36, 2): a(f'v_min3_u32 v{a2}, v{a2}, v{M+r}, v{M+r+1}')
        a(f'v_cmp_eq_u32 vcc, 0, v{a2}\ns_cbranch_vccz L_ln_g\ns_sub_u32 s74, s74, 1\ns_cmp_eq_u32 s74, 0\ns_cbranch_scc1 L_ln_g\ns_sleep {PSL}\ns_branch L_ln_p\nL_ln_g:')
        self.stamp(14)
        TAB = XL + 8192
        a(f'v_add_u32 v{a2}, {TAB}, v{a0}\nv_mov_b32 v14, {CX+16}')
        a(f's_and_b32 s75, s10, 63\ns_mul_i32 s76, s75, {16*RP}\ns_mul_i32 s75, s81, {1056*RP}\ns_add_u32 s75, s75, {WS_H}')
        a(f's_cmp_eq_u32 s80, 1\ns_cselect_b32 s75, {WS_HT}, s75\ns_add_u32 s76, s76, s75')
        a('s_lshl_b32 s75, s80, 30\nv_or_b32 v176, s75, v176')
        a('s_waitcnt vmcnt(0)')
        for r in range(0, 12, 2): a(f'v_pk_add_f32 {vr(M+r,2)}, {vr(M+r,2)}, {vr(M+12+r,2)}')
        for r in range(0, 12, 2): a(f'v_pk_add_f32 {vr(M+r,2)}, {vr(M+r,2)}, {vr(M+24+r,2)}')
        for k in range(2): a(f'ds_write_b128 v{a2}, {vr(M+4*k,4)} offset:{k*4096}')
        a(f's_cmp_lg_u32 s3, 0\ns_cbranch_scc1 L_tab2\nds_write_b128 v{a2}, {vr(M+8,4)} offset:8192\nL_tab2:')
        self.lds_arrive(14, self.VONE)
        a(f'v_lshlrev_b32 v{a2}, 5, v177\nv_add_u32 v{a2}, {TAB}, v{a2}')
        self.lds_wait4(14, a3)
        B = [104, 184]
        def rd(i0, p):
            for i in range(i0, i0 + 2):
                if i < 9:
                    k = i - i0
                    for h in range(2):
                        a(f'ds_read_b128 {vr(B[p]+16*k+4*h,4)}, v{a2} offset:{i*512+h*16}\nds_read_b128 {vr(B[p]+16*k+8+4*h,4)}, v{a2} offset:{4608+i*512+h*16}')
        rd(0, 0)
        for n, i0 in enumerate(range(0, 9, 2)):
            p = n & 1
            rd(i0 + 2, p ^ 1)
            left = 4 * max(0, min(9, i0 + 4) - (i0 + 2))
            a(f's_waitcnt lgkmcnt({left})')
            for i in range(i0, min(9, i0 + 2)):
                sh = B[p] + 16 * (i - i0); sc = sh + 8
                for e in range(0, 8, 2): a(f'v_pk_add_f32 {vr(sh+e,2)}, {vr(sh+e,2)}, {vr(F+8*i+e,2)}')
                for e in range(0, 8, 2): a(f'v_pk_fma_f32 {vr(sh+e,2)}, {vr(F+8*i+e,2)}, {vr(sc+e,2)}, {vr(sh+e,2)}')
                for d in range(4): a(f'v_cvt_pk_bf16_f32 v{X+4*i+d}, v{sh+2*d}, v{sh+2*d+1}')
                a(f'buffer_store_dwordx4 {vr(X+4*i,4)}, v176, s[12:15], s76 offen offset:{i*256} sc1')
        a(f's_cmp_eq_u32 s80, 0\ns_cbranch_scc1 L_ln_rm\nv_and_b32 v176, 0xf0, v0\nv_add_u32 v{a1}, v{a0}, v176\nv_mul_u32_u24 v177, 272, v177\nv_add_u32 v176, v177, v176\nv_mov_b32 v14, {CX+24}')
        for i in range(9): a(f'ds_write_b128 v176, {vr(X+4*i,4)} offset:{i*4352}')
        self.lds_arrive(14, self.VONE)
        self.lds_wait4(14, a3)
        for i in range(9): a(f'ds_read_b128 {vr(X+4*i,4)}, v{a1} offset:{i*4352}')
        for i in range(9): a(f's_waitcnt lgkmcnt({8-i})\nbuffer_store_dwordx4 {vr(X+4*i,4)}, v{a0}, s[12:15], s76 offen sc1\ns_add_u32 s76, s76, 4096')
        a('L_ln_rm:')
        self.sig_index('LN')
        self.signal_now()

    def idx_main(self):
        a = self.a
        a('s_and_b32 s92, s2, 3\ns_lshr_b32 s93, s2, 3\ns_bfe_u32 s60, s2, 0x10002')
        self.sdiv('s62', 's93', 5, 's61')
        a('s_lshr_b32 s70, s93, 2\ns_and_b32 s71, s93, 3\ns_bitcmp1_b32 s92, 0\ns_cselect_b32 s62, s70, s62\ns_cselect_b32 s61, s71, s61')
        a('s_lshl_b32 s70, s92, 2\ns_lshr_b32 s71, 0x0650, s70\ns_and_b32 s71, s71, 15\ns_add_u32 s62, s62, s71\ns_lshr_b32 s71, 0x5400, s70\ns_and_b32 s71, s71, 15\ns_add_u32 s61, s61, s71')
        a('s_mul_i32 s92, s92, 25\ns_add_u32 s92, s92, s93')
        a('s_cmp_eq_u32 s92, 20\ns_cselect_b32 s61, 4, s61\ns_cselect_b32 s62, 5, s62\ns_cmp_eq_u32 s92, 49\ns_cselect_b32 s62, 4, s62')
        self.set_bij('img')
        seen = set()
        for x in range(4):
            for jj in range(25):
                j, i = divmod(jj, 4 if x & 1 else 5); j += (0x0650 >> 4 * x) & 15; i += (0x5400 >> 4 * x) & 15
                if 25 * x + jj == 20: i, j = 4, 5
                if 25 * x + jj == 49: j = 4
                if 25 * x + jj < 99: seen.add((i, j))
        assert seen == {(i, j) for i in range(9) for j in range(11)}
    def idx_u(self, skip):
        a = self.a
        a(f's_cmp_ge_u32 s2, 112\ns_cbranch_scc1 {skip}\ns_and_b32 s92, s2, 7\ns_mul_i32 s92, s92, 14\ns_lshr_b32 s93, s2, 3\ns_add_u32 s92, s92, s93\ns_cmp_ge_u32 s92, 108\ns_cbranch_scc1 {skip}')
        self.sdiv('s70', 's92', 36, 's71'); self.sdiv('s62', 's71', 3, 's61')
        a('s_mul_i32 s70, s70, 3\ns_add_u32 s61, s61, s70\ns_mov_b32 s60, 0\ns_lshl_b32 s65, s61, 8')
    AUXOPS = ['end', 'T', 'VT', 'Y', 'AT', 'OT', 'X', 'G', 'P']
    AUXPROG = [(0, 'X T Y OT'), (18, 'X T Y AT'), (36, 'X T G G VT'), (42, 'X G T G G VT'), (51, 'G T G G VT'), (54, 'G G G')]
    SB = 64; SA = [212, 228]; SBASE = [2, 5]
    def idx_aux(self, t):
        a = self.a
        if t in ('T', 'Q2', 'OT'): a('s_mov_b32 s61, s9')
        elif t in ('VT', 'AT'): a(f's_sub_u32 s61, s9, {36 if t == "VT" else 18}')
        else: self.sdiv('s60', 's9', 18, 's61')
        a('s_lshl_b32 s65, s61, 7')
    def sk_loader(self, t):
        a = self.a; L = self.LV; tm = L['t']
        def wgt(name, sreg, const=0):
            a(f's_add_u32 s67, {sreg}, {const}\ns_sub_u32 s66, {SZ[name]}, s67'); self.srd(16, name, 's67', 's66')
        def poll(r): self.flag_lanes(L['vF'], tm, r); a('s_call_b64 s[68:69], L_lpoll')
        lay, pitch, n = 'T', RP, 18
        if t == 'OT':
            self.lin('s70', [('s61', 3)], F_GG + 54)
            if self.flags: self.w4(lambda: poll([('s70', 3)]))
            a('s_barrier')
        if t == 'T': wgt('wqkv_txt', 's65'); pitch = 6912; dep = [(F_LN + 128, 4)]
        elif t == 'VT': wgt('wo_img', 's65'); dep = [(F_T + 36, 18)]
        elif t == 'AT': wgt('wqkv_img', 's65', 4608); pitch = 6912; dep = [(F_Y, 36)]
        elif t == 'OT': wgt('wo_txt', 's65'); dep = [(F_AT, 18)]
        elif t == 'Y':
            if self.flags: self.lin('s70', [('s60', 64)], F_LN); poll([('s70', 64)])
            self.lin('s67', [('s60', 1056 * RP), ('s65', 1)], WS_H); self.srd(16, 'ws', 's67', 1056 * RP)
            n = 16; dep = [('s71', 17)]
        v = L['vA']
        a(f's_sub_u32 s84, s3, 4\ns_mov_b32 s76, {pitch}\ns_mul_i32 s80, s84, {2*PS}\ns_lshl_b32 s84, s84, 4\nv_and_b32 v{tm}, 3, v1\nv_lshlrev_b32 v{tm}, 4, v{tm}')
        if lay == 'T':
            a(f'v_lshrrev_b32 v{tm+1}, 5, v1\nv_bfe_u32 v{tm+2}, v1, 2, 2\nv_lshl_add_u32 v{tm+1}, v{tm+1}, 2, v{tm+2}\nv_bfe_u32 v{tm+2}, v1, 4, 1')
        a(f'v_lshl_add_u32 v{tm}, v{tm+2}, 6, v{tm}\nv_add_u32 v{tm+1}, s84, v{tm+1}\nv_mad_u32_u24 v{v}, v{tm+1}, s76, v{tm}\nv_add_u32 v{v+1}, {8*pitch - PS}, v{v}')
        a(f's_mov_b32 s78, {64*pitch if lay == "T" else 2048}\ns_mov_b32 s83, {n}\ns_call_b64 s[86:87], {"L_panel_nt" if t in ("T", "OT") else "L_panel"}')
        if t == 'Y':
            def stdep():
                a('s_lshl_b32 s70, s61, 1'); self.sdiv('s71', 's70', 3); a('s_min_u32 s71, s71, 9')
                self.lin('s70', [('s60', 99), ('s71', 9)], F_K)
                a(f's_cmp_eq_u32 s61, 16\ns_cselect_b32 s70, {F_T+18}, s70'); poll([('s70', 18)])
            if self.flags: self.w4(lambda: poll([(F_T, 18)]))
            a('s_barrier')
            if self.flags: self.w4(stdep)
            a('s_waitcnt vmcnt(0)\ns_barrier')
            if self.flags: a(f's_add_u32 s70, s61, {F_T+36}'); poll([('s70', 1)])
            a('s_mov_b32 s83, 1\ns_call_b64 s[86:87], L_panel_l')
            self.lin('s71', [('s60', 17)], F_PT)
        if self.flags: self.w4(lambda: poll(dep))
        a('s_waitcnt vmcnt(0)\ns_barrier\ns_barrier')
    def panel_subs(self):
        a = self.a; v = self.LV['vA']
        for lab, fl in (('L_panel', 'sc1'), ('L_panel_nt', 'nt')):
            a(f'{lab}:\ns_mov_b32 s81, 0\n{lab}_l:\ns_mov_b32 m0, s80\ns_add_u32 s80, s80, {8*PS}')
            a(f'buffer_load_dwordx4 v{v}, s[16:19], s81 offen {fl} lds\nbuffer_load_dwordx4 v{v+1}, s[16:19], s81 offen offset:{PS} {fl} lds')
            a(f's_add_u32 s81, s81, s78\ns_sub_u32 s83, s83, 1\ns_cmp_lg_u32 s83, 0\ns_cbranch_scc1 {lab}_l\ns_setpc_b64 s[86:87]')
    def sk_static(self):
        a = self.a; T, K = self.SBASE; x, y = 208, 209
        a(f'v_lshrrev_b32 v{x}, 4, v1\nv_mul_u32_u24 v{T}, {PS}, v{x}\nv_bfe_u32 v{y}, v1, 2, 2\nv_lshl_add_u32 v{T}, v{y}, 6, v{T}\nv_and_b32 v{y}, 3, v1\nv_lshl_add_u32 v{T}, v{y}, 3, v{T}')
        a(f's_xor_b32 s92, s90, 1\ns_mul_i32 s93, s92, {64*PS}\nv_add_u32 v{K}, s93, v{T}\ns_lshl_b32 s92, s92, 14\ns_mul_i32 s93, s91, {36*1024}\ns_add_u32 s92, s92, s93\nv_lshl_add_u32 v245, v1, 4, s92')
        for b in (T, K):
            for k in (1, 2): a(f'v_add_u32 v{b+k}, {k*48*PS}, v{b}')
        a(f's_mul_i32 s92, s3, {36*1024}\nv_lshl_add_u32 v246, v1, 4, s92\nv_bfe_u32 v{y}, v1, 4, 1\nv_lshlrev_b32 v{y}, 9, v{y}\nv_lshrrev_b32 v{x}, 5, v1\nv_lshl_add_u32 v{y}, v{x}, 8, v{y}')
        a(f'v_and_b32 v{x}, 15, v1\nv_lshl_add_u32 v{y}, v{x}, 4, v{y}\nv_add_u32 v247, s92, v{y}')
        a(f'v_and_b32 v{x}, 12, v1\nv_bfe_u32 v{y}, v1, 4, 1\ns_lshl_b32 s92, s3, 4\nv_add3_u32 v{x}, v{x}, v{y}, s92\nv_mul_u32_u24 v{x}, {RP}, v{x}')
        a(f'v_and_b32 v{y}, 127, v{self.VCOL}\nv_add_u32 v248, v{x}, v{y}\nv_add_u32 v249, {2*RP}, v248')
    def sk_sub(self, lab, lay, fold=False):
        a = self.a; SB = self.SB; nk = 17 if fold else 36
        base = self.SBASE[1 if fold else 0]; vb = 245 if fold else 246
        def rd(kk):
            st = self.SA[kk & 1]; b = base + kk // 12; k = kk % 12
            if lay == 'K': return [f'ds_read_b128 {vr(st+4*t,4)}, v{b} offset:{(8*(k>>1)+2*t+(k&1))*PS}' for t in range(4)]
            return [f'ds_read_b64_tr_b16 {vr(st+4*t+2*h,2)}, v{b} offset:{4*k*PS + h*512 + (t>>1)*256 + (t&1)*32}' for t in range(4) for h in range(2)]
        a(f'{lab}:')
        AH = 17 if fold else SKAH
        def ldb(kk):
            return ([f's_mov_b32 s92, {kk*1024}'] if kk % 4 == 0 else []) + [f'buffer_load_dwordx4 {vr(SB+4*kk,4)}, v{vb}, s[20:23], s92 offen offset:{(kk%4)*1024} sc1']
        if fold: self.sk_factors(lambda: [a(x) for kk in range(AH) for x in ldb(kk)], AH)
        else:
            for kk in range(AH):
                for x in ldb(kk): a(x)
        if fold: self.stamp(25)
        seq = rd(0)
        for kk in range(nk):
            st = self.SA[kk & 1]
            acc = 16 if not fold else (48, 196)[(kk >> 1) & 1]
            zero = kk == 0 if not fold else kk % 2 == 0
            nxt = rd(kk + 1) if kk + 1 < nk else []
            ex = []
            if fold and kk % 2 == 1 and kk > 1 or fold and kk == nk - 1:
                r = (kk >> 1) - 1; pv = (48, 196)[r & 1]
                ex = [(f'v_mul_f32 v{16+e}, v{pv+e}, v{32+r}' if r == 0 else f'v_fmac_f32 v{16+e}, v{pv+e}, v{32+r}') for e in range(16)]
                if kk == nk - 1: ex = ['s_nop 7'] + ex
            seq.append(f's_waitcnt vmcnt({min(AH, nk-kk)-1})')
            for t in range(4):
                d = vr(acc + 4 * t, 4)
                seq.append(f'v_mfma_f32_16x16x32_bf16 {d}, {vr(st+4*t,4)}, {vr(SB+4*kk,4)}, {"0" if zero else d}')
                seq += nxt[t * len(nxt) // 4:(t + 1) * len(nxt) // 4]
            seq += ex
            if kk + AH < nk: seq += ldb(kk + AH)
        self.emit_waits(seq, [])
        a('s_nop 7\ns_setpc_b64 s[86:87]')
    def sk_factors(self, mid, nmid):
        a = self.a; st = 208; m = 250
        dst = lambda r: st + 2 * r if r < 16 else 252
        a(f'v_and_b32 v{m}, 15, v1\ns_lshl_b32 s92, s91, 4\nv_add_lshl_u32 v{m}, v{m}, s92, 3\ns_mul_i32 s93, s90, {8*1056*8}\nv_add_u32 v{m+1}, s93, v{m}\ns_sub_u32 s93, {8*1056*8}, s93\nv_add_u32 v{m+4}, s93, v{m}')
        for r in range(17): a(f's_mov_b32 s92, {(r & 7 if r < 16 else 16)*1056*8}\nbuffer_load_dwordx2 {vr(dst(r),2)}, v{m + (4, 1, 0)[r >> 3]}, s[28:31], s92 offen sc1')
        mid()
        a(f's_waitcnt vmcnt({nmid})\nv_max3_f32 v{m}, v{dst(0)}, v{dst(1)}, v{dst(2)}')
        for r in range(3, 17, 2): a(f'v_max3_f32 v{m}, v{m}, v{dst(r)}, v{dst(r+1)}')
        for r in range(17): a(f'v_sub_f32 v{dst(r)}, v{dst(r)}, v{m}')
        for r in range(17): a(f'v_exp_f32 v{dst(r)}, v{dst(r)}')
        a(f'v_mul_f32 v{m+1}, v{dst(0)}, v{dst(0)+1}')
        for r in range(1, 17): a(f'v_fmac_f32 v{m+1}, v{dst(r)}, v{dst(r)+1}')
        a(f'v_rcp_f32 v{m+1}, v{m+1}\ns_nop 0')
        for r in list(range(8)) + [16]: a(f'v_mul_f32 v{32+r if r < 16 else m}, v{dst(r)}, v{m+1}')
    def sk_pack(self, P=64):
        for t in range(4): self.a(f'v_cvt_pk_bf16_f32 v{P+2*t}, v{16+4*t}, v{17+4*t}\nv_cvt_pk_bf16_f32 v{P+2*t+1}, v{18+4*t}, v{19+4*t}')
    def sk_epi_subs(self):
        a = self.a
        a('L_sk_ft:'); self.sk_pack(); a('s_nop 1')
        for r in (0, 4):
            for d in range(2): a(f'v_permlane16_swap_b32 v{64+r+d}, v{66+r+d}')
        for p in range(2): a(f'buffer_store_dwordx4 {vr(64+4*p,4)}, v247, s[12:15], s70 offen offset:{1024*p} sc1')
        a('s_setpc_b64 s[68:69]')
        a('L_sk_row:'); self.sk_pack(72); self.xpose(72, 80, nj=1)
        a(f's_lshr_b32 s92, s3, 1\ns_mul_i32 s92, s92, {1024*RP}\ns_add_u32 s92, s92, s71')
        for p in range(2): a(f'buffer_store_dwordx4 {vr(72+4*p,4)}, v{248+p}, s[12:15], s92 offen sc1')
        a('s_setpc_b64 s[68:69]')
    def st_compute(self):
        a = self.a; lab = 'L_std'
        ft = lambda base, bmul=0: self.lin('s70', [('s61', 2048), ('s60', bmul)], base)
        self.lin('s67', [('s60', FTS // 2)], WS_QT); self.srd(20, 'ws', 's67', FTS // 2)
        self.lin('s67', [('s60', 1056 * RP), ('s61', 64 * RP)], WS_K)
        a(f's_mov_b32 s66, {64*RP}\ns_cmp_eq_u32 s61, 16\ns_cselect_b32 s66, {32*RP}, s66'); self.srd(16, 'ws', 's67', 's66')
        self.lin('s67', [('s60', 17 * 1056 * 8), ('s61', 1056 * 8)], WS_ST + 1024 * 8); self.srd(28, 'ws', 's67', 0x100000)
        A0 = 48
        a(f's_mul_i32 s92, s3, 9216\nv_lshl_add_u32 v{A0}, v1, 4, s92')
        for t in range(1, 4): a(f'v_add_u32 v{A0+t}, {t*36864}, v{A0}')
        a(f's_and_b32 s92, s3, 1\ns_mul_i32 s93, s92, 36864\nv_add_u32 v{A0+4}, s93, v{A0}\ns_sub_u32 s93, 36864, s93\nv_add_u32 v{A0+5}, s93, v{A0}')
        R0 = 136 * PS
        a(f's_lshl_b32 s92, s92, 13\ns_add_u32 s92, s92, {R0}\nv_lshl_add_u32 v{A0+6}, v1, 4, s92\nv_xor_b32 v{A0+7}, s92, v{A0+6}\ns_sub_u32 s92, {2*R0 + 8192}, s92\nv_lshl_add_u32 v{A0+7}, v1, 4, s92\nv_mov_b32 v{A0+8}, {CX+48}\nv_mov_b32 v{A0+9}, {CX+52}')
        B = lambda kk, j: 64 + 8 * kk + 4 * j
        a('s_barrier')
        for kk in range(9):
            if kk % 4 == 0: a(f's_mov_b32 s92, {kk*1024}')
            for j in range(2): a(f'buffer_load_dwordx4 {vr(B(kk,j),4)}, v{A0+4+j}, s[20:23], s92 offen offset:{(kk%4)*1024} sc1')
        a(f's_barrier\ns_cmp_eq_u32 s61, 17\ns_cbranch_scc1 {lab}_x')
        if not self.do_st: a(f's_branch {lab}_x')
        self.stamp(18)
        A = lambda kk, t: 136 + 16 * (kk % 6) + 4 * t
        def ld(kk):
            if kk % 4 == 0: a(f's_mov_b32 s92, {kk*1024}')
            for t in range(4): a(f'buffer_load_dwordx4 {vr(A(kk,t),4)}, v{A0+t}, s[16:19], s92 offen offset:{(kk%4)*1024} sc1')
        for kk in range(6): ld(kk)
        for kk in range(9):
            a(f's_waitcnt vmcnt({4*(min(9, kk+6)-kk-1)})')
            for j in range(2):
                for t in range(4):
                    d = vr(16 + 16 * j + 4 * t, 4)
                    a(f'v_mfma_f32_16x16x32_bf16 {d}, {vr(A(kk,t),4)}, {vr(B(kk,j),4)}, {"0" if kk == 0 else d}')
            if kk + 6 < 9: ld(kk + 6)
        self.stamp(24)
        a(f's_nop 7\ns_cmp_lt_u32 s3, 2\ns_cbranch_scc1 {lab}_o')
        for q in range(8): a(f'ds_write_b128 v{A0+6}, {vr(16+4*q,4)} offset:{1024*q}')
        self.lds_arrive(A0 + 8, self.VONE)
        a(f's_branch {lab}_e\n{lab}_o:')
        self.lds_wait4(A0 + 8, 60, 2)
        for q in range(8): a(f'ds_read_b128 {vr(64+4*q,4)}, v{A0+6} offset:{1024*q}')
        a('s_waitcnt lgkmcnt(0)')
        for e in range(32): a(f'v_add_f32 v{16+e}, v{16+e}, v{64+e}')
        for q in range(4): a(f'ds_write_b128 v{A0+6}, {vr(32+4*q,4)} offset:{1024*q}')
        self.lds_arrive(A0 + 9, self.VONE)
        self.lds_wait4(A0 + 9, 60, 2)
        for q in range(4): a(f'ds_read_b128 {vr(64+4*q,4)}, v{A0+7} offset:{1024*q}')
        a('s_waitcnt lgkmcnt(0)')
        for e in range(16): a(f'v_add_f32 v{16+e}, v{16+e}, v{64+e}')
        a(f's_cmp_lg_u32 s61, 16\ns_cbranch_scc1 {lab}_m')
        for e in range(8, 16): a(f'v_mov_b32 v{16+e}, 0xff800000')
        a(f'{lab}_m:\nv_max_f32 v32, v16, v17')
        for e in range(2, 16, 2): a(f'v_max3_f32 v32, v32, v{16+e}, v{17+e}')
        self.allred(32, 34, 'v_max_f32', 1)
        a(f's_mov_b32 s92, {f2u(LOG2E * D ** -0.5):#x}\nv_mul_f32 v32, s92, v32')
        for e in range(16): a(f'v_fma_f32 v{16+e}, v{16+e}, s92, -v32')
        for e in range(16): a(f'v_exp_f32 v{16+e}, v{16+e}')
        ft(WS_PT, FTS // 2); a('s_call_b64 s[68:69], L_sk_ft\nv_add_f32 v33, v16, v17')
        for e in range(2, 16): a(f'v_add_f32 v33, v33, v{16+e}')
        self.allred(33, 34, 'v_add_f32', 1)
        a('s_lshl_b32 s92, s3, 7\nv_lshlrev_b32 v34, 3, v1\ns_mov_b64 exec, 0xffff\nbuffer_store_dwordx2 v[32:33], v34, s[28:31], s92 offen sc1\ns_mov_b64 exec, -1')
        a(f'{lab}_e:')
        self.sig_index('ST'); self.signal_now()
        self.stamp(19)
        a(f'{lab}_x:')
    def sk_compute(self, t):
        a = self.a
        half = t == 'Y'
        if half: self.st_compute()
        lab = a.label('sk')
        src = {'T': WS_HT, 'VT': WS_VT, 'ST': WS_QT, 'Y': WS_PT, 'AT': WS_Y, 'OT': WS_AT}[t]
        if half:
            self.lin('s67', [('s60', FTS // 2)], src)
            self.srd(20, 'ws', 's67', FTS // 2)
            self.lin('s67', [('s60', 17 * 1056 * 8), ], WS_ST + 1024 * 8); self.srd(28, 'ws', 's67', 0x100000)
        else: self.srd(20, 'ws', src, FTS)
        ft = lambda base, bmul=0: self.lin('s70', [('s61', 2048), ('s60', bmul)], base)
        if t == 'OT':
            a(f's_add_u32 s70, s65, {SZ["x_img"]}\ns_sub_u32 s71, {64*RP}, s65')
            self.srd(24, 'out', 's70', 's71'); self.srd(32, 'x_txt', 's65', 's71')
            a('s_barrier')
            for p in range(2): a(f'buffer_load_dwordx4 {vr(48+4*p,4)}, v{248+p}, s[32:35], 0 offen')
            a('s_lshr_b32 s71, s3, 1'); self.lin('s70', [('s71', 4608), ('s61', 256)], WS_GATE + 2 * 4608); a('v_and_b32 v250, 48, v1')
            for sp in range(3):
                for it in range(4): a(f'buffer_load_dwordx4 {vr((32, 160, 176)[sp]+4*it,4)}, v250, s[12:15], s70 offen offset:{64*it} sc1')
                a(f's_add_u32 s70, s70, {4*4608}')
            a('s_waitcnt vmcnt(0)')
            for e in range(16): a(f'v_add_f32 v{32+e}, v{32+e}, v{160+e}\nv_add_f32 v{32+e}, v{32+e}, v{176+e}')
            self.xpose(48, 64, inverse=True, nj=1)
        a('s_barrier')
        self.stamp({'T': 20, 'Y': 22}.get(t, 16))
        if half and not self.do_y: a(f's_branch {lab}_s')
        if t == 'AT':
            self.lin('s70', [('s3', 18 * 4096), ('s61', 4096)], WS_Z); a('v_lshlrev_b32 v250, 4, v1')
            for it in range(4): a(f'buffer_load_dwordx4 {vr(32+4*it,4)}, v250, s[12:15], s70 offen offset:{1024*it} sc1')
        a(f's_call_b64 s[86:87], {"L_sky" if t == "Y" else "L_skt"}')
        if half:
            a(f's_lshl_b32 s92, s91, 12\ns_add_u32 s92, s92, {XL+8192}\nv_lshl_add_u32 v64, v1, 4, s92\ns_cmp_lt_u32 s3, 2\ns_cbranch_scc1 {lab}_o')
            for q in range(4): a(f'ds_write_b128 v64, {vr(16+4*q,4)} offset:{1024*q}')
            a(f's_waitcnt lgkmcnt(0)\ns_branch {lab}_s\n{lab}_o:\ns_barrier')
            for q in range(4): a(f'ds_read_b128 {vr(68+4*q,4)}, v64 offset:{1024*q}')
            a('s_waitcnt lgkmcnt(0)')
            for e in range(16): a(f'v_add_f32 v{16+e}, v{16+e}, v{68+e}')
        else: a('s_barrier')
        self.stamp({'T': 21, 'Y': 23}.get(t, 17))
        if t == 'T':
            a(f's_cmp_ge_u32 s61, 18\ns_cbranch_scc1 {lab}_k'); ft(WS_QT); a(f's_call_b64 s[68:69], L_sk_ft\ns_branch {lab}_e\n{lab}_k:')
            a(f's_cmp_ge_u32 s61, 36\ns_cbranch_scc1 {lab}_v\ns_lshr_b32 s71, s3, 1')
            self.lin('s70', [('s61', 2048), ('s71', 1024 * RP)], WS_K + 1024 * RP - 18 * 2048); a(f's_call_b64 s[68:69], L_sk_ft\ns_branch {lab}_e\n{lab}_v:')
            ft(WS_VT - 36 * 2048); a(f's_call_b64 s[68:69], L_sk_ft\ns_add_u32 s71, s65, {WS_H + 1024*RP - 4608}')
            a('s_call_b64 s[68:69], L_sk_row')
        elif t == 'VT': a(f's_add_u32 s71, s65, {WS_V + 1024*RP}\ns_call_b64 s[68:69], L_sk_row')
        elif t == 'AT':
            for e in range(16): a(f'v_add_f32 v{16+e}, v{16+e}, v{32+e}')
            ft(WS_AT); a('s_call_b64 s[68:69], L_sk_ft')
        elif t == 'Y':
            ft(WS_Y, FTS // 2); a('s_call_b64 s[68:69], L_sk_ft')
            for e in range(16): a(f'v_mul_f32 v{48+e}, v{48+e}, v250')
            self.lin('s70', [('s60', 36 * 4096), ('s3', 18 * 4096), ('s61', 4096)], WS_Z); a('v_lshlrev_b32 v250, 4, v1')
            for it in range(4): a(f'buffer_store_dwordx4 {vr(48+4*it,4)}, v250, s[12:15], s70 offen offset:{1024*it} sc1')
        elif t == 'OT':
            for it in range(4):
                for d in range(2): a(f'v_lshlrev_b32 v{64+2*d}, 16, v{48+2*it+d}\nv_and_b32 v{65+2*d}, 0xffff0000, v{48+2*it+d}')
                for r in range(4): a(f'v_fmac_f32 v{64+r}, v{16+4*it+r}, v{32+4*it+r}')
                for d in range(2): a(f'v_cvt_pk_bf16_f32 v{48+2*it+d}, v{64+2*d}, v{65+2*d}')
            self.xpose(48, 64, nj=1)
            for p in range(2): a(f'buffer_store_dwordx4 {vr(48+4*p,4)}, v{248+p}, s[24:27], 0 offen sc1')
        if half: a(f's_branch {lab}_e\n{lab}_s:\ns_barrier')
        a(f'{lab}_e:')
        if t != 'OT': self.sig_index(t); self.signal_now()
    def aux_interp(self, side, only):
        a = self.a; p = f'L_{side}x'; self.do_st = only is None or 'ST' in only; self.do_y = only is None or 'Y' in only
        a('s_mov_b32 s8, 0\ns_mov_b32 s60, 0\ns_mov_b32 s10, 0\ns_sub_u32 s62, s9, 42\ns_sub_u32 s92, s9, 18\ns_cmp_lt_u32 s9, 42\ns_cselect_b32 s62, s92, s62')
        if side == 'c': self.sk_static()
        for lim, prog in self.AUXPROG:
            ops = [o for o in prog.split() if only is None or o in only or (o == 'Y' and 'ST' in only)]
            code = sum(self.AUXOPS.index(o) << (4 * k) for k, o in enumerate(ops))
            a(f's_cmp_ge_u32 s9, {lim}\ns_cselect_b32 s8, {code}, s8')
        a(f'{p}_next:\ns_and_b32 s92, s8, 15\ns_lshr_b32 s8, s8, 4')
        for k, o in enumerate(self.AUXOPS[1:], 1): a(f's_cmp_eq_u32 s92, {k}\ns_cbranch_scc1 {p}_{o}')
        a('s_branch L_fin')
        for k, o in enumerate(self.AUXOPS[1:], 1):
            a(f'{p}_{o}:')
            if o == 'P':
                a('s_sub_u32 s84, s9, 42'); self.prefetch_qk(0, PFR); a('s_waitcnt vmcnt(0)')
            elif o in 'XG':
                if o == 'G':
                    a(f's_barrier\ns_lshl_b32 s92, s62, 1\ns_add_u32 s92, s92, {int(side == "l")}\ns_add_u32 s10, s10, 1')
                    a('s_mov_b32 s93, 18\ns_cmp_lt_u32 s62, 18\ns_cselect_b32 s93, 2, s93\ns_cmp_lt_u32 s62, 12\ns_cselect_b32 s93, 24, s93\ns_add_u32 s62, s62, s93')
                    self.gemv_job('gate', 2); a('s_lshl_b32 s77, s10, 2')
                else:
                    g = int(side == 'l')
                    a(f's_lshl_b32 s92, s9, 1\ns_add_u32 s92, s92, {6 + g}\ns_add_u32 s93, s9, 48\ns_cmp_lt_u32 s9, 42\ns_cselect_b32 s92, s93, s92\ns_mov_b32 s81, 1\ns_mov_b32 s66, 2')
                    if g: a(f's_cbranch_scc0 {p}_X2\ns_barrier\ns_branch {p}_next\n{p}_X2:')
                    self.gemv_job('mod', 1)
                self.srd(24, 'ws', 0, 0)
                a('s_mov_b32 s83, 0\ns_mov_b32 s11, 3\ns_call_b64 s[86:87], L_gemv')
                if o == 'X':
                    self.gemv_loads(self.GW, self.GC); a('s_call_b64 s[86:87], L_gemv2\ns_barrier')
            else:
                self.idx_aux(o)
                self.sk_compute(o) if side == 'c' else self.sk_loader(o)
            self.stamp(k + 3)
            a(f's_branch {p}_next')
        if side == 'c':
            self.sk_sub('L_skt', 'T'); self.sk_sub('L_sky', 'T', True); self.sk_epi_subs()
        else: self.panel_subs()
    def kernel(self, name, only=None):
        a = self.a
        has = lambda t: only is None or t in only
        kernel_head(a, name)
        a('s_load_dwordx8 s[36:43], s[0:1], 0\ns_load_dwordx8 s[44:51], s[0:1], 32\ns_load_dwordx8 s[52:59], s[0:1], 64')
        a('s_cmp_ge_u32 s2, 256\ns_cbranch_scc1 L_end')
        a('s_getpc_b64 s[6:7]\nL_pc:\ns_lshr_b32 s92, s2, 3\ns_lshl_b32 s92, s92, 11\nv_subrev_u32 v2, 384, v0\nv_lshl_add_u32 v3, v2, 4, s92')
        a('s_mov_b32 s4, s6\ns_mov_b32 s5, s7\ns_mov_b32 s6, L_end - L_pc\ns_mov_b32 s7, 0x20000\nv_cmp_gt_u32 vcc, 128, v2')
        a('s_cbranch_vccz L_nocpf\nbuffer_load_dwordx4 v[248:251], v3, s[4:7], 0 offen\nL_nocpf:')
        a('v_lshrrev_b32 v1, 6, v0\nv_mov_b32 v15, 0\nv_readfirstlane_b32 s3, v1\nv_and_b32 v1, 63, v0')
        a(f'v_lshlrev_b32 v2, 2, v1\nv_add_u32 v2, {CX}, v2\nds_write_b32 v2, v15\nv_mov_b32 v202, 0')
        a('s_sub_u32 s9, s2, 200\ns_sub_u32 s10, s2, 112\ns_mov_b32 s92, s10\ns_mov_b32 s81, 0\ns_cmp_lt_u32 s10, 108\ns_cselect_b32 s66, 1, 0\ns_mov_b32 s11, 7')
        a('s_cmp_lt_u32 s2, 220\ns_cbranch_scc1 L_jd\ns_mov_b32 s81, 1\ns_mov_b32 s11, 3\ns_sub_u32 s92, s2, 242\ns_cmp_lt_u32 s92, 12\ns_cselect_b32 s66, 1, 0\ns_add_u32 s92, s92, 36')
        a('s_sub_u32 s93, s2, 220\ns_cmp_ge_u32 s3, 4\ns_cselect_b32 s92, s93, s92\ns_cselect_b32 s66, 1, s66\nL_jd:')
        self.gemv_job('mod')
        a(f's_cmp_lt_u32 s2, 220\ns_cselect_b32 s79, {XL}, s79\ns_cselect_b32 s80, {CX}, s80')
        for i, g in ((195, 128), (199, 129), (240, 83), (241, 87), (242, 200), (243, 200), (254, 130), (255, 131)):
            a(f's_cmp_eq_u32 s2, {i}\ns_cselect_b32 s10, {g}, s10')
        if not has('GV'): a('s_mov_b32 s66, 0')
        a(f's_and_b32 s83, s10, 127\ns_mul_i32 s83, s83, {16*RP}')
        a('s_waitcnt lgkmcnt(0)\ns_barrier')
        self.srd(12, 'ws', 0, SZ['ws'])
        self.stamp(0)
        a('s_cmp_ge_u32 s10, 128')
        a(f's_cselect_b32 s24, s{PTR["x_txt"]}, s{PTR["x_img"]}\ns_cselect_b32 s25, s{PTR["x_txt"]+1}, s{PTR["x_img"]+1}')
        a(f's_mov_b32 s26, {SZ["x_img"]}\ns_cselect_b32 s26, {SZ["x_txt"]}, s26\ns_mov_b32 s27, 0x20000\ns_cmp_ge_u32 s10, 132\ns_cselect_b32 s26, 0, s26')
        self.prefetch_u()
        a('s_cmp_ge_u32 s3, 4\ns_cbranch_scc1 L_loader')
        main = ['M', 'V', 'S']
        self.hooks = []; self.gate_job = False
        if 'dup' in OPT: main = ['V', 'V', 'V', 'V', 'S']
        elif 'vs' in OPT: main = ['V', 'M', 'V', 'M', 'S']
        else: main = [t for t in main if has(t)]
        chain = only is None or 'dup' in OPT or 'vs' in OPT
        def spare(): a('s_cmp_ge_u32 s92, 99\ns_cbranch_scc1 L_fin')
        a('s_cmp_lt_u32 s2, 112\ns_cbranch_scc1 L_c_nogv\ns_call_b64 s[86:87], L_gemv\nL_c_nogv:')
        if 'pf' in OPT and self.flags:
            a('s_sub_u32 s84, s2, 87\ns_and_b32 s75, s84, 0xffffffe7\ns_cmp_lg_u32 s75, 0\ns_cbranch_scc1 L_cnoinit\ns_barrier\ns_lshr_b32 s84, s84, 3'); self.prefetch_qk(96, 1); a('L_cnoinit:')
        self.stamp(1)
        self.cp_static()
        a('s_cmp_ge_u32 s10, 132\ns_cbranch_scc1 L_c_noln')
        if has('LN'): self.ln()
        a('L_c_noln:\ns_mov_b32 s60, 0\ns_mov_b32 s62, 0\ns_mov_b32 s64, 0\ns_mov_b32 s65, 0')
        self.stamp(3)
        body = self.a
        subs = Asm(); subs.uid = 10000; self.a = subs
        self.gemv_subs();
        self.chain = chain; er = self.capture(self.epi_rows); eq = self.capture(self.epi_qk)
        self.gemm_sub('L_tk', 'T', self.ACCT, epi=eq, npeel=NPEEL); self.gemm_sub('L_qk', 'T', self.ACC, True, epi=er, npeel=NPEEL); self.hook_sub(); self.gemm_sub('L_kk', 'K', self.ACC, epi=er, npeel=NPEEL); self.softmax_sub(); self.pv_sub()
        for h in self.hooks: subs(h)
        lsubs = Asm(); lsubs.uid = 20000; self.a = lsubs
        self.ld_subs()
        self.a = a = body
        self.row_offsets(self.VO, 216, None); self.ft_static()
        a('s_cmp_ge_u32 s2, 200\ns_cbranch_scc1 L_caux')
        if has('U'):
            self.idx_u('L_c_nou')
            self.cp_task('U', False, True, chain and main[0])
            self.stamp(4)
            if chain: self.idx_main(); a('s_barrier'); self.stamp(12); a(f's_call_b64 s[86:87], L_qk{"_w" if "weave" in OPT else ""}\ns_branch L_c_k')
        a('L_c_nou:')
        self.idx_main(); spare()
        if only is None: self.ops(2, XAT)
        for k, t in enumerate(main):
            self.cp_task(t, False, k == 0 or not chain, chain and k + 1 < len(main) and main[k + 1], cont=chain and k > 0, join='L_c_k' if chain and k == 0 else None, pv=only is None)
            self.stamp(5 + k)
        if has('PV'): self.cp_task('PV', False, True, False, pv=only is None)
        a('s_branch L_fin')
        a.lines += subs.lines
        a('L_caux:\ns_barrier')
        self.aux_interp('c', only)
        a('L_loader:')
        if self.instr:
            a('s_and_b32 s84, s2, 0xfffffffb\ns_cmp_lg_u32 s84, 195\ns_cbranch_scc1 L_notrace\ns_cmp_lg_u32 s3, 6\ns_cbranch_scc1 L_notrace\ns_mov_b32 s84, 0')
            a('L_trace:\ns_memrealtime s[72:73]\ns_memtime s[96:97]\ns_waitcnt lgkmcnt(0)\ns_mov_b32 m0, s84\ns_nop 4\nv_writelane_b32 v16, s72, m0\nv_writelane_b32 v17, s96, m0\ns_sleep 24\ns_add_u32 s84, s84, 1\ns_cmp_lt_u32 s84, 64\ns_cbranch_scc1 L_trace')
            a(f's_lshl_b32 s72, s2, 9\ns_add_u32 s72, s72, {WS_DBG + (1 << 20)}\nv_lshlrev_b32 v14, 3, v1\nbuffer_store_dwordx2 v[16:17], v14, s[12:15], s72 offen\ns_endpgm\nL_notrace:')
        if self.flags:
            a('s_sub_u32 s84, s2, 87\ns_and_b32 s75, s84, 0xffffffe7\ns_cmp_lg_u32 s75, 0\ns_cbranch_scc1 L_noinit\ns_mul_i32 s84, s84, 8192')
            a(f'v_mov_b32 v16, 0\nv_mov_b32 v17, 0\nv_mov_b32 v18, 0\nv_mov_b32 v19, 0\nv_lshlrev_b32 v20, 4, v0\nv_subrev_u32 v20, 4096, v20')
            for k in range(16): a(f'buffer_store_dwordx4 v[16:19], v20, s[12:15], s84 offen sc1\ns_add_u32 s84, s84, 4096')
            a(f'v_mov_b32 v20, {CX+28}\nv_mov_b32 v21, 1\ns_waitcnt vmcnt(0)\ns_mov_b64 exec, 1\nds_add_rtn_u32 v22, v20, v21\ns_waitcnt lgkmcnt(0)\nv_cmp_eq_u32 vcc, 3, v22')
            a(f's_cbranch_vccz L_noinit1\nv_mov_b32 v20, 0\nglobal_atomic_add v20, v21, {sr(PTR["dbg"],2)} sc1\nL_noinit1:\ns_mov_b64 exec, -1')
            if 'pf' in OPT:
                a('s_barrier\ns_sub_u32 s84, s2, 87\ns_lshr_b32 s84, s84, 3'); self.prefetch_qk(96, 1)
            a('L_noinit:')
        def w4job():
            if self.flags:
                a(f's_call_b64 s[68:69], L_lready\nv_mov_b32 v20, {CX+20}\nv_mov_b32 v21, 4'); self.lds_arrive(20, 21)
            a('s_cmp_ge_u32 s2, 220\ns_cbranch_scc1 L_w4j\ns_cmp_eq_u32 s66, 0\ns_cbranch_scc1 L_w4j\nv_mov_b32 v124, s80\ns_call_b64 s[86:87], L_gv_red2\nL_w4j:')
        a('s_cmp_lt_u32 s2, 112\ns_cbranch_scc1 L_l_nogv\ns_cmp_lt_u32 s2, 220\ns_cbranch_scc1 L_l_w4\ns_mov_b32 s26, 0\ns_call_b64 s[86:87], L_gemv\nL_l_w4:')
        self.w4(w4job)
        a('L_l_nogv:')
        self.ld_static()
        self.stamp(26)
        a('s_cmp_ge_u32 s2, 200\ns_cbranch_scc1 L_laux')
        if has('U'):
            self.idx_u('L_l_nou'); self.ld_late_start('U', False, 1)
            if chain: self.ld_body('U', main[0], self.idx_main, True, 2); a('s_branch L_l_k')
            else: self.ld_body('U', None)
        a('L_l_nou:')
        self.idx_main(); spare()
        for k, t in enumerate(main):
            if k == 0 or not chain: self.ld_late_start(t, False, 2, ready=True)
            if k == 0: a('L_l_k:')
            self.ld_body(t, main[k + 1] if chain and k + 1 < len(main) else None, k=3 + k)
        if has('PV'): self.ld_pv_start(); self.ld_body('PV', None)
        a('s_branch L_fin')
        a.lines += lsubs.lines
        a('L_laux:')
        a('s_barrier')
        self.aux_interp('l', only)
        a('L_fin:')
        self.stamp_store()
        a('L_end:\ns_endpgm')
    def rows4(self, srd, pitch, offs):
        a = self.a
        a(f'v_lshrrev_b32 v216, 4, v1\nv_and_b32 v217, 15, v1\nv_mul_u32_u24 v216, {pitch}, v216\nv_lshl_add_u32 v216, v217, 4, v216')
        for k, so in enumerate(offs):
            for i in range(9): a(f'buffer_load_dwordx4 {vr(252,4)}, v216, {sr(srd,4)}, {so} offen offset:{i*256}')
    def prefetch_u(self):
        if 'pfu' not in OPT: return
        a = self.a
        a('s_sub_u32 s84, s2, 116\ns_cmp_ge_u32 s84, 72\ns_cbranch_scc1 L_pfu\ns_lshl_b32 s84, s84, 2\ns_and_b32 s85, s3, 3\ns_add_u32 s84, s84, s85')
        a(f's_cmp_ge_u32 s3, 4\ns_cselect_b32 s32, s{PTR["wo_img"]}, s{PTR["wqkv_img"]}\ns_cselect_b32 s33, s{PTR["wo_img"]+1}, s{PTR["wqkv_img"]+1}')
        a(f's_mov_b32 s34, {SZ["wqkv_img"]}\ns_cselect_b32 s34, {SZ["wo_img"]}, s34\ns_mov_b32 s35, 0x20000\ns_movk_i32 s85, 6912\ns_cselect_b32 s85, 2304, s85\ns_cselect_b32 s82, 0, 4608')
        a('s_mul_i32 s84, s84, s85\ns_lshl_b32 s84, s84, 2\ns_add_u32 s84, s84, s82')
        self.rows4(32, 's85', ['s84'])
        a('L_pfu:')
    def prefetch_qk(self, first, rounds):
        a = self.a
        a(f's_lshl_b32 s84, s84, 3\ns_add_u32 s84, s84, s3\ns_add_u32 s84, s84, {first}\ns_mul_i32 s84, s84, {4*6912}')
        self.srd(32, 'wqkv_img', 0, SZ['wqkv_img'])
        for r in range(rounds):
            a('s_add_u32 s83, s84, 2304')
            self.rows4(32, 6912, ['s84', 's83'])
            a(f's_add_u32 s84, s84, {(128 if r == 0 else 96)*4*6912}')

def post(text):
    import re
    if 'nochk' in OPT:
        text = re.sub(r'  s_cbranch_vccnz L_chk_\d+_s\n', '', text).replace('L_spin:\n', 'L_spin:\n  s_setpc_b64 s[68:69]\n')
    if 'nofree' in OPT:
        text = text.replace('  s_cbranch_vccnz L_run_slow\n', '').replace('  s_cbranch_vccz L_run_go\nL_run_slow:', '  s_branch L_run_go\nL_run_slow:')
    if 'nocw' in OPT: text = text.replace('  ds_write_b32 v253, v252\n', '')
    if 'nocr' in OPT: text = text.replace('  ds_read_b32 v255, v254\n', '')
    if 'nolw' in OPT: text = text.replace('  ds_write_b32 v10, v12\n', '')
    if 'nolr' in OPT: text = text.replace('  ds_read_b32 v24, v9\n', '')
    if 'noldr' in OPT: text = text.replace('L_lprog0:\n', 'L_lprog0:\n  s_endpgm\n')
    if 'nocmp' in OPT: text = text.replace('L_cprog0:\n', 'L_cprog0:\n  s_endpgm\n')
    if 'nobar' in OPT: text = text.replace('  s_barrier\n', '')
    return text
def relabel(text, suffix):
    import re
    return re.sub(r'\b(L_\w+)', lambda m: m.group(1) + suffix, text)

def build(mode='fused', instr=False, cls=Mega):
    hdr = [l for l in open('standalone__mm_dit__diffusion.s.ref').read().split('\n')
           if l.startswith(';') and '@launch' not in l and 'Override launch' not in l and 'Harness parses' not in l]
    out = '\n'.join(hdr) + '\n'
    if mode == 'fused':
        name = 'standalone__mm_dit__diffusion_kernel'
        m = cls(instr, True); m.kernel(name)
        out += f'; @launch grid=(256,1,1) block=(512,1,1) lds={LDS}\n'
        out += '.amdgcn_target "amdgcn-amd-amdhsa--gfx950"\n.text\n' + m.a.text() + '.section .rodata,"a"\n' + kernel_desc(name, 256, 102)
        return out
    if mode.startswith('only:'):
        name = 'standalone__mm_dit__diffusion_kernel'
        m = cls(instr, False); m.kernel(name, set(mode[5:].split('+')))
        out += f'; @launch grid=(256,1,1) block=(512,1,1) lds={LDS}\n'
        out += '.amdgcn_target "amdgcn-amd-amdhsa--gfx950"\n.text\n' + m.a.text() + '.section .rodata,"a"\n' + kernel_desc(name, 256, 102)
        return out
    steps = [{'U', 'GV', 'G', 'X'}, {'LN'}, {'M', 'V', 'T'}, {'S', 'VT', 'Q2'}, {'PV', 'ST'}, {'Y'}, {'AT'}, {'OT'}]
    text = ''; desc = ''
    for k, st in enumerate(steps):
        name = f'step{k}_kernel'
        m = cls(instr, False); m.kernel(name, st)
        text += relabel(m.a.text(), f'_{k}'); desc += kernel_desc(name, 256, 102)
        out += f'; @launch kernel={name} grid=(256,1,1) block=(512,1,1) lds={LDS}\n'
    out += '.amdgcn_target "amdgcn-amd-amdhsa--gfx950"\n.text\n' + text + '.section .rodata,"a"\n' + desc
    return out

if __name__ == '__main__':
    mode = sys.argv[2] if len(sys.argv) > 2 else 'fused'
    open(sys.argv[1], 'w').write(post(build(mode, len(sys.argv) > 3)))
```

```python
import sys, struct
from asmlib import *
from gemm import Operand, emit_swz, emit_swap23

D = 1152
KA = ['x_img', 'x_txt', 'c', 'wqkv_img', 'wqkv_txt', 'wo_img', 'wo_txt', 'wmod_img', 'wmod_txt', 'out', 'dbg', 'ws']
PTR = {n: 36 + 2 * k for k, n in enumerate(KA)}
SZ = dict(x_img=4718592, x_txt=147456, c=4608, wqkv_img=7962624, wqkv_txt=7962624, wo_img=2654208, wo_txt=2654208,
          wmod_img=15925248, wmod_txt=15925248, out=4866048, dbg=256, ws=268435456)
MB = 1 << 20
RP = 2304
WS_FLAG = 0
WS_MODP = 151552
WS_GATE = WS_MODP + 3 * 4 * 9216
WS_ST = 327680
FTS = 4 * 36 * 1024
WS_HT = 655360; WS_QT = WS_HT + FTS; WS_VT = WS_QT + FTS; WS_Q2 = WS_VT + FTS; WS_PT = WS_Q2 + FTS; WS_Y = WS_PT + FTS; WS_AT = WS_Y + FTS
WS_Z = WS_AT + FTS
assert WS_Z + 4 * 18 * 4096 <= 2 * MB and WS_GATE + 12 * 4608 <= WS_ST and WS_ST + 34 * 1056 * 8 + 1024 <= WS_HT
BS = 2 * 1056 * RP
WS_H = 2 * MB; WS_Q = WS_H + BS; WS_K = WS_Q + BS; WS_V = WS_K + BS; WS_P = WS_V + BS; WS_U = WS_P + BS
USZ = 1152 * RP
WS_DBG = 64 * MB
FS = 128
F_GG = 0
F_LN = 108
F_U = 240
F_K = 348
F_V = 546
F_P = 744
F_T = 942; F_VT = 996; F_PT = 1014; F_Y = 1048; F_AT = 1084
NFLAG = 1184
assert WS_MODP == NFLAG * FS and WS_GATE == 4 * 65536
WS_E = (NFLAG - 1) * FS
PS = 1056
NS = 5; CH = 1040; STAGE = 28 * CH; RING = NS * STAGE; XL = RING; LDS = 163840
CB = LDS - 2048
GL = XL + 13312
CX = XL + 17920
SPIN = 0x1000000
LOG2E = 1.4426950408889634
def f2u(x): return struct.unpack('<I', struct.pack('<f', x))[0]

import os
OPT = set(os.environ.get('OPT', '').split(','))
LDF = os.environ.get('LDF', 'sc1')
SW = int(os.environ.get('SW', 5)); SD = int(os.environ.get('SD', 3))
DEPTH = int(os.environ.get('DEPTH', 2))
CSLEEP = '' if 'nocsleep' in OPT else 's_sleep 1\n'
LSLEEP = '' if 'nolsleep' in OPT else 's_sleep 1\n'
COLD = tuple(os.environ.get('COLD', 'none').split(','))
PSL = int(os.environ.get('PSL', 1))
PFAT = int(os.environ.get('PFAT', 5))
SIGW = int(os.environ.get('SIGW', 1))
ALN = f".p2align {os.environ.get('ALIGN', 6)}\n" + 's_nop 0\n' * int(os.environ.get('APAD', 0))
SKAH = int(os.environ.get('SKAH', 12))
PFD = int(os.environ.get('PFD', 4))
PFR = int(os.environ.get('PFR', 2))
XROT = tuple(os.environ.get('XROT', 'M,U').split(','))
PW = int(os.environ.get('PW', 3)); PD = int(os.environ.get('PD', 1))
NPEEL = int(os.environ.get('NPEEL', 2))
XAT = int(os.environ.get('XAT', 8))
PFW = int(os.environ.get('PFW', 0))
OUTF = os.environ.get('OUTF', 'sc1')
WEAVE = 'noweave' not in OPT and int(os.environ.get('XE', 0)) < 2
UNR = int(os.environ.get('UNR', 2)); LOOK = int(os.environ.get('LOOK', 0))
HLP = int(os.environ.get('HLP', 0)); HB = int(os.environ.get('HB', 144))
HTH = int(os.environ.get('HTH', 63)); HW = int(os.environ.get('HW', 0))
XE = int(os.environ.get('XE', 0))
class Mega:
    def __init__(self, instr=False, flags=True):
        self.a = Asm(); self.instr = instr; self.flags = flags

    def srd(self, srd, ptr, off, limit):
        a = self.a; p = PTR[ptr]
        a(f's_add_u32 s{srd}, s{p}, {off}\ns_addc_u32 s{srd+1}, s{p+1}, 0\ns_mov_b32 s{srd+2}, {limit}\ns_mov_b32 s{srd+3}, 0x20000')
    def sdiv(self, dst, src, c, rem=None):
        self.a(f's_mul_hi_u32 {dst}, {src}, {(1 << 32) // c + 1}')
        if rem: self.a(f's_mul_i32 {rem}, {dst}, {c}\ns_sub_u32 {rem}, {src}, {rem}')
    def lin(self, dst, terms, const=0):
        a = self.a; a(f's_mov_b32 {dst}, {const}')
        for r, c in terms: a(f's_mul_i32 s75, {r}, {c}\ns_add_u32 {dst}, {dst}, s75')
    def stamp(self, n):
        if self.instr: self.a(f's_memrealtime s[72:73]\ns_memtime s[96:97]\ns_waitcnt lgkmcnt(0)\nv_writelane_b32 v15, s72, {n}\nv_writelane_b32 v15, s96, {32+n}')
    def stamp_store(self):
        if not self.instr: return
        a = self.a
        self.stamp(2); a('s_waitcnt vmcnt(0)')
        self.stamp(31)
        a(f's_lshl_b32 s72, s2, 3\ns_add_u32 s72, s72, s3\ns_lshl_b32 s72, s72, 8\ns_add_u32 s72, s72, {WS_DBG}')
        a(f'v_lshlrev_b32 v14, 2, v1\nbuffer_store_dword v15, v14, s[12:15], s72 offen\ns_add_u32 s72, s72, {2 << 20}\nbuffer_store_dword v13, v14, s[12:15], s72 offen')
    def flag_lanes(self, vd, vt, ranges):
        a = self.a
        first = True; acc = 0
        if len(ranges) == 1:
            st, cnt = ranges[0]
            if isinstance(cnt, int): a(f'v_min_u32 v{vd}, {cnt-1}, v1')
            else: a(f's_sub_u32 s75, {cnt}, 1\nv_min_u32 v{vd}, s75, v1')
            a(f'v_add_u32 v{vd}, {st}, v{vd}\nv_lshlrev_b32 v{vd}, 7, v{vd}')
            return
        tot = sum(c for _, c in ranges)
        a(f'v_min_u32 v{vt}, {tot-1}, v1')
        for st, cnt in ranges:
            if isinstance(st, int): a(f's_mov_b32 s75, {st - acc}')
            else: a(f's_sub_u32 s75, {st}, {acc}')
            if first: a(f'v_mov_b32 v{vd}, s75')
            else: a(f'v_mov_b32 v{vt+1}, s75\nv_cmp_le_u32 vcc, {acc}, v{vt}\ns_nop 1\nv_cndmask_b32 v{vd}, v{vd}, v{vt+1}, vcc')
            first = False; acc += cnt
        a(f'v_add_lshl_u32 v{vd}, v{vd}, v{vt}, 7')
    def poll_sub(self, lab, vo, vt):
        a = self.a
        a(f'{lab}:\ns_mov_b32 s74, 0x80000\n{lab}_l:')
        a(f'buffer_load_dwordx4 {vr(vt,4)}, v{vo}, s[12:15], 0 offen sc1\ns_waitcnt vmcnt(0)')
        self.min4(vt); a(f'v_cmp_eq_u32 vcc, 0, v{vt}')
        a(f's_cmp_eq_u64 vcc, exec\ns_cbranch_scc1 {lab}_d\ns_sub_u32 s74, s74, 1\ns_cmp_eq_u32 s74, 0\ns_cbranch_scc1 {lab}_d\ns_sleep {PSL}\ns_branch {lab}_l')
        a(f'{lab}_d:\ns_setpc_b64 s[68:69]')
    def ld_params(self, t):
        a = self.a
        def ws(srd, off, lim=None): self.srd(srd, 'ws', off, lim if lim is not None else 0x4000000)
        def wsl(srd, base, sreg, lim=None):
            a(f's_add_u32 s67, {sreg}, {base}'); ws(srd, 's67', lim)
        def wgt(srd, name, sreg, const=0):
            a(f's_add_u32 s67, {sreg}, {const}\ns_sub_u32 s66, {SZ[name]}, s67'); self.srd(srd, name, 's67', 's66')
        if t in 'UW':
            wgt(16, 'wo_img', 's65'); a(f's_mul_i32 s70, s62, {96*6912}'); wgt(20, 'wqkv_img', 's70', 4608); return 'T', RP, 6912, 18
        if t == 'M':
            wgt(16, 'wqkv_img', 's65', 0); wsl(20, WS_H, 's63', 's64'); return 'T', 6912, RP, 18
        if t == 'V':
            wsl(16, WS_U, 's65'); wsl(20, WS_H, 's63', 's64'); return 'T', RP, RP, 18
        if t == 'S':
            self.lin('s70', [('s60', 1056 * RP), ('s61', 128 * RP)])
            a(f's_mov_b32 s71, {128*RP}\ns_cmp_eq_u32 s61, 8\ns_cselect_b32 s71, {32*RP}, s71')
            wsl(16, WS_K, 's70', 's71'); wsl(20, WS_Q, 's63', 's64'); return 'K', RP, RP, 18
        if t == 'PV':
            a(f's_mul_i32 s70, s60, {1056*RP}\ns_add_u32 s70, s70, s65')
            wsl(16, WS_V, 's70'); wsl(20, WS_P, 's63', 's64'); return 'T', RP, RP, 17
        raise ValueError(t)
    def dep_ranges(self, t, aux=False):
        a = self.a
        if t == 'M':
            self.lin('s70', [('s60', 64), ('s62', 6)], F_LN)
            a('s_cmp_eq_u32 s62, 10\ns_cselect_b32 s71, 4, 6'); return [('s70', 's71')]
        if t == 'V':
            self.lin('s70', [('s61', 12)], F_U); return [('s70', 12)]
        if t == 'S':
            a('s_lshl_b32 s70, s61, 2'); self.sdiv('s71', 's70', 3)
            self.lin('s70', [('s60', 99), ('s71', 9)], F_K)
            a(f's_cmp_eq_u32 s61, 8\ns_cselect_b32 s70, {F_T+18}, s70')
            self.lin('s66', [('s60', 99), ('s62', 9)], F_K)
            return [('s70', 18), ('s66', 9)]
        if t == 'PV':
            self.lin('s70', [('s60', 99), ('s62', 9)], F_P); self.lin('s71', [('s60', 99), ('s61', 11)], F_V)
            return [('s70', 9), ('s71', 11)]
        return None
    def sig_index(self, t, aux=False):
        m = {'U': ([('s61', 12), ('s62', 1)], F_U), 'M': ([('s60', 99), ('s62', 9), ('s61', 1)], F_K),
             'V': ([('s60', 99), ('s61', 11), ('s62', 1)], F_V), 'S': ([('s60', 99), ('s62', 9), ('s61', 1)], F_P),
             'T': ([('s61', 1)], F_T), 'VT': ([('s61', 1)], F_VT), 'ST': ([('s60', 17), ('s61', 1)], F_PT),
             'Y': ([('s60', 18), ('s61', 1)], F_Y), 'AT': ([('s61', 1)], F_AT), 'LN': ([('s10', 1)], F_LN)}[t]
        self.lin('s88', [(r, c * FS) for r, c in m[0]] + [('s3', 4)], m[1] * FS)
    def set_bij(self, rows):
        a = self.a
        if rows == 'img':
            self.lin('s63', [('s60', 1056 * RP), ('s62', 96 * RP)])
            a(f's_mov_b32 s64, {96*RP}\ns_cmp_eq_u32 s62, 10\ns_cselect_b32 s64, {64*RP}, s64')
        else:
            self.lin('s63', [('s60', 1056 * RP)], 1024 * RP); a(f's_mov_b32 s64, {32*RP}')
        a('s_lshl_b32 s65, s61, 8')

    LV = dict(rowT=2, inT=3, rowKA=4, rowKB=5, inK=6, inKB=7, vF=8, oA=9, oB=10, vA=24, vB=28, t=20, fd=16)
    def ld_static(self):
        a = self.a; L = self.LV; t = L['t']
        a(f's_sub_u32 s84, s3, 4\ns_mul_i32 s85, s84, {4*CH}\ns_mov_b32 s82, s85\ns_mul_i32 s5, s84, {CH}\ns_sub_u32 s5, {16*CH}, s5\ns_mov_b32 m0, s82')
        a(f'v_bfe_u32 v{L["rowT"]}, v1, 2, 2\nv_lshl_add_u32 v{L["rowT"]}, s84, 4, v{L["rowT"]}')
        a(f'v_lshrrev_b32 v{t}, 4, v1\nv_and_b32 v{t+1}, 3, v1\nv_lshlrev_b32 v{t+1}, 4, v{t+1}\nv_lshl_add_u32 v{L["inT"]}, v{t}, 6, v{t+1}')
        a(f'v_bfe_u32 v{t}, v1, 2, 3\nv_lshl_add_u32 v{L["rowKA"]}, s84, 5, v{t}\ns_mul_i32 s75, s84, 24\nv_add_u32 v{L["rowKB"]}, s75, v{t}')
        a(f'v_bfe_u32 v{t}, v1, 4, 1\nv_mul_u32_u24 v{t}, 48, v{t}\nv_xor_b32 v{t+1}, v{t+1}, v{t}\nv_lshrrev_b32 v{t}, 5, v1\nv_lshl_add_u32 v{L["inK"]}, v{t}, 6, v{t+1}')
        a(f's_and_b32 s75, s84, 1\ns_mul_i32 s75, s75, 48\nv_xor_b32 v{L["inKB"]}, s75, v{L["inK"]}\nv_mov_b32 v{L["vF"]}, 0')
    def order_valu(self, n, dst, t, u0, limit, SW=SW, SD=SD):
        a = self.a; u, dl, sd = t, t + 1, t + 2
        a(f'v_add_u32 v{u}, {u0}, v{n}\nv_mov_b32 v{sd}, {SD}')
        a(f'v_mul_u32_u24 v{dl}, {(1<<16)//SW+1}, v{u}\nv_lshrrev_b32 v{dl}, 16, v{dl}\nv_mul_u32_u24 v{dl}, {SW}, v{dl}\nv_sub_u32 v{u}, v{u}, v{dl}')
        a(f'v_cmp_ge_u32 vcc, {SD}, v{u}\nv_cmp_eq_u32 s[66:67], 0, v{u}\nv_sub_u32 v{u}, v{n}, v{u}\nv_cndmask_b32 v{dl}, 0, -1, vcc')
        a(f'v_cmp_gt_u32 vcc, {0 if "nostag" in OPT else limit}, v{u}\nv_cndmask_b32 v{dl}, v{dl}, v{sd}, s[66:67]\ns_nop 0\nv_cndmask_b32 v{dl}, 0, v{dl}, vcc')
        a(f'v_add_u32 v{dst}, v{n}, v{dl}')
    def pv_order(self, q, t):
        a = self.a
        a(f'v_subrev_u32 v{q}, 1, v{q}\ns_add_u32 s84, s62, {PW}')
        self.order_valu(q, q, t, 's84', 7 - PD, PW, PD)
        a(f's_add_u32 s84, s61, 1\nv_add_u32 v{t}, 1, v{q}\nv_and_b32 v{t}, 8, v{t}\nv_add_u32 v{q}, s84, v{q}\nv_and_b32 v{q}, 7, v{q}\nv_max_u32 v{q}, v{q}, v{t}')
    def ld_setup(self, t):
        a = self.a; L = self.LV; tm = L['t']; vA, vB = L['vA'], L['vB']
        S = 17 if t in ('PV', 'Y') else 18
        cold = t in COLD and 'norot' not in OPT
        if cold:
            self.lin('s84', [('s61', 2), ('s60', 1), ('s62', 3)]); self.sdiv('s75', 's84', 18, 's83')
            a(f'v_add_u32 v{L["oB"]}, s83, v1\nv_subrev_u32 v{tm}, 18, v{L["oB"]}\nv_min_u32 v{L["oB"]}, v{L["oB"]}, v{tm}')
        else:
            a('s_add_u32 s84, s61, s62')
            if t == 'PV':
                a(f'v_lshrrev_b32 v{L["oB"]}, 1, v1'); self.pv_order(L['oB'], tm)
                a(f'v_and_b32 v{tm}, 1, v1\nv_lshl_add_u32 v{L["oB"]}, v{L["oB"]}, 1, v{tm}')
            else:
                w_, d_ = [int(x) for x in os.environ.get('ST_' + t, f'{SW},{SD}').split(',')]
                self.order_valu(1, L['oB'], tm, 's84', 18 - d_, w_, d_)
            if t in XROT:
                a(f's_and_b32 s84, s2, 7\ns_mul_i32 s84, s84, 9\ns_lshr_b32 s84, s84, 2\nv_add_u32 v{L["oB"]}, s84, v{L["oB"]}\nv_subrev_u32 v{tm}, 18, v{L["oB"]}\nv_min_u32 v{L["oB"]}, v{L["oB"]}, v{tm}')
        lay, pA, pB, S2 = self.ld_params(t)
        assert S == S2
        ftB = t in ('S', 'PV')
        a(f's_mov_b32 s7, 2304\ns_mov_b32 s76, {pA}\ns_mov_b32 s77, {pB}\ns_mov_b32 s78, {pA * 64 if lay == "T" else 2048}')
        a(f'v_mul_u32_u24 v{L["oA"]}, s78, v{L["oB"]}\nv_lshlrev_b32 v{L["oB"]}, {11 if ftB else 7}, v{L["oB"]}')
        if lay == 'T':
            a(f'v_mad_u32_u24 v{vA}, v{L["rowT"]}, s76, v{L["inT"]}')
            for m in range(1, 4): a(f'v_add_u32 v{vA+m}, {m*(4*pA - CH)}, v{vA}')
        else:
            a(f's_sub_u32 s84, s3, 4\ns_mul_i32 s84, s84, {2*36864}\ns_add_u32 s84, s84, 64\nv_lshl_add_u32 v{vA}, v1, 4, s84')
            for m in range(1, 4): a(f'v_add_u32 v{vA+m}, {((m>>1)*36864 + (m&1)*1024 - m*CH) & 0xffffffff:#x}, v{vA}')
            a('s_sub_u32 s16, s16, 64\ns_subb_u32 s17, s17, 0\ns_add_u32 s18, s18, 64')
        a(f'v_readlane_b32 s100, v{L["oA"]}, 0\nv_readlane_b32 s101, v{L["oB"]}, 0\ns_mov_b32 s98, 1')
        if ftB:
            for m in range(3):
                a(f's_sub_u32 s84, s3, 4\ns_mul_i32 s84, s84, 3\ns_add_u32 s84, s84, {m}\ns_lshr_b32 s75, s84, 1\ns_mul_i32 s75, s75, {36864 - 2048}\ns_lshl_b32 s84, s84, 10')
                a(f's_add_u32 s84, s84, s75\ns_add_u32 s84, s84, {(64 - m*CH) & 0xffffffff:#x}\nv_lshl_add_u32 v{vB+m}, v1, 4, s84')
            a('s_sub_u32 s20, s20, 64\ns_subb_u32 s21, s21, 0\ns_add_u32 s22, s22, 64')
        else:
            a(f'v_mad_u32_u24 v{vB}, v{L["rowKB"]}, s77, v{L["inKB"]}\nv_xor_b32 v{tm}, 48, v{vB}')
            for m in range(1, 3): a(f'v_add_u32 v{vB+m}, {m*(8*pB - CH)}, v{tm if m & 1 else vB}')
        assert pA % 64 == 0 and pB % 64 == 0
    def min4(self, v):
        for r in range(4): self.a(f'v_xor_b32 v{v+r}, s11, v{v+r}')
        self.a(f'v_or3_b32 v{v}, v{v}, v{v+1}, v{v+2}\nv_or_b32 v{v}, v{v}, v{v+3}')
    def tag(self): self.a('s_waitcnt lgkmcnt(0)\ns_mul_i32 s11, s8, 1664525\ns_add_u32 s11, s11, 1013904223')
    def ld_issue(self, kind='n'):
        a = self.a; L = self.LV
        ld = lambda v, srd, so, m: a(f'buffer_load_dwordx4 v{v+m}, {srd}, {so} offen offset:{m*CH} {LDF} lds') if 'noload' not in OPT else a('s_nop 0')
        if kind == 'y':
            ld(L['vA'], 's[16:19]', 's99', 0)
            a(f's_add_u32 s82, s82, {STAGE}\ns_cmp_ge_u32 s82, {RING}')
            ld(L['vA'], 's[16:19]', 's99', 1)
            a('s_cselect_b32 s82, s85, s82')
            ld(L['vA'], 's[16:19]', 's99', 2); ld(L['vA'], 's[16:19]', 's99', 3)
            a('s_mov_b32 m0, s82\ns_nop 0')
            return
        for m in range(4): ld(L['vA'], 's[16:19]', 's100', m)
        if kind == 'x': a('s_add_u32 s99, s100, s7')
        a(f's_add_u32 m0, s82, s5\nv_readlane_b32 s100, v{L["oA"]}, s98')
        ld(L['vB'], 's[20:23]', 's101', 0)
        a(f's_add_u32 s82, s82, {STAGE}\ns_cmp_ge_u32 s82, {RING}')
        ld(L['vB'], 's[20:23]', 's101', 1)
        a('s_cselect_b32 s82, s85, s82')
        ld(L['vB'], 's[20:23]', 's101', 2)
        a(f's_mov_b32 m0, s82\nv_readlane_b32 s101, v{L["oB"]}, s98\ns_add_u32 s98, s98, 1')
    def ld_subs(self):
        a = self.a; L = self.LV
        loop = lambda l: a(f's_sub_u32 s83, s83, 1\ns_cmp_lg_u32 s83, 0\ns_cbranch_scc1 {l}\ns_setpc_b64 s[86:87]')
        a('L_issue:'); self.ld_issue(); loop('L_issue')
        a('L_steady:\ns_waitcnt vmcnt(14)\ns_barrier')
        if self.instr and 0: a('s_memrealtime s[72:73]\ns_waitcnt lgkmcnt(0)\ns_mov_b32 m0, s90\ns_add_u32 s90, s90, 1\nv_writelane_b32 v13, s72, m0\ns_mov_b32 m0, s82\ns_nop 0')
        self.ld_issue(); loop('L_steady')
        a('L_issue2:'); self.ld_issue('x'); self.ld_issue('y'); a('s_setpc_b64 s[86:87]')
        a('L_steady2:\ns_waitcnt vmcnt(11)\ns_barrier')
        if self.instr: a('s_memrealtime s[72:73]\ns_waitcnt lgkmcnt(0)\ns_mov_b32 m0, s90\ns_add_u32 s90, s90, 1\nv_writelane_b32 v13, s72, m0\ns_mov_b32 m0, s82\ns_nop 0')
        self.ld_issue('x')
        a('s_waitcnt vmcnt(11)\ns_barrier'); self.ld_issue('y'); loop('L_steady2')
        self.poll_sub('L_lpoll', L['vF'], L['fd'])
    def ld_call(self, what, n=None):
        if n is not None:
            if n == 0: return
            self.a(f's_mov_b32 s83, {n}')
        self.a(f's_call_b64 s[86:87], {what}')
    def w4(self, fn):
        lab = self.a.label('w4'); self.a(f's_cmp_lg_u32 s3, 4\ns_cbranch_scc1 {lab}'); fn(); self.a(f'{lab}:')
    def ld_late_start(self, t, aux, k, ready=False):
        a = self.a; L = self.LV
        def poll():
            r = self.dep_ranges(t, aux)
            if r: self.flag_lanes(L['vF'], L['t'], r); a('s_call_b64 s[68:69], L_lpoll')
        self.ld_setup(t)
        if self.flags and t != 'U': self.w4(poll)
        if t != 'U': a('s_barrier')
        self.stamp(k)
        if t in 'MW':
            self.ld_call('L_issue2'); a('s_waitcnt vmcnt(4)\ns_barrier'); self.ld_call('L_issue2'); return
        self.ld_call('L_issue', 2)
        a('s_waitcnt vmcnt(7)\ns_barrier')
        self.ld_call('L_issue', 2)
    def ld_pv_start(self):
        a = self.a; L = self.LV; vt = L['fd']
        st, t, ad, vf = 64, 100, 96, 112
        self.ld_setup('PV')
        self.lin('s70', [('s60', 17 * 1056 * 8), ('s62', 96 * 8)], WS_ST); self.srd(28, 'ws', 's70', 0x100000)
        a(f'v_and_b32 v{vf}, 15, v1\ns_sub_u32 s91, s3, 4\ns_min_u32 s91, s91, 2\ns_lshl_b32 s92, s91, 4\nv_add_lshl_u32 v{t}, v{vf}, s92, 3\nv_lshrrev_b32 v{t+1}, 4, v1\ns_movk_i32 s92, {1056*8}')
        for m in range(2):
            n = ad + 2 * m
            a(f'v_add_u32 v{n}, {4*m}, v{t+1}'); self.pv_order(n, t + 3)
            a(f'v_lshlrev_b32 v{n}, 1, v{n}\nv_mad_u32_u24 v{n}, v{n}, s92, v{t}\nv_add_u32 v{n+1}, s92, v{n}')
        a(f's_lshl_b32 s92, s91, 6\ns_add_u32 s92, s92, {XL+4096}\nv_lshl_add_u32 v{vf}, v{vf}, 2, s92\nv_mul_u32_u24 v{t+1}, 192, v{t+1}\nv_add_u32 v{t+1}, v{t+1}, v{vf}')
        def stats():
            a(f's_mov_b32 s93, {16*1056*8}')
            for m in range(4):
                for jt in range(2): a(f'buffer_load_dwordx2 {vr(st+2*(m*3+jt),2)}, v{ad+m}, s[28:31], 0 offen offset:{384*jt} sc1')
            for jt in range(2): a(f'buffer_load_dwordx2 {vr(st+2*(12+jt),2)}, v{t}, s[28:31], s93 offen offset:{384*jt} sc1')
        if self.flags:
            self.lin('s70', [('s60', 99), ('s62', 9)], F_P); self.lin('s71', [('s60', 99), ('s61', 11)], F_V)
            def first():
                a('s_cmp_eq_u32 s61, 8\ns_cselect_b32 s66, s70, s71'); self.flag_lanes(L['vF'], L['t'], [('s71', 11), ('s66', 1)]); a('s_call_b64 s[68:69], L_lpoll')
            self.w4(first)
            a(f'v_and_b32 v{L["vF"]}, 7, v1\ns_add_u32 s66, s61, 1\nv_add_u32 v{L["vF"]}, s66, v{L["vF"]}\nv_subrev_u32 v{L["t"]}, 9, v{L["vF"]}\nv_min_u32 v{L["vF"]}, v{L["vF"]}, v{L["t"]}\nv_add_lshl_u32 v{L["vF"]}, v{L["vF"]}, s70, 7')
        a('s_barrier')
        self.stamp(10)
        self.ld_call('L_issue', 2)
        if self.flags: a(f'buffer_load_dwordx4 {vr(vt,4)}, v{L["vF"]}, s[12:15], 0 offen sc1')
        a(f's_waitcnt vmcnt({7 + self.flags})\ns_barrier')
        if self.flags:
            a('s_waitcnt vmcnt(0)'); self.min4(vt)
            a(f'v_cmp_ne_u32 vcc, 0, v{vt}\ns_cbranch_vccz L_pv_fast\ns_barrier\ns_call_b64 s[68:69], L_lpoll')
            self.ld_call('L_issue', 2); a('s_branch L_pv_tab\nL_pv_fast:')
        self.ld_call('L_issue', 1); a('s_waitcnt vmcnt(7)\ns_barrier'); self.ld_call('L_issue', 1)
        a('L_pv_tab:')
        stats()
        a('s_waitcnt vmcnt(17)')
        self.stamp(11)
        a('s_barrier'); self.ld_call('L_issue', 1)
        a('s_waitcnt vmcnt(7)')
        mx, o = t + 4, t + 8
        M = [[st + 2 * (m * 3 + jt) for m in range(5)] for jt in range(2)]
        for jt in range(2): a(f'v_max3_f32 v{mx+jt}, v{M[jt][0]}, v{M[jt][2]}, v{M[jt][4]}')
        self.allred(mx, o, 'v_max_f32', 2)
        for m in (0, 2, 4):
            for jt in range(2): a(f'v_sub_f32 v{M[jt][m]}, v{M[jt][m]}, v{mx+jt}')
        for m in (0, 2, 4):
            for jt in range(2): a(f'v_exp_f32 v{M[jt][m]}, v{M[jt][m]}')
        for jt in range(2): a(f'v_mul_f32 v{mx+jt}, v{M[jt][0]}, v{M[jt][0]+1}')
        for m in range(1, 4):
            for jt in range(2): a(f'v_fmac_f32 v{mx+jt}, v{M[jt][m & 2]}, v{M[jt][m]+1}')
        self.allred(mx, o, 'v_add_f32', 2)
        for jt in range(2): a(f'v_fmac_f32 v{mx+jt}, v{M[jt][4]}, v{M[jt][4]+1}')
        for jt in range(2): a(f'v_rcp_f32 v{mx+jt}, v{mx+jt}')
        a('s_nop 0')
        for m in (0, 2, 4):
            for jt in range(2): a(f'v_mul_f32 v{M[jt][m]}, v{M[jt][m]}, v{mx+jt}\nds_write_b32 v{t+1 if m < 4 else vf}, v{M[jt][m]} offset:{m*384+jt*9*192}')
        self.ld_call('L_issue', 1)
        a('s_waitcnt lgkmcnt(0)')
        self.stamp(12)
    def ld_body(self, t, nxt, pre=None, ready=False, k=0):
        a = self.a; L = self.LV; vt = L['fd']
        M = t in 'MW'
        left = {'PV': 11, 'M': 32, 'W': 32}.get(t, 14)
        run = (lambda n: self.ld_call('L_steady2', n // 2)) if M else (lambda n: self.ld_call('L_steady', n))
        def ask(r):
            self.flag_lanes(L['vF'], L['t'], r())
            a(f'buffer_load_dwordx4 {vr(vt,4)}, v{L["vF"]}, s[12:15], 0 offen sc1')
        def chk():
            lab = a.label('dep_ok'); a(f's_waitcnt vmcnt({11 if M else 14})'); self.min4(vt)
            a(f'v_cmp_eq_u32 vcc, 0, v{vt}\ns_cmp_eq_u64 vcc, exec\ns_cbranch_scc1 {lab}')
            a(f's_call_b64 s[68:69], L_lpoll\n{lab}:')
        w = (11, 4) if M else (14, 7)
        drain = f's_waitcnt vmcnt({w[0]})\ns_barrier\ns_waitcnt vmcnt({w[1]})\ns_barrier\ns_waitcnt vmcnt(0)\ns_barrier\ns_barrier'
        if not nxt:
            if t == 'PV':
                def gdep():
                    a(f's_lshl_b32 s66, s61, 1\ns_add_u32 s66, s66, {F_VT}\ns_lshl_b32 s67, s61, 2'); return [('s67', 4), ('s66', 2)]
                def gate():
                    if self.flags: chk()
                    self.lin('s67', [('s60', 4608), ('s65', 2)], WS_GATE); self.srd(24, 'ws', 's67', 4 * 4608 + 512)
                    t_ = L['t']
                    a(f'v_lshrrev_b32 v{t_+1}, 5, v1\nv_mul_u32_u24 v{t_+1}, {4*4608 - 512}, v{t_+1}\nv_lshl_add_u32 v{t_}, v1, 4, v{t_+1}\ns_mov_b32 m0, {GL}\ns_nop 0')
                    a(f'buffer_load_dwordx4 v{t_}, s[24:27], 0 offen sc1 lds\ns_mov_b32 m0, s82')
                run(left - 3)
                if self.flags: self.w4(lambda: ask(gdep))
                run(2); self.w4(gate); run(1)
            else: run(left)
            a(drain)
            return
        if pre: pre()
        if t == 'M' and 'bg' in OPT:
            for n in range(4):
                self.bg_prefetch(n); run(4); left -= 4
        lab = a.label('nx')
        if self.flags:
            run(left - 2)
            ask(lambda: self.dep_ranges(nxt, False))
            run(2)
            a(f's_waitcnt vmcnt({w[0]})'); self.min4(vt)
            a(f'v_cmp_eq_u32 s[94:95], 0, v{vt}')
        else: run(left)
        self.stamp(k)
        self.ld_setup(nxt)
        if self.flags:
            a(f's_cmp_eq_u64 s[94:95], exec\ns_cbranch_scc1 {lab}_g\n{drain}\ns_call_b64 s[68:69], L_lpoll')
            if nxt == 'M': self.ld_call('L_issue2'); a('s_waitcnt vmcnt(4)\ns_barrier'); self.ld_call('L_issue2')
            else: self.ld_call('L_issue', 2); a('s_waitcnt vmcnt(7)\ns_barrier'); self.ld_call('L_issue', 2)
            a(f's_branch {lab}_e\n{lab}_g:')
        if nxt == 'M': self.ld_call('L_steady2', 2)
        elif M:
            for _ in range(2): a('s_waitcnt vmcnt(11)'); self.ld_call('L_steady', 1)
            self.ld_call('L_steady', 2)
        else: self.ld_call('L_steady', 4)
        a(f's_barrier\n{lab}_e:')
    def bg_prefetch(self, n):
        a = self.a
        a('s_lshl_b32 s92, s2, 2\ns_add_u32 s92, s92, s3\ns_sub_u32 s92, s92, 4\nv_lshlrev_b32 v32, 4, v1')
        if n < 2:
            self.srd(24, 'wqkv_txt', 0, SZ['wqkv_txt'])
            a(f's_mul_i32 s92, s92, 10240\ns_add_u32 s92, s92, {5120*n}\ns_min_u32 s92, s92, {SZ["wqkv_txt"]-5120}\ns_add_u32 s93, s92, 4096')
            for i in range(5): a(f'buffer_load_dwordx4 v[36:39], v32, s[24:27], {"s92" if i < 4 else "s93"} offen offset:{1024*(i&3)}')
        else:
            self.srd(24, 'wmod_img' if n == 2 else 'wmod_txt', 0, SZ['wmod_img'])
            a('s_mul_i32 s92, s92, 3\ns_mov_b32 exec_hi, 0xf')
            for i in range(3):
                a(f's_add_u32 s93, s92, {i}\ns_and_b32 s84, s93, 1\ns_lshr_b32 s93, s93, 1\ns_min_u32 s93, s93, 1151\ns_mul_i32 s93, s93, 13824\ns_mul_i32 s84, s84, 1152\ns_add_u32 s93, s93, s84\ns_add_u32 s93, s93, 4608')
                a('buffer_load_dwordx4 v[36:39], v32, s[24:27], s93 offen\nbuffer_load_dwordx4 v[36:39], v32, s[24:27], s93 offen offset:576')
            a('s_mov_b32 exec_hi, -1')

    VA = 2; VB = 3; DT = 4; DK = 5; TA = 6; VROW = 10; VCOL = 11; VONE = 12; VZERO = 13
    ACC = 16; TMP = [64, 112]; FA = [160, 176]; FB = [192, 204]; FREE = 216
    def cp_static(self):
        a = self.a
        a('s_lshr_b32 s90, s3, 1\ns_and_b32 s91, s3, 1\ns_mov_b32 s89, -1\ns_mov_b32 s98, 0\ns_mov_b32 s88, 0')
        g, c, x, y = 196, 197, 198, 199
        a(f'v_lshrrev_b32 v{g}, 4, v1\nv_lshrrev_b32 v{x}, 1, v1\nv_xor_b32 v{x}, v{x}, v1\nv_bfe_u32 v{x}, v{x}, 2, 1\nv_mul_u32_u24 v{x}, 3, v{x}\nv_xor_b32 v{x}, v{x}, v{g}')
        a(f'v_and_b32 v{c}, 7, v1\nv_lshlrev_b32 v{c}, 6, v{c}\nv_lshl_add_u32 v{x}, v{x}, 4, v{c}\nv_bfe_u32 v{c}, v1, 3, 1\nv_mul_u32_u24 v{c}, {CH}, v{c}\nv_add_u32 v{x}, v{x}, v{c}')
        a(f's_mul_i32 s92, s91, {6*CH}\ns_add_u32 s92, s92, {16*CH}\nv_add_u32 v{self.VB}, s92, v{x}')
        a(f's_mul_i32 s93, s90, {8*CH}\ns_sub_u32 s93, s93, s92\nv_mov_b32 v{self.DK}, s93')
        a(f'v_mul_u32_u24 v{g}, {2*CH}, v{g}\nv_bfe_u32 v{c}, v1, 2, 2\nv_lshl_add_u32 v{g}, v{c}, 6, v{g}\nv_and_b32 v{c}, 3, v1\nv_lshl_add_u32 v{g}, v{c}, 3, v{g}')
        a(f's_lshl_b32 s93, s90, 9\nv_add_u32 v{g}, s93, v{g}\nv_sub_u32 v{self.DT}, v{g}, v{self.VB}')
        a(f'v_and_b32 v{x}, 12, v1\nv_bfe_u32 v{y}, v1, 4, 1\ns_mul_i32 s92, s91, 48\nv_add3_u32 v{self.VROW}, v{x}, v{y}, s92')
        a(f'v_and_b32 v{x}, 3, v1\nv_lshlrev_b32 v{x}, 5, v{x}\nv_lshrrev_b32 v{y}, 5, v1\nv_lshl_add_u32 v{x}, v{y}, 4, v{x}\ns_lshl_b32 s92, s90, 7\nv_add_u32 v{self.VCOL}, s92, v{x}')
        a(f'v_bfe_i32 v8, v1, 0, 1\nv_bfe_i32 v9, v1, 1, 1\nv_mov_b32 v{self.VONE}, 1\nv_mov_b32 v{self.VZERO}, 0')
    def reads(self, lay, kk, st):
        B = [f'ds_read_b128 {vr(self.FB[st]+4*jt,4)}, v{self.VB} offset:{jt*2*CH + kk*(512 if lay == "T" else CH)}' for jt in range(3)]
        A = []
        for it in range(4):
            if lay == 'K': A.append(f'ds_read_b128 {vr(self.FA[st]+4*it,4)}, v{self.VA} offset:{it*2*CH + kk*CH}')
            else:
                for h in range(2):
                    A.append(f'ds_read_b64_tr_b16 {vr(self.FA[st]+4*it+2*h,2)}, v{self.VA} offset:{(h+8*kk)*CH + (it>>1)*256 + (it&1)*32}')
        k = 1 if lay == 'K' else 2
        if 'jmaj' in OPT: return A[:k] + B[:1] + A[k:] + B[1:]
        return A[:k] + B + A[k:]
    def to_ft(self):
        self.a(f'v_add_u32 v{self.VB}, v{self.VB}, v14\nv_sub_u32 v{self.DT}, v{self.DT}, v14\nv_mov_b32 v14, 0')
    def mfmas(self, st, acc, zero=False):
        out = []
        order = [(it, (2 - jt if it & 1 and 'snake' in OPT else jt)) for it in range(4) for jt in range(3)]
        if 'jmaj' in OPT: order = [((3 - it if jt & 1 else it), jt) for jt in range(3) for it in range(4)]
        for it, jt in order:
            d = vr(acc + 4 * (it * 3 + jt), 4)
            out.append(f'v_mfma_f32_16x16x32_bf16 {d}, {vr(self.FA[st]+4*it,4)}, {vr(self.FB[st]+4*jt,4)}, {"0" if zero else d}')
        return out
    def advance(self, lay):
        return [f'v_add_u32 v{self.TA}, {STAGE}, v{self.VB}', f'v_add_u32 v{self.TA+1}, {(STAGE-RING) & 0xffffffff:#x}, v{self.VB}',
                f'v_min_u32 v{self.VB}, v{self.TA+1}, v{self.TA}', f'v_add_u32 v{self.VA}, v{self.VB}, v{self.DK if lay == "K" else self.DT}']
    def rebase(self, lay, sign):
        if sign > 0: self.a(self.advance(lay)[3])
    @staticmethod
    def regs_of(txt):
        import re
        out = []
        for m in re.finditer(r'v\[(\d+):(\d+)\]|v(\d+)', txt):
            out.append(set(range(int(m.group(1)), int(m.group(2)) + 1)) if m.group(1) else {int(m.group(3))})
        return out
    def emit_waits(self, seq, pending):
        a = self.a
        for pos, ins in enumerate(seq):
            rs = self.regs_of(ins)
            if ins.startswith('ds_read'):
                a(ins); pending.append(rs[0]); continue
            use = set().union(*rs) if rs else set()
            last = max((k for k, d in enumerate(pending) if d & use), default=-1)
            if last >= 0:
                for nx in [x for x in seq[pos + 1:pos + 12] if x.startswith('v_mfma')][:LOOK]:
                    u2 = set().union(*self.regs_of(nx))
                    last = max(last, max((k for k, d in enumerate(pending) if d & u2), default=-1))
                n = len(pending) - 1 - last
                assert n <= 15
                a(f's_waitcnt lgkmcnt({n})'); del pending[:last + 1]
            a(ins)
        return pending
    def weave(self, mf, rd, other):
        if 'nomfma' in OPT: mf = ['s_nop 0'] * len(mf)
        if 'noread' in OPT: rd = []
        n = len(mf); gaps = [[] for _ in range(n)]
        for k, r in enumerate(rd): gaps[min(n - 1, k * (n - 1) // max(1, len(rd)) if len(rd) < n else k)].append(r)
        return gaps, mf
    def substep(self, mf, rd, tail, other=(), bar=False):
        gaps, mf = self.weave(mf, rd, other)
        n = len(mf); other = list(other)
        for k, x in enumerate(other): gaps[k * n // len(other)].append(x)
        gaps[n - 1] += list(tail)
        seq = []
        if bar and 'bar0' in OPT: seq = ['s_barrier']
        elif bar: gaps[0].insert(0, 's_barrier')
        for m, g in zip(mf, gaps): seq += [m] + g
        return seq
    def stage(self, lay, acc, zero=False, ex0=(), ex1=(), half=False, end=()):
        adv = self.advance(lay)
        if half: return self.substep(self.mfmas(0, acc, zero), [], list(end), adv + list(ex0), bar=True)
        return self.substep(self.mfmas(0, acc, zero), self.reads(lay, 1, 1), adv[2:], adv[:2] + list(ex0)) + \
               self.substep(self.mfmas(1, acc), self.reads(lay, 0, 0), list(end), ex1, bar=True)
    def loop(self, pre, body):
        pend = self.emit_waits(pre, [])
        start = [set(x) for x in pend]
        return start, pend
    def signal_now(self):
        if not self.flags: return
        self.a(f's_waitcnt vmcnt(0)\nv_mov_b32 v255, s11\ns_mov_b64 exec, 1\nbuffer_store_dword v255, v{self.VZERO}, s[12:15], s88 offen sc1\ns_mov_b64 exec, -1')
    ACC2 = 112; ACCT = 64; VO = 240
    def hook(self, lab):
        self.hooks.append(f'{lab}_h:\ns_call_b64 s[68:69], L_hook\ns_branch {lab}_n')
        return f's_cmp_eq_u32 s94, s89\ns_cbranch_scc1 {lab}_h\n{lab}_n:'
    def capture(self, fn):
        keep = self.a; self.a = Asm(); fn(); out = [l.strip() for l in self.a.lines if not l.strip().startswith('s_nop')]; self.a = keep
        return out
    def gemm_sub(self, lab, lay, acc, merged=False, epi=None, npeel=2):
        a = self.a
        nit = 18 if merged else 9
        adv = self.advance(lay); onlyA = lambda kk, st: [r for r in self.reads(lay, kk, st) if f'v{self.VA} ' in r]
        def body(ex, zero=False):
            if merged:
                return self.substep(self.mfmas(0, acc, zero), self.reads(lay, 1, 1), adv[2:], adv[:2] + ex[0]) + \
                       self.substep(self.mfmas(1, acc), onlyA(0, 0), [], ex[1], bar=True) + \
                       self.substep(self.mfmas(0, self.ACC2, zero), onlyA(1, 1), adv[2:], adv[:2] + ex[2]) + \
                       self.substep(self.mfmas(1, self.ACC2), self.reads(lay, 0, 0), [], ex[3], bar=True)
            return self.stage(lay, acc, zero=zero, ex0=ex[0], ex1=ex[1]) + self.stage(lay, acc, ex0=ex[2], ex1=ex[3])
        first = self.reads(lay, 0, 0) if 'noread' not in OPT else []
        a(f'{lab}:')
        self.rebase(lay, 1)
        start = self.emit_waits(first, [])
        for r in range(48): a(f'v_mov_b32 v{acc+r}, 0')
        if merged:
            for r in range(48): a(f'v_mov_b32 v{self.ACC2+r}, 0')
        a(f's_mov_b32 s94, {nit}')
        if epi:
            a(f's_branch {lab}_l\n{ALN}{lab}_w:')
            self.rebase(lay, 1)
            pend = self.emit_waits(first, [])
            n = 4 * npeel
            for k in range(npeel):
                pend = self.emit_waits(body([epi[(4*k+q)*len(epi)//n:(4*k+q+1)*len(epi)//n] for q in range(4)], zero=k == 0), pend)
            assert pend == start
            a(f's_mov_b32 s94, {nit - npeel}')
        a(f'{ALN}{lab}_l:')
        un = UNR if merged else 1
        assert (nit - npeel) % un == 0 and XAT % un == 0
        seq = []
        for u in range(un):
            seq += body([[], [self.hook(lab + 'a')] if u == 0 else [], [], [f's_sub_u32 s94, s94, {un}', 's_cmp_lg_u32 s94, 0'] if u == un - 1 else []])
        pend = self.emit_waits(seq, list(start))
        assert pend == start
        a(f's_cbranch_scc1 {lab}_l')
        a('s_waitcnt lgkmcnt(0)\ns_nop 6\ns_setpc_b64 s[86:87]')
    def epi_rows(self, P=160):
        self.pack(self.ACCT, P); self.xpose(P, self.ACCT)
        for k in range(6): self.a(f'buffer_store_dwordx4 {vr(P+4*k,4)}, v{self.VO+k}, s[24:27], 0 offen sc1')
    def epi_qk(self):
        self.pack(self.ACC2, 160); self.store_ft(160, 28); self.pack(self.ACC, self.ACC2); self.store_ft(self.ACC2, 24)
    def pack(self, acc, dst):
        for jt in range(3):
            for p in range(2):
                Z = dst + 8 * jt + 4 * p
                x = acc + 4 * (2 * p * 3 + jt); y = acc + 4 * ((2 * p + 1) * 3 + jt)
                self.a(f'v_cvt_pk_bf16_f32 v{Z}, v{x}, v{x+1}\nv_cvt_pk_bf16_f32 v{Z+1}, v{x+2}, v{x+3}')
                self.a(f'v_cvt_pk_bf16_f32 v{Z+2}, v{y}, v{y+1}\nv_cvt_pk_bf16_f32 v{Z+3}, v{y+2}, v{y+3}')
    def hook_sub(self):
        a = self.a
        a('L_hook:\ns_mov_b32 s89, -1\ns_bitcmp0_b32 s98, 0\ns_cbranch_scc1 L_hook_x'); self.signal_now()
        a('L_hook_x:\ns_bitcmp0_b32 s98, 1\ns_cbranch_scc1 L_hook_r'); self.x_loads()
        if 'pfv' in OPT:
            self.sdiv('s70', 's62', 6, 's71'); self.lin('s70', [('s71', 192 * RP), ('s3', 48 * RP), ('s65', 1)], WS_U)
            a(f'v_lshrrev_b32 v246, 4, v1\nv_mul_u32_u24 v246, {RP}, v246\nv_and_b32 v247, 15, v1\nv_lshl_add_u32 v246, v247, 4, v246')
            for k in range(12): a(f'buffer_load_dwordx4 v[252:255], v246, s[12:15], s70 offen sc1\ns_add_u32 s70, s70, {4*RP}')
        a('L_hook_r:\ns_setpc_b64 s[68:69]')
        if True:
            a('L_st3:'); self.epi_rows(); a('s_setpc_b64 s[68:69]\nL_st6:'); self.epi_qk(); a('s_setpc_b64 s[68:69]')
    def store_ft(self, P, srd):
        a = self.a; v = [self.VROW, 246, 247]
        a(f'v_add_u32 v{v[1]}, 36864, v{v[0]}\nv_add_u32 v{v[2]}, {2*36864}, v{v[0]}')
        for k in range(6):
            for d in range(2): a(f'v_permlane16_swap_b32 v{P+4*k+d}, v{P+4*k+2+d}')
            a(f'buffer_store_dwordx4 {vr(P+4*k,4)}, v{v[k>>1]}, {sr(srd,4)}, 0 offen offset:{1024*(k&1)} sc1')
    def ft_static(self):
        a = self.a; x, y = 216, 217
        a(f'v_bfe_u32 v{y}, v1, 4, 1\nv_lshlrev_b32 v{y}, 9, v{y}\nv_lshrrev_b32 v{x}, 5, v1\nv_lshl_add_u32 v{y}, v{x}, 8, v{y}\nv_and_b32 v{x}, 15, v1\nv_lshl_add_u32 v{y}, v{x}, 4, v{y}')
        a(f's_mul_i32 s92, s91, {3*36864}\ns_lshl_b32 s93, s90, 11\ns_add_u32 s92, s92, s93\nv_add_u32 v{self.VROW}, s92, v{y}')
        a(f's_mul_i32 s92, s91, {6*CH}\ns_add_u32 s92, s92, {16*CH}\nv_lshl_add_u32 v14, v1, 4, s92\nv_sub_u32 v14, v14, v{self.VB}')
    def ops(self, op, it): self.a(f's_mov_b32 s98, {op}\ns_mov_b32 s89, {it}')
    def xpose(self, P, T, inverse=False, nj=3):
        a = self.a
        def swaps():
            for jt in range(nj):
                for r in (0, 4):
                    for d in range(2): a(f'v_permlane16_swap_b32 v{P+8*jt+r+d}, v{P+8*jt+r+2+d}')
        a('s_nop 1')
        if inverse: swaps()
        for bit, M, qp in ((2, 8, '[1,0,3,2]'), (4, 9, '[2,3,0,1]')):
            lo = [r for r in range(8 * nj) if not r & bit]
            for k, r in enumerate(lo): a(f'v_bfi_b32 v{T+k}, v{M}, v{P+r}, v{P+r+bit}')
            for k, r in enumerate(lo): a(f'v_mov_b32_dpp v{T+12+k}, v{T+k} quad_perm:{qp} row_mask:0xf bank_mask:0xf')
            for k, r in enumerate(lo): a(f'v_bfi_b32 v{P+r}, v{M}, v{T+12+k}, v{P+r}\nv_bfi_b32 v{P+r+bit}, v{M}, v{P+r+bit}, v{T+12+k}')
        if not inverse:
            a('s_nop 1'); swaps()
    def row_offsets(self, vo, t, jump):
        a = self.a
        a(f's_movk_i32 s92, {RP}')
        for k in range(6):
            a(f'v_add_u32 v{t}, {16*(k>>1)+2*(k&1)}, v{self.VROW}\nv_mad_u32_u24 v{vo+k}, v{t}, s92, v{self.VCOL}')
            if jump: a(f'v_lshrrev_b32 v{t}, 5, v{t}\nv_mad_u32_u24 v{vo+k}, v{t}, {jump}, v{vo+k}')
    def store_tile(self, acc, srd, vo, t):
        self.pack(acc, t); self.xpose(t, t + 24)
        for k in range(6): self.a(f'buffer_store_dwordx4 {vr(t+4*k,4)}, v{vo+k}, {sr(srd,4)}, 0 offen sc1')
    def store_sub(self):
        a = self.a
        a('L_store:')
        self.row_offsets(216, 222, 's79')
        self.store_tile(self.ACC, 24, 216, 160)
        a('s_setpc_b64 s[86:87]')
    def allred(self, v, tmp, op, n=3):
        a = self.a
        for sw in ('v_permlane16_swap_b32', 'v_permlane32_swap_b32'):
            for j in range(n): a(f'v_mov_b32 v{tmp+j}, v{v+j}')
            a('s_nop 1')
            for j in range(n): a(f'{sw} v{v+j}, v{tmp+j}')
            for j in range(n): a(f'{op} v{v+j}, v{v+j}, v{tmp+j}')
    def softmax_sub(self):
        a = self.a; acc = self.ACC
        m, o, l, pr = 64, 67, 70, 74
        a('L_softmax:\ns_cmp_lg_u32 s61, 8\ns_cbranch_scc1 L_sm_go\ns_cmp_lg_u32 s90, 0\ns_cbranch_scc1 L_sm_ret')
        for r in range(24, 48): a(f'v_mov_b32 v{acc+r}, 0xff800000')
        a('L_sm_go:')
        allred = self.allred
        R = [[acc + 4 * (it * 3 + jt) + r for it in range(4) for r in range(4)] for jt in range(3)]
        for jt in range(3): a(f'v_max_f32 v{m+jt}, v{R[jt][0]}, v{R[jt][1]}')
        for k in range(2, 16, 2):
            for jt in range(3): a(f'v_max3_f32 v{m+jt}, v{m+jt}, v{R[jt][k]}, v{R[jt][k+1]}')
        allred(m, o, 'v_max_f32')
        a(f's_cmp_eq_u32 s61, 8\ns_cbranch_scc1 L_sm_x\ns_mul_i32 s92, s3, 768\ns_add_u32 s92, s92, {XL}\nv_lshl_add_u32 v{pr}, v1, 2, s92')
        for jt in range(3): a(f'ds_write_b32 v{pr}, v{m+jt} offset:{256*jt}')
        a(f's_lshl_b32 s92, s91, 2\ns_add_u32 s92, s92, {CX+56}\nv_mov_b32 v{pr+1}, s92'); self.lds_arrive(pr + 1, self.VONE)
        a(f's_xor_b32 s92, s3, 2\ns_mul_i32 s92, s92, 768\ns_add_u32 s92, s92, {XL}\nv_lshl_add_u32 v{pr}, v1, 2, s92')
        self.lds_wait4(pr + 1, pr + 2, 2, sleep=False)
        for jt in range(3): a(f'ds_read_b32 v{o+jt}, v{pr} offset:{256*jt}')
        a('s_waitcnt lgkmcnt(0)')
        for jt in range(3): a(f'v_max_f32 v{m+jt}, v{m+jt}, v{o+jt}')
        a(f'L_sm_x:\ns_mov_b32 s92, {f2u(LOG2E * D ** -0.5):#x}')
        nm = 78
        for jt in range(3): a(f'v_mul_f32 v{m+jt}, s92, v{m+jt}\nv_mov_b32 v{nm+2*jt}, s92')
        for jt in range(3): a(f'v_sub_f32 v{nm+2*jt+1}, 0, v{m+jt}')
        a(f'v_add_u32 v246, 36864, v{self.VROW}\nv_add_u32 v247, {2*36864}, v{self.VROW}')
        for jt in range(3):
            for r in R[jt][::2]: a(f'v_pk_fma_f32 {vr(r,2)}, {vr(r,2)}, {vr(nm+2*jt,2)}, {vr(nm+2*jt,2)} op_sel:[0,0,1] op_sel_hi:[1,0,1]')
            for r in R[jt]: a(f'v_exp_f32 v{r}, v{r}')
            P = 160 + 8 * jt
            for k in range(8): a(f'v_cvt_pk_bf16_f32 v{P+k}, v{R[jt][2*k]}, v{R[jt][2*k+1]}')
            a(f'v_pk_add_f32 {vr(nm+2*jt,2)}, {vr(R[jt][0],2)}, {vr(R[jt][2],2)}')
            for p in range(2):
                for d in range(2): a(f'v_permlane16_swap_b32 v{P+4*p+d}, v{P+4*p+2+d}')
                a(f'buffer_store_dwordx4 {vr(P+4*p,4)}, v{(self.VROW, 246, 247)[jt]}, s[4:7], 0 offen offset:{1024*p} sc1')
        for k in range(4, 16, 2):
            for jt in range(3): a(f'v_pk_add_f32 {vr(nm+2*jt,2)}, {vr(nm+2*jt,2)}, {vr(R[jt][k],2)}')
        for jt in range(3): a(f'v_add_f32 v{l+jt}, v{nm+2*jt}, v{nm+2*jt+1}')
        allred(l, o, 'v_add_f32')
        a(f's_mul_i32 s92, s91, 48\nv_add_lshl_u32 v{o}, v1, s92, 3\nv_mov_b32 v{pr}, v{m}\nv_mov_b32 v{pr+1}, v{l}')
        a(f's_mov_b64 exec, 0xffff0000\ns_mov_b32 exec_hi, 0\nv_mov_b32 v{pr}, v{m+1}\nv_mov_b32 v{pr+1}, v{l+1}')
        a(f's_mov_b32 exec_lo, 0\ns_mov_b32 exec_hi, 0xffff\nv_mov_b32 v{pr}, v{m+2}\nv_mov_b32 v{pr+1}, v{l+2}\ns_mov_b32 exec_lo, -1')
        a(f'buffer_store_dwordx2 {vr(pr,2)}, v{o}, s[28:31], 0 offen sc1')
        a('s_mov_b64 exec, -1\nL_sm_ret:\ns_setpc_b64 s[86:87]')
    XR = 216; GT = 240; F = 248; VF = 251; LS = 252
    def pv_sub(self):
        a = self.a; main = self.ACC; tmp = self.TMP; f = self.F; vf = self.VF
        a('L_pv:')
        self.to_ft(); self.rebase('P', 1)
        for r in range(48): a(f'v_mov_b32 v{main+r}, 0')
        for r in range(48): a(f'v_mov_b32 v{tmp[1]+r}, 0')
        a(f'v_and_b32 v{vf}, 15, v1\ns_mul_i32 s92, s91, {9*192}\ns_add_u32 s92, s92, {XL+4096}\nv_lshl_add_u32 v{vf}, v{vf}, 2, s92\nv_mov_b32 v{vf+1}, {CX+64}')
        self.stamp(23)
        a('s_barrier')
        self.stamp(24)
        def fold(tp):
            if 'pk' in OPT:
                return [f'v_pk_fma_f32 {vr(main+4*(it*3+jt)+r,2)}, {vr(tp+4*(it*3+jt)+r,2)}, {vr(f+(jt&2),2)}, {vr(main+4*(it*3+jt)+r,2)} ' + ('op_sel:[0,1,0]' if jt & 1 else 'op_sel_hi:[1,0,1]')
                        for it in range(4) for jt in range(3) for r in (0, 2)]
            return [f'v_fmac_f32 v{main+4*(it*3+jt)+r}, v{tp+4*(it*3+jt)+r}, v{f+jt}' for it in range(4) for jt in range(3) for r in range(4)]
        fread = [f'ds_read_b32 v{f+jt}, v{vf} offset:{64*jt}' for jt in range(3)] + [f'v_add_u32 v{vf}, 192, v{vf}']
        fread = [f'ds_read_b32 v{f+jt}, v{vf+1} offset:{64*jt}' for jt in range(3)] + [f'v_mov_b32 v{vf+1}, v{vf}', f'v_add_u32 v{vf}, 192, v{vf}']
        pend = self.emit_waits(self.reads('P', 0, 0) if 'noread' not in OPT else [], [])
        start = list(pend)
        a(f's_mov_b32 s94, 4\n{ALN}L_pv_l:')
        seq = []
        for p in range(2):
            fl = fold(tmp[p ^ 1])
            seq += self.stage('P', tmp[p], zero=True, ex1=fread + ['s_nop 0'] * 3 + fl[:10])
            seq += self.stage('P', tmp[p], ex0=fl[10:28], ex1=fl[28:] + (['s_sub_u32 s94, s94, 1', 's_cmp_lg_u32 s94, 0'] if p else []))
        seq = [x for x in seq if x != 's_nop 0']
        pend = self.emit_waits(seq, pend)
        assert pend == start
        a('s_cbranch_scc1 L_pv_l')
        self.emit_waits(fread + self.stage('P', tmp[0], zero=True, ex0=fold(tmp[1]), half=True, end=fread), pend)
        self.rebase('P', -1)
        a('s_waitcnt lgkmcnt(0)\ns_nop 5\ns_setpc_b64 s[86:87]')
        self.fold = fold
    def gate_loads(self, gt, va, jts):
        a = self.a
        for n, jt in enumerate(jts):
            a(f'v_lshrrev_b32 v{va}, 4, v1\nv_lshlrev_b32 v{va}, 4, v{va}\ns_lshl_b32 s92, s90, 8')
            if jt is not None:
                a(f's_mul_i32 s93, s91, 48\ns_add_u32 s93, s93, {16*jt}\ns_lshr_b32 s93, s93, 5\ns_mul_i32 s93, s93, 4608\ns_add_u32 s92, s92, s93')
            for it in range(4): a(f'buffer_load_dwordx4 {vr(gt+16*n+4*it,4)}, v{va}, s[4:7], s92 offen offset:{64*it} sc1')
    def resid_epi(self, acc, xr, gt, zr, vo, t):
        a = self.a
        for jt in range(3):
            for it in range(4):
                q = acc + 4 * (it * 3 + jt); o = 8 * jt + 2 * it; u = t + 4 * (it & 1)
                if zr is not None:
                    for d in range(2): a(f'v_lshlrev_b32 v{u+2*d}, 16, v{zr+o+d}\nv_and_b32 v{u+2*d+1}, 0xffff0000, v{zr+o+d}')
                    for r in range(4): a(f'v_add_f32 v{q+r}, v{q+r}, v{u+r}')
                for d in range(2): a(f'v_lshlrev_b32 v{u+2*d}, 16, v{xr+o+d}\nv_and_b32 v{u+2*d+1}, 0xffff0000, v{xr+o+d}')
                for r in range(4): a(f'v_fmac_f32 v{u+r}, v{q+r}, v{gt(jt)+4*it+r}')
                for d in range(2): a(f'v_cvt_pk_bf16_f32 v{xr+o+d}, v{u+2*d}, v{u+2*d+1}')
        self.xpose(xr, t)
        for k in range(6): a(f'buffer_store_dwordx4 {vr(xr+4*k,4)}, v{vo+k}, s[24:27], 0 offen {OUTF}')

    def cp_task(self, t, aux, late, nxt_early, cont=False, join=None, pv=False):
        a = self.a
        def wsl(srd, base, sregs, lim):
            a(f's_mov_b32 s67, {base}')
            for s in sregs: a(f's_add_u32 s67, s67, {s}')
            self.srd(srd, 'ws', 's67', lim)
        JUMP = 1024 * RP
        weave = WEAVE and t == 'U'
        if t in 'UMV':
            two = t == 'M'
            a('s_barrier\ns_barrier' if late and t != 'U' else 's_barrier')
            self.stamp(28 if t == 'U' else 12 if two else 16)
            a(f's_call_b64 s[86:87], {"L_qk" if two else "L_tk"}{"_w" if cont and weave else ""}')
            if join: a(f'{join}:')
            self.stamp(29 if t == 'U' else 13 if two else 17)
            if t == 'U': self.lin('s70', [('s62', 96 * RP)]); wsl(24, WS_U, ['s70', 's65'], 96 * RP)
            elif t == 'M': a('s_lshl_b32 s70, s61, 12'); wsl(24, WS_Q, ['s63', 's70'], 's64'); wsl(28, WS_K, ['s63', 's70'], 's64')
            else: wsl(24, WS_V, ['s63', 's65'], 's64')
            if not (nxt_early and weave): a(f's_call_b64 s[68:69], L_st{6 if two else 3}')
            self.sig_index(t, aux)
            if nxt_early == 'M': self.ops(1 if XE == 2 else 3, XAT)
            elif nxt_early: self.ops(1, 9 - SIGW)
            else: self.signal_now()
            self.stamp(18)
            return
        elif t == 'S':
            self.to_ft()
            self.lin('s70', [('s60', 17 * 1056 * 8), ('s61', 2 * 1056 * 8), ('s90', 1056 * 8), ('s62', 96 * 8)], WS_ST)
            self.sdiv('s71', 's64', RP // 8); self.srd(28, 'ws', 's70', 's71')
            a('s_lshl_b32 s70, s61, 12'); wsl(4, WS_P, ['s63', 's70'], 's64')
            a('s_barrier\ns_barrier' if late else 's_barrier')
            self.stamp(19); a(f's_call_b64 s[86:87], L_kk{"_w" if cont and weave else ""}'); self.stamp(20)
            a('s_call_b64 s[86:87], L_softmax'); self.stamp(21)
            self.sig_index(t, aux)
            self.signal_now()
            return
        elif t == 'PV':
            if not pv: self.x_loads(); a('s_waitcnt vmcnt(0)')
            a('s_barrier'); self.stamp(22)
            a('s_sub_u32 s71, s64, s65'); self.srd(24, 'out', 's79', 's71')
            self.xpose(self.XR, 112, inverse=True)
            a('s_call_b64 s[86:87], L_pv'); self.stamp(25)
            if t == 'PV':
                a(f'v_and_b32 v246, 48, v1\ns_lshl_b32 s92, s90, 8\ns_add_u32 s92, s92, {GL}\nv_add_u32 v246, s92, v246')
                for sp in range(2):
                    for it in range(4): a(f'ds_read_b128 {vr((192, 112, 128)[sp]+4*it,4)}, v246 offset:{512*sp+64*it}')
                for x in self.fold(self.TMP[0]): a(x)
                a('s_waitcnt lgkmcnt(0)')
                for e in range(16): a(f'v_add_f32 v{192+e}, v{192+e}, v{112+e}')
                self.resid_epi(self.ACC, self.XR, lambda jt: 192, None, 240, 160)
    def x_loads(self):
        a = self.a
        self.lin('s79', [('s60', 1024 * RP), ('s62', 96 * RP), ('s65', 1)])
        a('s_sub_u32 s71, s64, s65'); self.srd(32, 'x_img', 's79', 's71')
        for k in range(6): a(f'buffer_load_dwordx4 {vr(self.XR+4*k,4)}, v{self.VO+k}, s[32:35], 0 offen nt')

    GW = 32; GS = 80; GA = 104; GT_ = 120; LX = 140; GC = 204
    def lds_arrive(self, va, vone):
        self.a(f's_mov_b64 exec, 1\nds_add_u32 v{va}, v{vone}\ns_mov_b64 exec, -1')
    def lds_wait4(self, va, vt, n=4, sleep=True):
        a = self.a; lab = a.label('lw')
        a(f's_mov_b32 s74, {SPIN}\n{lab}:\nds_read_b32 v{vt}, v{va}\ns_waitcnt lgkmcnt(0)\nv_cmp_le_u32 vcc, {n}, v{vt}')
        a(f's_cbranch_vccnz {lab}_d\n' + ('s_sleep 1\n' if sleep else '') + f's_sub_u32 s74, s74, 1\ns_cmp_lg_u32 s74, 0\ns_cbranch_scc1 {lab}\n{lab}_d:')
    def gemv_job(self, kind, ls=0):
        a = self.a
        a('s_lshr_b32 s71, s3, 2')
        self.lin('s79', [('s71', 2048)], XL + (8192 if ls else 0))
        self.lin('s80', [('s71', 4)], CX + (0, 8, 40)[ls])
        if kind == 'mod':
            a('s_mov_b32 s71, s81\ns_mov_b32 s81, s92'); self.sdiv('s92', 's81', 3, 's93')
            a('s_lshl_b32 s67, s92, 7\ns_mul_i32 s70, s93, 384\ns_movk_i32 s78, 9216')
            self.lin('s76', [('s93', 4 * 9216), ('s71', 2 * 9216), ('s92', 256)], WS_MODP)
            a('s_mov_b32 s77, 4\ns_mov_b32 s6, -1')
        else:
            a('s_mov_b32 s81, s92'); self.sdiv('s71', 's81', 18, 's92')
            a('s_lshl_b32 s66, s93, 1\ns_add_u32 s66, s66, 1\ns_lshl_b32 s67, s92, 7\ns_add_u32 s67, s67, 4608\ns_movk_i32 s78, 4608\ns_mul_i32 s70, s93, 384')
            self.lin('s6', [('s81', 2 * FS), ('s93', FS)])
            self.lin('s76', [('s93', 4 * 4608), ('s71', 2 * 4608), ('s92', 256)], WS_GATE)
    def gemv_loads(self, W, C, mid={}):
        a = self.a; T = self.GT_
        a('s_lshl_b32 s75, s70, 1')
        for b in range(2):
            for k in range(3): a(f'buffer_load_dwordx2 {vr(C+6*b+2*k,2)}, v{T+2}, s[20:23], s75 offen offset:{2304*b+8*k}')
        a('s_mul_i32 s81, s70, 13824')
        for i in range(12):
            if i in mid: a(mid[i])
            a(f'buffer_load_dwordx4 {vr(W+4*i,4)}, v{T}, s[16:19], s81 offen nt')
            if i < 11: a(f's_add_u32 s81, s81, 13824')
    def gemv_subs(self):
        a = self.a
        W, S, ACC, T, X, C = self.GW, self.GS, self.GA, self.GT_, self.LX, self.GC
        a('L_gemv:\ns_and_b32 s75, s3, 3\ns_mul_i32 s75, s75, 96\ns_add_u32 s70, s70, s75')
        a(f'v_and_b32 v{T}, 7, v1\nv_lshrrev_b32 v{T+1}, 3, v1\nv_lshlrev_b32 v{T}, 4, v{T}\ns_mov_b32 s75, {12*13824}\nv_mad_u32_u24 v{T}, v{T+1}, s75, v{T}\nv_add_u32 v{T}, s67, v{T}')
        a(f'v_mul_u32_u24 v{T+2}, 24, v{T+1}')
        a(f's_cmp_eq_u32 s71, 1\ns_cselect_b32 s16, s{PTR["wmod_txt"]}, s{PTR["wmod_img"]}\ns_cselect_b32 s17, s{PTR["wmod_txt"]+1}, s{PTR["wmod_img"]+1}')
        a(f's_mov_b32 s18, {SZ["wmod_img"]}\ns_mov_b32 s19, 0x20000')
        self.srd(20, 'c', 0, SZ['c'])
        a('s_cmp_eq_u32 s66, 2\ns_cbranch_scc1 L_gv_ret')
        self.gemv_loads(W, C)
        a(f'v_mov_b32 v{T+4}, {CX+32}\nv_mov_b32 v{T+5}, 1'); self.lds_arrive(T + 4, T + 5)
        a('s_cmp_lg_u32 s7, 0x20000\ns_cbranch_scc1 L_gemv2'); self.tag()
        a('L_gemv2:')
        for r in range(16): a(f'v_mov_b32 v{ACC+r}, 0')
        W2 = 140; C2 = 188
        a('s_waitcnt vmcnt(12)\ns_cmp_lg_u32 s66, 3\ns_cbranch_scc1 L_gv_l\ns_add_u32 s70, s70, 384')
        self.gemv_loads(W2, C2)
        a('s_waitcnt vmcnt(18)\nL_gv_l:\ns_cmp_lg_u32 s66, 3')
        q = T + 8; e = 216
        for i in range(12):
            for b in range(2):
                src = C + 6 * b + i // 2
                a(f'v_and_b32 v{S+2*i+b}, 0xffff0000, v{src}' if i & 1 else f'v_lshlrev_b32 v{S+2*i+b}, 16, v{src}')
        for r in range(24): a(f'v_mul_f32 v{e+r}, {f2u(-LOG2E):#x}, v{S+r}')
        for r in range(24): a(f'v_exp_f32 v{e+r}, v{e+r}')
        for r in range(24): a(f'v_add_f32 v{e+r}, 1.0, v{e+r}')
        for r in range(24): a(f'v_rcp_f32 v{e+r}, v{e+r}')
        for r in range(24): a(f'v_mul_f32 v{S+r}, v{S+r}, v{e+r}')
        for i in range(12):
            a(f's_cbranch_scc0 L_gv_w{i}\ns_waitcnt vmcnt({11-i})\nL_gv_w{i}:')
            for d in range(4):
                w = W + 4 * i + d
                a(f'v_lshlrev_b32 v{q+2*d}, 16, v{w}\nv_and_b32 v{q+2*d+1}, 0xffff0000, v{w}')
            for d in range(4):
                a(f'v_pk_fma_f32 {vr(ACC+4*d,2)}, {vr(q+2*d,2)}, {vr(S+2*i,2)}, {vr(ACC+4*d,2)} op_sel_hi:[0,1,1]')
                a(f'v_pk_fma_f32 {vr(ACC+4*d+2,2)}, {vr(q+2*d,2)}, {vr(S+2*i,2)}, {vr(ACC+4*d+2,2)} op_sel:[1,0,0]')
        a('s_cbranch_scc1 L_gv_done\ns_mov_b32 s66, 1\ns_waitcnt vmcnt(0)')
        for r in range(48): a(f'v_mov_b32 v{W+r}, v{W2+r}')
        for r in range(12): a(f'v_mov_b32 v{C+r}, v{C2+r}')
        a('s_branch L_gv_l\nL_gv_done:')
        self.stamp(27)
        for v in range(8): a(f'v_permlane32_swap_b32 v{ACC+v}, v{ACC+v+8}')
        for v in range(8): a(f'v_add_f32 v{ACC+v}, v{ACC+v}, v{ACC+v+8}')
        a('s_nop 1')
        for v in range(4): a(f'v_permlane16_swap_b32 v{ACC+v}, v{ACC+v+4}')
        for v in range(4): a(f'v_add_f32 v{ACC+v}, v{ACC+v}, v{ACC+v+4}')
        a('s_nop 1')
        for v in range(4): a(f'v_add_f32_dpp v{ACC+4+v}, v{ACC+v}, v{ACC+v} row_ror:8 row_mask:0xf bank_mask:0xf')
        RED = XL
        a(f's_and_b32 s81, s3, 3\ns_lshl_b32 s81, s81, 9\ns_add_u32 s81, s81, s79\nv_and_b32 v{T}, 7, v1\nv_lshlrev_b32 v{T}, 6, v{T}\nv_lshrrev_b32 v{T+1}, 4, v1\nv_lshl_add_u32 v{T}, v{T+1}, 4, v{T}\nv_add_u32 v{T}, s81, v{T}')
        a(f'v_mov_b32 v{T+4}, s80\nv_mov_b32 v{T+5}, 1\nv_mov_b32 v{T+6}, 0\nds_write_b128 v{T}, {vr(ACC+4,4)}')
        self.lds_arrive(T + 4, T + 5)
        a(f's_and_b32 s75, s3, 3\ns_cmp_lg_u32 s75, 3\ns_cbranch_scc1 L_gv_ret')
        self.lds_wait4(T + 4, T, 's77')
        a(f'v_lshl_add_u32 v{T}, v1, 3, s79')
        for w in range(4): a(f'ds_read_b64 {vr(ACC+2*w,2)}, v{T} offset:{512*w}')
        a(f'v_lshlrev_b32 v{T}, 2, v1\ns_add_u32 s78, s78, s76\ns_waitcnt lgkmcnt(0)')
        a(f'v_pk_add_f32 {vr(ACC,2)}, {vr(ACC,2)}, {vr(ACC+2,2)}\nv_pk_add_f32 {vr(ACC+4,2)}, {vr(ACC+4,2)}, {vr(ACC+6,2)}\nv_pk_add_f32 {vr(ACC,2)}, {vr(ACC,2)}, {vr(ACC+4,2)}')
        a(f's_and_b32 s75, s11, 255\ns_cmp_eq_u32 s6, -1\ns_cselect_b32 s75, s75, 0\nv_mov_b32 v{T+5}, s11')
        for r in range(2): a(f'v_and_b32 v{ACC+r}, 0xffffff00, v{ACC+r}\nv_or_b32 v{ACC+r}, s75, v{ACC+r}')
        a(f'buffer_store_dword v{ACC}, v{T}, s[12:15], s76 offen sc1\nbuffer_store_dword v{ACC+1}, v{T}, s[12:15], s78 offen sc1')
        if self.flags:
            a('s_cmp_eq_u32 s6, -1\ns_cbranch_scc1 L_gv_ret\ns_waitcnt vmcnt(0)')
            a(f's_mov_b64 exec, 15\nbuffer_store_dword v{T+5}, v{T}, s[12:15], s6 offen sc1\ns_mov_b64 exec, -1')
        a('L_gv_ret:\ns_setpc_b64 s[86:87]')
    def ln(self, gv):
        a = self.a; X = self.LX; F = 32
        a(f'v_subrev_u32 v0, 256, v0\nv_mov_b32 v{self.VONE}, 1\nv_mov_b32 v{self.VZERO}, 0\ns_sub_u32 s3, s3, 4')
        a(f'v_lshrrev_b32 v176, 4, v0\nv_and_b32 v177, 15, v0\nv_mul_u32_u24 v176, {RP}, v176\nv_lshl_add_u32 v176, v177, 4, v176')
        a(f's_and_b32 s83, s10, 127\ns_mul_i32 s83, s83, {16*RP}\ns_cmp_ge_u32 s10, 128')
        a(f's_cselect_b32 s24, s{PTR["x_txt"]}, s{PTR["x_img"]}\ns_cselect_b32 s25, s{PTR["x_txt"]+1}, s{PTR["x_img"]+1}')
        a(f's_mov_b32 s26, {SZ["x_img"]}\ns_cselect_b32 s26, {SZ["x_txt"]}, s26\ns_mov_b32 s27, 0x20000')
        if gv: a(f'v_mov_b32 v14, {CX+32}'); self.lds_wait4(14, 180)
        for i in range(9): a(f'buffer_load_dwordx4 {vr(X+4*i,4)}, v176, s[24:27], s83 offen offset:{i*256} nt')
        self.tag()
        a('s_waitcnt vmcnt(0)')
        for i in range(9):
            for d in range(4):
                a(f'v_lshlrev_b32 v{F+8*i+2*d}, 16, v{X+4*i+d}\nv_and_b32 v{F+8*i+2*d+1}, 0xffff0000, v{X+4*i+d}')
        def rowsum(v, t):
            for r in (8, 4, 2, 1):
                a(f's_nop 1\nv_add_f32_dpp v{t}, v{v}, v{v} row_ror:{r} row_mask:0xf bank_mask:0xf')
                v, t = t, v
            return v
        a0, a1, a2, a3 = 180, 181, 182, 183
        a(f'v_pk_add_f32 {vr(a0,2)}, {vr(F,2)}, {vr(F+2,2)}')
        for e in range(4, 72, 2): a(f'v_pk_add_f32 {vr(a0,2)}, {vr(a0,2)}, {vr(F+e,2)}')
        a(f'v_add_f32 v{a0}, v{a0}, v{a1}')
        v = rowsum(a0, a1)
        a(f'v_mul_f32 v{a0}, {f2u(-1.0/1152):#x}, v{v}')
        for e in range(0, 72, 2): a(f'v_pk_add_f32 {vr(F+e,2)}, {vr(F+e,2)}, {vr(a0,2)} op_sel_hi:[1,0]')
        a(f'v_pk_mul_f32 {vr(a2,2)}, {vr(F,2)}, {vr(F,2)}')
        for e in range(2, 72, 2): a(f'v_pk_fma_f32 {vr(a2,2)}, {vr(F+e,2)}, {vr(F+e,2)}, {vr(a2,2)}')
        a(f'v_add_f32 v{a1}, v{a2}, v{a3}')
        v = rowsum(a1, a2)
        a(f'v_mov_b32 v{a0}, {f2u(1e-5):#x}\nv_fmac_f32 v{a0}, {f2u(1.0/1152):#x}, v{v}\nv_rsq_f32 v{a0}, v{a0}\ns_nop 0')
        for e in range(0, 72, 2): a(f'v_pk_mul_f32 {vr(F+e,2)}, {vr(F+e,2)}, {vr(a0,2)} op_sel_hi:[1,0]')
        self.stamp(15)
        a('s_lshr_b32 s80, s10, 7\ns_lshr_b32 s81, s10, 6\ns_bfe_u32 s75, s10, 0x10001\ns_cmp_eq_u32 s80, 1\ns_cselect_b32 s81, s75, s81')
        self.lin('s76', [('s80', 2 * 9216), ('s81', 9216)], WS_MODP)
        M = 184
        a(f'v_lshlrev_b32 v{a0}, 4, v0\nv_lshlrev_b32 v{a1}, 4, v1')
        a(f's_lshl_b32 s75, s3, 8\nv_add_u32 v{a1}, s75, v{a1}')
        a('s_and_b32 s77, s11, 255\ns_mov_b32 s74, 0x80000\nL_ln_p:')
        for sp in range(3):
            for r in range(4): a(f'v_mov_b32 v{M+12*sp+8+r}, s77')
        for sp in range(3):
            for k in range(2):
                a(f's_add_u32 s75, s76, {sp*4*9216 + k*4096}\nbuffer_load_dwordx4 {vr(M+12*sp+4*k,4)}, v{a0}, s[12:15], s75 offen sc1')
        a('s_mov_b64 exec, 0xffff')
        for sp in range(3): a(f's_add_u32 s75, s76, {sp*4*9216 + 8192}\nbuffer_load_dwordx4 {vr(M+12*sp+8,4)}, v{a1}, s[12:15], s75 offen sc1')
        a('s_mov_b64 exec, -1')
        a('s_waitcnt vmcnt(0)')
        for r in range(36): a(f'v_xor_b32 v{M+r}, s77, v{M+r}')
        a(f'v_or_b32 v{a2}, v{M}, v{M+1}')
        for r in range(2, 36, 2): a(f'v_or3_b32 v{a2}, v{a2}, v{M+r}, v{M+r+1}')
        a(f'v_and_b32 v{a2}, 255, v{a2}\nv_cmp_ne_u32 vcc, 0, v{a2}\ns_cbranch_vccz L_ln_g\ns_sub_u32 s74, s74, 1\ns_cmp_eq_u32 s74, 0\ns_cbranch_scc1 L_ln_g\ns_sleep {PSL}\ns_branch L_ln_p\nL_ln_g:')
        self.stamp(14)
        TAB = XL + 8192
        a(f'v_add_u32 v{a2}, {TAB}, v{a0}\nv_mov_b32 v14, {CX+16}')
        a(f's_and_b32 s75, s10, 63\ns_mul_i32 s76, s75, {16*RP}\ns_mul_i32 s75, s81, {1056*RP}\ns_add_u32 s75, s75, {WS_H}')
        a(f's_cmp_eq_u32 s80, 1\ns_cselect_b32 s75, {WS_HT}, s75\ns_add_u32 s76, s76, s75')
        a('s_lshl_b32 s75, s80, 30\nv_or_b32 v176, s75, v176')
        a('s_waitcnt vmcnt(0)')
        for r in range(0, 12, 2): a(f'v_pk_add_f32 {vr(M+r,2)}, {vr(M+r,2)}, {vr(M+12+r,2)}')
        for r in range(0, 12, 2): a(f'v_pk_add_f32 {vr(M+r,2)}, {vr(M+r,2)}, {vr(M+24+r,2)}')
        for k in range(2): a(f'ds_write_b128 v{a2}, {vr(M+4*k,4)} offset:{k*4096}')
        a(f'v_add_u32 v{a1}, {TAB}, v{a1}\ns_mov_b64 exec, 0xffff\nds_write_b128 v{a1}, {vr(M+8,4)} offset:8192\ns_mov_b64 exec, -1')
        self.lds_arrive(14, self.VONE)
        a(f'v_lshlrev_b32 v{a2}, 5, v177\nv_add_u32 v{a2}, {TAB}, v{a2}')
        self.lds_wait4(14, a3)
        B = [104, 184]
        def rd(i0, p):
            for i in range(i0, i0 + 2):
                if i < 9:
                    k = i - i0
                    for h in range(2):
                        a(f'ds_read_b128 {vr(B[p]+16*k+4*h,4)}, v{a2} offset:{i*512+h*16}\nds_read_b128 {vr(B[p]+16*k+8+4*h,4)}, v{a2} offset:{4608+i*512+h*16}')
        rd(0, 0)
        for n, i0 in enumerate(range(0, 9, 2)):
            p = n & 1
            rd(i0 + 2, p ^ 1)
            left = 4 * max(0, min(9, i0 + 4) - (i0 + 2))
            a(f's_waitcnt lgkmcnt({left})')
            for i in range(i0, min(9, i0 + 2)):
                sh = B[p] + 16 * (i - i0); sc = sh + 8
                for e in range(0, 8, 2): a(f'v_pk_add_f32 {vr(sh+e,2)}, {vr(sh+e,2)}, {vr(F+8*i+e,2)}')
                for e in range(0, 8, 2): a(f'v_pk_fma_f32 {vr(sh+e,2)}, {vr(F+8*i+e,2)}, {vr(sc+e,2)}, {vr(sh+e,2)}')
                for d in range(4): a(f'v_cvt_pk_bf16_f32 v{X+4*i+d}, v{sh+2*d}, v{sh+2*d+1}')
                a(f'buffer_store_dwordx4 {vr(X+4*i,4)}, v176, s[12:15], s76 offen offset:{i*256} sc1')
        a(f's_cmp_eq_u32 s80, 0\ns_cbranch_scc1 L_ln_rm\nv_and_b32 v176, 0xf0, v0\nv_add_u32 v{a1}, v{a0}, v176\nv_mul_u32_u24 v177, 272, v177\nv_add_u32 v176, v177, v176\nv_mov_b32 v14, {CX+24}')
        for i in range(9): a(f'ds_write_b128 v176, {vr(X+4*i,4)} offset:{i*4352}')
        self.lds_arrive(14, self.VONE)
        self.lds_wait4(14, a3)
        for i in range(9): a(f'ds_read_b128 {vr(X+4*i,4)}, v{a1} offset:{i*4352}')
        for i in range(9): a(f's_waitcnt lgkmcnt({8-i})\nbuffer_store_dwordx4 {vr(X+4*i,4)}, v{a0}, s[12:15], s76 offen sc1\ns_add_u32 s76, s76, 4096')
        a('L_ln_rm:')
        self.sig_index('LN')
        self.signal_now()
        a('s_add_u32 s3, s3, 4')

    def idx_main(self):
        a = self.a
        a('s_and_b32 s92, s2, 3\ns_lshr_b32 s93, s2, 3\ns_bfe_u32 s60, s2, 0x10002')
        self.sdiv('s62', 's93', 5, 's61')
        a('s_lshr_b32 s70, s93, 2\ns_and_b32 s71, s93, 3\ns_bitcmp1_b32 s92, 0\ns_cselect_b32 s62, s70, s62\ns_cselect_b32 s61, s71, s61')
        a('s_lshl_b32 s70, s92, 2\ns_lshr_b32 s71, 0x0650, s70\ns_and_b32 s71, s71, 15\ns_add_u32 s62, s62, s71\ns_lshr_b32 s71, 0x5400, s70\ns_and_b32 s71, s71, 15\ns_add_u32 s61, s61, s71')
        a('s_mul_i32 s92, s92, 25\ns_add_u32 s92, s92, s93')
        a('s_cmp_eq_u32 s92, 20\ns_cselect_b32 s61, 4, s61\ns_cselect_b32 s62, 5, s62\ns_cmp_eq_u32 s92, 49\ns_cselect_b32 s62, 4, s62')
        self.set_bij('img')
        seen = set()
        for x in range(4):
            for jj in range(25):
                j, i = divmod(jj, 4 if x & 1 else 5); j += (0x0650 >> 4 * x) & 15; i += (0x5400 >> 4 * x) & 15
                if 25 * x + jj == 20: i, j = 4, 5
                if 25 * x + jj == 49: j = 4
                if 25 * x + jj < 99: seen.add((i, j))
        assert seen == {(i, j) for i in range(9) for j in range(11)}
    def idx_u(self, skip, sid='s2'):
        a = self.a
        a(f's_cmp_ge_u32 {sid}, 112\ns_cbranch_scc1 {skip}\ns_and_b32 s92, {sid}, 7\ns_mul_i32 s92, s92, 14\ns_lshr_b32 s93, {sid}, 3\ns_add_u32 s92, s92, s93\ns_cmp_ge_u32 s92, 108\ns_cbranch_scc1 {skip}')
        self.sdiv('s70', 's92', 36, 's71'); self.sdiv('s62', 's71', 3, 's61')
        a('s_mul_i32 s70, s70, 3\ns_add_u32 s61, s61, s70\ns_mov_b32 s60, 0\ns_lshl_b32 s65, s61, 8')
    AUXOPS = ['end', 'T', 'VT', 'Y', 'AT', 'OT', 'X', 'G', 'OP']
    AUXPROG = [(0, 'X T Y VT'), (18, 'X T Y AT'), (36, 'X T G OP OT'), (42, 'X G T G OP OT'), (51, 'G T G OP OT'), (54, 'G G G')]
    SB = 64; SA = [212, 228]; SBASE = [2, 5]
    def idx_aux(self, t):
        a = self.a
        if t in ('T', 'VT'): a('s_mov_b32 s61, s9')
        elif t in ('OT', 'OP', 'AT'): a(f's_sub_u32 s61, s9, {18 if t == "AT" else 36}')
        else: self.sdiv('s60', 's9', 18, 's61')
        a('s_lshl_b32 s65, s61, 7')
    def sk_loader(self, t):
        a = self.a; L = self.LV; tm = L['t']
        def wgt(name, sreg, const=0):
            a(f's_add_u32 s67, {sreg}, {const}\ns_sub_u32 s66, {SZ[name]}, s67'); self.srd(16, name, 's67', 's66')
        def poll(r): self.flag_lanes(L['vF'], tm, r); a('s_call_b64 s[68:69], L_lpoll')
        lay, pitch, n = 'T', RP, 18
        if t == 'OT':
            self.lin('s70', [('s61', 2)], F_GG + 36)
            if self.flags: self.w4(lambda: poll([('s70', 2)]))
            a('s_barrier')
            if self.flags: self.w4(lambda: poll([(F_AT, 18)]))
            a('s_waitcnt vmcnt(0)\ns_barrier\ns_barrier')
            return
        if t == 'T': wgt('wqkv_txt', 's65'); pitch = 6912; dep = [(F_LN + 128, 4)]
        elif t == 'VT': wgt('wo_img', 's65'); dep = [(F_T + 36, 18)]
        elif t == 'AT': wgt('wqkv_img', 's65', 4608); pitch = 6912; dep = [(F_Y, 36)]
        elif t == 'OP': wgt('wo_txt', 's65')
        elif t == 'Y':
            if self.flags: self.lin('s70', [('s60', 64)], F_LN); poll([('s70', 64)])
            self.lin('s67', [('s60', 1056 * RP), ('s65', 1)], WS_H); self.srd(16, 'ws', 's67', 1056 * RP)
            n = 16; dep = [('s71', 17)]
        v = L['vA']
        a(f's_sub_u32 s84, s3, 4\ns_mov_b32 s76, {pitch}\ns_mul_i32 s80, s84, {2*PS}\ns_lshl_b32 s84, s84, 4\nv_and_b32 v{tm}, 3, v1\nv_lshlrev_b32 v{tm}, 4, v{tm}')
        if lay == 'T':
            a(f'v_lshrrev_b32 v{tm+1}, 5, v1\nv_bfe_u32 v{tm+2}, v1, 2, 2\nv_lshl_add_u32 v{tm+1}, v{tm+1}, 2, v{tm+2}\nv_bfe_u32 v{tm+2}, v1, 4, 1')
        a(f'v_lshl_add_u32 v{tm}, v{tm+2}, 6, v{tm}\nv_add_u32 v{tm+1}, s84, v{tm+1}\nv_mad_u32_u24 v{v}, v{tm+1}, s76, v{tm}\nv_add_u32 v{v+1}, {8*pitch - PS}, v{v}')
        a(f's_mov_b32 s78, {64*pitch if lay == "T" else 2048}\ns_mov_b32 s83, {n}\ns_call_b64 s[86:87], {"L_panel_nt" if t in ("T", "OP") else "L_panel"}')
        if t == 'OP': return
        if t == 'Y':
            def stdep():
                a('s_lshl_b32 s70, s61, 1'); self.sdiv('s71', 's70', 3); a('s_min_u32 s71, s71, 9')
                self.lin('s70', [('s60', 99), ('s71', 9)], F_K)
                a(f's_cmp_eq_u32 s61, 16\ns_cselect_b32 s70, {F_T+18}, s70'); poll([('s70', 18)])
            if self.flags: self.w4(lambda: poll([(F_T, 18)]))
            a('s_barrier')
            if self.flags: self.w4(stdep)
            a('s_waitcnt vmcnt(0)\ns_barrier')
            if self.flags: a(f's_add_u32 s70, s61, {F_T+36}'); poll([('s70', 1)])
            a('s_mov_b32 s83, 1\ns_call_b64 s[86:87], L_panel_l')
            self.lin('s71', [('s60', 17)], F_PT)
        if self.flags: self.w4(lambda: poll(dep))
        a('s_waitcnt vmcnt(0)\ns_barrier\ns_barrier')
    def panel_subs(self):
        a = self.a; v = self.LV['vA']
        for lab, fl in (('L_panel', 'sc1'), ('L_panel_nt', 'nt')):
            a(f'{lab}:\ns_mov_b32 s81, 0\n{lab}_l:\ns_mov_b32 m0, s80\ns_add_u32 s80, s80, {8*PS}')
            a(f'buffer_load_dwordx4 v{v}, s[16:19], s81 offen {fl} lds\nbuffer_load_dwordx4 v{v+1}, s[16:19], s81 offen offset:{PS} {fl} lds')
            a(f's_add_u32 s81, s81, s78\ns_sub_u32 s83, s83, 1\ns_cmp_lg_u32 s83, 0\ns_cbranch_scc1 {lab}_l\ns_setpc_b64 s[86:87]')
    def sk_static(self):
        a = self.a; T, K = self.SBASE; x, y = 208, 209
        a(f'v_lshrrev_b32 v{x}, 4, v1\nv_mul_u32_u24 v{T}, {PS}, v{x}\nv_bfe_u32 v{y}, v1, 2, 2\nv_lshl_add_u32 v{T}, v{y}, 6, v{T}\nv_and_b32 v{y}, 3, v1\nv_lshl_add_u32 v{T}, v{y}, 3, v{T}')
        a(f's_xor_b32 s92, s90, 1\ns_mul_i32 s93, s92, {64*PS}\nv_add_u32 v{K}, s93, v{T}\ns_lshl_b32 s92, s92, 14\ns_mul_i32 s93, s91, {36*1024}\ns_add_u32 s92, s92, s93\nv_lshl_add_u32 v245, v1, 4, s92')
        for b in (T, K):
            for k in (1, 2): a(f'v_add_u32 v{b+k}, {k*48*PS}, v{b}')
        a(f's_mul_i32 s92, s3, {36*1024}\nv_lshl_add_u32 v246, v1, 4, s92\nv_bfe_u32 v{y}, v1, 4, 1\nv_lshlrev_b32 v{y}, 9, v{y}\nv_lshrrev_b32 v{x}, 5, v1\nv_lshl_add_u32 v{y}, v{x}, 8, v{y}')
        a(f'v_and_b32 v{x}, 15, v1\nv_lshl_add_u32 v{y}, v{x}, 4, v{y}\nv_add_u32 v247, s92, v{y}')
        a(f'v_and_b32 v{x}, 12, v1\nv_bfe_u32 v{y}, v1, 4, 1\ns_lshl_b32 s92, s3, 4\nv_add3_u32 v{x}, v{x}, v{y}, s92\nv_mul_u32_u24 v{x}, {RP}, v{x}')
        a(f'v_and_b32 v{y}, 127, v{self.VCOL}\nv_add_u32 v248, v{x}, v{y}\nv_add_u32 v249, {2*RP}, v248')
    def sk_sub(self, lab, lay, fold=False):
        a = self.a; SB = self.SB; nk = 17 if fold else 36
        base = self.SBASE[1 if fold else 0]; vb = 245 if fold else 246
        def rd(kk):
            st = self.SA[kk & 1]; b = base + kk // 12; k = kk % 12
            if lay == 'K': return [f'ds_read_b128 {vr(st+4*t,4)}, v{b} offset:{(8*(k>>1)+2*t+(k&1))*PS}' for t in range(4)]
            return [f'ds_read_b64_tr_b16 {vr(st+4*t+2*h,2)}, v{b} offset:{4*k*PS + h*512 + (t>>1)*256 + (t&1)*32}' for t in range(4) for h in range(2)]
        a(f'{lab}:')
        AH = 17 if fold else SKAH
        def ldb(kk):
            return ([f's_mov_b32 s92, {kk*1024}'] if kk % 4 == 0 else []) + [f'buffer_load_dwordx4 {vr(SB+4*kk,4)}, v{vb}, s[20:23], s92 offen offset:{(kk%4)*1024} sc1']
        if fold: self.sk_factors(lambda: [a(x) for kk in range(AH) for x in ldb(kk)], AH)
        else:
            for kk in range(AH):
                for x in ldb(kk): a(x)
        if fold: self.stamp(25)
        seq = rd(0)
        for kk in range(nk):
            st = self.SA[kk & 1]
            acc = 16 if not fold else (48, 196)[(kk >> 1) & 1]
            zero = kk == 0 if not fold else kk % 2 == 0
            nxt = rd(kk + 1) if kk + 1 < nk else []
            ex = []
            if fold and kk % 2 == 1 and kk > 1 or fold and kk == nk - 1:
                r = (kk >> 1) - 1; pv = (48, 196)[r & 1]
                ex = [(f'v_mul_f32 v{16+e}, v{pv+e}, v{32+r}' if r == 0 else f'v_fmac_f32 v{16+e}, v{pv+e}, v{32+r}') for e in range(16)]
                if kk == nk - 1: ex = ['s_nop 7'] + ex
            seq.append(f's_waitcnt vmcnt({min(AH, nk-kk)-1})')
            for t in range(4):
                d = vr(acc + 4 * t, 4)
                seq.append(f'v_mfma_f32_16x16x32_bf16 {d}, {vr(st+4*t,4)}, {vr(SB+4*kk,4)}, {"0" if zero else d}')
                seq += nxt[t * len(nxt) // 4:(t + 1) * len(nxt) // 4]
            seq += ex
            if kk + AH < nk: seq += ldb(kk + AH)
        self.emit_waits(seq, [])
        a('s_nop 7\ns_setpc_b64 s[86:87]')
    def sk_factors(self, mid, nmid):
        a = self.a; st = 208; m = 250
        dst = lambda r: st + 2 * r if r < 16 else 252
        a(f'v_and_b32 v{m}, 15, v1\ns_lshl_b32 s92, s91, 4\nv_add_lshl_u32 v{m}, v{m}, s92, 3\ns_mul_i32 s93, s90, {8*1056*8}\nv_add_u32 v{m+1}, s93, v{m}\ns_sub_u32 s93, {8*1056*8}, s93\nv_add_u32 v{m+4}, s93, v{m}')
        for r in range(17): a(f's_mov_b32 s92, {(r & 7 if r < 16 else 16)*1056*8}\nbuffer_load_dwordx2 {vr(dst(r),2)}, v{m + (4, 1, 0)[r >> 3]}, s[28:31], s92 offen sc1')
        mid()
        a(f's_waitcnt vmcnt({nmid})\nv_max3_f32 v{m}, v{dst(0)}, v{dst(1)}, v{dst(2)}')
        for r in range(3, 17, 2): a(f'v_max3_f32 v{m}, v{m}, v{dst(r)}, v{dst(r+1)}')
        for r in range(17): a(f'v_sub_f32 v{dst(r)}, v{dst(r)}, v{m}')
        for r in range(17): a(f'v_exp_f32 v{dst(r)}, v{dst(r)}')
        a(f'v_mul_f32 v{m+1}, v{dst(0)}, v{dst(0)+1}')
        for r in range(1, 17): a(f'v_fmac_f32 v{m+1}, v{dst(r)}, v{dst(r)+1}')
        a(f'v_rcp_f32 v{m+1}, v{m+1}\ns_nop 0')
        for r in list(range(8)) + [16]: a(f'v_mul_f32 v{32+r if r < 16 else m}, v{dst(r)}, v{m+1}')
    def sk_pack(self, P=64):
        for t in range(4): self.a(f'v_cvt_pk_bf16_f32 v{P+2*t}, v{16+4*t}, v{17+4*t}\nv_cvt_pk_bf16_f32 v{P+2*t+1}, v{18+4*t}, v{19+4*t}')
    def sk_epi_subs(self):
        a = self.a
        a('L_sk_ft:'); self.sk_pack(); a('s_nop 1')
        for r in (0, 4):
            for d in range(2): a(f'v_permlane16_swap_b32 v{64+r+d}, v{66+r+d}')
        for p in range(2): a(f'buffer_store_dwordx4 {vr(64+4*p,4)}, v247, s[12:15], s70 offen offset:{1024*p} sc1')
        a('s_setpc_b64 s[68:69]')
        a('L_sk_row:'); self.sk_pack(72); self.xpose(72, 80, nj=1)
        a(f's_lshr_b32 s92, s3, 1\ns_mul_i32 s92, s92, {1024*RP}\ns_add_u32 s92, s92, s71')
        for p in range(2): a(f'buffer_store_dwordx4 {vr(72+4*p,4)}, v{248+p}, s[12:15], s92 offen sc1')
        a('s_setpc_b64 s[68:69]')
    def st_compute(self):
        a = self.a; lab = 'L_std'
        ft = lambda base, bmul=0: self.lin('s70', [('s61', 2048), ('s60', bmul)], base)
        self.lin('s67', [('s60', FTS // 2)], WS_QT); self.srd(20, 'ws', 's67', FTS // 2)
        self.lin('s67', [('s60', 1056 * RP), ('s61', 64 * RP)], WS_K)
        a(f's_mov_b32 s66, {64*RP}\ns_cmp_eq_u32 s61, 16\ns_cselect_b32 s66, {32*RP}, s66'); self.srd(16, 'ws', 's67', 's66')
        self.lin('s67', [('s60', 17 * 1056 * 8), ('s61', 1056 * 8)], WS_ST + 1024 * 8); self.srd(28, 'ws', 's67', 0x100000)
        A0 = 48
        a(f's_mul_i32 s92, s3, 9216\nv_lshl_add_u32 v{A0}, v1, 4, s92')
        for t in range(1, 4): a(f'v_add_u32 v{A0+t}, {t*36864}, v{A0}')
        a(f's_and_b32 s92, s3, 1\ns_mul_i32 s93, s92, 36864\nv_add_u32 v{A0+4}, s93, v{A0}\ns_sub_u32 s93, 36864, s93\nv_add_u32 v{A0+5}, s93, v{A0}')
        R0 = 136 * PS
        a(f's_lshl_b32 s92, s92, 13\ns_add_u32 s92, s92, {R0}\nv_lshl_add_u32 v{A0+6}, v1, 4, s92\nv_xor_b32 v{A0+7}, s92, v{A0+6}\ns_sub_u32 s92, {2*R0 + 8192}, s92\nv_lshl_add_u32 v{A0+7}, v1, 4, s92\nv_mov_b32 v{A0+8}, {CX+48}\nv_mov_b32 v{A0+9}, {CX+52}')
        B = lambda kk, j: 64 + 8 * kk + 4 * j
        a('s_barrier')
        for kk in range(9):
            if kk % 4 == 0: a(f's_mov_b32 s92, {kk*1024}')
            for j in range(2): a(f'buffer_load_dwordx4 {vr(B(kk,j),4)}, v{A0+4+j}, s[20:23], s92 offen offset:{(kk%4)*1024} sc1')
        a(f's_barrier\ns_cmp_eq_u32 s61, 17\ns_cbranch_scc1 {lab}_x')
        if not self.do_st: a(f's_branch {lab}_x')
        self.stamp(18)
        A = lambda kk, t: 136 + 16 * (kk % 6) + 4 * t
        def ld(kk):
            if kk % 4 == 0: a(f's_mov_b32 s92, {kk*1024}')
            for t in range(4): a(f'buffer_load_dwordx4 {vr(A(kk,t),4)}, v{A0+t}, s[16:19], s92 offen offset:{(kk%4)*1024} sc1')
        for kk in range(6): ld(kk)
        for kk in range(9):
            a(f's_waitcnt vmcnt({4*(min(9, kk+6)-kk-1)})')
            for j in range(2):
                for t in range(4):
                    d = vr(16 + 16 * j + 4 * t, 4)
                    a(f'v_mfma_f32_16x16x32_bf16 {d}, {vr(A(kk,t),4)}, {vr(B(kk,j),4)}, {"0" if kk == 0 else d}')
            if kk + 6 < 9: ld(kk + 6)
        self.stamp(24)
        a(f's_nop 7\ns_cmp_lt_u32 s3, 2\ns_cbranch_scc1 {lab}_o')
        for q in range(8): a(f'ds_write_b128 v{A0+6}, {vr(16+4*q,4)} offset:{1024*q}')
        self.lds_arrive(A0 + 8, self.VONE)
        a(f's_branch {lab}_e\n{lab}_o:')
        self.lds_wait4(A0 + 8, 60, 2)
        for q in range(8): a(f'ds_read_b128 {vr(64+4*q,4)}, v{A0+6} offset:{1024*q}')
        a('s_waitcnt lgkmcnt(0)')
        for e in range(32): a(f'v_add_f32 v{16+e}, v{16+e}, v{64+e}')
        for q in range(4): a(f'ds_write_b128 v{A0+6}, {vr(32+4*q,4)} offset:{1024*q}')
        self.lds_arrive(A0 + 9, self.VONE)
        self.lds_wait4(A0 + 9, 60, 2)
        for q in range(4): a(f'ds_read_b128 {vr(64+4*q,4)}, v{A0+7} offset:{1024*q}')
        a('s_waitcnt lgkmcnt(0)')
        for e in range(16): a(f'v_add_f32 v{16+e}, v{16+e}, v{64+e}')
        a(f's_cmp_lg_u32 s61, 16\ns_cbranch_scc1 {lab}_m')
        for e in range(8, 16): a(f'v_mov_b32 v{16+e}, 0xff800000')
        a(f'{lab}_m:\nv_max_f32 v32, v16, v17')
        for e in range(2, 16, 2): a(f'v_max3_f32 v32, v32, v{16+e}, v{17+e}')
        self.allred(32, 34, 'v_max_f32', 1)
        a(f's_mov_b32 s92, {f2u(LOG2E * D ** -0.5):#x}\nv_mul_f32 v32, s92, v32')
        for e in range(16): a(f'v_fma_f32 v{16+e}, v{16+e}, s92, -v32')
        for e in range(16): a(f'v_exp_f32 v{16+e}, v{16+e}')
        ft(WS_PT, FTS // 2); a('s_call_b64 s[68:69], L_sk_ft\nv_add_f32 v33, v16, v17')
        for e in range(2, 16): a(f'v_add_f32 v33, v33, v{16+e}')
        self.allred(33, 34, 'v_add_f32', 1)
        a('s_lshl_b32 s92, s3, 7\nv_lshlrev_b32 v34, 3, v1\ns_mov_b64 exec, 0xffff\nbuffer_store_dwordx2 v[32:33], v34, s[28:31], s92 offen sc1\ns_mov_b64 exec, -1')
        a(f'{lab}_e:')
        self.sig_index('ST'); self.signal_now()
        self.stamp(19)
        a(f'{lab}_x:')
    def sk_compute(self, t):
        a = self.a
        half = t == 'Y'
        if half: self.st_compute()
        lab = a.label('sk')
        src = {'T': WS_HT, 'VT': WS_VT, 'ST': WS_QT, 'Y': WS_PT, 'AT': WS_Y, 'OT': WS_AT}[t]
        if half:
            self.lin('s67', [('s60', FTS // 2)], src)
            self.srd(20, 'ws', 's67', FTS // 2)
            self.lin('s67', [('s60', 17 * 1056 * 8), ], WS_ST + 1024 * 8); self.srd(28, 'ws', 's67', 0x100000)
        else: self.srd(20, 'ws', src, FTS)
        ft = lambda base, bmul=0: self.lin('s70', [('s61', 2048), ('s60', bmul)], base)
        if t == 'OT':
            a(f's_add_u32 s70, s65, {SZ["x_img"]}\ns_sub_u32 s71, {64*RP}, s65')
            self.srd(24, 'out', 's70', 's71'); self.srd(32, 'x_txt', 's65', 's71')
            a('s_barrier')
            for p in range(2): a(f'buffer_load_dwordx4 {vr(48+4*p,4)}, v{248+p}, s[32:35], 0 offen')
            a('s_lshr_b32 s71, s3, 1'); self.lin('s70', [('s71', 4608), ('s61', 256)], WS_GATE + 2 * 4608); a('v_and_b32 v250, 48, v1')
            for sp in range(2):
                for it in range(4): a(f'buffer_load_dwordx4 {vr((32, 160, 176)[sp]+4*it,4)}, v250, s[12:15], s70 offen offset:{64*it} sc1')
                a(f's_add_u32 s70, s70, {4*4608}')
            a('s_waitcnt vmcnt(0)')
            for e in range(16): a(f'v_add_f32 v{32+e}, v{32+e}, v{160+e}')
            self.xpose(48, 64, inverse=True, nj=1)
        a('s_barrier')
        self.stamp({'T': 20, 'Y': 22}.get(t, 16))
        if half and not self.do_y: a(f's_branch {lab}_s')
        if t == 'AT':
            self.lin('s70', [('s3', 18 * 4096), ('s61', 4096)], WS_Z); a('v_lshlrev_b32 v250, 4, v1')
            for it in range(4): a(f'buffer_load_dwordx4 {vr(32+4*it,4)}, v250, s[12:15], s70 offen offset:{1024*it} sc1')
        a(f's_call_b64 s[86:87], {"L_sky" if t == "Y" else "L_skt"}')
        if half:
            a(f's_lshl_b32 s92, s91, 12\ns_add_u32 s92, s92, {XL+8192}\nv_lshl_add_u32 v64, v1, 4, s92\ns_cmp_lt_u32 s3, 2\ns_cbranch_scc1 {lab}_o')
            for q in range(4): a(f'ds_write_b128 v64, {vr(16+4*q,4)} offset:{1024*q}')
            a(f's_waitcnt lgkmcnt(0)\ns_branch {lab}_s\n{lab}_o:\ns_barrier')
            for q in range(4): a(f'ds_read_b128 {vr(68+4*q,4)}, v64 offset:{1024*q}')
            a('s_waitcnt lgkmcnt(0)')
            for e in range(16): a(f'v_add_f32 v{16+e}, v{16+e}, v{68+e}')
        else: a('s_barrier')
        self.stamp({'T': 21, 'Y': 23}.get(t, 17))
        if t == 'T':
            a(f's_cmp_ge_u32 s61, 18\ns_cbranch_scc1 {lab}_k'); ft(WS_QT); a(f's_call_b64 s[68:69], L_sk_ft\ns_branch {lab}_e\n{lab}_k:')
            a(f's_cmp_ge_u32 s61, 36\ns_cbranch_scc1 {lab}_v\ns_lshr_b32 s71, s3, 1')
            self.lin('s70', [('s61', 2048), ('s71', 1024 * RP)], WS_K + 1024 * RP - 18 * 2048); a(f's_call_b64 s[68:69], L_sk_ft\ns_branch {lab}_e\n{lab}_v:')
            ft(WS_VT - 36 * 2048); a(f's_call_b64 s[68:69], L_sk_ft\ns_add_u32 s71, s65, {WS_H + 1024*RP - 4608}')
            a('s_call_b64 s[68:69], L_sk_row')
        elif t == 'VT': a(f's_add_u32 s71, s65, {WS_V + 1024*RP}\ns_call_b64 s[68:69], L_sk_row')
        elif t == 'AT':
            for e in range(16): a(f'v_add_f32 v{16+e}, v{16+e}, v{32+e}')
            ft(WS_AT); a('s_call_b64 s[68:69], L_sk_ft')
        elif t == 'Y':
            ft(WS_Y, FTS // 2); a('s_call_b64 s[68:69], L_sk_ft')
            for e in range(16): a(f'v_mul_f32 v{48+e}, v{48+e}, v250')
            self.lin('s70', [('s60', 36 * 4096), ('s3', 18 * 4096), ('s61', 4096)], WS_Z); a('v_lshlrev_b32 v250, 4, v1')
            for it in range(4): a(f'buffer_store_dwordx4 {vr(48+4*it,4)}, v250, s[12:15], s70 offen offset:{1024*it} sc1')
        elif t == 'OT':
            for it in range(4):
                for d in range(2): a(f'v_lshlrev_b32 v{64+2*d}, 16, v{48+2*it+d}\nv_and_b32 v{65+2*d}, 0xffff0000, v{48+2*it+d}')
                for r in range(4): a(f'v_fmac_f32 v{64+r}, v{16+4*it+r}, v{32+4*it+r}')
                for d in range(2): a(f'v_cvt_pk_bf16_f32 v{48+2*it+d}, v{64+2*d}, v{65+2*d}')
            self.xpose(48, 64, nj=1)
            for p in range(2): a(f'buffer_store_dwordx4 {vr(48+4*p,4)}, v{248+p}, s[24:27], 0 offen sc1')
        if half: a(f's_branch {lab}_e\n{lab}_s:\ns_barrier')
        a(f'{lab}_e:')
        if t != 'OT': self.sig_index(t); self.signal_now()
        else: a(f's_add_u32 s92, s61, s3\ns_cmp_lg_u32 s92, 0\ns_cbranch_scc1 {lab}_t\nv_mov_b32 v255, s11\ns_mov_b32 s92, {WS_E}\ns_mov_b64 exec, 1\nbuffer_store_dword v255, v{self.VZERO}, s[12:15], s92 offen sc1\ns_mov_b64 exec, -1\n{lab}_t:')
    def aux_interp(self, side, only):
        a = self.a; p = f'L_{side}x'; self.do_st = only is None or 'ST' in only; self.do_y = only is None or 'Y' in only
        a('s_mov_b32 s8, 0\ns_mov_b32 s60, 0\ns_mov_b32 s10, 0\ns_sub_u32 s62, s9, 42\ns_sub_u32 s92, s9, 18\ns_cmp_lt_u32 s9, 42\ns_cselect_b32 s62, s92, s62')
        if side == 'c': self.sk_static()
        for lim, prog in self.AUXPROG:
            ops = [o for o in prog.split() if only is None or o in only or (o == 'Y' and 'ST' in only) or (o == 'OP' and 'OT' in only)]
            code = sum(self.AUXOPS.index(o) << (4 * k) for k, o in enumerate(ops))
            a(f's_cmp_ge_u32 s9, {lim}\ns_cselect_b32 s8, {code}, s8')
        a(f'{p}_next:\ns_and_b32 s92, s8, 15\ns_lshr_b32 s8, s8, 4')
        for k, o in enumerate(self.AUXOPS[1:], 1): a(f's_cmp_eq_u32 s92, {k}\ns_cbranch_scc1 {p}_{o}')
        a('s_branch L_fin')
        for k, o in enumerate(self.AUXOPS[1:], 1):
            a(f'{p}_{o}:')
            if o == 'P':
                a('s_sub_u32 s84, s9, 42'); self.prefetch_qk(0, PFR); a('s_waitcnt vmcnt(0)')
            elif o in 'XG':
                if o == 'G':
                    a(f's_barrier\ns_lshl_b32 s92, s62, 1\ns_add_u32 s92, s92, {int(side == "l")}\ns_add_u32 s10, s10, 1')
                    a('s_cmp_lt_u32 s62, 12\ns_cselect_b32 s93, 24, 2\ns_add_u32 s62, s62, s93\ns_cmp_ge_u32 s92, 36\ns_cselect_b32 s93, 1, 0\ns_mul_i32 s75, s93, 36\ns_sub_u32 s92, s92, s75')
                    self.gemv_job('gate', 2); a('s_lshl_b32 s77, s10, 2')
                else:
                    g = int(side == 'l')
                    a(f's_lshl_b32 s92, s9, 1\ns_add_u32 s92, s92, {6 + g}\ns_add_u32 s93, s9, 48\ns_cmp_lt_u32 s9, 42\ns_cselect_b32 s92, s93, s92\ns_mov_b32 s81, 1\ns_mov_b32 s66, 2')
                    if g: a(f's_cbranch_scc0 {p}_X2\ns_barrier\ns_branch {p}_next\n{p}_X2:')
                    self.gemv_job('mod', 1)
                a('s_call_b64 s[86:87], L_gemv')
                if o == 'X':
                    self.gemv_loads(self.GW, self.GC); a('s_call_b64 s[86:87], L_gemv2\ns_barrier')
            else:
                self.idx_aux(o)
                if side == 'l': self.sk_loader(o)
                elif o != 'OP': self.sk_compute(o)
            self.stamp(k + 3)
            a(f's_branch {p}_next')
        if side == 'c':
            self.sk_sub('L_skt', 'T'); self.sk_sub('L_sky', 'T', True); self.sk_epi_subs()
        else: self.panel_subs()
    def kernel(self, name, only=None):
        a = self.a
        has = lambda t: only is None or t in only
        kernel_head(a, name)
        if self.instr: a('s_memrealtime s[94:95]')
        a('s_load_dwordx8 s[36:43], s[0:1], 0\ns_load_dwordx8 s[44:51], s[0:1], 32\ns_load_dwordx8 s[52:59], s[0:1], 64')
        a('s_cmp_ge_u32 s2, 256\ns_cbranch_scc1 L_end')
        a('s_getpc_b64 s[6:7]\nL_pc:\ns_lshr_b32 s92, s2, 3\ns_lshl_b32 s92, s92, 11\nv_subrev_u32 v2, 384, v0\nv_lshl_add_u32 v3, v2, 4, s92')
        a('s_mov_b32 s4, s6\ns_mov_b32 s5, s7\ns_mov_b32 s6, L_end - L_pc\ns_mov_b32 s7, 0x20000\nv_cmp_gt_u32 vcc, 128, v2')
        a('s_cbranch_vccz L_nocpf\nbuffer_load_dwordx4 v[248:251], v3, s[4:7], 0 offen\nL_nocpf:')
        a('v_lshrrev_b32 v1, 6, v0\nv_mov_b32 v15, 0\nv_readfirstlane_b32 s3, v1\nv_and_b32 v1, 63, v0')
        a(f'v_lshlrev_b32 v2, 2, v1\nv_add_u32 v2, {CX}, v2\nds_write_b32 v2, v15')
        a('s_sub_u32 s9, s2, 200\ns_sub_u32 s10, s2, 112\ns_cmp_ge_u32 s2, 220\ns_cselect_b32 s81, 1, 0\ns_mul_i32 s92, s81, 108\ns_sub_u32 s92, s10, s92\ns_mov_b32 s66, 1')
        a('s_lshr_b32 s93, s3, 2\ns_mul_i32 s93, s93, 14\ns_add_u32 s92, s92, s93')
        self.gemv_job('mod')
        for i, g in ((195, 128), (199, 129), (240, 83), (241, 87), (242, 200), (243, 200), (254, 130), (255, 131)):
            a(f's_cmp_eq_u32 s2, {i}\ns_cselect_b32 s10, {g}, s10')
        a(f's_waitcnt lgkmcnt(0)\ns_load_dword s8, {sr(PTR["ws"],2)}, {WS_E}\ns_barrier')
        self.srd(12, 'ws', 0, SZ['ws'])
        self.stamp(0)
        if self.instr: a('v_writelane_b32 v15, s94, 30')
        self.prefetch_u()
        a('s_cmp_ge_u32 s3, 4\ns_cbranch_scc1 L_loader')
        main = ['M', 'V', 'S']
        self.hooks = []; self.gate_job = False
        if 'dup' in OPT: main = ['V', 'V', 'V', 'V', 'S']
        elif 'vs' in OPT: main = ['V', 'M', 'V', 'M', 'S']
        else: main = [t for t in main if has(t)]
        chain = only is None or 'dup' in OPT or 'vs' in OPT
        def spare(): a('s_cmp_ge_u32 s92, 99\ns_cbranch_scc1 L_fin')
        if 'late' in OPT: self.cp_static(); self.tag()
        if has('GV'): a('s_cmp_lt_u32 s2, 112\ns_cbranch_scc1 L_c_nogv\ns_call_b64 s[86:87], L_gemv\nL_c_nogv:')
        if self.instr:
            a('s_and_b32 s84, s2, 0xfffffffb\ns_cmp_lg_u32 s84, 195\ns_cbranch_scc1 L_notrace\ns_cmp_lg_u32 s3, 1\ns_cbranch_scc1 L_notrace\ns_mov_b32 s84, 0')
            a('L_trace:\ns_memrealtime s[72:73]\ns_memtime s[96:97]\ns_waitcnt lgkmcnt(0)\ns_mov_b32 m0, s84\ns_nop 4\nv_writelane_b32 v16, s72, m0\nv_writelane_b32 v17, s96, m0\ns_sleep 24\ns_add_u32 s84, s84, 1\ns_cmp_lt_u32 s84, 64\ns_cbranch_scc1 L_trace')
            a(f's_lshl_b32 s72, s2, 9\ns_add_u32 s72, s72, {WS_DBG + (1 << 20)}\nv_lshlrev_b32 v14, 3, v1\nbuffer_store_dwordx2 v[16:17], v14, s[12:15], s72 offen\ns_endpgm\nL_notrace:')
        self.stamp(1)
        self.help_u()
        if 'late' not in OPT: self.cp_static(); self.tag()
        a('s_mov_b32 s7, 0')
        a('s_mov_b32 s60, 0\ns_mov_b32 s62, 0\ns_mov_b32 s64, 0\ns_mov_b32 s65, 0')
        self.stamp(3)
        body = self.a
        subs = Asm(); subs.uid = 10000; self.a = subs
        self.gemv_subs();
        self.chain = chain; er = self.capture(lambda: self.epi_rows(216))
        self.gemm_sub('L_tk', 'T', self.ACCT); self.gemm_sub('L_qk', 'T', self.ACC, True, epi=er if WEAVE else None, npeel=NPEEL); self.hook_sub(); self.gemm_sub('L_kk', 'K', self.ACC); self.softmax_sub(); self.pv_sub()
        for h in self.hooks: subs(h)
        lsubs = Asm(); lsubs.uid = 20000; self.a = lsubs
        self.ld_subs()
        self.a = a = body
        self.row_offsets(self.VO, 216, None); self.ft_static()
        a('s_cmp_ge_u32 s2, 200\ns_cbranch_scc1 L_caux')
        if XE == 2 and only is None: self.idx_main(); spare(); self.x_loads()
        if has('U'):
            self.idx_u('L_c_nou')
            self.cp_task('U', False, True, chain and main[0])
            self.stamp(4)
            if chain: self.idx_main(); a('s_barrier'); self.stamp(12); a(f's_call_b64 s[86:87], L_qk{"_w" if WEAVE else ""}\ns_branch L_c_k')
        a('L_c_nou:')
        self.idx_main(); spare()
        if only is None and XE == 1: self.x_loads()
        if only is None and XE == 0: self.ops(2, XAT)
        if PFW:
            self.sdiv('s70', 's62', 3, 's71')
            a(f's_mul_i32 s71, s71, {PFW}\ns_and_b32 s70, s2, 7\ns_mul_i32 s70, s70, 9\ns_lshr_b32 s70, s70, 2\ns_add_u32 s71, s71, s70')
            self.srd(32, 'wqkv_img', 0, SZ['wqkv_img'])
            a('v_lshrrev_b32 v246, 4, v1\nv_mul_u32_u24 v246, 6912, v246\nv_and_b32 v247, 15, v1\nv_lshl_add_u32 v246, v247, 4, v246')
            for k in range(PFW):
                a(f's_add_u32 s70, s71, {k}\ns_sub_u32 s66, s70, 18\ns_min_u32 s70, s70, s66')
                self.lin('s66', [('s70', 64 * 6912), ('s3', 16 * 6912), ('s65', 1)])
                for m in range(4): a(f'buffer_load_dwordx4 v[252:255], v246, s[32:35], s66 offen\nbuffer_load_dwordx4 v[252:255], v246, s[32:35], s66 offen offset:2304\ns_add_u32 s66, s66, {4*6912}')
        for k, t in enumerate(main):
            self.cp_task(t, False, k == 0 or not chain, chain and k + 1 < len(main) and main[k + 1], cont=chain and k > 0, join='L_c_k' if chain and k == 0 else None, pv=only is None)
            self.stamp(5 + k)
        if has('PV'): self.cp_task('PV', False, True, False, pv=only is None)
        a('s_branch L_fin')
        a.lines += subs.lines
        a('L_caux:\ns_barrier')
        self.aux_interp('c', only)
        a('L_loader:')
        a('s_sub_u32 s84, s2, 87\ns_and_b32 s75, s84, 0xffffffe7\ns_cmp_lg_u32 s75, 0\ns_cbranch_scc1 L_noinit\ns_lshl_b32 s84, s84, 9\nv_lshlrev_b32 v23, 4, v0\nv_subrev_u32 v23, 4096, v23')
        for k in range(15, -1, -1): a(f's_add_u32 s85, s84, {k*16384}\nbuffer_load_dwordx4 v[16:19], v23, s[12:15], s85 offen sc1')
        a('L_noinit:')
        a('s_cmp_lt_u32 s2, 112\ns_cbranch_scc1 L_l_nogv\ns_cmp_ge_u32 s10, 132\ns_cbranch_scc1 L_l_noln')
        if has('LN'): self.ln(has('GV'))
        self.stamp(13)
        a('s_branch L_l_nogv\nL_l_noln:')
        if has('GV'): a('s_call_b64 s[86:87], L_gemv')
        a('L_l_nogv:')
        self.ld_static()
        if self.instr: a('s_mov_b32 s90, 0\nv_mov_b32 v13, 0')
        self.stamp(26)
        a('s_cmp_ge_u32 s2, 200\ns_cbranch_scc1 L_laux')
        if has('U'):
            self.idx_u('L_l_nou'); self.ld_late_start('U', False, 1); self.tag()
            if chain: self.ld_body('U', main[0], self.idx_main, True, 2); a('s_branch L_l_k')
            else: self.ld_body('U', None)
        a('L_l_nou:'); self.tag()
        self.idx_main(); spare()
        for k, t in enumerate(main):
            if k == 0 or not chain: self.ld_late_start(t, False, 2, ready=True)
            if k == 0: a('L_l_k:')
            self.ld_body(t, main[k + 1] if chain and k + 1 < len(main) else None, k=3 + k)
        if has('PV'): self.ld_pv_start(); self.ld_body('PV', None)
        a('s_branch L_fin')
        a.lines += lsubs.lines
        a('L_laux:'); self.tag(); a('s_mov_b32 s7, 0')
        a('s_barrier')
        self.aux_interp('l', only)
        a('L_fin:')
        self.stamp_store()
        a('L_end:\ns_endpgm')
    def rows4(self, srd, pitch, offs):
        a = self.a
        a(f'v_lshrrev_b32 v216, 4, v1\nv_and_b32 v217, 15, v1\nv_mul_u32_u24 v216, {pitch}, v216\nv_lshl_add_u32 v216, v217, 4, v216')
        for k, so in enumerate(offs):
            for i in range(9): a(f'buffer_load_dwordx4 {vr(252,4)}, v216, {sr(srd,4)}, {so} offen offset:{i*256}')
    def help_u(self):
        if not HLP: return
        a = self.a
        a(f's_sub_u32 s84, s2, {HB}'); self.idx_u('L_hlp_e', 's84')
        a(f's_sub_u32 s66, {SZ["wo_img"]}, s65'); self.srd(28, 'wo_img', 's65', 's66')
        a(f's_mul_i32 s67, s62, {96*6912}\ns_add_u32 s67, s67, 4608\ns_sub_u32 s66, {SZ["wqkv_img"]}, s67'); self.srd(32, 'wqkv_img', 's67', 's66')
        a(f'v_lshrrev_b32 v246, 4, v1\nv_lshl_add_u32 v246, s3, 4, v246\nv_mul_u32_u24 v246, {RP}, v246\nv_and_b32 v247, 15, v1\nv_lshl_add_u32 v246, v247, 4, v246')
        a('s_mul_i32 s66, s3, 24\nv_lshrrev_b32 v247, 3, v1\nv_add_u32 v247, s66, v247\nv_mul_u32_u24 v247, 6912, v247\nv_and_b32 v248, 7, v1\nv_lshl_add_u32 v247, v248, 4, v247')
        self.sdiv('s70', 's62', 5, 's76'); self.sdiv('s70', 's61', 3, 's77')
        if HW: a(f's_cmp_ge_u32 s10, 128\ns_cbranch_scc1 L_hlp_s\nv_mov_b32 v248, {CX+16}'); self.lds_wait4(248, 249); a('L_hlp_s:')
        a(f's_and_b32 s78, s2, 7\ns_mul_i32 s78, s78, 9\ns_lshr_b32 s78, s78, 2\ns_add_u32 s78, s78, {HLP}\ns_mov_b32 s83, {18 - HLP}\nL_hlp:')
        a('s_sub_u32 s70, s78, 18\ns_min_u32 s70, s70, s78\ns_sub_u32 s76, s76, 1\ns_cbranch_scc0 L_hlp_b\ns_mov_b32 s76, 4')
        a(f's_mul_i32 s71, s70, {64*RP}')
        for m in range(4): a(f'buffer_load_dwordx4 v[252:255], v246, s[28:31], s71 offen\ns_add_u32 s71, s71, {4*RP}')
        a('L_hlp_b:\ns_sub_u32 s77, s77, 1\ns_cbranch_scc0 L_hlp_n\ns_mov_b32 s77, 2\ns_lshl_b32 s71, s70, 7')
        for m in range(3): a(f'buffer_load_dwordx4 v[252:255], v247, s[32:35], s71 offen\ns_add_u32 s71, s71, {8*6912}')
        a(f'L_hlp_n:\ns_waitcnt vmcnt({HTH})\ns_add_u32 s78, s78, 1\ns_sub_u32 s83, s83, 1\ns_cmp_lg_u32 s83, 0\ns_cbranch_scc1 L_hlp\nL_hlp_e:')
    def prefetch_u(self):
        if 'pfu' not in OPT: return
        a = self.a
        a('s_sub_u32 s84, s2, 116\ns_cmp_ge_u32 s84, 72\ns_cbranch_scc1 L_pfu\ns_lshl_b32 s84, s84, 2\ns_and_b32 s85, s3, 3\ns_add_u32 s84, s84, s85')
        a(f's_cmp_ge_u32 s3, 4\ns_cselect_b32 s32, s{PTR["wo_img"]}, s{PTR["wqkv_img"]}\ns_cselect_b32 s33, s{PTR["wo_img"]+1}, s{PTR["wqkv_img"]+1}')
        a(f's_mov_b32 s34, {SZ["wqkv_img"]}\ns_cselect_b32 s34, {SZ["wo_img"]}, s34\ns_mov_b32 s35, 0x20000\ns_movk_i32 s85, 6912\ns_cselect_b32 s85, 2304, s85\ns_cselect_b32 s82, 0, 4608')
        a('s_mul_i32 s84, s84, s85\ns_lshl_b32 s84, s84, 2\ns_add_u32 s84, s84, s82')
        self.rows4(32, 's85', ['s84'])
        a('L_pfu:')
    def prefetch_qk(self, first, rounds):
        a = self.a
        a(f's_lshl_b32 s84, s84, 3\ns_add_u32 s84, s84, s3\ns_add_u32 s84, s84, {first}\ns_mul_i32 s84, s84, {4*6912}')
        self.srd(32, 'wqkv_img', 0, SZ['wqkv_img'])
        for r in range(rounds):
            a('s_add_u32 s83, s84, 2304')
            self.rows4(32, 6912, ['s84', 's83'])
            a(f's_add_u32 s84, s84, {(128 if r == 0 else 96)*4*6912}')

def post(text):
    import re
    if 'nochk' in OPT:
        text = re.sub(r'  s_cbranch_vccnz L_chk_\d+_s\n', '', text).replace('L_spin:\n', 'L_spin:\n  s_setpc_b64 s[68:69]\n')
    if 'nofree' in OPT:
        text = text.replace('  s_cbranch_vccnz L_run_slow\n', '').replace('  s_cbranch_vccz L_run_go\nL_run_slow:', '  s_branch L_run_go\nL_run_slow:')
    if 'nocw' in OPT: text = text.replace('  ds_write_b32 v253, v252\n', '')
    if 'nocr' in OPT: text = text.replace('  ds_read_b32 v255, v254\n', '')
    if 'nolw' in OPT: text = text.replace('  ds_write_b32 v10, v12\n', '')
    if 'nolr' in OPT: text = text.replace('  ds_read_b32 v24, v9\n', '')
    if 'noldr' in OPT: text = text.replace('L_lprog0:\n', 'L_lprog0:\n  s_endpgm\n')
    if 'nocmp' in OPT: text = text.replace('L_cprog0:\n', 'L_cprog0:\n  s_endpgm\n')
    if 'nobar' in OPT: text = text.replace('  s_barrier\n', '')
    return text
def relabel(text, suffix):
    import re
    return re.sub(r'\b(L_\w+)', lambda m: m.group(1) + suffix, text)

def build(mode='fused', instr=False, cls=Mega):
    hdr = [l for l in open('standalone__mm_dit__diffusion.s.ref').read().split('\n')
           if l.startswith(';') and '@launch' not in l and 'Override launch' not in l and 'Harness parses' not in l]
    out = '\n'.join(hdr) + '\n'
    if mode == 'fused':
        name = 'standalone__mm_dit__diffusion_kernel'
        m = cls(instr, True); m.kernel(name)
        out += f'; @launch grid=(256,1,1) block=(512,1,1) lds={LDS}\n'
        out += '.amdgcn_target "amdgcn-amd-amdhsa--gfx950"\n.text\n' + m.a.text() + '.section .rodata,"a"\n' + kernel_desc(name, 256, 102)
        return out
    if mode.startswith('only:'):
        name = 'standalone__mm_dit__diffusion_kernel'
        m = cls(instr, False); m.kernel(name, set(mode[5:].split('+')))
        out += f'; @launch grid=(256,1,1) block=(512,1,1) lds={LDS}\n'
        out += '.amdgcn_target "amdgcn-amd-amdhsa--gfx950"\n.text\n' + m.a.text() + '.section .rodata,"a"\n' + kernel_desc(name, 256, 102)
        return out
    steps = [{'U', 'GV', 'G', 'X'}, {'LN'}, {'M', 'V', 'T'}, {'S', 'VT', 'Q2'}, {'PV', 'ST'}, {'Y'}, {'AT'}, {'OT'}]
    text = ''; desc = ''
    for k, st in enumerate(steps):
        name = f'step{k}_kernel'
        m = cls(instr, False); m.kernel(name, st)
        text += relabel(m.a.text(), f'_{k}'); desc += kernel_desc(name, 256, 102)
        out += f'; @launch kernel={name} grid=(256,1,1) block=(512,1,1) lds={LDS}\n'
    out += '.amdgcn_target "amdgcn-amd-amdhsa--gfx950"\n.text\n' + text + '.section .rodata,"a"\n' + desc
    return out

if __name__ == '__main__':
    mode = sys.argv[2] if len(sys.argv) > 2 else 'fused'
    open(sys.argv[1], 'w').write(post(build(mode, len(sys.argv) > 3)))
```

```python
import sys, struct
from asmlib import *
from gemm import Operand, emit_swz, emit_swap23

D = 1152
KA = ['x_img', 'x_txt', 'c', 'wqkv_img', 'wqkv_txt', 'wo_img', 'wo_txt', 'wmod_img', 'wmod_txt', 'out', 'dbg', 'ws']
PTR = {n: 36 + 2 * k for k, n in enumerate(KA)}
SZ = dict(x_img=4718592, x_txt=147456, c=4608, wqkv_img=7962624, wqkv_txt=7962624, wo_img=2654208, wo_txt=2654208,
          wmod_img=15925248, wmod_txt=15925248, out=4866048, dbg=256, ws=268435456)
MB = 1 << 20
RP = 2304
WS_FLAG = 0
WS_MODP = 151552
WS_GATE = WS_MODP + 3 * 4 * 9216
WS_ST = 327680
FTS = 4 * 36 * 1024
WS_HT = 655360; WS_QT = WS_HT + FTS; WS_VT = WS_QT + FTS; WS_Q2 = WS_VT + FTS; WS_PT = WS_Q2 + FTS; WS_Y = WS_PT + FTS; WS_AT = WS_Y + FTS
WS_Z = WS_AT + FTS
assert WS_Z + 4 * 18 * 4096 <= 2 * MB and WS_GATE + 12 * 4608 <= WS_ST and WS_ST + 34 * 1056 * 8 + 1024 <= WS_HT
BS = 2 * 1056 * RP
WS_H = 2 * MB; WS_Q = WS_H + BS; WS_K = WS_Q + BS; WS_V = WS_K + BS; WS_P = WS_V + BS; WS_U = WS_P + BS
USZ = 1152 * RP
WS_DBG = 64 * MB
FS = 128
F_GG = 0
F_LN = 108
F_U = 240
F_K = 348
F_V = 546
F_P = 744
F_T = 942; F_VT = 996; F_PT = 1014; F_Y = 1048; F_AT = 1084
NFLAG = 1184
assert WS_MODP == NFLAG * FS and WS_GATE == 4 * 65536
WS_E = (NFLAG - 1) * FS
PS = 1056
NS = 5; CH = 1040; STAGE = 28 * CH; RING = NS * STAGE; XL = RING; LDS = 163840
CB = LDS - 2048
GL = XL + 13312
CX = XL + 17920
SPIN = 0x1000000
LOG2E = 1.4426950408889634
def f2u(x): return struct.unpack('<I', struct.pack('<f', x))[0]

import os
OPT = set(os.environ.get('OPT', '').split(','))
LDF = os.environ.get('LDF', 'sc1')
SW = int(os.environ.get('SW', 5)); SD = int(os.environ.get('SD', 3))
DEPTH = int(os.environ.get('DEPTH', 2))
CSLEEP = '' if 'nocsleep' in OPT else 's_sleep 1\n'
LSLEEP = '' if 'nolsleep' in OPT else 's_sleep 1\n'
COLD = tuple(os.environ.get('COLD', 'none').split(','))
PSL = int(os.environ.get('PSL', 1))
PFAT = int(os.environ.get('PFAT', 5))
SIGW = int(os.environ.get('SIGW', 1))
ALN = f".p2align {os.environ.get('ALIGN', 6)}\n" + 's_nop 0\n' * int(os.environ.get('APAD', 0))
SKAH = int(os.environ.get('SKAH', 12))
PFD = int(os.environ.get('PFD', 4))
PFR = int(os.environ.get('PFR', 2))
XROT = tuple(os.environ.get('XROT', 'M,U').split(','))
PW = int(os.environ.get('PW', 3)); PD = int(os.environ.get('PD', 1))
NPEEL = int(os.environ.get('NPEEL', 2))
XAT = int(os.environ.get('XAT', 8))
PFW = int(os.environ.get('PFW', 0))
OUTF = os.environ.get('OUTF', 'sc1')
WEAVE = 'noweave' not in OPT and int(os.environ.get('XE', 0)) < 2
UNR = int(os.environ.get('UNR', 2)); LOOK = int(os.environ.get('LOOK', 0))
HLP = int(os.environ.get('HLP', 0)); HB = int(os.environ.get('HB', 144))
HTH = int(os.environ.get('HTH', 63)); HW = int(os.environ.get('HW', 0))
XE = int(os.environ.get('XE', 0))
DIAG = [int(x) for x in os.environ.get('DIAG', '').split(',') if x]
class Mega:
    def __init__(self, instr=False, flags=True):
        self.a = Asm(); self.instr = instr; self.flags = flags

    def srd(self, srd, ptr, off, limit):
        a = self.a; p = PTR[ptr]
        a(f's_add_u32 s{srd}, s{p}, {off}\ns_addc_u32 s{srd+1}, s{p+1}, 0\ns_mov_b32 s{srd+2}, {limit}\ns_mov_b32 s{srd+3}, 0x20000')
    def sdiv(self, dst, src, c, rem=None):
        self.a(f's_mul_hi_u32 {dst}, {src}, {(1 << 32) // c + 1}')
        if rem: self.a(f's_mul_i32 {rem}, {dst}, {c}\ns_sub_u32 {rem}, {src}, {rem}')
    def lin(self, dst, terms, const=0):
        a = self.a; a(f's_mov_b32 {dst}, {const}')
        for r, c in terms: a(f's_mul_i32 s75, {r}, {c}\ns_add_u32 {dst}, {dst}, s75')
    def stamp(self, n):
        if DIAG and n == DIAG[0]: self.a('s_memrealtime s[96:97]\ns_waitcnt lgkmcnt(0)')
        if self.instr: self.a(f's_memrealtime s[72:73]\ns_memtime s[96:97]\ns_waitcnt lgkmcnt(0)\nv_writelane_b32 v15, s72, {n}\nv_writelane_b32 v15, s96, {32+n}')
    def stamp_store(self):
        if not self.instr: return
        a = self.a
        self.stamp(2); a('s_waitcnt vmcnt(0)')
        self.stamp(31)
        a(f's_lshl_b32 s72, s2, 3\ns_add_u32 s72, s72, s3\ns_lshl_b32 s72, s72, 8\ns_add_u32 s72, s72, {WS_DBG}')
        a(f'v_lshlrev_b32 v14, 2, v1\nbuffer_store_dword v15, v14, s[12:15], s72 offen\ns_add_u32 s72, s72, {2 << 20}\nbuffer_store_dword v13, v14, s[12:15], s72 offen')
    def flag_lanes(self, vd, vt, ranges):
        a = self.a
        first = True; acc = 0
        if len(ranges) == 1:
            st, cnt = ranges[0]
            if isinstance(cnt, int): a(f'v_min_u32 v{vd}, {cnt-1}, v1')
            else: a(f's_sub_u32 s75, {cnt}, 1\nv_min_u32 v{vd}, s75, v1')
            a(f'v_add_u32 v{vd}, {st}, v{vd}\nv_lshlrev_b32 v{vd}, 7, v{vd}')
            return
        tot = sum(c for _, c in ranges)
        a(f'v_min_u32 v{vt}, {tot-1}, v1')
        for st, cnt in ranges:
            if isinstance(st, int): a(f's_mov_b32 s75, {st - acc}')
            else: a(f's_sub_u32 s75, {st}, {acc}')
            if first: a(f'v_mov_b32 v{vd}, s75')
            else: a(f'v_mov_b32 v{vt+1}, s75\nv_cmp_le_u32 vcc, {acc}, v{vt}\ns_nop 1\nv_cndmask_b32 v{vd}, v{vd}, v{vt+1}, vcc')
            first = False; acc += cnt
        a(f'v_add_lshl_u32 v{vd}, v{vd}, v{vt}, 7')
    def poll_sub(self, lab, vo, vt):
        a = self.a
        a(f'{lab}:\ns_mov_b32 s74, 0x80000\n{lab}_l:')
        a(f'buffer_load_dwordx4 {vr(vt,4)}, v{vo}, s[12:15], 0 offen sc1\ns_waitcnt vmcnt(0)')
        self.min4(vt); a(f'v_cmp_eq_u32 vcc, 0, v{vt}')
        a(f's_cmp_eq_u64 vcc, exec\ns_cbranch_scc1 {lab}_d\ns_sub_u32 s74, s74, 1\ns_cmp_eq_u32 s74, 0\ns_cbranch_scc1 {lab}_d\ns_sleep {PSL}\ns_branch {lab}_l')
        a(f'{lab}_d:\ns_setpc_b64 s[68:69]')
    def ld_params(self, t):
        a = self.a
        def ws(srd, off, lim=None): self.srd(srd, 'ws', off, lim if lim is not None else 0x4000000)
        def wsl(srd, base, sreg, lim=None):
            a(f's_add_u32 s67, {sreg}, {base}'); ws(srd, 's67', lim)
        def wgt(srd, name, sreg, const=0):
            a(f's_add_u32 s67, {sreg}, {const}\ns_sub_u32 s66, {SZ[name]}, s67'); self.srd(srd, name, 's67', 's66')
        if t in 'UW':
            wgt(16, 'wo_img', 's65'); a(f's_mul_i32 s70, s62, {96*6912}'); wgt(20, 'wqkv_img', 's70', 4608); return 'T', RP, 6912, 18
        if t == 'M':
            wgt(16, 'wqkv_img', 's65', 0); wsl(20, WS_H, 's63', 's64'); return 'T', 6912, RP, 18
        if t == 'V':
            wsl(16, WS_U, 's65'); wsl(20, WS_H, 's63', 's64'); return 'T', RP, RP, 18
        if t == 'S':
            self.lin('s70', [('s60', 1056 * RP), ('s61', 128 * RP)])
            a(f's_mov_b32 s71, {128*RP}\ns_cmp_eq_u32 s61, 8\ns_cselect_b32 s71, {32*RP}, s71')
            wsl(16, WS_K, 's70', 's71'); wsl(20, WS_Q, 's63', 's64'); return 'K', RP, RP, 18
        if t == 'PV':
            a(f's_mul_i32 s70, s60, {1056*RP}\ns_add_u32 s70, s70, s65')
            wsl(16, WS_V, 's70'); wsl(20, WS_P, 's63', 's64'); return 'T', RP, RP, 17
        raise ValueError(t)
    def dep_ranges(self, t, aux=False):
        a = self.a
        if t == 'M':
            self.lin('s70', [('s60', 64), ('s62', 6)], F_LN)
            a('s_cmp_eq_u32 s62, 10\ns_cselect_b32 s71, 4, 6'); return [('s70', 's71')]
        if t == 'V':
            self.lin('s70', [('s61', 12)], F_U); return [('s70', 12)]
        if t == 'S':
            a('s_lshl_b32 s70, s61, 2'); self.sdiv('s71', 's70', 3)
            self.lin('s70', [('s60', 99), ('s71', 9)], F_K)
            a(f's_cmp_eq_u32 s61, 8\ns_cselect_b32 s70, {F_T+18}, s70')
            self.lin('s66', [('s60', 99), ('s62', 9)], F_K)
            return [('s70', 18), ('s66', 9)]
        if t == 'PV':
            self.lin('s70', [('s60', 99), ('s62', 9)], F_P); self.lin('s71', [('s60', 99), ('s61', 11)], F_V)
            return [('s70', 9), ('s71', 11)]
        return None
    def sig_index(self, t, aux=False):
        m = {'U': ([('s61', 12), ('s62', 1)], F_U), 'M': ([('s60', 99), ('s62', 9), ('s61', 1)], F_K),
             'V': ([('s60', 99), ('s61', 11), ('s62', 1)], F_V), 'S': ([('s60', 99), ('s62', 9), ('s61', 1)], F_P),
             'T': ([('s61', 1)], F_T), 'VT': ([('s61', 1)], F_VT), 'ST': ([('s60', 17), ('s61', 1)], F_PT),
             'Y': ([('s60', 18), ('s61', 1)], F_Y), 'AT': ([('s61', 1)], F_AT), 'LN': ([('s10', 1)], F_LN)}[t]
        self.lin('s88', [(r, c * FS) for r, c in m[0]] + [('s3', 4)], m[1] * FS)
    def set_bij(self, rows):
        a = self.a
        if rows == 'img':
            self.lin('s63', [('s60', 1056 * RP), ('s62', 96 * RP)])
            a(f's_mov_b32 s64, {96*RP}\ns_cmp_eq_u32 s62, 10\ns_cselect_b32 s64, {64*RP}, s64')
        else:
            self.lin('s63', [('s60', 1056 * RP)], 1024 * RP); a(f's_mov_b32 s64, {32*RP}')
        a('s_lshl_b32 s65, s61, 8')

    LV = dict(rowT=2, inT=3, rowKA=4, rowKB=5, inK=6, inKB=7, vF=8, oA=9, oB=10, vA=24, vB=28, t=20, fd=16)
    def ld_static(self):
        a = self.a; L = self.LV; t = L['t']
        a(f's_sub_u32 s84, s3, 4\ns_mul_i32 s85, s84, {4*CH}\ns_mov_b32 s82, s85\ns_mul_i32 s5, s84, {CH}\ns_sub_u32 s5, {16*CH}, s5\ns_mov_b32 m0, s82')
        a(f'v_bfe_u32 v{L["rowT"]}, v1, 2, 2\nv_lshl_add_u32 v{L["rowT"]}, s84, 4, v{L["rowT"]}')
        a(f'v_lshrrev_b32 v{t}, 4, v1\nv_and_b32 v{t+1}, 3, v1\nv_lshlrev_b32 v{t+1}, 4, v{t+1}\nv_lshl_add_u32 v{L["inT"]}, v{t}, 6, v{t+1}')
        a(f'v_bfe_u32 v{t}, v1, 2, 3\nv_lshl_add_u32 v{L["rowKA"]}, s84, 5, v{t}\ns_mul_i32 s75, s84, 24\nv_add_u32 v{L["rowKB"]}, s75, v{t}')
        a(f'v_bfe_u32 v{t}, v1, 4, 1\nv_mul_u32_u24 v{t}, 48, v{t}\nv_xor_b32 v{t+1}, v{t+1}, v{t}\nv_lshrrev_b32 v{t}, 5, v1\nv_lshl_add_u32 v{L["inK"]}, v{t}, 6, v{t+1}')
        a(f's_and_b32 s75, s84, 1\ns_mul_i32 s75, s75, 48\nv_xor_b32 v{L["inKB"]}, s75, v{L["inK"]}\nv_mov_b32 v{L["vF"]}, 0')
    def order_valu(self, n, dst, t, u0, limit, SW=SW, SD=SD):
        a = self.a; u, dl, sd = t, t + 1, t + 2
        a(f'v_add_u32 v{u}, {u0}, v{n}\nv_mov_b32 v{sd}, {SD}')
        a(f'v_mul_u32_u24 v{dl}, {(1<<16)//SW+1}, v{u}\nv_lshrrev_b32 v{dl}, 16, v{dl}\nv_mul_u32_u24 v{dl}, {SW}, v{dl}\nv_sub_u32 v{u}, v{u}, v{dl}')
        a(f'v_cmp_ge_u32 vcc, {SD}, v{u}\nv_cmp_eq_u32 s[66:67], 0, v{u}\nv_sub_u32 v{u}, v{n}, v{u}\nv_cndmask_b32 v{dl}, 0, -1, vcc')
        a(f'v_cmp_gt_u32 vcc, {0 if "nostag" in OPT else limit}, v{u}\nv_cndmask_b32 v{dl}, v{dl}, v{sd}, s[66:67]\ns_nop 0\nv_cndmask_b32 v{dl}, 0, v{dl}, vcc')
        a(f'v_add_u32 v{dst}, v{n}, v{dl}')
    def pv_order(self, q, t):
        a = self.a
        a(f'v_subrev_u32 v{q}, 1, v{q}\ns_add_u32 s84, s62, {PW}')
        self.order_valu(q, q, t, 's84', 7 - PD, PW, PD)
        a(f's_add_u32 s84, s61, 1\nv_add_u32 v{t}, 1, v{q}\nv_and_b32 v{t}, 8, v{t}\nv_add_u32 v{q}, s84, v{q}\nv_and_b32 v{q}, 7, v{q}\nv_max_u32 v{q}, v{q}, v{t}')
    def ld_setup(self, t):
        a = self.a; L = self.LV; tm = L['t']; vA, vB = L['vA'], L['vB']
        S = 17 if t in ('PV', 'Y') else 18
        cold = t in COLD and 'norot' not in OPT
        if cold:
            self.lin('s84', [('s61', 2), ('s60', 1), ('s62', 3)]); self.sdiv('s75', 's84', 18, 's83')
            a(f'v_add_u32 v{L["oB"]}, s83, v1\nv_subrev_u32 v{tm}, 18, v{L["oB"]}\nv_min_u32 v{L["oB"]}, v{L["oB"]}, v{tm}')
        else:
            a('s_add_u32 s84, s61, s62')
            if t == 'PV':
                a(f'v_lshrrev_b32 v{L["oB"]}, 1, v1'); self.pv_order(L['oB'], tm)
                a(f'v_and_b32 v{tm}, 1, v1\nv_lshl_add_u32 v{L["oB"]}, v{L["oB"]}, 1, v{tm}')
            else:
                w_, d_ = [int(x) for x in os.environ.get('ST_' + t, f'{SW},{SD}').split(',')]
                self.order_valu(1, L['oB'], tm, 's84', 18 - d_, w_, d_)
            if t in XROT:
                a(f's_and_b32 s84, s2, 7\ns_mul_i32 s84, s84, 9\ns_lshr_b32 s84, s84, 2\nv_add_u32 v{L["oB"]}, s84, v{L["oB"]}\nv_subrev_u32 v{tm}, 18, v{L["oB"]}\nv_min_u32 v{L["oB"]}, v{L["oB"]}, v{tm}')
        lay, pA, pB, S2 = self.ld_params(t)
        assert S == S2
        ftB = t in ('S', 'PV')
        a(f's_mov_b32 s7, 2304\ns_mov_b32 s76, {pA}\ns_mov_b32 s77, {pB}\ns_mov_b32 s78, {pA * 64 if lay == "T" else 2048}')
        a(f'v_mul_u32_u24 v{L["oA"]}, s78, v{L["oB"]}\nv_lshlrev_b32 v{L["oB"]}, {11 if ftB else 7}, v{L["oB"]}')
        if lay == 'T':
            a(f'v_mad_u32_u24 v{vA}, v{L["rowT"]}, s76, v{L["inT"]}')
            for m in range(1, 4): a(f'v_add_u32 v{vA+m}, {m*(4*pA - CH)}, v{vA}')
        else:
            a(f's_sub_u32 s84, s3, 4\ns_mul_i32 s84, s84, {2*36864}\ns_add_u32 s84, s84, 64\nv_lshl_add_u32 v{vA}, v1, 4, s84')
            for m in range(1, 4): a(f'v_add_u32 v{vA+m}, {((m>>1)*36864 + (m&1)*1024 - m*CH) & 0xffffffff:#x}, v{vA}')
            a('s_sub_u32 s16, s16, 64\ns_subb_u32 s17, s17, 0\ns_add_u32 s18, s18, 64')
        a(f'v_readlane_b32 s100, v{L["oA"]}, 0\nv_readlane_b32 s101, v{L["oB"]}, 0\ns_mov_b32 s98, 1')
        if ftB:
            for m in range(3):
                a(f's_sub_u32 s84, s3, 4\ns_mul_i32 s84, s84, 3\ns_add_u32 s84, s84, {m}\ns_lshr_b32 s75, s84, 1\ns_mul_i32 s75, s75, {36864 - 2048}\ns_lshl_b32 s84, s84, 10')
                a(f's_add_u32 s84, s84, s75\ns_add_u32 s84, s84, {(64 - m*CH) & 0xffffffff:#x}\nv_lshl_add_u32 v{vB+m}, v1, 4, s84')
            a('s_sub_u32 s20, s20, 64\ns_subb_u32 s21, s21, 0\ns_add_u32 s22, s22, 64')
        else:
            a(f'v_mad_u32_u24 v{vB}, v{L["rowKB"]}, s77, v{L["inKB"]}\nv_xor_b32 v{tm}, 48, v{vB}')
            for m in range(1, 3): a(f'v_add_u32 v{vB+m}, {m*(8*pB - CH)}, v{tm if m & 1 else vB}')
        assert pA % 64 == 0 and pB % 64 == 0
    def min4(self, v):
        for r in range(4): self.a(f'v_xor_b32 v{v+r}, s11, v{v+r}')
        self.a(f'v_or3_b32 v{v}, v{v}, v{v+1}, v{v+2}\nv_or_b32 v{v}, v{v}, v{v+3}')
    def tag(self): self.a('s_waitcnt lgkmcnt(0)\ns_mul_i32 s11, s8, 1664525\ns_add_u32 s11, s11, 1013904223')
    def ld_issue(self, kind='n'):
        a = self.a; L = self.LV
        ld = lambda v, srd, so, m: a(f'buffer_load_dwordx4 v{v+m}, {srd}, {so} offen offset:{m*CH} {LDF} lds') if 'noload' not in OPT else a('s_nop 0')
        if kind == 'y':
            ld(L['vA'], 's[16:19]', 's99', 0)
            a(f's_add_u32 s82, s82, {STAGE}\ns_cmp_ge_u32 s82, {RING}')
            ld(L['vA'], 's[16:19]', 's99', 1)
            a('s_cselect_b32 s82, s85, s82')
            ld(L['vA'], 's[16:19]', 's99', 2); ld(L['vA'], 's[16:19]', 's99', 3)
            a('s_mov_b32 m0, s82\ns_nop 0')
            return
        for m in range(4): ld(L['vA'], 's[16:19]', 's100', m)
        if kind == 'x': a('s_add_u32 s99, s100, s7')
        a(f's_add_u32 m0, s82, s5\nv_readlane_b32 s100, v{L["oA"]}, s98')
        ld(L['vB'], 's[20:23]', 's101', 0)
        a(f's_add_u32 s82, s82, {STAGE}\ns_cmp_ge_u32 s82, {RING}')
        ld(L['vB'], 's[20:23]', 's101', 1)
        a('s_cselect_b32 s82, s85, s82')
        ld(L['vB'], 's[20:23]', 's101', 2)
        a(f's_mov_b32 m0, s82\nv_readlane_b32 s101, v{L["oB"]}, s98\ns_add_u32 s98, s98, 1')
    def ld_subs(self):
        a = self.a; L = self.LV
        loop = lambda l: a(f's_sub_u32 s83, s83, 1\ns_cmp_lg_u32 s83, 0\ns_cbranch_scc1 {l}\ns_setpc_b64 s[86:87]')
        a('L_issue:'); self.ld_issue(); loop('L_issue')
        a('L_steady:\ns_waitcnt vmcnt(14)\ns_barrier')
        if self.instr and 0: a('s_memrealtime s[72:73]\ns_waitcnt lgkmcnt(0)\ns_mov_b32 m0, s90\ns_add_u32 s90, s90, 1\nv_writelane_b32 v13, s72, m0\ns_mov_b32 m0, s82\ns_nop 0')
        self.ld_issue(); loop('L_steady')
        a('L_issue2:'); self.ld_issue('x'); self.ld_issue('y'); a('s_setpc_b64 s[86:87]')
        a('L_steady2:\ns_waitcnt vmcnt(11)\ns_barrier')
        if self.instr: a('s_memrealtime s[72:73]\ns_waitcnt lgkmcnt(0)\ns_mov_b32 m0, s90\ns_add_u32 s90, s90, 1\nv_writelane_b32 v13, s72, m0\ns_mov_b32 m0, s82\ns_nop 0')
        self.ld_issue('x')
        a('s_waitcnt vmcnt(11)\ns_barrier'); self.ld_issue('y'); loop('L_steady2')
        self.poll_sub('L_lpoll', L['vF'], L['fd'])
    def ld_call(self, what, n=None):
        if n is not None:
            if n == 0: return
            self.a(f's_mov_b32 s83, {n}')
        self.a(f's_call_b64 s[86:87], {what}')
    def w4(self, fn):
        lab = self.a.label('w4'); self.a(f's_cmp_lg_u32 s3, 4\ns_cbranch_scc1 {lab}'); fn(); self.a(f'{lab}:')
    def ld_late_start(self, t, aux, k, ready=False):
        a = self.a; L = self.LV
        def poll():
            r = self.dep_ranges(t, aux)
            if r: self.flag_lanes(L['vF'], L['t'], r); a('s_call_b64 s[68:69], L_lpoll')
        self.ld_setup(t)
        if self.flags and t != 'U': self.w4(poll)
        if t != 'U': a('s_barrier')
        self.stamp(k)
        if t in 'MW':
            self.ld_call('L_issue2'); a('s_waitcnt vmcnt(4)\ns_barrier'); self.ld_call('L_issue2'); return
        self.ld_call('L_issue', 2)
        a('s_waitcnt vmcnt(7)\ns_barrier')
        self.ld_call('L_issue', 2)
    def ld_pv_start(self):
        a = self.a; L = self.LV; vt = L['fd']
        st, t, ad, vf = 64, 100, 96, 112
        self.ld_setup('PV')
        self.lin('s70', [('s60', 17 * 1056 * 8), ('s62', 96 * 8)], WS_ST); self.srd(28, 'ws', 's70', 0x100000)
        a(f'v_and_b32 v{vf}, 15, v1\ns_sub_u32 s91, s3, 4\ns_min_u32 s91, s91, 2\ns_lshl_b32 s92, s91, 4\nv_add_lshl_u32 v{t}, v{vf}, s92, 3\nv_lshrrev_b32 v{t+1}, 4, v1\ns_movk_i32 s92, {1056*8}')
        for m in range(2):
            n = ad + 2 * m
            a(f'v_add_u32 v{n}, {4*m}, v{t+1}'); self.pv_order(n, t + 3)
            a(f'v_lshlrev_b32 v{n}, 1, v{n}\nv_mad_u32_u24 v{n}, v{n}, s92, v{t}\nv_add_u32 v{n+1}, s92, v{n}')
        a(f's_lshl_b32 s92, s91, 6\ns_add_u32 s92, s92, {XL+4096}\nv_lshl_add_u32 v{vf}, v{vf}, 2, s92\nv_mul_u32_u24 v{t+1}, 192, v{t+1}\nv_add_u32 v{t+1}, v{t+1}, v{vf}')
        def stats():
            a(f's_mov_b32 s93, {16*1056*8}')
            for m in range(4):
                for jt in range(2): a(f'buffer_load_dwordx2 {vr(st+2*(m*3+jt),2)}, v{ad+m}, s[28:31], 0 offen offset:{384*jt} sc1')
            for jt in range(2): a(f'buffer_load_dwordx2 {vr(st+2*(12+jt),2)}, v{t}, s[28:31], s93 offen offset:{384*jt} sc1')
        if self.flags:
            self.lin('s70', [('s60', 99), ('s62', 9)], F_P); self.lin('s71', [('s60', 99), ('s61', 11)], F_V)
            def first():
                a('s_cmp_eq_u32 s61, 8\ns_cselect_b32 s66, s70, s71'); self.flag_lanes(L['vF'], L['t'], [('s71', 11), ('s66', 1)]); a('s_call_b64 s[68:69], L_lpoll')
            self.w4(first)
            a(f'v_and_b32 v{L["vF"]}, 7, v1\ns_add_u32 s66, s61, 1\nv_add_u32 v{L["vF"]}, s66, v{L["vF"]}\nv_subrev_u32 v{L["t"]}, 9, v{L["vF"]}\nv_min_u32 v{L["vF"]}, v{L["vF"]}, v{L["t"]}\nv_add_lshl_u32 v{L["vF"]}, v{L["vF"]}, s70, 7')
        a('s_barrier')
        self.stamp(10)
        self.ld_call('L_issue', 2)
        if self.flags: a(f'buffer_load_dwordx4 {vr(vt,4)}, v{L["vF"]}, s[12:15], 0 offen sc1')
        a(f's_waitcnt vmcnt({7 + self.flags})\ns_barrier')
        if self.flags:
            a('s_waitcnt vmcnt(0)'); self.min4(vt)
            a(f'v_cmp_ne_u32 vcc, 0, v{vt}\ns_cbranch_vccz L_pv_fast\ns_barrier\ns_call_b64 s[68:69], L_lpoll')
            self.ld_call('L_issue', 2); a('s_branch L_pv_tab\nL_pv_fast:')
        self.ld_call('L_issue', 1); a('s_waitcnt vmcnt(7)\ns_barrier'); self.ld_call('L_issue', 1)
        a('L_pv_tab:')
        stats()
        a('s_waitcnt vmcnt(17)')
        self.stamp(11)
        a('s_barrier'); self.ld_call('L_issue', 1)
        a('s_waitcnt vmcnt(7)')
        mx, o = t + 4, t + 8
        M = [[st + 2 * (m * 3 + jt) for m in range(5)] for jt in range(2)]
        for jt in range(2): a(f'v_max3_f32 v{mx+jt}, v{M[jt][0]}, v{M[jt][2]}, v{M[jt][4]}')
        self.allred(mx, o, 'v_max_f32', 2)
        for m in (0, 2, 4):
            for jt in range(2): a(f'v_sub_f32 v{M[jt][m]}, v{M[jt][m]}, v{mx+jt}')
        for m in (0, 2, 4):
            for jt in range(2): a(f'v_exp_f32 v{M[jt][m]}, v{M[jt][m]}')
        for jt in range(2): a(f'v_mul_f32 v{mx+jt}, v{M[jt][0]}, v{M[jt][0]+1}')
        for m in range(1, 4):
            for jt in range(2): a(f'v_fmac_f32 v{mx+jt}, v{M[jt][m & 2]}, v{M[jt][m]+1}')
        self.allred(mx, o, 'v_add_f32', 2)
        for jt in range(2): a(f'v_fmac_f32 v{mx+jt}, v{M[jt][4]}, v{M[jt][4]+1}')
        for jt in range(2): a(f'v_rcp_f32 v{mx+jt}, v{mx+jt}')
        a('s_nop 0')
        for m in (0, 2, 4):
            for jt in range(2): a(f'v_mul_f32 v{M[jt][m]}, v{M[jt][m]}, v{mx+jt}\nds_write_b32 v{t+1 if m < 4 else vf}, v{M[jt][m]} offset:{m*384+jt*9*192}')
        self.ld_call('L_issue', 1)
        a('s_waitcnt lgkmcnt(0)')
        self.stamp(12)
    def ld_body(self, t, nxt, pre=None, ready=False, k=0):
        a = self.a; L = self.LV; vt = L['fd']
        M = t in 'MW'
        left = {'PV': 11, 'M': 32, 'W': 32}.get(t, 14)
        run = (lambda n: self.ld_call('L_steady2', n // 2)) if M else (lambda n: self.ld_call('L_steady', n))
        def ask(r):
            self.flag_lanes(L['vF'], L['t'], r())
            a(f'buffer_load_dwordx4 {vr(vt,4)}, v{L["vF"]}, s[12:15], 0 offen sc1')
        def chk():
            lab = a.label('dep_ok'); a(f's_waitcnt vmcnt({11 if M else 14})'); self.min4(vt)
            a(f'v_cmp_eq_u32 vcc, 0, v{vt}\ns_cmp_eq_u64 vcc, exec\ns_cbranch_scc1 {lab}')
            a(f's_call_b64 s[68:69], L_lpoll\n{lab}:')
        w = (11, 4) if M else (14, 7)
        drain = f's_waitcnt vmcnt({w[0]})\ns_barrier\ns_waitcnt vmcnt({w[1]})\ns_barrier\ns_waitcnt vmcnt(0)\ns_barrier\ns_barrier'
        if not nxt:
            if t == 'PV':
                def gdep():
                    a(f's_lshl_b32 s66, s61, 1\ns_add_u32 s66, s66, {F_VT}\ns_lshl_b32 s67, s61, 2'); return [('s67', 4), ('s66', 2)]
                def gate():
                    if self.flags: chk()
                    self.lin('s67', [('s60', 4608), ('s65', 2)], WS_GATE); self.srd(24, 'ws', 's67', 4 * 4608 + 512)
                    t_ = L['t']
                    a(f'v_lshrrev_b32 v{t_+1}, 5, v1\nv_mul_u32_u24 v{t_+1}, {4*4608 - 512}, v{t_+1}\nv_lshl_add_u32 v{t_}, v1, 4, v{t_+1}\ns_mov_b32 m0, {GL}\ns_nop 0')
                    a(f'buffer_load_dwordx4 v{t_}, s[24:27], 0 offen sc1 lds\ns_mov_b32 m0, s82')
                run(left - 3)
                if self.flags: self.w4(lambda: ask(gdep))
                run(2); self.w4(gate); run(1)
            else: run(left)
            a(drain)
            return
        if pre: pre()
        if t == 'M' and 'bg' in OPT:
            for n in range(4):
                self.bg_prefetch(n); run(4); left -= 4
        lab = a.label('nx')
        if self.flags:
            run(left - 2)
            ask(lambda: self.dep_ranges(nxt, False))
            run(2)
            a(f's_waitcnt vmcnt({w[0]})'); self.min4(vt)
            a(f'v_cmp_eq_u32 s[94:95], 0, v{vt}')
        else: run(left)
        self.stamp(k)
        self.ld_setup(nxt)
        if self.flags:
            a(f's_cmp_eq_u64 s[94:95], exec\ns_cbranch_scc1 {lab}_g\n{drain}\ns_call_b64 s[68:69], L_lpoll')
            if nxt == 'M': self.ld_call('L_issue2'); a('s_waitcnt vmcnt(4)\ns_barrier'); self.ld_call('L_issue2')
            else: self.ld_call('L_issue', 2); a('s_waitcnt vmcnt(7)\ns_barrier'); self.ld_call('L_issue', 2)
            a(f's_branch {lab}_e\n{lab}_g:')
        if nxt == 'M': self.ld_call('L_steady2', 2)
        elif M:
            for _ in range(2): a('s_waitcnt vmcnt(11)'); self.ld_call('L_steady', 1)
            self.ld_call('L_steady', 2)
        else: self.ld_call('L_steady', 4)
        a(f's_barrier\n{lab}_e:')
    def bg_prefetch(self, n):
        a = self.a
        a('s_lshl_b32 s92, s2, 2\ns_add_u32 s92, s92, s3\ns_sub_u32 s92, s92, 4\nv_lshlrev_b32 v32, 4, v1')
        if n < 2:
            self.srd(24, 'wqkv_txt', 0, SZ['wqkv_txt'])
            a(f's_mul_i32 s92, s92, 10240\ns_add_u32 s92, s92, {5120*n}\ns_min_u32 s92, s92, {SZ["wqkv_txt"]-5120}\ns_add_u32 s93, s92, 4096')
            for i in range(5): a(f'buffer_load_dwordx4 v[36:39], v32, s[24:27], {"s92" if i < 4 else "s93"} offen offset:{1024*(i&3)}')
        else:
            self.srd(24, 'wmod_img' if n == 2 else 'wmod_txt', 0, SZ['wmod_img'])
            a('s_mul_i32 s92, s92, 3\ns_mov_b32 exec_hi, 0xf')
            for i in range(3):
                a(f's_add_u32 s93, s92, {i}\ns_and_b32 s84, s93, 1\ns_lshr_b32 s93, s93, 1\ns_min_u32 s93, s93, 1151\ns_mul_i32 s93, s93, 13824\ns_mul_i32 s84, s84, 1152\ns_add_u32 s93, s93, s84\ns_add_u32 s93, s93, 4608')
                a('buffer_load_dwordx4 v[36:39], v32, s[24:27], s93 offen\nbuffer_load_dwordx4 v[36:39], v32, s[24:27], s93 offen offset:576')
            a('s_mov_b32 exec_hi, -1')

    VA = 2; VB = 3; DT = 4; DK = 5; TA = 6; VROW = 10; VCOL = 11; VONE = 12; VZERO = 13
    ACC = 16; TMP = [64, 112]; FA = [160, 176]; FB = [192, 204]; FREE = 216
    def cp_static(self):
        a = self.a
        a('s_lshr_b32 s90, s3, 1\ns_and_b32 s91, s3, 1\ns_mov_b32 s89, -1\ns_mov_b32 s98, 0\ns_mov_b32 s88, 0')
        g, c, x, y = 196, 197, 198, 199
        a(f'v_lshrrev_b32 v{g}, 4, v1\nv_lshrrev_b32 v{x}, 1, v1\nv_xor_b32 v{x}, v{x}, v1\nv_bfe_u32 v{x}, v{x}, 2, 1\nv_mul_u32_u24 v{x}, 3, v{x}\nv_xor_b32 v{x}, v{x}, v{g}')
        a(f'v_and_b32 v{c}, 7, v1\nv_lshlrev_b32 v{c}, 6, v{c}\nv_lshl_add_u32 v{x}, v{x}, 4, v{c}\nv_bfe_u32 v{c}, v1, 3, 1\nv_mul_u32_u24 v{c}, {CH}, v{c}\nv_add_u32 v{x}, v{x}, v{c}')
        a(f's_mul_i32 s92, s91, {6*CH}\ns_add_u32 s92, s92, {16*CH}\nv_add_u32 v{self.VB}, s92, v{x}')
        a(f's_mul_i32 s93, s90, {8*CH}\ns_sub_u32 s93, s93, s92\nv_mov_b32 v{self.DK}, s93')
        a(f'v_mul_u32_u24 v{g}, {2*CH}, v{g}\nv_bfe_u32 v{c}, v1, 2, 2\nv_lshl_add_u32 v{g}, v{c}, 6, v{g}\nv_and_b32 v{c}, 3, v1\nv_lshl_add_u32 v{g}, v{c}, 3, v{g}')
        a(f's_lshl_b32 s93, s90, 9\nv_add_u32 v{g}, s93, v{g}\nv_sub_u32 v{self.DT}, v{g}, v{self.VB}')
        a(f'v_and_b32 v{x}, 12, v1\nv_bfe_u32 v{y}, v1, 4, 1\ns_mul_i32 s92, s91, 48\nv_add3_u32 v{self.VROW}, v{x}, v{y}, s92')
        a(f'v_and_b32 v{x}, 3, v1\nv_lshlrev_b32 v{x}, 5, v{x}\nv_lshrrev_b32 v{y}, 5, v1\nv_lshl_add_u32 v{x}, v{y}, 4, v{x}\ns_lshl_b32 s92, s90, 7\nv_add_u32 v{self.VCOL}, s92, v{x}')
        a(f'v_bfe_i32 v8, v1, 0, 1\nv_bfe_i32 v9, v1, 1, 1\nv_mov_b32 v{self.VONE}, 1\nv_mov_b32 v{self.VZERO}, 0')
    def reads(self, lay, kk, st):
        B = [f'ds_read_b128 {vr(self.FB[st]+4*jt,4)}, v{self.VB} offset:{jt*2*CH + kk*(512 if lay == "T" else CH)}' for jt in range(3)]
        A = []
        for it in range(4):
            if lay == 'K': A.append(f'ds_read_b128 {vr(self.FA[st]+4*it,4)}, v{self.VA} offset:{it*2*CH + kk*CH}')
            else:
                for h in range(2):
                    A.append(f'ds_read_b64_tr_b16 {vr(self.FA[st]+4*it+2*h,2)}, v{self.VA} offset:{(h+8*kk)*CH + (it>>1)*256 + (it&1)*32}')
        k = 1 if lay == 'K' else 2
        if 'jmaj' in OPT: return A[:k] + B[:1] + A[k:] + B[1:]
        return A[:k] + B + A[k:]
    def to_ft(self):
        self.a(f'v_add_u32 v{self.VB}, v{self.VB}, v14\nv_sub_u32 v{self.DT}, v{self.DT}, v14\nv_mov_b32 v14, 0')
    def mfmas(self, st, acc, zero=False):
        out = []
        order = [(it, (2 - jt if it & 1 and 'snake' in OPT else jt)) for it in range(4) for jt in range(3)]
        if 'jmaj' in OPT: order = [((3 - it if jt & 1 else it), jt) for jt in range(3) for it in range(4)]
        for it, jt in order:
            d = vr(acc + 4 * (it * 3 + jt), 4)
            out.append(f'v_mfma_f32_16x16x32_bf16 {d}, {vr(self.FA[st]+4*it,4)}, {vr(self.FB[st]+4*jt,4)}, {"0" if zero else d}')
        return out
    def advance(self, lay):
        return [f'v_add_u32 v{self.TA}, {STAGE}, v{self.VB}', f'v_add_u32 v{self.TA+1}, {(STAGE-RING) & 0xffffffff:#x}, v{self.VB}',
                f'v_min_u32 v{self.VB}, v{self.TA+1}, v{self.TA}', f'v_add_u32 v{self.VA}, v{self.VB}, v{self.DK if lay == "K" else self.DT}']
    def rebase(self, lay, sign):
        if sign > 0: self.a(self.advance(lay)[3])
    @staticmethod
    def regs_of(txt):
        import re
        out = []
        for m in re.finditer(r'v\[(\d+):(\d+)\]|v(\d+)', txt):
            out.append(set(range(int(m.group(1)), int(m.group(2)) + 1)) if m.group(1) else {int(m.group(3))})
        return out
    def emit_waits(self, seq, pending):
        a = self.a
        for pos, ins in enumerate(seq):
            rs = self.regs_of(ins)
            if ins.startswith('ds_read'):
                a(ins); pending.append(rs[0]); continue
            use = set().union(*rs) if rs else set()
            last = max((k for k, d in enumerate(pending) if d & use), default=-1)
            if last >= 0:
                for nx in [x for x in seq[pos + 1:pos + 12] if x.startswith('v_mfma')][:LOOK]:
                    u2 = set().union(*self.regs_of(nx))
                    last = max(last, max((k for k, d in enumerate(pending) if d & u2), default=-1))
                n = len(pending) - 1 - last
                assert n <= 15
                a(f's_waitcnt lgkmcnt({n})'); del pending[:last + 1]
            a(ins)
        return pending
    def weave(self, mf, rd, other):
        if 'nomfma' in OPT: mf = ['s_nop 0'] * len(mf)
        if 'noread' in OPT: rd = []
        n = len(mf); gaps = [[] for _ in range(n)]
        for k, r in enumerate(rd): gaps[min(n - 1, k * (n - 1) // max(1, len(rd)) if len(rd) < n else k)].append(r)
        return gaps, mf
    def substep(self, mf, rd, tail, other=(), bar=False):
        gaps, mf = self.weave(mf, rd, other)
        n = len(mf); other = list(other)
        for k, x in enumerate(other): gaps[k * n // len(other)].append(x)
        gaps[n - 1] += list(tail)
        seq = []
        if bar and 'bar0' in OPT: seq = ['s_barrier']
        elif bar: gaps[0].insert(0, 's_barrier')
        for m, g in zip(mf, gaps): seq += [m] + g
        return seq
    def stage(self, lay, acc, zero=False, ex0=(), ex1=(), half=False, end=()):
        adv = self.advance(lay)
        if half: return self.substep(self.mfmas(0, acc, zero), [], list(end), adv + list(ex0), bar=True)
        return self.substep(self.mfmas(0, acc, zero), self.reads(lay, 1, 1), adv[2:], adv[:2] + list(ex0)) + \
               self.substep(self.mfmas(1, acc), self.reads(lay, 0, 0), list(end), ex1, bar=True)
    def loop(self, pre, body):
        pend = self.emit_waits(pre, [])
        start = [set(x) for x in pend]
        return start, pend
    def signal_now(self):
        if not self.flags: return
        self.a(f's_waitcnt vmcnt(0)\nv_mov_b32 v255, s11\ns_mov_b64 exec, 1\nbuffer_store_dword v255, v{self.VZERO}, s[12:15], s88 offen sc1\ns_mov_b64 exec, -1')
    ACC2 = 112; ACCT = 64; VO = 240
    def hook(self, lab):
        self.hooks.append(f'{lab}_h:\ns_call_b64 s[68:69], L_hook\ns_branch {lab}_n')
        return f's_cmp_eq_u32 s94, s89\ns_cbranch_scc1 {lab}_h\n{lab}_n:'
    def capture(self, fn):
        keep = self.a; self.a = Asm(); fn(); out = [l.strip() for l in self.a.lines if not l.strip().startswith('s_nop')]; self.a = keep
        return out
    def gemm_sub(self, lab, lay, acc, merged=False, epi=None, npeel=2):
        a = self.a
        nit = 18 if merged else 9
        adv = self.advance(lay); onlyA = lambda kk, st: [r for r in self.reads(lay, kk, st) if f'v{self.VA} ' in r]
        def body(ex, zero=False):
            if merged:
                return self.substep(self.mfmas(0, acc, zero), self.reads(lay, 1, 1), adv[2:], adv[:2] + ex[0]) + \
                       self.substep(self.mfmas(1, acc), onlyA(0, 0), [], ex[1], bar=True) + \
                       self.substep(self.mfmas(0, self.ACC2, zero), onlyA(1, 1), adv[2:], adv[:2] + ex[2]) + \
                       self.substep(self.mfmas(1, self.ACC2), self.reads(lay, 0, 0), [], ex[3], bar=True)
            return self.stage(lay, acc, zero=zero, ex0=ex[0], ex1=ex[1]) + self.stage(lay, acc, ex0=ex[2], ex1=ex[3])
        first = self.reads(lay, 0, 0) if 'noread' not in OPT else []
        a(f'{lab}:')
        self.rebase(lay, 1)
        start = self.emit_waits(first, [])
        for r in range(48): a(f'v_mov_b32 v{acc+r}, 0')
        if merged:
            for r in range(48): a(f'v_mov_b32 v{self.ACC2+r}, 0')
        a(f's_mov_b32 s94, {nit}')
        if epi:
            a(f's_branch {lab}_l\n{ALN}{lab}_w:')
            self.rebase(lay, 1)
            pend = self.emit_waits(first, [])
            n = 4 * npeel
            for k in range(npeel):
                pend = self.emit_waits(body([epi[(4*k+q)*len(epi)//n:(4*k+q+1)*len(epi)//n] for q in range(4)], zero=k == 0), pend)
            assert pend == start
            a(f's_mov_b32 s94, {nit - npeel}')
        a(f'{ALN}{lab}_l:')
        un = UNR if merged else 1
        assert (nit - npeel) % un == 0 and XAT % un == 0
        seq = []
        for u in range(un):
            seq += body([[], [self.hook(lab + 'a')] if u == 0 else [], [], [f's_sub_u32 s94, s94, {un}', 's_cmp_lg_u32 s94, 0'] if u == un - 1 else []])
        pend = self.emit_waits(seq, list(start))
        assert pend == start
        a(f's_cbranch_scc1 {lab}_l')
        a('s_waitcnt lgkmcnt(0)\ns_nop 6\ns_setpc_b64 s[86:87]')
    def epi_rows(self, P=160):
        self.pack(self.ACCT, P); self.xpose(P, self.ACCT)
        for k in range(6): self.a(f'buffer_store_dwordx4 {vr(P+4*k,4)}, v{self.VO+k}, s[24:27], 0 offen sc1')
    def epi_qk(self):
        self.pack(self.ACC2, 160); self.store_ft(160, 28); self.pack(self.ACC, self.ACC2); self.store_ft(self.ACC2, 24)
    def pack(self, acc, dst):
        for jt in range(3):
            for p in range(2):
                Z = dst + 8 * jt + 4 * p
                x = acc + 4 * (2 * p * 3 + jt); y = acc + 4 * ((2 * p + 1) * 3 + jt)
                self.a(f'v_cvt_pk_bf16_f32 v{Z}, v{x}, v{x+1}\nv_cvt_pk_bf16_f32 v{Z+1}, v{x+2}, v{x+3}')
                self.a(f'v_cvt_pk_bf16_f32 v{Z+2}, v{y}, v{y+1}\nv_cvt_pk_bf16_f32 v{Z+3}, v{y+2}, v{y+3}')
    def hook_sub(self):
        a = self.a
        a('L_hook:\ns_mov_b32 s89, -1\ns_bitcmp0_b32 s98, 0\ns_cbranch_scc1 L_hook_x'); self.signal_now()
        a('L_hook_x:\ns_bitcmp0_b32 s98, 1\ns_cbranch_scc1 L_hook_r'); self.x_loads()
        if 'pfv' in OPT:
            self.sdiv('s70', 's62', 6, 's71'); self.lin('s70', [('s71', 192 * RP), ('s3', 48 * RP), ('s65', 1)], WS_U)
            a(f'v_lshrrev_b32 v246, 4, v1\nv_mul_u32_u24 v246, {RP}, v246\nv_and_b32 v247, 15, v1\nv_lshl_add_u32 v246, v247, 4, v246')
            for k in range(12): a(f'buffer_load_dwordx4 v[252:255], v246, s[12:15], s70 offen sc1\ns_add_u32 s70, s70, {4*RP}')
        a('L_hook_r:\ns_setpc_b64 s[68:69]')
        if True:
            a('L_st3:'); self.epi_rows(); a('s_setpc_b64 s[68:69]\nL_st6:'); self.epi_qk(); a('s_setpc_b64 s[68:69]')
    def store_ft(self, P, srd):
        a = self.a; v = [self.VROW, 246, 247]
        a(f'v_add_u32 v{v[1]}, 36864, v{v[0]}\nv_add_u32 v{v[2]}, {2*36864}, v{v[0]}')
        for k in range(6):
            for d in range(2): a(f'v_permlane16_swap_b32 v{P+4*k+d}, v{P+4*k+2+d}')
            a(f'buffer_store_dwordx4 {vr(P+4*k,4)}, v{v[k>>1]}, {sr(srd,4)}, 0 offen offset:{1024*(k&1)} sc1')
    def ft_static(self):
        a = self.a; x, y = 216, 217
        a(f'v_bfe_u32 v{y}, v1, 4, 1\nv_lshlrev_b32 v{y}, 9, v{y}\nv_lshrrev_b32 v{x}, 5, v1\nv_lshl_add_u32 v{y}, v{x}, 8, v{y}\nv_and_b32 v{x}, 15, v1\nv_lshl_add_u32 v{y}, v{x}, 4, v{y}')
        a(f's_mul_i32 s92, s91, {3*36864}\ns_lshl_b32 s93, s90, 11\ns_add_u32 s92, s92, s93\nv_add_u32 v{self.VROW}, s92, v{y}')
        a(f's_mul_i32 s92, s91, {6*CH}\ns_add_u32 s92, s92, {16*CH}\nv_lshl_add_u32 v14, v1, 4, s92\nv_sub_u32 v14, v14, v{self.VB}')
    def ops(self, op, it): self.a(f's_mov_b32 s98, {op}\ns_mov_b32 s89, {it}')
    def xpose(self, P, T, inverse=False, nj=3):
        a = self.a
        def swaps():
            for jt in range(nj):
                for r in (0, 4):
                    for d in range(2): a(f'v_permlane16_swap_b32 v{P+8*jt+r+d}, v{P+8*jt+r+2+d}')
        a('s_nop 1')
        if inverse: swaps()
        for bit, M, qp in ((2, 8, '[1,0,3,2]'), (4, 9, '[2,3,0,1]')):
            lo = [r for r in range(8 * nj) if not r & bit]
            for k, r in enumerate(lo): a(f'v_bfi_b32 v{T+k}, v{M}, v{P+r}, v{P+r+bit}')
            for k, r in enumerate(lo): a(f'v_mov_b32_dpp v{T+12+k}, v{T+k} quad_perm:{qp} row_mask:0xf bank_mask:0xf')
            for k, r in enumerate(lo): a(f'v_bfi_b32 v{P+r}, v{M}, v{T+12+k}, v{P+r}\nv_bfi_b32 v{P+r+bit}, v{M}, v{P+r+bit}, v{T+12+k}')
        if not inverse:
            a('s_nop 1'); swaps()
    def row_offsets(self, vo, t, jump):
        a = self.a
        a(f's_movk_i32 s92, {RP}')
        for k in range(6):
            a(f'v_add_u32 v{t}, {16*(k>>1)+2*(k&1)}, v{self.VROW}\nv_mad_u32_u24 v{vo+k}, v{t}, s92, v{self.VCOL}')
            if jump: a(f'v_lshrrev_b32 v{t}, 5, v{t}\nv_mad_u32_u24 v{vo+k}, v{t}, {jump}, v{vo+k}')
    def store_tile(self, acc, srd, vo, t):
        self.pack(acc, t); self.xpose(t, t + 24)
        for k in range(6): self.a(f'buffer_store_dwordx4 {vr(t+4*k,4)}, v{vo+k}, {sr(srd,4)}, 0 offen sc1')
    def store_sub(self):
        a = self.a
        a('L_store:')
        self.row_offsets(216, 222, 's79')
        self.store_tile(self.ACC, 24, 216, 160)
        a('s_setpc_b64 s[86:87]')
    def allred(self, v, tmp, op, n=3):
        a = self.a
        for sw in ('v_permlane16_swap_b32', 'v_permlane32_swap_b32'):
            for j in range(n): a(f'v_mov_b32 v{tmp+j}, v{v+j}')
            a('s_nop 1')
            for j in range(n): a(f'{sw} v{v+j}, v{tmp+j}')
            for j in range(n): a(f'{op} v{v+j}, v{v+j}, v{tmp+j}')
    def softmax_sub(self):
        a = self.a; acc = self.ACC
        m, o, l, pr = 64, 67, 70, 74
        a('L_softmax:\ns_cmp_lg_u32 s61, 8\ns_cbranch_scc1 L_sm_go\ns_cmp_lg_u32 s90, 0\ns_cbranch_scc1 L_sm_ret')
        for r in range(24, 48): a(f'v_mov_b32 v{acc+r}, 0xff800000')
        a('L_sm_go:')
        allred = self.allred
        R = [[acc + 4 * (it * 3 + jt) + r for it in range(4) for r in range(4)] for jt in range(3)]
        for jt in range(3): a(f'v_max_f32 v{m+jt}, v{R[jt][0]}, v{R[jt][1]}')
        for k in range(2, 16, 2):
            for jt in range(3): a(f'v_max3_f32 v{m+jt}, v{m+jt}, v{R[jt][k]}, v{R[jt][k+1]}')
        allred(m, o, 'v_max_f32')
        a(f's_cmp_eq_u32 s61, 8\ns_cbranch_scc1 L_sm_x\ns_mul_i32 s92, s3, 768\ns_add_u32 s92, s92, {XL}\nv_lshl_add_u32 v{pr}, v1, 2, s92')
        for jt in range(3): a(f'ds_write_b32 v{pr}, v{m+jt} offset:{256*jt}')
        a(f's_lshl_b32 s92, s91, 2\ns_add_u32 s92, s92, {CX+56}\nv_mov_b32 v{pr+1}, s92'); self.lds_arrive(pr + 1, self.VONE)
        a(f's_xor_b32 s92, s3, 2\ns_mul_i32 s92, s92, 768\ns_add_u32 s92, s92, {XL}\nv_lshl_add_u32 v{pr}, v1, 2, s92')
        self.lds_wait4(pr + 1, pr + 2, 2, sleep=False)
        for jt in range(3): a(f'ds_read_b32 v{o+jt}, v{pr} offset:{256*jt}')
        a('s_waitcnt lgkmcnt(0)')
        for jt in range(3): a(f'v_max_f32 v{m+jt}, v{m+jt}, v{o+jt}')
        a(f'L_sm_x:\ns_mov_b32 s92, {f2u(LOG2E * D ** -0.5):#x}')
        nm = 78
        for jt in range(3): a(f'v_mul_f32 v{m+jt}, s92, v{m+jt}\nv_mov_b32 v{nm+2*jt}, s92')
        for jt in range(3): a(f'v_sub_f32 v{nm+2*jt+1}, 0, v{m+jt}')
        a(f'v_add_u32 v246, 36864, v{self.VROW}\nv_add_u32 v247, {2*36864}, v{self.VROW}')
        for jt in range(3):
            for r in R[jt][::2]: a(f'v_pk_fma_f32 {vr(r,2)}, {vr(r,2)}, {vr(nm+2*jt,2)}, {vr(nm+2*jt,2)} op_sel:[0,0,1] op_sel_hi:[1,0,1]')
            for r in R[jt]: a(f'v_exp_f32 v{r}, v{r}')
            P = 160 + 8 * jt
            for k in range(8): a(f'v_cvt_pk_bf16_f32 v{P+k}, v{R[jt][2*k]}, v{R[jt][2*k+1]}')
            a(f'v_pk_add_f32 {vr(nm+2*jt,2)}, {vr(R[jt][0],2)}, {vr(R[jt][2],2)}')
            for p in range(2):
                for d in range(2): a(f'v_permlane16_swap_b32 v{P+4*p+d}, v{P+4*p+2+d}')
                a(f'buffer_store_dwordx4 {vr(P+4*p,4)}, v{(self.VROW, 246, 247)[jt]}, s[4:7], 0 offen offset:{1024*p} sc1')
        for k in range(4, 16, 2):
            for jt in range(3): a(f'v_pk_add_f32 {vr(nm+2*jt,2)}, {vr(nm+2*jt,2)}, {vr(R[jt][k],2)}')
        for jt in range(3): a(f'v_add_f32 v{l+jt}, v{nm+2*jt}, v{nm+2*jt+1}')
        allred(l, o, 'v_add_f32')
        a(f's_mul_i32 s92, s91, 48\nv_add_lshl_u32 v{o}, v1, s92, 3\nv_mov_b32 v{pr}, v{m}\nv_mov_b32 v{pr+1}, v{l}')
        a(f's_mov_b64 exec, 0xffff0000\ns_mov_b32 exec_hi, 0\nv_mov_b32 v{pr}, v{m+1}\nv_mov_b32 v{pr+1}, v{l+1}')
        a(f's_mov_b32 exec_lo, 0\ns_mov_b32 exec_hi, 0xffff\nv_mov_b32 v{pr}, v{m+2}\nv_mov_b32 v{pr+1}, v{l+2}\ns_mov_b32 exec_lo, -1')
        a(f'buffer_store_dwordx2 {vr(pr,2)}, v{o}, s[28:31], 0 offen sc1')
        a('s_mov_b64 exec, -1\nL_sm_ret:\ns_setpc_b64 s[86:87]')
    XR = 216; GT = 240; F = 248; VF = 251; LS = 252
    def pv_sub(self):
        a = self.a; main = self.ACC; tmp = self.TMP; f = self.F; vf = self.VF
        a('L_pv:')
        self.to_ft(); self.rebase('P', 1)
        for r in range(48): a(f'v_mov_b32 v{main+r}, 0')
        for r in range(48): a(f'v_mov_b32 v{tmp[1]+r}, 0')
        a(f'v_and_b32 v{vf}, 15, v1\ns_mul_i32 s92, s91, {9*192}\ns_add_u32 s92, s92, {XL+4096}\nv_lshl_add_u32 v{vf}, v{vf}, 2, s92\nv_mov_b32 v{vf+1}, {CX+64}')
        self.stamp(23)
        a('s_barrier')
        self.stamp(24)
        def fold(tp):
            if 'pk' in OPT:
                return [f'v_pk_fma_f32 {vr(main+4*(it*3+jt)+r,2)}, {vr(tp+4*(it*3+jt)+r,2)}, {vr(f+(jt&2),2)}, {vr(main+4*(it*3+jt)+r,2)} ' + ('op_sel:[0,1,0]' if jt & 1 else 'op_sel_hi:[1,0,1]')
                        for it in range(4) for jt in range(3) for r in (0, 2)]
            return [f'v_fmac_f32 v{main+4*(it*3+jt)+r}, v{tp+4*(it*3+jt)+r}, v{f+jt}' for it in range(4) for jt in range(3) for r in range(4)]
        fread = [f'ds_read_b32 v{f+jt}, v{vf} offset:{64*jt}' for jt in range(3)] + [f'v_add_u32 v{vf}, 192, v{vf}']
        fread = [f'ds_read_b32 v{f+jt}, v{vf+1} offset:{64*jt}' for jt in range(3)] + [f'v_mov_b32 v{vf+1}, v{vf}', f'v_add_u32 v{vf}, 192, v{vf}']
        pend = self.emit_waits(self.reads('P', 0, 0) if 'noread' not in OPT else [], [])
        start = list(pend)
        a(f's_mov_b32 s94, 4\n{ALN}L_pv_l:')
        seq = []
        for p in range(2):
            fl = fold(tmp[p ^ 1])
            seq += self.stage('P', tmp[p], zero=True, ex1=fread + ['s_nop 0'] * 3 + fl[:10])
            seq += self.stage('P', tmp[p], ex0=fl[10:28], ex1=fl[28:] + (['s_sub_u32 s94, s94, 1', 's_cmp_lg_u32 s94, 0'] if p else []))
        seq = [x for x in seq if x != 's_nop 0']
        pend = self.emit_waits(seq, pend)
        assert pend == start
        a('s_cbranch_scc1 L_pv_l')
        self.emit_waits(fread + self.stage('P', tmp[0], zero=True, ex0=fold(tmp[1]), half=True, end=fread), pend)
        self.rebase('P', -1)
        a('s_waitcnt lgkmcnt(0)\ns_nop 5\ns_setpc_b64 s[86:87]')
        self.fold = fold
    def gate_loads(self, gt, va, jts):
        a = self.a
        for n, jt in enumerate(jts):
            a(f'v_lshrrev_b32 v{va}, 4, v1\nv_lshlrev_b32 v{va}, 4, v{va}\ns_lshl_b32 s92, s90, 8')
            if jt is not None:
                a(f's_mul_i32 s93, s91, 48\ns_add_u32 s93, s93, {16*jt}\ns_lshr_b32 s93, s93, 5\ns_mul_i32 s93, s93, 4608\ns_add_u32 s92, s92, s93')
            for it in range(4): a(f'buffer_load_dwordx4 {vr(gt+16*n+4*it,4)}, v{va}, s[4:7], s92 offen offset:{64*it} sc1')
    def resid_epi(self, acc, xr, gt, zr, vo, t):
        a = self.a
        for jt in range(3):
            for it in range(4):
                q = acc + 4 * (it * 3 + jt); o = 8 * jt + 2 * it; u = t + 4 * (it & 1)
                if zr is not None:
                    for d in range(2): a(f'v_lshlrev_b32 v{u+2*d}, 16, v{zr+o+d}\nv_and_b32 v{u+2*d+1}, 0xffff0000, v{zr+o+d}')
                    for r in range(4): a(f'v_add_f32 v{q+r}, v{q+r}, v{u+r}')
                for d in range(2): a(f'v_lshlrev_b32 v{u+2*d}, 16, v{xr+o+d}\nv_and_b32 v{u+2*d+1}, 0xffff0000, v{xr+o+d}')
                for r in range(4): a(f'v_fmac_f32 v{u+r}, v{q+r}, v{gt(jt)+4*it+r}')
                for d in range(2): a(f'v_cvt_pk_bf16_f32 v{xr+o+d}, v{u+2*d}, v{u+2*d+1}')
        self.xpose(xr, t)
        for k in range(6): a(f'buffer_store_dwordx4 {vr(xr+4*k,4)}, v{vo+k}, s[24:27], 0 offen {OUTF}')

    def cp_task(self, t, aux, late, nxt_early, cont=False, join=None, pv=False):
        a = self.a
        def wsl(srd, base, sregs, lim):
            a(f's_mov_b32 s67, {base}')
            for s in sregs: a(f's_add_u32 s67, s67, {s}')
            self.srd(srd, 'ws', 's67', lim)
        JUMP = 1024 * RP
        weave = WEAVE and t == 'U'
        if t in 'UMV':
            two = t == 'M'
            a('s_barrier\ns_barrier' if late and t != 'U' else 's_barrier')
            self.stamp(28 if t == 'U' else 12 if two else 16)
            a(f's_call_b64 s[86:87], {"L_qk" if two else "L_tk"}{"_w" if cont and weave else ""}')
            if join: a(f'{join}:')
            self.stamp(29 if t == 'U' else 13 if two else 17)
            if t == 'U': self.lin('s70', [('s62', 96 * RP)]); wsl(24, WS_U, ['s70', 's65'], 96 * RP)
            elif t == 'M': a('s_lshl_b32 s70, s61, 12'); wsl(24, WS_Q, ['s63', 's70'], 's64'); wsl(28, WS_K, ['s63', 's70'], 's64')
            else: wsl(24, WS_V, ['s63', 's65'], 's64')
            if not (nxt_early and weave): a(f's_call_b64 s[68:69], L_st{6 if two else 3}')
            self.sig_index(t, aux)
            if nxt_early == 'M': self.ops(1 if XE == 2 else 3, XAT)
            elif nxt_early: self.ops(1, 9 - SIGW)
            else: self.signal_now()
            self.stamp(18)
            return
        elif t == 'S':
            self.to_ft()
            self.lin('s70', [('s60', 17 * 1056 * 8), ('s61', 2 * 1056 * 8), ('s90', 1056 * 8), ('s62', 96 * 8)], WS_ST)
            self.sdiv('s71', 's64', RP // 8); self.srd(28, 'ws', 's70', 's71')
            a('s_lshl_b32 s70, s61, 12'); wsl(4, WS_P, ['s63', 's70'], 's64')
            a('s_barrier\ns_barrier' if late else 's_barrier')
            self.stamp(19); a(f's_call_b64 s[86:87], L_kk{"_w" if cont and weave else ""}'); self.stamp(20)
            a('s_call_b64 s[86:87], L_softmax'); self.stamp(21)
            self.sig_index(t, aux)
            self.signal_now()
            return
        elif t == 'PV':
            if not pv: self.x_loads(); a('s_waitcnt vmcnt(0)')
            a('s_barrier'); self.stamp(22)
            a('s_sub_u32 s71, s64, s65'); self.srd(24, 'out', 's79', 's71')
            self.xpose(self.XR, 112, inverse=True)
            a('s_call_b64 s[86:87], L_pv'); self.stamp(25)
            if t == 'PV':
                a(f'v_and_b32 v246, 48, v1\ns_lshl_b32 s92, s90, 8\ns_add_u32 s92, s92, {GL}\nv_add_u32 v246, s92, v246')
                for sp in range(2):
                    for it in range(4): a(f'ds_read_b128 {vr((192, 112, 128)[sp]+4*it,4)}, v246 offset:{512*sp+64*it}')
                for x in self.fold(self.TMP[0]): a(x)
                a('s_waitcnt lgkmcnt(0)')
                for e in range(16): a(f'v_add_f32 v{192+e}, v{192+e}, v{112+e}')
                self.resid_epi(self.ACC, self.XR, lambda jt: 192, None, 240, 160)
    def x_loads(self):
        a = self.a
        self.lin('s79', [('s60', 1024 * RP), ('s62', 96 * RP), ('s65', 1)])
        a('s_sub_u32 s71, s64, s65'); self.srd(32, 'x_img', 's79', 's71')
        for k in range(6): a(f'buffer_load_dwordx4 {vr(self.XR+4*k,4)}, v{self.VO+k}, s[32:35], 0 offen nt')

    GW = 32; GS = 80; GA = 104; GT_ = 120; LX = 140; GC = 204
    def lds_arrive(self, va, vone):
        self.a(f's_mov_b64 exec, 1\nds_add_u32 v{va}, v{vone}\ns_mov_b64 exec, -1')
    def lds_wait4(self, va, vt, n=4, sleep=True):
        a = self.a; lab = a.label('lw')
        a(f's_mov_b32 s74, {SPIN}\n{lab}:\nds_read_b32 v{vt}, v{va}\ns_waitcnt lgkmcnt(0)\nv_cmp_le_u32 vcc, {n}, v{vt}')
        a(f's_cbranch_vccnz {lab}_d\n' + ('s_sleep 1\n' if sleep else '') + f's_sub_u32 s74, s74, 1\ns_cmp_lg_u32 s74, 0\ns_cbranch_scc1 {lab}\n{lab}_d:')
    def gemv_job(self, kind, ls=0):
        a = self.a
        a('s_lshr_b32 s71, s3, 2')
        self.lin('s79', [('s71', 2048)], XL + (8192 if ls else 0))
        self.lin('s80', [('s71', 4)], CX + (0, 8, 40)[ls])
        if kind == 'mod':
            a('s_mov_b32 s71, s81\ns_mov_b32 s81, s92'); self.sdiv('s92', 's81', 3, 's93')
            a('s_lshl_b32 s67, s92, 7\ns_mul_i32 s70, s93, 384\ns_movk_i32 s78, 9216')
            self.lin('s76', [('s93', 4 * 9216), ('s71', 2 * 9216), ('s92', 256)], WS_MODP)
            a('s_mov_b32 s77, 4\ns_mov_b32 s6, -1')
        else:
            a('s_mov_b32 s81, s92'); self.sdiv('s71', 's81', 18, 's92')
            a('s_lshl_b32 s66, s93, 1\ns_add_u32 s66, s66, 1\ns_lshl_b32 s67, s92, 7\ns_add_u32 s67, s67, 4608\ns_movk_i32 s78, 4608\ns_mul_i32 s70, s93, 384')
            self.lin('s6', [('s81', 2 * FS), ('s93', FS)])
            self.lin('s76', [('s93', 4 * 4608), ('s71', 2 * 4608), ('s92', 256)], WS_GATE)
    def gemv_loads(self, W, C, mid={}):
        a = self.a; T = self.GT_
        a('s_lshl_b32 s75, s70, 1')
        for b in range(2):
            for k in range(3): a(f'buffer_load_dwordx2 {vr(C+6*b+2*k,2)}, v{T+2}, s[20:23], s75 offen offset:{2304*b+8*k}')
        a('s_mul_i32 s81, s70, 13824')
        for i in range(12):
            if i in mid: a(mid[i])
            a(f'buffer_load_dwordx4 {vr(W+4*i,4)}, v{T}, s[16:19], s81 offen nt')
            if i < 11: a(f's_add_u32 s81, s81, 13824')
    def gemv_subs(self):
        a = self.a
        W, S, ACC, T, X, C = self.GW, self.GS, self.GA, self.GT_, self.LX, self.GC
        a('L_gemv:\ns_and_b32 s75, s3, 3\ns_mul_i32 s75, s75, 96\ns_add_u32 s70, s70, s75')
        a(f'v_and_b32 v{T}, 7, v1\nv_lshrrev_b32 v{T+1}, 3, v1\nv_lshlrev_b32 v{T}, 4, v{T}\ns_mov_b32 s75, {12*13824}\nv_mad_u32_u24 v{T}, v{T+1}, s75, v{T}\nv_add_u32 v{T}, s67, v{T}')
        a(f'v_mul_u32_u24 v{T+2}, 24, v{T+1}')
        a(f's_cmp_eq_u32 s71, 1\ns_cselect_b32 s16, s{PTR["wmod_txt"]}, s{PTR["wmod_img"]}\ns_cselect_b32 s17, s{PTR["wmod_txt"]+1}, s{PTR["wmod_img"]+1}')
        a(f's_mov_b32 s18, {SZ["wmod_img"]}\ns_mov_b32 s19, 0x20000')
        self.srd(20, 'c', 0, SZ['c'])
        a('s_cmp_eq_u32 s66, 2\ns_cbranch_scc1 L_gv_ret')
        self.gemv_loads(W, C)
        a(f'v_mov_b32 v{T+4}, {CX+32}\nv_mov_b32 v{T+5}, 1'); self.lds_arrive(T + 4, T + 5)
        a('s_cmp_lg_u32 s7, 0x20000\ns_cbranch_scc1 L_gemv2'); self.tag()
        a('L_gemv2:')
        for r in range(16): a(f'v_mov_b32 v{ACC+r}, 0')
        W2 = 140; C2 = 188
        a('s_waitcnt vmcnt(12)\ns_cmp_lg_u32 s66, 3\ns_cbranch_scc1 L_gv_l\ns_add_u32 s70, s70, 384')
        self.gemv_loads(W2, C2)
        a('s_waitcnt vmcnt(18)\nL_gv_l:\ns_cmp_lg_u32 s66, 3')
        q = T + 8; e = 216
        for i in range(12):
            for b in range(2):
                src = C + 6 * b + i // 2
                a(f'v_and_b32 v{S+2*i+b}, 0xffff0000, v{src}' if i & 1 else f'v_lshlrev_b32 v{S+2*i+b}, 16, v{src}')
        for r in range(24): a(f'v_mul_f32 v{e+r}, {f2u(-LOG2E):#x}, v{S+r}')
        for r in range(24): a(f'v_exp_f32 v{e+r}, v{e+r}')
        for r in range(24): a(f'v_add_f32 v{e+r}, 1.0, v{e+r}')
        for r in range(24): a(f'v_rcp_f32 v{e+r}, v{e+r}')
        for r in range(24): a(f'v_mul_f32 v{S+r}, v{S+r}, v{e+r}')
        for i in range(12):
            a(f's_cbranch_scc0 L_gv_w{i}\ns_waitcnt vmcnt({11-i})\nL_gv_w{i}:')
            for d in range(4):
                w = W + 4 * i + d
                a(f'v_lshlrev_b32 v{q+2*d}, 16, v{w}\nv_and_b32 v{q+2*d+1}, 0xffff0000, v{w}')
            for d in range(4):
                a(f'v_pk_fma_f32 {vr(ACC+4*d,2)}, {vr(q+2*d,2)}, {vr(S+2*i,2)}, {vr(ACC+4*d,2)} op_sel_hi:[0,1,1]')
                a(f'v_pk_fma_f32 {vr(ACC+4*d+2,2)}, {vr(q+2*d,2)}, {vr(S+2*i,2)}, {vr(ACC+4*d+2,2)} op_sel:[1,0,0]')
        a('s_cbranch_scc1 L_gv_done\ns_mov_b32 s66, 1\ns_waitcnt vmcnt(0)')
        for r in range(48): a(f'v_mov_b32 v{W+r}, v{W2+r}')
        for r in range(12): a(f'v_mov_b32 v{C+r}, v{C2+r}')
        a('s_branch L_gv_l\nL_gv_done:')
        self.stamp(27)
        for v in range(8): a(f'v_permlane32_swap_b32 v{ACC+v}, v{ACC+v+8}')
        for v in range(8): a(f'v_add_f32 v{ACC+v}, v{ACC+v}, v{ACC+v+8}')
        a('s_nop 1')
        for v in range(4): a(f'v_permlane16_swap_b32 v{ACC+v}, v{ACC+v+4}')
        for v in range(4): a(f'v_add_f32 v{ACC+v}, v{ACC+v}, v{ACC+v+4}')
        a('s_nop 1')
        for v in range(4): a(f'v_add_f32_dpp v{ACC+4+v}, v{ACC+v}, v{ACC+v} row_ror:8 row_mask:0xf bank_mask:0xf')
        RED = XL
        a(f's_and_b32 s81, s3, 3\ns_lshl_b32 s81, s81, 9\ns_add_u32 s81, s81, s79\nv_and_b32 v{T}, 7, v1\nv_lshlrev_b32 v{T}, 6, v{T}\nv_lshrrev_b32 v{T+1}, 4, v1\nv_lshl_add_u32 v{T}, v{T+1}, 4, v{T}\nv_add_u32 v{T}, s81, v{T}')
        a(f'v_mov_b32 v{T+4}, s80\nv_mov_b32 v{T+5}, 1\nv_mov_b32 v{T+6}, 0\nds_write_b128 v{T}, {vr(ACC+4,4)}')
        self.lds_arrive(T + 4, T + 5)
        a(f's_and_b32 s75, s3, 3\ns_cmp_lg_u32 s75, 3\ns_cbranch_scc1 L_gv_ret')
        self.lds_wait4(T + 4, T, 's77')
        a(f'v_lshl_add_u32 v{T}, v1, 3, s79')
        for w in range(4): a(f'ds_read_b64 {vr(ACC+2*w,2)}, v{T} offset:{512*w}')
        a(f'v_lshlrev_b32 v{T}, 2, v1\ns_add_u32 s78, s78, s76\ns_waitcnt lgkmcnt(0)')
        a(f'v_pk_add_f32 {vr(ACC,2)}, {vr(ACC,2)}, {vr(ACC+2,2)}\nv_pk_add_f32 {vr(ACC+4,2)}, {vr(ACC+4,2)}, {vr(ACC+6,2)}\nv_pk_add_f32 {vr(ACC,2)}, {vr(ACC,2)}, {vr(ACC+4,2)}')
        a(f's_and_b32 s75, s11, 255\ns_cmp_eq_u32 s6, -1\ns_cselect_b32 s75, s75, 0\nv_mov_b32 v{T+5}, s11')
        for r in range(2): a(f'v_and_b32 v{ACC+r}, 0xffffff00, v{ACC+r}\nv_or_b32 v{ACC+r}, s75, v{ACC+r}')
        a(f'buffer_store_dword v{ACC}, v{T}, s[12:15], s76 offen sc1\nbuffer_store_dword v{ACC+1}, v{T}, s[12:15], s78 offen sc1')
        if self.flags:
            a('s_cmp_eq_u32 s6, -1\ns_cbranch_scc1 L_gv_ret\ns_waitcnt vmcnt(0)')
            a(f's_mov_b64 exec, 15\nbuffer_store_dword v{T+5}, v{T}, s[12:15], s6 offen sc1\ns_mov_b64 exec, -1')
        a('L_gv_ret:\ns_setpc_b64 s[86:87]')
    def ln(self, gv):
        a = self.a; X = self.LX; F = 32
        a(f'v_subrev_u32 v0, 256, v0\nv_mov_b32 v{self.VONE}, 1\nv_mov_b32 v{self.VZERO}, 0\ns_sub_u32 s3, s3, 4')
        a(f'v_lshrrev_b32 v176, 4, v0\nv_and_b32 v177, 15, v0\nv_mul_u32_u24 v176, {RP}, v176\nv_lshl_add_u32 v176, v177, 4, v176')
        a(f's_and_b32 s83, s10, 127\ns_mul_i32 s83, s83, {16*RP}\ns_cmp_ge_u32 s10, 128')
        a(f's_cselect_b32 s24, s{PTR["x_txt"]}, s{PTR["x_img"]}\ns_cselect_b32 s25, s{PTR["x_txt"]+1}, s{PTR["x_img"]+1}')
        a(f's_mov_b32 s26, {SZ["x_img"]}\ns_cselect_b32 s26, {SZ["x_txt"]}, s26\ns_mov_b32 s27, 0x20000')
        if gv: a(f'v_mov_b32 v14, {CX+32}'); self.lds_wait4(14, 180)
        for i in range(9): a(f'buffer_load_dwordx4 {vr(X+4*i,4)}, v176, s[24:27], s83 offen offset:{i*256} nt')
        self.tag()
        a('s_waitcnt vmcnt(0)')
        for i in range(9):
            for d in range(4):
                a(f'v_lshlrev_b32 v{F+8*i+2*d}, 16, v{X+4*i+d}\nv_and_b32 v{F+8*i+2*d+1}, 0xffff0000, v{X+4*i+d}')
        def rowsum(v, t):
            for r in (8, 4, 2, 1):
                a(f's_nop 1\nv_add_f32_dpp v{t}, v{v}, v{v} row_ror:{r} row_mask:0xf bank_mask:0xf')
                v, t = t, v
            return v
        a0, a1, a2, a3 = 180, 181, 182, 183
        a(f'v_pk_add_f32 {vr(a0,2)}, {vr(F,2)}, {vr(F+2,2)}')
        for e in range(4, 72, 2): a(f'v_pk_add_f32 {vr(a0,2)}, {vr(a0,2)}, {vr(F+e,2)}')
        a(f'v_add_f32 v{a0}, v{a0}, v{a1}')
        v = rowsum(a0, a1)
        a(f'v_mul_f32 v{a0}, {f2u(-1.0/1152):#x}, v{v}')
        for e in range(0, 72, 2): a(f'v_pk_add_f32 {vr(F+e,2)}, {vr(F+e,2)}, {vr(a0,2)} op_sel_hi:[1,0]')
        a(f'v_pk_mul_f32 {vr(a2,2)}, {vr(F,2)}, {vr(F,2)}')
        for e in range(2, 72, 2): a(f'v_pk_fma_f32 {vr(a2,2)}, {vr(F+e,2)}, {vr(F+e,2)}, {vr(a2,2)}')
        a(f'v_add_f32 v{a1}, v{a2}, v{a3}')
        v = rowsum(a1, a2)
        a(f'v_mov_b32 v{a0}, {f2u(1e-5):#x}\nv_fmac_f32 v{a0}, {f2u(1.0/1152):#x}, v{v}\nv_rsq_f32 v{a0}, v{a0}\ns_nop 0')
        for e in range(0, 72, 2): a(f'v_pk_mul_f32 {vr(F+e,2)}, {vr(F+e,2)}, {vr(a0,2)} op_sel_hi:[1,0]')
        self.stamp(15)
        a('s_lshr_b32 s80, s10, 7\ns_lshr_b32 s81, s10, 6\ns_bfe_u32 s75, s10, 0x10001\ns_cmp_eq_u32 s80, 1\ns_cselect_b32 s81, s75, s81')
        self.lin('s76', [('s80', 2 * 9216), ('s81', 9216)], WS_MODP)
        M = 184
        a(f'v_lshlrev_b32 v{a0}, 4, v0\nv_lshlrev_b32 v{a1}, 4, v1')
        a(f's_lshl_b32 s75, s3, 8\nv_add_u32 v{a1}, s75, v{a1}')
        a('s_and_b32 s77, s11, 255\ns_mov_b32 s74, 0x80000\nL_ln_p:')
        for sp in range(3):
            for r in range(4): a(f'v_mov_b32 v{M+12*sp+8+r}, s77')
        for sp in range(3):
            for k in range(2):
                a(f's_add_u32 s75, s76, {sp*4*9216 + k*4096}\nbuffer_load_dwordx4 {vr(M+12*sp+4*k,4)}, v{a0}, s[12:15], s75 offen sc1')
        a('s_mov_b64 exec, 0xffff')
        for sp in range(3): a(f's_add_u32 s75, s76, {sp*4*9216 + 8192}\nbuffer_load_dwordx4 {vr(M+12*sp+8,4)}, v{a1}, s[12:15], s75 offen sc1')
        a('s_mov_b64 exec, -1')
        a('s_waitcnt vmcnt(0)')
        for r in range(36): a(f'v_xor_b32 v{M+r}, s77, v{M+r}')
        a(f'v_or_b32 v{a2}, v{M}, v{M+1}')
        for r in range(2, 36, 2): a(f'v_or3_b32 v{a2}, v{a2}, v{M+r}, v{M+r+1}')
        a(f'v_and_b32 v{a2}, 255, v{a2}\nv_cmp_ne_u32 vcc, 0, v{a2}\ns_cbranch_vccz L_ln_g\ns_sub_u32 s74, s74, 1\ns_cmp_eq_u32 s74, 0\ns_cbranch_scc1 L_ln_g\ns_sleep {PSL}\ns_branch L_ln_p\nL_ln_g:')
        self.stamp(14)
        TAB = XL + 8192
        a(f'v_add_u32 v{a2}, {TAB}, v{a0}\nv_mov_b32 v14, {CX+16}')
        a(f's_and_b32 s75, s10, 63\ns_mul_i32 s76, s75, {16*RP}\ns_mul_i32 s75, s81, {1056*RP}\ns_add_u32 s75, s75, {WS_H}')
        a(f's_cmp_eq_u32 s80, 1\ns_cselect_b32 s75, {WS_HT}, s75\ns_add_u32 s76, s76, s75')
        a('s_lshl_b32 s75, s80, 30\nv_or_b32 v176, s75, v176')
        a('s_waitcnt vmcnt(0)')
        for r in range(0, 12, 2): a(f'v_pk_add_f32 {vr(M+r,2)}, {vr(M+r,2)}, {vr(M+12+r,2)}')
        for r in range(0, 12, 2): a(f'v_pk_add_f32 {vr(M+r,2)}, {vr(M+r,2)}, {vr(M+24+r,2)}')
        for k in range(2): a(f'ds_write_b128 v{a2}, {vr(M+4*k,4)} offset:{k*4096}')
        a(f'v_add_u32 v{a1}, {TAB}, v{a1}\ns_mov_b64 exec, 0xffff\nds_write_b128 v{a1}, {vr(M+8,4)} offset:8192\ns_mov_b64 exec, -1')
        self.lds_arrive(14, self.VONE)
        a(f'v_lshlrev_b32 v{a2}, 5, v177\nv_add_u32 v{a2}, {TAB}, v{a2}')
        self.lds_wait4(14, a3)
        B = [104, 184]
        def rd(i0, p):
            for i in range(i0, i0 + 2):
                if i < 9:
                    k = i - i0
                    for h in range(2):
                        a(f'ds_read_b128 {vr(B[p]+16*k+4*h,4)}, v{a2} offset:{i*512+h*16}\nds_read_b128 {vr(B[p]+16*k+8+4*h,4)}, v{a2} offset:{4608+i*512+h*16}')
        rd(0, 0)
        for n, i0 in enumerate(range(0, 9, 2)):
            p = n & 1
            rd(i0 + 2, p ^ 1)
            left = 4 * max(0, min(9, i0 + 4) - (i0 + 2))
            a(f's_waitcnt lgkmcnt({left})')
            for i in range(i0, min(9, i0 + 2)):
                sh = B[p] + 16 * (i - i0); sc = sh + 8
                for e in range(0, 8, 2): a(f'v_pk_add_f32 {vr(sh+e,2)}, {vr(sh+e,2)}, {vr(F+8*i+e,2)}')
                for e in range(0, 8, 2): a(f'v_pk_fma_f32 {vr(sh+e,2)}, {vr(F+8*i+e,2)}, {vr(sc+e,2)}, {vr(sh+e,2)}')
                for d in range(4): a(f'v_cvt_pk_bf16_f32 v{X+4*i+d}, v{sh+2*d}, v{sh+2*d+1}')
                a(f'buffer_store_dwordx4 {vr(X+4*i,4)}, v176, s[12:15], s76 offen offset:{i*256} sc1')
        a(f's_cmp_eq_u32 s80, 0\ns_cbranch_scc1 L_ln_rm\nv_and_b32 v176, 0xf0, v0\nv_add_u32 v{a1}, v{a0}, v176\nv_mul_u32_u24 v177, 272, v177\nv_add_u32 v176, v177, v176\nv_mov_b32 v14, {CX+24}')
        for i in range(9): a(f'ds_write_b128 v176, {vr(X+4*i,4)} offset:{i*4352}')
        self.lds_arrive(14, self.VONE)
        self.lds_wait4(14, a3)
        for i in range(9): a(f'ds_read_b128 {vr(X+4*i,4)}, v{a1} offset:{i*4352}')
        for i in range(9): a(f's_waitcnt lgkmcnt({8-i})\nbuffer_store_dwordx4 {vr(X+4*i,4)}, v{a0}, s[12:15], s76 offen sc1\ns_add_u32 s76, s76, 4096')
        a('L_ln_rm:')
        self.sig_index('LN')
        self.signal_now()
        a('s_add_u32 s3, s3, 4')

    def idx_main(self):
        a = self.a
        a('s_and_b32 s92, s2, 3\ns_lshr_b32 s93, s2, 3\ns_bfe_u32 s60, s2, 0x10002')
        self.sdiv('s62', 's93', 5, 's61')
        a('s_lshr_b32 s70, s93, 2\ns_and_b32 s71, s93, 3\ns_bitcmp1_b32 s92, 0\ns_cselect_b32 s62, s70, s62\ns_cselect_b32 s61, s71, s61')
        a('s_lshl_b32 s70, s92, 2\ns_lshr_b32 s71, 0x0650, s70\ns_and_b32 s71, s71, 15\ns_add_u32 s62, s62, s71\ns_lshr_b32 s71, 0x5400, s70\ns_and_b32 s71, s71, 15\ns_add_u32 s61, s61, s71')
        a('s_mul_i32 s92, s92, 25\ns_add_u32 s92, s92, s93')
        a('s_cmp_eq_u32 s92, 20\ns_cselect_b32 s61, 4, s61\ns_cselect_b32 s62, 5, s62\ns_cmp_eq_u32 s92, 49\ns_cselect_b32 s62, 4, s62')
        self.set_bij('img')
        seen = set()
        for x in range(4):
            for jj in range(25):
                j, i = divmod(jj, 4 if x & 1 else 5); j += (0x0650 >> 4 * x) & 15; i += (0x5400 >> 4 * x) & 15
                if 25 * x + jj == 20: i, j = 4, 5
                if 25 * x + jj == 49: j = 4
                if 25 * x + jj < 99: seen.add((i, j))
        assert seen == {(i, j) for i in range(9) for j in range(11)}
    def idx_u(self, skip, sid='s2'):
        a = self.a
        a(f's_cmp_ge_u32 {sid}, 112\ns_cbranch_scc1 {skip}\ns_and_b32 s92, {sid}, 7\ns_mul_i32 s92, s92, 14\ns_lshr_b32 s93, {sid}, 3\ns_add_u32 s92, s92, s93\ns_cmp_ge_u32 s92, 108\ns_cbranch_scc1 {skip}')
        self.sdiv('s70', 's92', 36, 's71'); self.sdiv('s62', 's71', 3, 's61')
        a('s_mul_i32 s70, s70, 3\ns_add_u32 s61, s61, s70\ns_mov_b32 s60, 0\ns_lshl_b32 s65, s61, 8')
    AUXOPS = ['end', 'T', 'VT', 'Y', 'AT', 'OT', 'X', 'G', 'OP']
    AUXPROG = [(0, 'X T Y VT'), (18, 'X T Y AT'), (36, 'X T G OP OT'), (42, 'X G T G OP OT'), (51, 'G T G OP OT'), (54, 'G G G')]
    SB = 64; SA = [212, 228]; SBASE = [2, 5]
    def idx_aux(self, t):
        a = self.a
        if t in ('T', 'VT'): a('s_mov_b32 s61, s9')
        elif t in ('OT', 'OP', 'AT'): a(f's_sub_u32 s61, s9, {18 if t == "AT" else 36}')
        else: self.sdiv('s60', 's9', 18, 's61')
        a('s_lshl_b32 s65, s61, 7')
    def sk_loader(self, t):
        a = self.a; L = self.LV; tm = L['t']
        def wgt(name, sreg, const=0):
            a(f's_add_u32 s67, {sreg}, {const}\ns_sub_u32 s66, {SZ[name]}, s67'); self.srd(16, name, 's67', 's66')
        def poll(r): self.flag_lanes(L['vF'], tm, r); a('s_call_b64 s[68:69], L_lpoll')
        lay, pitch, n = 'T', RP, 18
        if t == 'OT':
            self.lin('s70', [('s61', 2)], F_GG + 36)
            if self.flags: self.w4(lambda: poll([('s70', 2)]))
            a('s_barrier')
            if self.flags: self.w4(lambda: poll([(F_AT, 18)]))
            a('s_waitcnt vmcnt(0)\ns_barrier\ns_barrier')
            return
        if t == 'T': wgt('wqkv_txt', 's65'); pitch = 6912; dep = [(F_LN + 128, 4)]
        elif t == 'VT': wgt('wo_img', 's65'); dep = [(F_T + 36, 18)]
        elif t == 'AT': wgt('wqkv_img', 's65', 4608); pitch = 6912; dep = [(F_Y, 36)]
        elif t == 'OP': wgt('wo_txt', 's65')
        elif t == 'Y':
            if self.flags: self.lin('s70', [('s60', 64)], F_LN); poll([('s70', 64)])
            self.lin('s67', [('s60', 1056 * RP), ('s65', 1)], WS_H); self.srd(16, 'ws', 's67', 1056 * RP)
            n = 16; dep = [('s71', 17)]
        v = L['vA']
        a(f's_sub_u32 s84, s3, 4\ns_mov_b32 s76, {pitch}\ns_mul_i32 s80, s84, {2*PS}\ns_lshl_b32 s84, s84, 4\nv_and_b32 v{tm}, 3, v1\nv_lshlrev_b32 v{tm}, 4, v{tm}')
        if lay == 'T':
            a(f'v_lshrrev_b32 v{tm+1}, 5, v1\nv_bfe_u32 v{tm+2}, v1, 2, 2\nv_lshl_add_u32 v{tm+1}, v{tm+1}, 2, v{tm+2}\nv_bfe_u32 v{tm+2}, v1, 4, 1')
        a(f'v_lshl_add_u32 v{tm}, v{tm+2}, 6, v{tm}\nv_add_u32 v{tm+1}, s84, v{tm+1}\nv_mad_u32_u24 v{v}, v{tm+1}, s76, v{tm}\nv_add_u32 v{v+1}, {8*pitch - PS}, v{v}')
        a(f's_mov_b32 s78, {64*pitch if lay == "T" else 2048}\ns_mov_b32 s83, {n}\ns_call_b64 s[86:87], {"L_panel_nt" if t in ("T", "OP") else "L_panel"}')
        if t == 'OP': return
        if t == 'Y':
            def stdep():
                a('s_lshl_b32 s70, s61, 1'); self.sdiv('s71', 's70', 3); a('s_min_u32 s71, s71, 9')
                self.lin('s70', [('s60', 99), ('s71', 9)], F_K)
                a(f's_cmp_eq_u32 s61, 16\ns_cselect_b32 s70, {F_T+18}, s70'); poll([('s70', 18)])
            if self.flags: self.w4(lambda: poll([(F_T, 18)]))
            a('s_barrier')
            if self.flags: self.w4(stdep)
            a('s_waitcnt vmcnt(0)\ns_barrier')
            if self.flags: a(f's_add_u32 s70, s61, {F_T+36}'); poll([('s70', 1)])
            a('s_mov_b32 s83, 1\ns_call_b64 s[86:87], L_panel_l')
            self.lin('s71', [('s60', 17)], F_PT)
        if self.flags: self.w4(lambda: poll(dep))
        a('s_waitcnt vmcnt(0)\ns_barrier\ns_barrier')
    def panel_subs(self):
        a = self.a; v = self.LV['vA']
        for lab, fl in (('L_panel', 'sc1'), ('L_panel_nt', 'nt')):
            a(f'{lab}:\ns_mov_b32 s81, 0\n{lab}_l:\ns_mov_b32 m0, s80\ns_add_u32 s80, s80, {8*PS}')
            a(f'buffer_load_dwordx4 v{v}, s[16:19], s81 offen {fl} lds\nbuffer_load_dwordx4 v{v+1}, s[16:19], s81 offen offset:{PS} {fl} lds')
            a(f's_add_u32 s81, s81, s78\ns_sub_u32 s83, s83, 1\ns_cmp_lg_u32 s83, 0\ns_cbranch_scc1 {lab}_l\ns_setpc_b64 s[86:87]')
    def sk_static(self):
        a = self.a; T, K = self.SBASE; x, y = 208, 209
        a(f'v_lshrrev_b32 v{x}, 4, v1\nv_mul_u32_u24 v{T}, {PS}, v{x}\nv_bfe_u32 v{y}, v1, 2, 2\nv_lshl_add_u32 v{T}, v{y}, 6, v{T}\nv_and_b32 v{y}, 3, v1\nv_lshl_add_u32 v{T}, v{y}, 3, v{T}')
        a(f's_xor_b32 s92, s90, 1\ns_mul_i32 s93, s92, {64*PS}\nv_add_u32 v{K}, s93, v{T}\ns_lshl_b32 s92, s92, 14\ns_mul_i32 s93, s91, {36*1024}\ns_add_u32 s92, s92, s93\nv_lshl_add_u32 v245, v1, 4, s92')
        for b in (T, K):
            for k in (1, 2): a(f'v_add_u32 v{b+k}, {k*48*PS}, v{b}')
        a(f's_mul_i32 s92, s3, {36*1024}\nv_lshl_add_u32 v246, v1, 4, s92\nv_bfe_u32 v{y}, v1, 4, 1\nv_lshlrev_b32 v{y}, 9, v{y}\nv_lshrrev_b32 v{x}, 5, v1\nv_lshl_add_u32 v{y}, v{x}, 8, v{y}')
        a(f'v_and_b32 v{x}, 15, v1\nv_lshl_add_u32 v{y}, v{x}, 4, v{y}\nv_add_u32 v247, s92, v{y}')
        a(f'v_and_b32 v{x}, 12, v1\nv_bfe_u32 v{y}, v1, 4, 1\ns_lshl_b32 s92, s3, 4\nv_add3_u32 v{x}, v{x}, v{y}, s92\nv_mul_u32_u24 v{x}, {RP}, v{x}')
        a(f'v_and_b32 v{y}, 127, v{self.VCOL}\nv_add_u32 v248, v{x}, v{y}\nv_add_u32 v249, {2*RP}, v248')
    def sk_sub(self, lab, lay, fold=False):
        a = self.a; SB = self.SB; nk = 17 if fold else 36
        base = self.SBASE[1 if fold else 0]; vb = 245 if fold else 246
        def rd(kk):
            st = self.SA[kk & 1]; b = base + kk // 12; k = kk % 12
            if lay == 'K': return [f'ds_read_b128 {vr(st+4*t,4)}, v{b} offset:{(8*(k>>1)+2*t+(k&1))*PS}' for t in range(4)]
            return [f'ds_read_b64_tr_b16 {vr(st+4*t+2*h,2)}, v{b} offset:{4*k*PS + h*512 + (t>>1)*256 + (t&1)*32}' for t in range(4) for h in range(2)]
        a(f'{lab}:')
        AH = 17 if fold else SKAH
        def ldb(kk):
            return ([f's_mov_b32 s92, {kk*1024}'] if kk % 4 == 0 else []) + [f'buffer_load_dwordx4 {vr(SB+4*kk,4)}, v{vb}, s[20:23], s92 offen offset:{(kk%4)*1024} sc1']
        if fold: self.sk_factors(lambda: [a(x) for kk in range(AH) for x in ldb(kk)], AH)
        else:
            for kk in range(AH):
                for x in ldb(kk): a(x)
        if fold: self.stamp(25)
        seq = rd(0)
        for kk in range(nk):
            st = self.SA[kk & 1]
            acc = 16 if not fold else (48, 196)[(kk >> 1) & 1]
            zero = kk == 0 if not fold else kk % 2 == 0
            nxt = rd(kk + 1) if kk + 1 < nk else []
            ex = []
            if fold and kk % 2 == 1 and kk > 1 or fold and kk == nk - 1:
                r = (kk >> 1) - 1; pv = (48, 196)[r & 1]
                ex = [(f'v_mul_f32 v{16+e}, v{pv+e}, v{32+r}' if r == 0 else f'v_fmac_f32 v{16+e}, v{pv+e}, v{32+r}') for e in range(16)]
                if kk == nk - 1: ex = ['s_nop 7'] + ex
            seq.append(f's_waitcnt vmcnt({min(AH, nk-kk)-1})')
            for t in range(4):
                d = vr(acc + 4 * t, 4)
                seq.append(f'v_mfma_f32_16x16x32_bf16 {d}, {vr(st+4*t,4)}, {vr(SB+4*kk,4)}, {"0" if zero else d}')
                seq += nxt[t * len(nxt) // 4:(t + 1) * len(nxt) // 4]
            seq += ex
            if kk + AH < nk: seq += ldb(kk + AH)
        self.emit_waits(seq, [])
        a('s_nop 7\ns_setpc_b64 s[86:87]')
    def sk_factors(self, mid, nmid):
        a = self.a; st = 208; m = 250
        dst = lambda r: st + 2 * r if r < 16 else 252
        a(f'v_and_b32 v{m}, 15, v1\ns_lshl_b32 s92, s91, 4\nv_add_lshl_u32 v{m}, v{m}, s92, 3\ns_mul_i32 s93, s90, {8*1056*8}\nv_add_u32 v{m+1}, s93, v{m}\ns_sub_u32 s93, {8*1056*8}, s93\nv_add_u32 v{m+4}, s93, v{m}')
        for r in range(17): a(f's_mov_b32 s92, {(r & 7 if r < 16 else 16)*1056*8}\nbuffer_load_dwordx2 {vr(dst(r),2)}, v{m + (4, 1, 0)[r >> 3]}, s[28:31], s92 offen sc1')
        mid()
        a(f's_waitcnt vmcnt({nmid})\nv_max3_f32 v{m}, v{dst(0)}, v{dst(1)}, v{dst(2)}')
        for r in range(3, 17, 2): a(f'v_max3_f32 v{m}, v{m}, v{dst(r)}, v{dst(r+1)}')
        for r in range(17): a(f'v_sub_f32 v{dst(r)}, v{dst(r)}, v{m}')
        for r in range(17): a(f'v_exp_f32 v{dst(r)}, v{dst(r)}')
        a(f'v_mul_f32 v{m+1}, v{dst(0)}, v{dst(0)+1}')
        for r in range(1, 17): a(f'v_fmac_f32 v{m+1}, v{dst(r)}, v{dst(r)+1}')
        a(f'v_rcp_f32 v{m+1}, v{m+1}\ns_nop 0')
        for r in list(range(8)) + [16]: a(f'v_mul_f32 v{32+r if r < 16 else m}, v{dst(r)}, v{m+1}')
    def sk_pack(self, P=64):
        for t in range(4): self.a(f'v_cvt_pk_bf16_f32 v{P+2*t}, v{16+4*t}, v{17+4*t}\nv_cvt_pk_bf16_f32 v{P+2*t+1}, v{18+4*t}, v{19+4*t}')
    def sk_epi_subs(self):
        a = self.a
        a('L_sk_ft:'); self.sk_pack(); a('s_nop 1')
        for r in (0, 4):
            for d in range(2): a(f'v_permlane16_swap_b32 v{64+r+d}, v{66+r+d}')
        for p in range(2): a(f'buffer_store_dwordx4 {vr(64+4*p,4)}, v247, s[12:15], s70 offen offset:{1024*p} sc1')
        a('s_setpc_b64 s[68:69]')
        a('L_sk_row:'); self.sk_pack(72); self.xpose(72, 80, nj=1)
        a(f's_lshr_b32 s92, s3, 1\ns_mul_i32 s92, s92, {1024*RP}\ns_add_u32 s92, s92, s71')
        for p in range(2): a(f'buffer_store_dwordx4 {vr(72+4*p,4)}, v{248+p}, s[12:15], s92 offen sc1')
        a('s_setpc_b64 s[68:69]')
    def st_compute(self):
        a = self.a; lab = 'L_std'
        ft = lambda base, bmul=0: self.lin('s70', [('s61', 2048), ('s60', bmul)], base)
        self.lin('s67', [('s60', FTS // 2)], WS_QT); self.srd(20, 'ws', 's67', FTS // 2)
        self.lin('s67', [('s60', 1056 * RP), ('s61', 64 * RP)], WS_K)
        a(f's_mov_b32 s66, {64*RP}\ns_cmp_eq_u32 s61, 16\ns_cselect_b32 s66, {32*RP}, s66'); self.srd(16, 'ws', 's67', 's66')
        self.lin('s67', [('s60', 17 * 1056 * 8), ('s61', 1056 * 8)], WS_ST + 1024 * 8); self.srd(28, 'ws', 's67', 0x100000)
        A0 = 48
        a(f's_mul_i32 s92, s3, 9216\nv_lshl_add_u32 v{A0}, v1, 4, s92')
        for t in range(1, 4): a(f'v_add_u32 v{A0+t}, {t*36864}, v{A0}')
        a(f's_and_b32 s92, s3, 1\ns_mul_i32 s93, s92, 36864\nv_add_u32 v{A0+4}, s93, v{A0}\ns_sub_u32 s93, 36864, s93\nv_add_u32 v{A0+5}, s93, v{A0}')
        R0 = 136 * PS
        a(f's_lshl_b32 s92, s92, 13\ns_add_u32 s92, s92, {R0}\nv_lshl_add_u32 v{A0+6}, v1, 4, s92\nv_xor_b32 v{A0+7}, s92, v{A0+6}\ns_sub_u32 s92, {2*R0 + 8192}, s92\nv_lshl_add_u32 v{A0+7}, v1, 4, s92\nv_mov_b32 v{A0+8}, {CX+48}\nv_mov_b32 v{A0+9}, {CX+52}')
        B = lambda kk, j: 64 + 8 * kk + 4 * j
        a('s_barrier')
        for kk in range(9):
            if kk % 4 == 0: a(f's_mov_b32 s92, {kk*1024}')
            for j in range(2): a(f'buffer_load_dwordx4 {vr(B(kk,j),4)}, v{A0+4+j}, s[20:23], s92 offen offset:{(kk%4)*1024} sc1')
        a(f's_barrier\ns_cmp_eq_u32 s61, 17\ns_cbranch_scc1 {lab}_x')
        if not self.do_st: a(f's_branch {lab}_x')
        self.stamp(18)
        A = lambda kk, t: 136 + 16 * (kk % 6) + 4 * t
        def ld(kk):
            if kk % 4 == 0: a(f's_mov_b32 s92, {kk*1024}')
            for t in range(4): a(f'buffer_load_dwordx4 {vr(A(kk,t),4)}, v{A0+t}, s[16:19], s92 offen offset:{(kk%4)*1024} sc1')
        for kk in range(6): ld(kk)
        for kk in range(9):
            a(f's_waitcnt vmcnt({4*(min(9, kk+6)-kk-1)})')
            for j in range(2):
                for t in range(4):
                    d = vr(16 + 16 * j + 4 * t, 4)
                    a(f'v_mfma_f32_16x16x32_bf16 {d}, {vr(A(kk,t),4)}, {vr(B(kk,j),4)}, {"0" if kk == 0 else d}')
            if kk + 6 < 9: ld(kk + 6)
        self.stamp(24)
        a(f's_nop 7\ns_cmp_lt_u32 s3, 2\ns_cbranch_scc1 {lab}_o')
        for q in range(8): a(f'ds_write_b128 v{A0+6}, {vr(16+4*q,4)} offset:{1024*q}')
        self.lds_arrive(A0 + 8, self.VONE)
        a(f's_branch {lab}_e\n{lab}_o:')
        self.lds_wait4(A0 + 8, 60, 2)
        for q in range(8): a(f'ds_read_b128 {vr(64+4*q,4)}, v{A0+6} offset:{1024*q}')
        a('s_waitcnt lgkmcnt(0)')
        for e in range(32): a(f'v_add_f32 v{16+e}, v{16+e}, v{64+e}')
        for q in range(4): a(f'ds_write_b128 v{A0+6}, {vr(32+4*q,4)} offset:{1024*q}')
        self.lds_arrive(A0 + 9, self.VONE)
        self.lds_wait4(A0 + 9, 60, 2)
        for q in range(4): a(f'ds_read_b128 {vr(64+4*q,4)}, v{A0+7} offset:{1024*q}')
        a('s_waitcnt lgkmcnt(0)')
        for e in range(16): a(f'v_add_f32 v{16+e}, v{16+e}, v{64+e}')
        a(f's_cmp_lg_u32 s61, 16\ns_cbranch_scc1 {lab}_m')
        for e in range(8, 16): a(f'v_mov_b32 v{16+e}, 0xff800000')
        a(f'{lab}_m:\nv_max_f32 v32, v16, v17')
        for e in range(2, 16, 2): a(f'v_max3_f32 v32, v32, v{16+e}, v{17+e}')
        self.allred(32, 34, 'v_max_f32', 1)
        a(f's_mov_b32 s92, {f2u(LOG2E * D ** -0.5):#x}\nv_mul_f32 v32, s92, v32')
        for e in range(16): a(f'v_fma_f32 v{16+e}, v{16+e}, s92, -v32')
        for e in range(16): a(f'v_exp_f32 v{16+e}, v{16+e}')
        ft(WS_PT, FTS // 2); a('s_call_b64 s[68:69], L_sk_ft\nv_add_f32 v33, v16, v17')
        for e in range(2, 16): a(f'v_add_f32 v33, v33, v{16+e}')
        self.allred(33, 34, 'v_add_f32', 1)
        a('s_lshl_b32 s92, s3, 7\nv_lshlrev_b32 v34, 3, v1\ns_mov_b64 exec, 0xffff\nbuffer_store_dwordx2 v[32:33], v34, s[28:31], s92 offen sc1\ns_mov_b64 exec, -1')
        a(f'{lab}_e:')
        self.sig_index('ST'); self.signal_now()
        self.stamp(19)
        a(f'{lab}_x:')
    def sk_compute(self, t):
        a = self.a
        half = t == 'Y'
        if half: self.st_compute()
        lab = a.label('sk')
        src = {'T': WS_HT, 'VT': WS_VT, 'ST': WS_QT, 'Y': WS_PT, 'AT': WS_Y, 'OT': WS_AT}[t]
        if half:
            self.lin('s67', [('s60', FTS // 2)], src)
            self.srd(20, 'ws', 's67', FTS // 2)
            self.lin('s67', [('s60', 17 * 1056 * 8), ], WS_ST + 1024 * 8); self.srd(28, 'ws', 's67', 0x100000)
        else: self.srd(20, 'ws', src, FTS)
        ft = lambda base, bmul=0: self.lin('s70', [('s61', 2048), ('s60', bmul)], base)
        if t == 'OT':
            a(f's_add_u32 s70, s65, {SZ["x_img"]}\ns_sub_u32 s71, {64*RP}, s65')
            self.srd(24, 'out', 's70', 's71'); self.srd(32, 'x_txt', 's65', 's71')
            a('s_barrier')
            for p in range(2): a(f'buffer_load_dwordx4 {vr(48+4*p,4)}, v{248+p}, s[32:35], 0 offen')
            a('s_lshr_b32 s71, s3, 1'); self.lin('s70', [('s71', 4608), ('s61', 256)], WS_GATE + 2 * 4608); a('v_and_b32 v250, 48, v1')
            for sp in range(2):
                for it in range(4): a(f'buffer_load_dwordx4 {vr((32, 160, 176)[sp]+4*it,4)}, v250, s[12:15], s70 offen offset:{64*it} sc1')
                a(f's_add_u32 s70, s70, {4*4608}')
            a('s_waitcnt vmcnt(0)')
            for e in range(16): a(f'v_add_f32 v{32+e}, v{32+e}, v{160+e}')
            self.xpose(48, 64, inverse=True, nj=1)
        a('s_barrier')
        self.stamp({'T': 20, 'Y': 22}.get(t, 16))
        if half and not self.do_y: a(f's_branch {lab}_s')
        if t == 'AT':
            self.lin('s70', [('s3', 18 * 4096), ('s61', 4096)], WS_Z); a('v_lshlrev_b32 v250, 4, v1')
            for it in range(4): a(f'buffer_load_dwordx4 {vr(32+4*it,4)}, v250, s[12:15], s70 offen offset:{1024*it} sc1')
        a(f's_call_b64 s[86:87], {"L_sky" if t == "Y" else "L_skt"}')
        if half:
            a(f's_lshl_b32 s92, s91, 12\ns_add_u32 s92, s92, {XL+8192}\nv_lshl_add_u32 v64, v1, 4, s92\ns_cmp_lt_u32 s3, 2\ns_cbranch_scc1 {lab}_o')
            for q in range(4): a(f'ds_write_b128 v64, {vr(16+4*q,4)} offset:{1024*q}')
            a(f's_waitcnt lgkmcnt(0)\ns_branch {lab}_s\n{lab}_o:\ns_barrier')
            for q in range(4): a(f'ds_read_b128 {vr(68+4*q,4)}, v64 offset:{1024*q}')
            a('s_waitcnt lgkmcnt(0)')
            for e in range(16): a(f'v_add_f32 v{16+e}, v{16+e}, v{68+e}')
        else: a('s_barrier')
        self.stamp({'T': 21, 'Y': 23}.get(t, 17))
        if t == 'T':
            a(f's_cmp_ge_u32 s61, 18\ns_cbranch_scc1 {lab}_k'); ft(WS_QT); a(f's_call_b64 s[68:69], L_sk_ft\ns_branch {lab}_e\n{lab}_k:')
            a(f's_cmp_ge_u32 s61, 36\ns_cbranch_scc1 {lab}_v\ns_lshr_b32 s71, s3, 1')
            self.lin('s70', [('s61', 2048), ('s71', 1024 * RP)], WS_K + 1024 * RP - 18 * 2048); a(f's_call_b64 s[68:69], L_sk_ft\ns_branch {lab}_e\n{lab}_v:')
            ft(WS_VT - 36 * 2048); a(f's_call_b64 s[68:69], L_sk_ft\ns_add_u32 s71, s65, {WS_H + 1024*RP - 4608}')
            a('s_call_b64 s[68:69], L_sk_row')
        elif t == 'VT': a(f's_add_u32 s71, s65, {WS_V + 1024*RP}\ns_call_b64 s[68:69], L_sk_row')
        elif t == 'AT':
            for e in range(16): a(f'v_add_f32 v{16+e}, v{16+e}, v{32+e}')
            ft(WS_AT); a('s_call_b64 s[68:69], L_sk_ft')
        elif t == 'Y':
            ft(WS_Y, FTS // 2); a('s_call_b64 s[68:69], L_sk_ft')
            for e in range(16): a(f'v_mul_f32 v{48+e}, v{48+e}, v250')
            self.lin('s70', [('s60', 36 * 4096), ('s3', 18 * 4096), ('s61', 4096)], WS_Z); a('v_lshlrev_b32 v250, 4, v1')
            for it in range(4): a(f'buffer_store_dwordx4 {vr(48+4*it,4)}, v250, s[12:15], s70 offen offset:{1024*it} sc1')
        elif t == 'OT':
            for it in range(4):
                for d in range(2): a(f'v_lshlrev_b32 v{64+2*d}, 16, v{48+2*it+d}\nv_and_b32 v{65+2*d}, 0xffff0000, v{48+2*it+d}')
                for r in range(4): a(f'v_fmac_f32 v{64+r}, v{16+4*it+r}, v{32+4*it+r}')
                for d in range(2): a(f'v_cvt_pk_bf16_f32 v{48+2*it+d}, v{64+2*d}, v{65+2*d}')
            self.xpose(48, 64, nj=1)
            for p in range(2): a(f'buffer_store_dwordx4 {vr(48+4*p,4)}, v{248+p}, s[24:27], 0 offen sc1')
        if half: a(f's_branch {lab}_e\n{lab}_s:\ns_barrier')
        a(f'{lab}_e:')
        if t != 'OT': self.sig_index(t); self.signal_now()
        else: a(f's_add_u32 s92, s61, s3\ns_cmp_lg_u32 s92, 0\ns_cbranch_scc1 {lab}_t\nv_mov_b32 v255, s11\ns_mov_b32 s92, {WS_E}\ns_mov_b64 exec, 1\nbuffer_store_dword v255, v{self.VZERO}, s[12:15], s92 offen sc1\ns_mov_b64 exec, -1\n{lab}_t:')
    def aux_interp(self, side, only):
        a = self.a; p = f'L_{side}x'; self.do_st = only is None or 'ST' in only; self.do_y = only is None or 'Y' in only
        a('s_mov_b32 s8, 0\ns_mov_b32 s60, 0\ns_mov_b32 s10, 0\ns_sub_u32 s62, s9, 42\ns_sub_u32 s92, s9, 18\ns_cmp_lt_u32 s9, 42\ns_cselect_b32 s62, s92, s62')
        if side == 'c': self.sk_static()
        for lim, prog in self.AUXPROG:
            ops = [o for o in prog.split() if only is None or o in only or (o == 'Y' and 'ST' in only) or (o == 'OP' and 'OT' in only)]
            code = sum(self.AUXOPS.index(o) << (4 * k) for k, o in enumerate(ops))
            a(f's_cmp_ge_u32 s9, {lim}\ns_cselect_b32 s8, {code}, s8')
        a(f'{p}_next:\ns_and_b32 s92, s8, 15\ns_lshr_b32 s8, s8, 4')
        for k, o in enumerate(self.AUXOPS[1:], 1): a(f's_cmp_eq_u32 s92, {k}\ns_cbranch_scc1 {p}_{o}')
        a('s_branch L_fin')
        for k, o in enumerate(self.AUXOPS[1:], 1):
            a(f'{p}_{o}:')
            if o == 'P':
                a('s_sub_u32 s84, s9, 42'); self.prefetch_qk(0, PFR); a('s_waitcnt vmcnt(0)')
            elif o in 'XG':
                if o == 'G':
                    a(f's_barrier\ns_lshl_b32 s92, s62, 1\ns_add_u32 s92, s92, {int(side == "l")}\ns_add_u32 s10, s10, 1')
                    a('s_cmp_lt_u32 s62, 12\ns_cselect_b32 s93, 24, 2\ns_add_u32 s62, s62, s93\ns_cmp_ge_u32 s92, 36\ns_cselect_b32 s93, 1, 0\ns_mul_i32 s75, s93, 36\ns_sub_u32 s92, s92, s75')
                    self.gemv_job('gate', 2); a('s_lshl_b32 s77, s10, 2')
                else:
                    g = int(side == 'l')
                    a(f's_lshl_b32 s92, s9, 1\ns_add_u32 s92, s92, {6 + g}\ns_add_u32 s93, s9, 48\ns_cmp_lt_u32 s9, 42\ns_cselect_b32 s92, s93, s92\ns_mov_b32 s81, 1\ns_mov_b32 s66, 2')
                    if g: a(f's_cbranch_scc0 {p}_X2\ns_barrier\ns_branch {p}_next\n{p}_X2:')
                    self.gemv_job('mod', 1)
                a('s_call_b64 s[86:87], L_gemv')
                if o == 'X':
                    self.gemv_loads(self.GW, self.GC); a('s_call_b64 s[86:87], L_gemv2\ns_barrier')
            else:
                self.idx_aux(o)
                if side == 'l': self.sk_loader(o)
                elif o != 'OP': self.sk_compute(o)
            self.stamp(k + 3)
            a(f's_branch {p}_next')
        if side == 'c':
            self.sk_sub('L_skt', 'T'); self.sk_sub('L_sky', 'T', True); self.sk_epi_subs()
        else: self.panel_subs()
    def kernel(self, name, only=None):
        a = self.a
        has = lambda t: only is None or t in only
        kernel_head(a, name)
        if self.instr: a('s_memrealtime s[94:95]')
        if DIAG: a('s_memrealtime s[72:73]\ns_memrealtime s[96:97]')
        a('s_load_dwordx8 s[36:43], s[0:1], 0\ns_load_dwordx8 s[44:51], s[0:1], 32\ns_load_dwordx8 s[52:59], s[0:1], 64')
        a('s_cmp_ge_u32 s2, 256\ns_cbranch_scc1 L_end')
        a('s_getpc_b64 s[6:7]\nL_pc:\ns_lshr_b32 s92, s2, 3\ns_lshl_b32 s92, s92, 11\nv_subrev_u32 v2, 384, v0\nv_lshl_add_u32 v3, v2, 4, s92')
        a('s_mov_b32 s4, s6\ns_mov_b32 s5, s7\ns_mov_b32 s6, L_end - L_pc\ns_mov_b32 s7, 0x20000\nv_cmp_gt_u32 vcc, 128, v2')
        a('s_cbranch_vccz L_nocpf\nbuffer_load_dwordx4 v[248:251], v3, s[4:7], 0 offen\nL_nocpf:')
        a('v_lshrrev_b32 v1, 6, v0\nv_mov_b32 v15, 0\nv_readfirstlane_b32 s3, v1\nv_and_b32 v1, 63, v0')
        a(f'v_lshlrev_b32 v2, 2, v1\nv_add_u32 v2, {CX}, v2\nds_write_b32 v2, v15')
        a('s_sub_u32 s9, s2, 200\ns_sub_u32 s10, s2, 112\ns_cmp_ge_u32 s2, 220\ns_cselect_b32 s81, 1, 0\ns_mul_i32 s92, s81, 108\ns_sub_u32 s92, s10, s92\ns_mov_b32 s66, 1')
        a('s_lshr_b32 s93, s3, 2\ns_mul_i32 s93, s93, 14\ns_add_u32 s92, s92, s93')
        self.gemv_job('mod')
        for i, g in ((195, 128), (199, 129), (240, 83), (241, 87), (242, 200), (243, 200), (254, 130), (255, 131)):
            a(f's_cmp_eq_u32 s2, {i}\ns_cselect_b32 s10, {g}, s10')
        a(f's_waitcnt lgkmcnt(0)\ns_load_dword s8, {sr(PTR["ws"],2)}, {WS_E}\ns_barrier')
        self.srd(12, 'ws', 0, SZ['ws'])
        self.stamp(0)
        if self.instr: a('v_writelane_b32 v15, s94, 30')
        self.prefetch_u()
        a('s_cmp_ge_u32 s3, 4\ns_cbranch_scc1 L_loader')
        main = ['M', 'V', 'S']
        self.hooks = []; self.gate_job = False
        if 'dup' in OPT: main = ['V', 'V', 'V', 'V', 'S']
        elif 'vs' in OPT: main = ['V', 'M', 'V', 'M', 'S']
        else: main = [t for t in main if has(t)]
        chain = only is None or 'dup' in OPT or 'vs' in OPT
        def spare(): a('s_cmp_ge_u32 s92, 99\ns_cbranch_scc1 L_fin')
        if 'late' in OPT: self.cp_static(); self.tag()
        if has('GV'): a('s_cmp_lt_u32 s2, 112\ns_cbranch_scc1 L_c_nogv\ns_call_b64 s[86:87], L_gemv\nL_c_nogv:')
        if self.instr:
            a('s_and_b32 s84, s2, 0xfffffffb\ns_cmp_lg_u32 s84, 195\ns_cbranch_scc1 L_notrace\ns_cmp_lg_u32 s3, 1\ns_cbranch_scc1 L_notrace\ns_mov_b32 s84, 0')
            a('L_trace:\ns_memrealtime s[72:73]\ns_memtime s[96:97]\ns_waitcnt lgkmcnt(0)\ns_mov_b32 m0, s84\ns_nop 4\nv_writelane_b32 v16, s72, m0\nv_writelane_b32 v17, s96, m0\ns_sleep 24\ns_add_u32 s84, s84, 1\ns_cmp_lt_u32 s84, 64\ns_cbranch_scc1 L_trace')
            a(f's_lshl_b32 s72, s2, 9\ns_add_u32 s72, s72, {WS_DBG + (1 << 20)}\nv_lshlrev_b32 v14, 3, v1\nbuffer_store_dwordx2 v[16:17], v14, s[12:15], s72 offen\ns_endpgm\nL_notrace:')
        self.stamp(1)
        self.help_u()
        if 'late' not in OPT: self.cp_static(); self.tag()
        a('s_mov_b32 s7, 0')
        a('s_mov_b32 s60, 0\ns_mov_b32 s62, 0\ns_mov_b32 s64, 0\ns_mov_b32 s65, 0')
        self.stamp(3)
        body = self.a
        subs = Asm(); subs.uid = 10000; self.a = subs
        self.gemv_subs();
        self.chain = chain; er = self.capture(lambda: self.epi_rows(216))
        self.gemm_sub('L_tk', 'T', self.ACCT); self.gemm_sub('L_qk', 'T', self.ACC, True, epi=er if WEAVE else None, npeel=NPEEL); self.hook_sub(); self.gemm_sub('L_kk', 'K', self.ACC); self.softmax_sub(); self.pv_sub()
        for h in self.hooks: subs(h)
        lsubs = Asm(); lsubs.uid = 20000; self.a = lsubs
        self.ld_subs()
        self.a = a = body
        self.row_offsets(self.VO, 216, None); self.ft_static()
        a('s_cmp_ge_u32 s2, 200\ns_cbranch_scc1 L_caux')
        if XE == 2 and only is None: self.idx_main(); spare(); self.x_loads()
        if has('U'):
            self.idx_u('L_c_nou')
            self.cp_task('U', False, True, chain and main[0])
            self.stamp(4)
            if chain: self.idx_main(); a('s_barrier'); self.stamp(12); a(f's_call_b64 s[86:87], L_qk{"_w" if WEAVE else ""}\ns_branch L_c_k')
        a('L_c_nou:')
        self.idx_main(); spare()
        if only is None and XE == 1: self.x_loads()
        if only is None and XE == 0: self.ops(2, XAT)
        if PFW:
            self.sdiv('s70', 's62', 3, 's71')
            a(f's_mul_i32 s71, s71, {PFW}\ns_and_b32 s70, s2, 7\ns_mul_i32 s70, s70, 9\ns_lshr_b32 s70, s70, 2\ns_add_u32 s71, s71, s70')
            self.srd(32, 'wqkv_img', 0, SZ['wqkv_img'])
            a('v_lshrrev_b32 v246, 4, v1\nv_mul_u32_u24 v246, 6912, v246\nv_and_b32 v247, 15, v1\nv_lshl_add_u32 v246, v247, 4, v246')
            for k in range(PFW):
                a(f's_add_u32 s70, s71, {k}\ns_sub_u32 s66, s70, 18\ns_min_u32 s70, s70, s66')
                self.lin('s66', [('s70', 64 * 6912), ('s3', 16 * 6912), ('s65', 1)])
                for m in range(4): a(f'buffer_load_dwordx4 v[252:255], v246, s[32:35], s66 offen\nbuffer_load_dwordx4 v[252:255], v246, s[32:35], s66 offen offset:2304\ns_add_u32 s66, s66, {4*6912}')
        for k, t in enumerate(main):
            self.cp_task(t, False, k == 0 or not chain, chain and k + 1 < len(main) and main[k + 1], cont=chain and k > 0, join='L_c_k' if chain and k == 0 else None, pv=only is None)
            self.stamp(5 + k)
        if has('PV'): self.cp_task('PV', False, True, False, pv=only is None)
        a('s_branch L_fin')
        a.lines += subs.lines
        a('L_caux:\ns_barrier')
        self.aux_interp('c', only)
        a('L_loader:')
        a('s_sub_u32 s84, s2, 87\ns_and_b32 s75, s84, 0xffffffe7\ns_cmp_lg_u32 s75, 0\ns_cbranch_scc1 L_noinit\ns_lshl_b32 s84, s84, 9\nv_lshlrev_b32 v23, 4, v0\nv_subrev_u32 v23, 4096, v23')
        for k in range(15, -1, -1): a(f's_add_u32 s85, s84, {k*16384}\nbuffer_load_dwordx4 v[16:19], v23, s[12:15], s85 offen sc1')
        a('L_noinit:')
        a('s_cmp_lt_u32 s2, 112\ns_cbranch_scc1 L_l_nogv\ns_cmp_ge_u32 s10, 132\ns_cbranch_scc1 L_l_noln')
        if has('LN'): self.ln(has('GV'))
        self.stamp(13)
        a('s_branch L_l_nogv\nL_l_noln:')
        if has('GV'): a('s_call_b64 s[86:87], L_gemv')
        a('L_l_nogv:')
        self.ld_static()
        if self.instr: a('s_mov_b32 s90, 0\nv_mov_b32 v13, 0')
        self.stamp(26)
        a('s_cmp_ge_u32 s2, 200\ns_cbranch_scc1 L_laux')
        if has('U'):
            self.idx_u('L_l_nou'); self.ld_late_start('U', False, 1); self.tag()
            if chain: self.ld_body('U', main[0], self.idx_main, True, 2); a('s_branch L_l_k')
            else: self.ld_body('U', None)
        a('L_l_nou:'); self.tag()
        self.idx_main(); spare()
        for k, t in enumerate(main):
            if k == 0 or not chain: self.ld_late_start(t, False, 2, ready=True)
            if k == 0: a('L_l_k:')
            self.ld_body(t, main[k + 1] if chain and k + 1 < len(main) else None, k=3 + k)
        if has('PV'): self.ld_pv_start(); self.ld_body('PV', None)
        a('s_branch L_fin')
        a.lines += lsubs.lines
        a('L_laux:'); self.tag(); a('s_mov_b32 s7, 0')
        a('s_barrier')
        self.aux_interp('l', only)
        a('L_fin:')
        if DIAG:
            self.stamp(31)
            a(f's_cmp_lg_u32 s2, {DIAG[1]}\ns_cbranch_scc1 L_end\ns_cmp_lg_u32 s3, {DIAG[2]}\ns_cbranch_scc1 L_end\ns_sub_u32 s72, s96, s72\ns_memrealtime s[96:97]\ns_waitcnt lgkmcnt(0)')
            if DIAG[0] == 99: a('s_movk_i32 s72, 2000')
            a('L_dg:\ns_memrealtime s[74:75]\ns_waitcnt lgkmcnt(0)\ns_sub_u32 s74, s74, s96\ns_cmp_lt_u32 s74, s72\ns_cbranch_scc1 L_dg')
        self.stamp_store()
        a('L_end:\ns_endpgm')
    def rows4(self, srd, pitch, offs):
        a = self.a
        a(f'v_lshrrev_b32 v216, 4, v1\nv_and_b32 v217, 15, v1\nv_mul_u32_u24 v216, {pitch}, v216\nv_lshl_add_u32 v216, v217, 4, v216')
        for k, so in enumerate(offs):
            for i in range(9): a(f'buffer_load_dwordx4 {vr(252,4)}, v216, {sr(srd,4)}, {so} offen offset:{i*256}')
    def help_u(self):
        if not HLP: return
        a = self.a
        a(f's_sub_u32 s84, s2, {HB}'); self.idx_u('L_hlp_e', 's84')
        a(f's_sub_u32 s66, {SZ["wo_img"]}, s65'); self.srd(28, 'wo_img', 's65', 's66')
        a(f's_mul_i32 s67, s62, {96*6912}\ns_add_u32 s67, s67, 4608\ns_sub_u32 s66, {SZ["wqkv_img"]}, s67'); self.srd(32, 'wqkv_img', 's67', 's66')
        a(f'v_lshrrev_b32 v246, 4, v1\nv_lshl_add_u32 v246, s3, 4, v246\nv_mul_u32_u24 v246, {RP}, v246\nv_and_b32 v247, 15, v1\nv_lshl_add_u32 v246, v247, 4, v246')
        a('s_mul_i32 s66, s3, 24\nv_lshrrev_b32 v247, 3, v1\nv_add_u32 v247, s66, v247\nv_mul_u32_u24 v247, 6912, v247\nv_and_b32 v248, 7, v1\nv_lshl_add_u32 v247, v248, 4, v247')
        self.sdiv('s70', 's62', 5, 's76'); self.sdiv('s70', 's61', 3, 's77')
        if HW: a(f's_cmp_ge_u32 s10, 128\ns_cbranch_scc1 L_hlp_s\nv_mov_b32 v248, {CX+16}'); self.lds_wait4(248, 249); a('L_hlp_s:')
        a(f's_and_b32 s78, s2, 7\ns_mul_i32 s78, s78, 9\ns_lshr_b32 s78, s78, 2\ns_add_u32 s78, s78, {HLP}\ns_mov_b32 s83, {18 - HLP}\nL_hlp:')
        a('s_sub_u32 s70, s78, 18\ns_min_u32 s70, s70, s78\ns_sub_u32 s76, s76, 1\ns_cbranch_scc0 L_hlp_b\ns_mov_b32 s76, 4')
        a(f's_mul_i32 s71, s70, {64*RP}')
        for m in range(4): a(f'buffer_load_dwordx4 v[252:255], v246, s[28:31], s71 offen\ns_add_u32 s71, s71, {4*RP}')
        a('L_hlp_b:\ns_sub_u32 s77, s77, 1\ns_cbranch_scc0 L_hlp_n\ns_mov_b32 s77, 2\ns_lshl_b32 s71, s70, 7')
        for m in range(3): a(f'buffer_load_dwordx4 v[252:255], v247, s[32:35], s71 offen\ns_add_u32 s71, s71, {8*6912}')
        a(f'L_hlp_n:\ns_waitcnt vmcnt({HTH})\ns_add_u32 s78, s78, 1\ns_sub_u32 s83, s83, 1\ns_cmp_lg_u32 s83, 0\ns_cbranch_scc1 L_hlp\nL_hlp_e:')
    def prefetch_u(self):
        if 'pfu' not in OPT: return
        a = self.a
        a('s_sub_u32 s84, s2, 116\ns_cmp_ge_u32 s84, 72\ns_cbranch_scc1 L_pfu\ns_lshl_b32 s84, s84, 2\ns_and_b32 s85, s3, 3\ns_add_u32 s84, s84, s85')
        a(f's_cmp_ge_u32 s3, 4\ns_cselect_b32 s32, s{PTR["wo_img"]}, s{PTR["wqkv_img"]}\ns_cselect_b32 s33, s{PTR["wo_img"]+1}, s{PTR["wqkv_img"]+1}')
        a(f's_mov_b32 s34, {SZ["wqkv_img"]}\ns_cselect_b32 s34, {SZ["wo_img"]}, s34\ns_mov_b32 s35, 0x20000\ns_movk_i32 s85, 6912\ns_cselect_b32 s85, 2304, s85\ns_cselect_b32 s82, 0, 4608')
        a('s_mul_i32 s84, s84, s85\ns_lshl_b32 s84, s84, 2\ns_add_u32 s84, s84, s82')
        self.rows4(32, 's85', ['s84'])
        a('L_pfu:')
    def prefetch_qk(self, first, rounds):
        a = self.a
        a(f's_lshl_b32 s84, s84, 3\ns_add_u32 s84, s84, s3\ns_add_u32 s84, s84, {first}\ns_mul_i32 s84, s84, {4*6912}')
        self.srd(32, 'wqkv_img', 0, SZ['wqkv_img'])
        for r in range(rounds):
            a('s_add_u32 s83, s84, 2304')
            self.rows4(32, 6912, ['s84', 's83'])
            a(f's_add_u32 s84, s84, {(128 if r == 0 else 96)*4*6912}')

def post(text):
    import re
    if 'nochk' in OPT:
        text = re.sub(r'  s_cbranch_vccnz L_chk_\d+_s\n', '', text).replace('L_spin:\n', 'L_spin:\n  s_setpc_b64 s[68:69]\n')
    if 'nofree' in OPT:
        text = text.replace('  s_cbranch_vccnz L_run_slow\n', '').replace('  s_cbranch_vccz L_run_go\nL_run_slow:', '  s_branch L_run_go\nL_run_slow:')
    if 'nocw' in OPT: text = text.replace('  ds_write_b32 v253, v252\n', '')
    if 'nocr' in OPT: text = text.replace('  ds_read_b32 v255, v254\n', '')
    if 'nolw' in OPT: text = text.replace('  ds_write_b32 v10, v12\n', '')
    if 'nolr' in OPT: text = text.replace('  ds_read_b32 v24, v9\n', '')
    if 'noldr' in OPT: text = text.replace('L_lprog0:\n', 'L_lprog0:\n  s_endpgm\n')
    if 'nocmp' in OPT: text = text.replace('L_cprog0:\n', 'L_cprog0:\n  s_endpgm\n')
    if 'nobar' in OPT: text = text.replace('  s_barrier\n', '')
    return text
def relabel(text, suffix):
    import re
    return re.sub(r'\b(L_\w+)', lambda m: m.group(1) + suffix, text)

def build(mode='fused', instr=False, cls=Mega):
    hdr = [l for l in open('standalone__mm_dit__diffusion.s.ref').read().split('\n')
           if l.startswith(';') and '@launch' not in l and 'Override launch' not in l and 'Harness parses' not in l]
    out = '\n'.join(hdr) + '\n'
    if mode == 'fused':
        name = 'standalone__mm_dit__diffusion_kernel'
        m = cls(instr, True); m.kernel(name)
        out += f'; @launch grid=(256,1,1) block=(512,1,1) lds={LDS}\n'
        out += '.amdgcn_target "amdgcn-amd-amdhsa--gfx950"\n.text\n' + m.a.text() + '.section .rodata,"a"\n' + kernel_desc(name, 256, 102)
        return out
    if mode.startswith('only:'):
        name = 'standalone__mm_dit__diffusion_kernel'
        m = cls(instr, False); m.kernel(name, set(mode[5:].split('+')))
        out += f'; @launch grid=(256,1,1) block=(512,1,1) lds={LDS}\n'
        out += '.amdgcn_target "amdgcn-amd-amdhsa--gfx950"\n.text\n' + m.a.text() + '.section .rodata,"a"\n' + kernel_desc(name, 256, 102)
        return out
    steps = [{'U', 'GV', 'G', 'X'}, {'LN'}, {'M', 'V', 'T'}, {'S', 'VT', 'Q2'}, {'PV', 'ST'}, {'Y'}, {'AT'}, {'OT'}]
    text = ''; desc = ''
    for k, st in enumerate(steps):
        name = f'step{k}_kernel'
        m = cls(instr, False); m.kernel(name, st)
        text += relabel(m.a.text(), f'_{k}'); desc += kernel_desc(name, 256, 102)
        out += f'; @launch kernel={name} grid=(256,1,1) block=(512,1,1) lds={LDS}\n'
    out += '.amdgcn_target "amdgcn-amd-amdhsa--gfx950"\n.text\n' + text + '.section .rodata,"a"\n' + desc
    return out

if __name__ == '__main__':
    mode = sys.argv[2] if len(sys.argv) > 2 else 'fused'
    open(sys.argv[1], 'w').write(post(build(mode, len(sys.argv) > 3)))
```

```python
import sys, struct
from asmlib import *
from gemm import Operand, emit_swz, emit_swap23

D = 1152
KA = ['x_img', 'x_txt', 'c', 'wqkv_img', 'wqkv_txt', 'wo_img', 'wo_txt', 'wmod_img', 'wmod_txt', 'out', 'dbg', 'ws']
PTR = {n: 36 + 2 * k for k, n in enumerate(KA)}
SZ = dict(x_img=4718592, x_txt=147456, c=4608, wqkv_img=7962624, wqkv_txt=7962624, wo_img=2654208, wo_txt=2654208,
          wmod_img=15925248, wmod_txt=15925248, out=4866048, dbg=256, ws=268435456)
MB = 1 << 20
RP = 2304
WS_FLAG = 0
WS_MODP = 151552
WS_GATE = WS_MODP + 3 * 4 * 9216
WS_ST = 327680
FTS = 4 * 36 * 1024
WS_HT = 655360; WS_QT = WS_HT + FTS; WS_VT = WS_QT + FTS; WS_Q2 = WS_VT + FTS; WS_PT = WS_Q2 + FTS; WS_Y = WS_PT + FTS; WS_AT = WS_Y + FTS
WS_Z = WS_AT + FTS
assert WS_Z + 4 * 18 * 4096 <= 2 * MB and WS_GATE + 12 * 4608 <= WS_ST and WS_ST + 34 * 1056 * 8 + 1024 <= WS_HT
BS = 2 * 1056 * RP
WS_H = 2 * MB; WS_Q = WS_H + BS; WS_K = WS_Q + BS; WS_V = WS_K + BS; WS_P = WS_V + BS; WS_U = WS_P + BS
USZ = 1152 * RP
WS_DBG = 64 * MB
FS = 128
F_GG = 0
F_LN = 108
F_U = 240
F_K = 348
F_V = 546
F_P = 744
F_T = 942; F_VT = 996; F_PT = 1014; F_Y = 1048; F_AT = 1084
NFLAG = 1184
assert WS_MODP == NFLAG * FS and WS_GATE == 4 * 65536
WS_E = (NFLAG - 1) * FS
PS = 1056
NS = 5; CH = 1040; STAGE = 28 * CH; RING = NS * STAGE; XL = RING; LDS = 163840
CB = LDS - 2048
GL = XL + 13312
CX = XL + 17920
SPIN = 0x1000000
LOG2E = 1.4426950408889634
def f2u(x): return struct.unpack('<I', struct.pack('<f', x))[0]

import os
OPT = set(os.environ.get('OPT', '').split(','))
LDF = os.environ.get('LDF', 'sc1')
SW = int(os.environ.get('SW', 5)); SD = int(os.environ.get('SD', 3))
DEPTH = int(os.environ.get('DEPTH', 2))
CSLEEP = '' if 'nocsleep' in OPT else 's_sleep 1\n'
LSLEEP = '' if 'nolsleep' in OPT else 's_sleep 1\n'
COLD = tuple(os.environ.get('COLD', 'none').split(','))
PSL = int(os.environ.get('PSL', 1))
PFAT = int(os.environ.get('PFAT', 5))
SIGW = int(os.environ.get('SIGW', 1))
ALN = f".p2align {os.environ.get('ALIGN', 6)}\n" + 's_nop 0\n' * int(os.environ.get('APAD', 0))
SKAH = int(os.environ.get('SKAH', 12))
PFD = int(os.environ.get('PFD', 4))
PFR = int(os.environ.get('PFR', 2))
XROT = tuple(os.environ.get('XROT', 'M,U').split(','))
PW = int(os.environ.get('PW', 3)); PD = int(os.environ.get('PD', 1))
NPEEL = int(os.environ.get('NPEEL', 0))
XAT = int(os.environ.get('XAT', 8))
PFW = int(os.environ.get('PFW', 0))
OUTF = os.environ.get('OUTF', 'sc1')
WEAVE = 'weave' in OPT
UNR = int(os.environ.get('UNR', 2)); LOOK = int(os.environ.get('LOOK', 0))
HLP = int(os.environ.get('HLP', 0)); HB = int(os.environ.get('HB', 144))
HTH = int(os.environ.get('HTH', 63)); HW = int(os.environ.get('HW', 0))
XE = int(os.environ.get('XE', 0))
DIAG = [int(x) for x in os.environ.get('DIAG', '').split(',') if x]
PF = os.environ.get('PF', 'sc1'); TCH = int(os.environ.get('TCH', 0))
FIVE = int(os.environ.get('FIVE', 0)); SIGV = int(os.environ.get('SIGV', 3))
LSIG = int(os.environ.get('LSIG', 1))
ONE = int(os.environ.get('ONE', 2))
class Mega:
    def __init__(self, instr=False, flags=True):
        self.a = Asm(); self.instr = instr; self.flags = flags

    def srd(self, srd, ptr, off, limit):
        a = self.a; p = PTR[ptr]
        a(f's_add_u32 s{srd}, s{p}, {off}\ns_addc_u32 s{srd+1}, s{p+1}, 0\ns_mov_b32 s{srd+2}, {limit}\ns_mov_b32 s{srd+3}, 0x20000')
    def sdiv(self, dst, src, c, rem=None):
        self.a(f's_mul_hi_u32 {dst}, {src}, {(1 << 32) // c + 1}')
        if rem: self.a(f's_mul_i32 {rem}, {dst}, {c}\ns_sub_u32 {rem}, {src}, {rem}')
    def lin(self, dst, terms, const=0):
        a = self.a; a(f's_mov_b32 {dst}, {const}')
        for r, c in terms: a(f's_mul_i32 s75, {r}, {c}\ns_add_u32 {dst}, {dst}, s75')
    def stamp(self, n):
        if DIAG and n == DIAG[0]: self.a('s_memrealtime s[96:97]\ns_waitcnt lgkmcnt(0)')
        if self.instr: self.a(f's_memrealtime s[72:73]\ns_memtime s[96:97]\ns_waitcnt lgkmcnt(0)\nv_writelane_b32 v15, s72, {n}\nv_writelane_b32 v15, s96, {32+n}')
    def stamp_store(self):
        if not self.instr: return
        a = self.a
        self.stamp(2); a('s_waitcnt vmcnt(0)')
        self.stamp(31)
        a(f's_lshl_b32 s72, s2, 3\ns_add_u32 s72, s72, s3\ns_lshl_b32 s72, s72, 8\ns_add_u32 s72, s72, {WS_DBG}')
        a(f'v_lshlrev_b32 v14, 2, v1\nbuffer_store_dword v15, v14, s[12:15], s72 offen\ns_add_u32 s72, s72, {2 << 20}\nbuffer_store_dword v13, v14, s[12:15], s72 offen')
    def flag_lanes(self, vd, vt, ranges):
        a = self.a
        first = True; acc = 0
        if len(ranges) == 1:
            st, cnt = ranges[0]
            if isinstance(cnt, int): a(f'v_min_u32 v{vd}, {cnt-1}, v1')
            else: a(f's_sub_u32 s75, {cnt}, 1\nv_min_u32 v{vd}, s75, v1')
            a(f'v_add_u32 v{vd}, {st}, v{vd}\nv_lshlrev_b32 v{vd}, 7, v{vd}')
            return
        tot = sum(c for _, c in ranges)
        a(f'v_min_u32 v{vt}, {tot-1}, v1')
        for st, cnt in ranges:
            if isinstance(st, int): a(f's_mov_b32 s75, {st - acc}')
            else: a(f's_sub_u32 s75, {st}, {acc}')
            if first: a(f'v_mov_b32 v{vd}, s75')
            else: a(f'v_mov_b32 v{vt+1}, s75\nv_cmp_le_u32 vcc, {acc}, v{vt}\ns_nop 1\nv_cndmask_b32 v{vd}, v{vd}, v{vt+1}, vcc')
            first = False; acc += cnt
        a(f'v_add_lshl_u32 v{vd}, v{vd}, v{vt}, 7')
    def poll_sub(self, lab, vo, vt):
        a = self.a
        a(f'{lab}:\ns_mov_b32 s74, 0x80000\n{lab}_l:')
        a(f'buffer_load_dwordx4 {vr(vt,4)}, v{vo}, s[12:15], 0 offen {PF}\ns_waitcnt vmcnt(0)')
        self.min4(vt); a(f'v_cmp_eq_u32 vcc, 0, v{vt}')
        a(f's_cmp_eq_u64 vcc, exec\ns_cbranch_scc1 {lab}_d\ns_sub_u32 s74, s74, 1\ns_cmp_eq_u32 s74, 0\ns_cbranch_scc1 {lab}_d\ns_sleep {PSL}\ns_branch {lab}_l')
        a(f'{lab}_d:\ns_setpc_b64 s[68:69]')
    def ld_params(self, t):
        a = self.a
        def ws(srd, off, lim=None): self.srd(srd, 'ws', off, lim if lim is not None else 0x4000000)
        def wsl(srd, base, sreg, lim=None):
            a(f's_add_u32 s67, {sreg}, {base}'); ws(srd, 's67', lim)
        def wgt(srd, name, sreg, const=0):
            a(f's_add_u32 s67, {sreg}, {const}\ns_sub_u32 s66, {SZ[name]}, s67'); self.srd(srd, name, 's67', 's66')
        if t in 'UW':
            wgt(16, 'wo_img', 's65'); a(f's_mul_i32 s70, s62, {96*6912}'); wgt(20, 'wqkv_img', 's70', 4608); return 'T', RP, 6912, 18
        if t == 'M':
            wgt(16, 'wqkv_img', 's65', 0); wsl(20, WS_H, 's63', 's64'); return 'T', 6912, RP, 18
        if t == 'V':
            wsl(16, WS_U, 's65'); wsl(20, WS_H, 's63', 's64'); return 'T', RP, RP, 18
        if t == 'S':
            self.lin('s70', [('s60', 1056 * RP), ('s61', 128 * RP)])
            a(f's_mov_b32 s71, {128*RP}\ns_cmp_eq_u32 s61, 8\ns_cselect_b32 s71, {32*RP}, s71')
            wsl(16, WS_K, 's70', 's71'); wsl(20, WS_Q, 's63', 's64'); return 'K', RP, RP, 18
        if t == 'PV':
            a(f's_mul_i32 s70, s60, {1056*RP}\ns_add_u32 s70, s70, s65')
            wsl(16, WS_V, 's70'); wsl(20, WS_P, 's63', 's64'); return 'T', RP, RP, 17
        raise ValueError(t)
    def dep_ranges(self, t, aux=False):
        a = self.a
        if t == 'M':
            self.lin('s70', [('s60', 64), ('s62', 6)], F_LN)
            a('s_cmp_eq_u32 s62, 10\ns_cselect_b32 s71, 4, 6'); return [('s70', 's71')]
        if t == 'V':
            self.lin('s70', [('s61', 12)], F_U); return [('s70', 12)]
        if t == 'S':
            a('s_lshl_b32 s70, s61, 2'); self.sdiv('s71', 's70', 3)
            self.lin('s70', [('s60', 99), ('s71', 9)], F_K)
            a(f's_cmp_eq_u32 s61, 8\ns_cselect_b32 s70, {F_T+18}, s70')
            self.lin('s66', [('s60', 99), ('s62', 9)], F_K)
            return [('s70', 18), ('s66', 9)]
        if t == 'PV':
            self.lin('s70', [('s60', 99), ('s62', 9)], F_P); self.lin('s71', [('s60', 99), ('s61', 11)], F_V)
            return [('s70', 9), ('s71', 11)]
        return None
    def sig_index(self, t, aux=False):
        m = {'U': ([('s61', 12), ('s62', 1)], F_U), 'M': ([('s60', 99), ('s62', 9), ('s61', 1)], F_K),
             'V': ([('s60', 99), ('s61', 11), ('s62', 1)], F_V), 'S': ([('s60', 99), ('s62', 9), ('s61', 1)], F_P),
             'T': ([('s61', 1)], F_T), 'VT': ([('s61', 1)], F_VT), 'ST': ([('s60', 17), ('s61', 1)], F_PT),
             'Y': ([('s60', 18), ('s61', 1)], F_Y), 'AT': ([('s61', 1)], F_AT), 'LN': ([('s10', 1)], F_LN)}[t]
        self.lin('s88', [(r, c * FS) for r, c in m[0]] + [('s3', 4)], m[1] * FS)
    def set_bij(self, rows):
        a = self.a
        if rows == 'img':
            self.lin('s63', [('s60', 1056 * RP), ('s62', 96 * RP)])
            a(f's_mov_b32 s64, {96*RP}\ns_cmp_eq_u32 s62, 10\ns_cselect_b32 s64, {64*RP}, s64')
        else:
            self.lin('s63', [('s60', 1056 * RP)], 1024 * RP); a(f's_mov_b32 s64, {32*RP}')
        a('s_lshl_b32 s65, s61, 8')

    LV = dict(rowT=2, inT=3, rowKA=4, rowKB=5, inK=6, inKB=7, vF=8, oA=9, oB=10, vA=24, vB=28, t=20, fd=16)
    def ld_static(self):
        a = self.a; L = self.LV; t = L['t']
        a(f's_sub_u32 s84, s3, 4\ns_mul_i32 s85, s84, {4*CH}\ns_mov_b32 s82, s85\ns_mul_i32 s5, s84, {CH}\ns_sub_u32 s5, {16*CH}, s5\ns_mov_b32 m0, s82')
        a(f'v_bfe_u32 v{L["rowT"]}, v1, 2, 2\nv_lshl_add_u32 v{L["rowT"]}, s84, 4, v{L["rowT"]}')
        a(f'v_lshrrev_b32 v{t}, 4, v1\nv_and_b32 v{t+1}, 3, v1\nv_lshlrev_b32 v{t+1}, 4, v{t+1}\nv_lshl_add_u32 v{L["inT"]}, v{t}, 6, v{t+1}')
        a(f'v_bfe_u32 v{t}, v1, 2, 3\nv_lshl_add_u32 v{L["rowKA"]}, s84, 5, v{t}\ns_mul_i32 s75, s84, 24\nv_add_u32 v{L["rowKB"]}, s75, v{t}')
        a(f'v_bfe_u32 v{t}, v1, 4, 1\nv_mul_u32_u24 v{t}, 48, v{t}\nv_xor_b32 v{t+1}, v{t+1}, v{t}\nv_lshrrev_b32 v{t}, 5, v1\nv_lshl_add_u32 v{L["inK"]}, v{t}, 6, v{t+1}')
        a(f's_and_b32 s75, s84, 1\ns_mul_i32 s75, s75, 48\nv_xor_b32 v{L["inKB"]}, s75, v{L["inK"]}\nv_mov_b32 v{L["vF"]}, 0')
    def order_valu(self, n, dst, t, u0, limit, SW=SW, SD=SD):
        a = self.a; u, dl, sd = t, t + 1, t + 2
        a(f'v_add_u32 v{u}, {u0}, v{n}\nv_mov_b32 v{sd}, {SD}')
        a(f'v_mul_u32_u24 v{dl}, {(1<<16)//SW+1}, v{u}\nv_lshrrev_b32 v{dl}, 16, v{dl}\nv_mul_u32_u24 v{dl}, {SW}, v{dl}\nv_sub_u32 v{u}, v{u}, v{dl}')
        a(f'v_cmp_ge_u32 vcc, {SD}, v{u}\nv_cmp_eq_u32 s[66:67], 0, v{u}\nv_sub_u32 v{u}, v{n}, v{u}\nv_cndmask_b32 v{dl}, 0, -1, vcc')
        a(f'v_cmp_gt_u32 vcc, {0 if "nostag" in OPT else limit}, v{u}\nv_cndmask_b32 v{dl}, v{dl}, v{sd}, s[66:67]\ns_nop 0\nv_cndmask_b32 v{dl}, 0, v{dl}, vcc')
        a(f'v_add_u32 v{dst}, v{n}, v{dl}')
    def pv_order(self, q, t):
        a = self.a
        a(f'v_subrev_u32 v{q}, 1, v{q}\ns_add_u32 s84, s62, {PW}')
        self.order_valu(q, q, t, 's84', 7 - PD, PW, PD)
        a(f's_add_u32 s84, s61, 1\nv_add_u32 v{t}, 1, v{q}\nv_and_b32 v{t}, 8, v{t}\nv_add_u32 v{q}, s84, v{q}\nv_and_b32 v{q}, 7, v{q}\nv_max_u32 v{q}, v{q}, v{t}')
    def ld_setup(self, t):
        a = self.a; L = self.LV; tm = L['t']; vA, vB = L['vA'], L['vB']
        S = 17 if t in ('PV', 'Y') else 18
        cold = t in COLD and 'norot' not in OPT
        if cold:
            self.lin('s84', [('s61', 2), ('s60', 1), ('s62', 3)]); self.sdiv('s75', 's84', 18, 's83')
            a(f'v_add_u32 v{L["oB"]}, s83, v1\nv_subrev_u32 v{tm}, 18, v{L["oB"]}\nv_min_u32 v{L["oB"]}, v{L["oB"]}, v{tm}')
        else:
            a('s_add_u32 s84, s61, s62')
            if t == 'PV':
                a(f'v_lshrrev_b32 v{L["oB"]}, 1, v1'); self.pv_order(L['oB'], tm)
                a(f'v_and_b32 v{tm}, 1, v1\nv_lshl_add_u32 v{L["oB"]}, v{L["oB"]}, 1, v{tm}')
            else:
                w_, d_ = [int(x) for x in os.environ.get('ST_' + t, f'{SW},{SD}').split(',')]
                self.order_valu(1, L['oB'], tm, 's84', 18 - d_, w_, d_)
            if t in XROT:
                a(f's_and_b32 s84, s2, 7\ns_mul_i32 s84, s84, 9\ns_lshr_b32 s84, s84, 2\nv_add_u32 v{L["oB"]}, s84, v{L["oB"]}\nv_subrev_u32 v{tm}, 18, v{L["oB"]}\nv_min_u32 v{L["oB"]}, v{L["oB"]}, v{tm}')
        lay, pA, pB, S2 = self.ld_params(t)
        assert S == S2
        ftB = t in ('S', 'PV')
        a(f's_mov_b32 s7, 2304\ns_mov_b32 s76, {pA}\ns_mov_b32 s77, {pB}\ns_mov_b32 s78, {pA * 64 if lay == "T" else 2048}')
        a(f'v_mul_u32_u24 v{L["oA"]}, s78, v{L["oB"]}\nv_lshlrev_b32 v{L["oB"]}, {11 if ftB else 7}, v{L["oB"]}')
        if lay == 'T':
            a(f'v_mad_u32_u24 v{vA}, v{L["rowT"]}, s76, v{L["inT"]}')
            for m in range(1, 4): a(f'v_add_u32 v{vA+m}, {m*(4*pA - CH)}, v{vA}')
        else:
            a(f's_sub_u32 s84, s3, 4\ns_mul_i32 s84, s84, {2*36864}\ns_add_u32 s84, s84, 64\nv_lshl_add_u32 v{vA}, v1, 4, s84')
            for m in range(1, 4): a(f'v_add_u32 v{vA+m}, {((m>>1)*36864 + (m&1)*1024 - m*CH) & 0xffffffff:#x}, v{vA}')
            a('s_sub_u32 s16, s16, 64\ns_subb_u32 s17, s17, 0\ns_add_u32 s18, s18, 64')
        a(f'v_readlane_b32 s100, v{L["oA"]}, 0\nv_readlane_b32 s101, v{L["oB"]}, 0\ns_mov_b32 s98, 1')
        if ftB:
            for m in range(3):
                a(f's_sub_u32 s84, s3, 4\ns_mul_i32 s84, s84, 3\ns_add_u32 s84, s84, {m}\ns_lshr_b32 s75, s84, 1\ns_mul_i32 s75, s75, {36864 - 2048}\ns_lshl_b32 s84, s84, 10')
                a(f's_add_u32 s84, s84, s75\ns_add_u32 s84, s84, {(64 - m*CH) & 0xffffffff:#x}\nv_lshl_add_u32 v{vB+m}, v1, 4, s84')
            a('s_sub_u32 s20, s20, 64\ns_subb_u32 s21, s21, 0\ns_add_u32 s22, s22, 64')
        else:
            a(f'v_mad_u32_u24 v{vB}, v{L["rowKB"]}, s77, v{L["inKB"]}\nv_xor_b32 v{tm}, 48, v{vB}')
            for m in range(1, 3): a(f'v_add_u32 v{vB+m}, {m*(8*pB - CH)}, v{tm if m & 1 else vB}')
        assert pA % 64 == 0 and pB % 64 == 0
    SH = {24: 40, 25: 41, 26: 42, 27: 43, 28: 44, 29: 45, 30: 46, 9: 47, 10: 48, 8: 49}
    def ld_prep(self, t):
        import re
        def f():
            self.ld_setup(t)
            if self.flags: self.flag_lanes(self.LV['vF'], self.LV['t'], self.dep_ranges(t, False))
        keep = self.a; self.a = Asm(); f(); code = self.a.lines; self.a = keep
        for l in code:
            if 'readlane' in l or 's98' in l: continue
            l = re.sub(r'\bv(\d+)\b', lambda m: f'v{self.SH.get(int(m.group(1)), int(m.group(1)))}', l)
            l = re.sub(r'\bs(1[6-9]|2[0-3])\b', lambda m: f's{int(m.group(1)) + 8}', l)
            self.a(l)
    def ld_commit(self):
        a = self.a
        a('v_readlane_b32 s100, v47, 0\nv_readlane_b32 s101, v48, 0\ns_mov_b32 s98, 1')
        a('s_mov_b64 s[16:17], s[24:25]\ns_mov_b32 s18, s26\ns_mov_b64 s[20:21], s[28:29]\ns_mov_b32 s22, s30')
        for d, x in self.SH.items(): a(f'v_mov_b32 v{d}, v{x}')
    def min4(self, v):
        for r in range(4): self.a(f'v_xor_b32 v{v+r}, s11, v{v+r}')
        self.a(f'v_or3_b32 v{v}, v{v}, v{v+1}, v{v+2}\nv_or_b32 v{v}, v{v}, v{v+3}')
    def tag(self): self.a('s_waitcnt lgkmcnt(0)\ns_mul_i32 s11, s8, 1664525\ns_add_u32 s11, s11, 1013904223')
    def ld_issue(self, kind='n'):
        a = self.a; L = self.LV
        ld = lambda v, srd, so, m: a(f'buffer_load_dwordx4 v{v+m}, {srd}, {so} offen offset:{m*CH} {LDF} lds') if 'noload' not in OPT else a('s_nop 0')
        if kind == 'y':
            ld(L['vA'], 's[16:19]', 's99', 0)
            a(f's_add_u32 s82, s82, {STAGE}\ns_cmp_ge_u32 s82, {RING}')
            ld(L['vA'], 's[16:19]', 's99', 1)
            a('s_cselect_b32 s82, s85, s82')
            ld(L['vA'], 's[16:19]', 's99', 2); ld(L['vA'], 's[16:19]', 's99', 3)
            a('s_mov_b32 m0, s82\ns_nop 0')
            return
        for m in range(4): ld(L['vA'], 's[16:19]', 's100', m)
        if kind == 'x': a('s_add_u32 s99, s100, s7')
        a(f's_add_u32 m0, s82, s5\nv_readlane_b32 s100, v{L["oA"]}, s98')
        ld(L['vB'], 's[20:23]', 's101', 0)
        a(f's_add_u32 s82, s82, {STAGE}\ns_cmp_ge_u32 s82, {RING}')
        ld(L['vB'], 's[20:23]', 's101', 1)
        a('s_cselect_b32 s82, s85, s82')
        ld(L['vB'], 's[20:23]', 's101', 2)
        a(f's_mov_b32 m0, s82\nv_readlane_b32 s101, v{L["oB"]}, s98\ns_add_u32 s98, s98, 1')
    def ld_subs(self):
        a = self.a; L = self.LV
        loop = lambda l: a(f's_sub_u32 s83, s83, 1\ns_cmp_lg_u32 s83, 0\ns_cbranch_scc1 {l}\ns_setpc_b64 s[86:87]')
        a('L_issue:'); self.ld_issue(); loop('L_issue')
        a('L_steady:\ns_waitcnt vmcnt(14)\ns_barrier')
        if self.instr: a('s_cmp_lt_u32 s90, 16\ns_cbranch_scc1 L_notr2\ns_memrealtime s[72:73]\ns_waitcnt lgkmcnt(0)\ns_mov_b32 m0, s90\ns_add_u32 s90, s90, 1\nv_writelane_b32 v13, s72, m0\ns_mov_b32 m0, s82\ns_nop 0\nL_notr2:')
        self.ld_issue(); loop('L_steady')
        a('L_issue2:'); self.ld_issue('x'); self.ld_issue('y'); a('s_setpc_b64 s[86:87]')
        a('L_steady2:\ns_waitcnt vmcnt(11)\ns_barrier')
        if self.instr: a('s_memrealtime s[72:73]\ns_waitcnt lgkmcnt(0)\ns_mov_b32 m0, s90\ns_add_u32 s90, s90, 1\nv_writelane_b32 v13, s72, m0\ns_mov_b32 m0, s82\ns_nop 0')
        self.ld_issue('x')
        a('s_waitcnt vmcnt(11)\ns_barrier'); self.ld_issue('y'); loop('L_steady2')
        self.poll_sub('L_lpoll', L['vF'], L['fd'])
    def ld_call(self, what, n=None):
        if n is not None:
            if n == 0: return
            self.a(f's_mov_b32 s83, {n}')
        self.a(f's_call_b64 s[86:87], {what}')
    def w4(self, fn):
        lab = self.a.label('w4'); self.a(f's_cmp_lg_u32 s3, 4\ns_cbranch_scc1 {lab}'); fn(); self.a(f'{lab}:')
    def ld_late_start(self, t, aux, k, ready=False):
        a = self.a; L = self.LV
        def poll():
            r = self.dep_ranges(t, aux)
            if r: self.flag_lanes(L['vF'], L['t'], r); a('s_call_b64 s[68:69], L_lpoll')
        self.ld_setup(t)
        if self.flags and t != 'U': self.w4(poll)
        if t != 'U': a('s_barrier')
        self.stamp(k)
        if t in 'MW':
            self.ld_call('L_issue2'); a('s_waitcnt vmcnt(4)\ns_barrier'); self.ld_call('L_issue2'); return
        self.ld_call('L_issue', 2)
        a('s_waitcnt vmcnt(7)\ns_barrier')
        self.ld_call('L_issue', 2)
    def x_dma(self):
        a = self.a
        self.lin('s70', [('s60', 1024 * RP), ('s62', 96 * RP), ('s65', 1)])
        a('s_sub_u32 s71, s64, s65'); self.srd(24, 'x_img', 's70', 's71')
        a(f's_sub_u32 s84, s3, 4\ns_mul_i32 s70, s84, 24\nv_lshrrev_b32 v50, 4, v1\nv_add_u32 v50, s70, v50\nv_mul_u32_u24 v50, {RP}, v50\nv_and_b32 v51, 15, v1\nv_lshl_add_u32 v50, v51, 4, v50')
        a(f's_mul_i32 s84, s84, {2*CH}\ns_add_u32 s84, s84, s82')
        for m in range(6): a(f's_add_u32 m0, s84, {m*CH}\nv_add_u32 v51, {4*m*RP}, v50\nbuffer_load_dwordx4 v51, s[24:27], 0 offen nt lds')
        a(f's_add_u32 s82, s82, {STAGE}\ns_cmp_ge_u32 s82, {RING}\ns_cselect_b32 s82, s85, s82\ns_mov_b32 m0, s82')
    def ld_pv_start(self):
        a = self.a; L = self.LV; vt = L['fd']
        st, t, ad, vf = 64, 100, 96, 112
        if not self.xdma: self.x_dma()
        self.ld_setup('PV')
        if self.instr: a('s_mov_b32 s90, 52')
        self.lin('s70', [('s60', 17 * 1056 * 8), ('s62', 96 * 8)], WS_ST); self.srd(28, 'ws', 's70', 0x100000)
        a(f'v_and_b32 v{vf}, 15, v1\ns_sub_u32 s91, s3, 4\ns_min_u32 s91, s91, 2\ns_lshl_b32 s92, s91, 4\nv_add_lshl_u32 v{t}, v{vf}, s92, 3\nv_lshrrev_b32 v{t+1}, 4, v1\ns_movk_i32 s92, {1056*8}')
        for m in range(2):
            n = ad + 2 * m
            a(f'v_add_u32 v{n}, {4*m}, v{t+1}'); self.pv_order(n, t + 3)
            a(f'v_lshlrev_b32 v{n}, 1, v{n}\nv_mad_u32_u24 v{n}, v{n}, s92, v{t}\nv_add_u32 v{n+1}, s92, v{n}')
        a(f's_lshl_b32 s92, s91, 6\ns_add_u32 s92, s92, {XL+4096}\nv_lshl_add_u32 v{vf}, v{vf}, 2, s92\nv_mul_u32_u24 v{t+1}, 192, v{t+1}\nv_add_u32 v{t+1}, v{t+1}, v{vf}')
        def stats():
            a(f's_mov_b32 s93, {16*1056*8}')
            for m in range(4):
                for jt in range(2): a(f'buffer_load_dwordx2 {vr(st+2*(m*3+jt),2)}, v{ad+m}, s[28:31], 0 offen offset:{384*jt} sc1')
            for jt in range(2): a(f'buffer_load_dwordx2 {vr(st+2*(12+jt),2)}, v{t}, s[28:31], s93 offen offset:{384*jt} sc1')
        if self.flags:
            self.lin('s70', [('s60', 99), ('s62', 9)], F_P); self.lin('s71', [('s60', 99), ('s61', 11)], F_V)
            def first():
                a('s_cmp_eq_u32 s61, 8\ns_cselect_b32 s66, s70, s71'); self.flag_lanes(L['vF'], L['t'], [('s71', 11), ('s66', 1)]); a('s_call_b64 s[68:69], L_lpoll')
            self.w4(first)
            a(f'v_and_b32 v{L["vF"]}, 7, v1\ns_add_u32 s66, s61, 1\nv_add_u32 v{L["vF"]}, s66, v{L["vF"]}\nv_subrev_u32 v{L["t"]}, 9, v{L["vF"]}\nv_min_u32 v{L["vF"]}, v{L["vF"]}, v{L["t"]}\nv_add_lshl_u32 v{L["vF"]}, v{L["vF"]}, s70, 7')
        a('s_waitcnt vmcnt(0)\ns_barrier')
        self.stamp(10)
        self.ld_call('L_issue', 2)
        if self.flags: a(f'buffer_load_dwordx4 {vr(vt,4)}, v{L["vF"]}, s[12:15], 0 offen {PF}')
        a(f's_waitcnt vmcnt({7 + self.flags})\ns_barrier')
        if self.flags:
            a('s_waitcnt vmcnt(0)'); self.min4(vt)
            a(f'v_cmp_ne_u32 vcc, 0, v{vt}\ns_cbranch_vccz L_pv_fast\ns_barrier\ns_call_b64 s[68:69], L_lpoll')
            stats(); self.ld_call('L_issue', 2); a('s_branch L_pv_tab\nL_pv_fast:')
        stats(); self.ld_call('L_issue', 1); a('s_waitcnt vmcnt(17)\ns_barrier'); self.ld_call('L_issue', 1)
        a('L_pv_tab:\ns_waitcnt vmcnt(14)')
        mx, o = t + 4, t + 8
        M = [[st + 2 * (m * 3 + jt) for m in range(5)] for jt in range(2)]
        for jt in range(2): a(f'v_max3_f32 v{mx+jt}, v{M[jt][0]}, v{M[jt][2]}, v{M[jt][4]}')
        self.allred(mx, o, 'v_max_f32', 2)
        for m in (0, 2, 4):
            for jt in range(2): a(f'v_sub_f32 v{M[jt][m]}, v{M[jt][m]}, v{mx+jt}')
        for m in (0, 2, 4):
            for jt in range(2): a(f'v_exp_f32 v{M[jt][m]}, v{M[jt][m]}')
        for jt in range(2): a(f'v_mul_f32 v{mx+jt}, v{M[jt][0]}, v{M[jt][0]+1}')
        for m in range(1, 4):
            for jt in range(2): a(f'v_fmac_f32 v{mx+jt}, v{M[jt][m & 2]}, v{M[jt][m]+1}')
        self.allred(mx, o, 'v_add_f32', 2)
        for jt in range(2): a(f'v_fmac_f32 v{mx+jt}, v{M[jt][4]}, v{M[jt][4]+1}')
        for jt in range(2): a(f'v_rcp_f32 v{mx+jt}, v{mx+jt}')
        a('s_nop 0')
        for m in (0, 2, 4):
            for jt in range(2): a(f'v_mul_f32 v{M[jt][m]}, v{M[jt][m]}, v{mx+jt}\nds_write_b32 v{t+1 if m < 4 else vf}, v{M[jt][m]} offset:{m*384+jt*9*192}')
        a('s_waitcnt vmcnt(7)\ns_barrier')
        self.ld_call('L_issue', 2)
        a('s_waitcnt lgkmcnt(0)')
        self.stamp(12)
    def ld_body(self, t, nxt, pre=None, ready=False, k=0, nn=None, prepped=False, short=False, prev=None):
        a = self.a; L = self.LV; vt = L['fd']
        M = t in 'MW'
        left = {'PV': 11, 'M': 32, 'W': 32}.get(t, 14) - short
        run = (lambda n: self.ld_call('L_steady2', n // 2)) if M else (lambda n: self.ld_call('L_steady', n))
        def ask(r):
            self.flag_lanes(L['vF'], L['t'], r())
            a(f'buffer_load_dwordx4 {vr(vt,4)}, v{L["vF"]}, s[12:15], 0 offen {PF}')
        def chk():
            lab = a.label('dep_ok'); a(f's_waitcnt vmcnt({11 if M else 14})'); self.min4(vt)
            a(f'v_cmp_eq_u32 vcc, 0, v{vt}\ns_cmp_eq_u64 vcc, exec\ns_cbranch_scc1 {lab}')
            a(f's_call_b64 s[68:69], L_lpoll\n{lab}:')
        w = (11, 4) if M else (14, 7)
        if prev:
            n = 2 * (NPEEL + UNR) if M else 2
            run(n); left -= n
            if self.flags:
                lab = a.label('sg'); a(f's_cmp_lg_u32 s3, 5\ns_cbranch_scc1 {lab}')
                if prev == 'U': a(f's_cmp_eq_u32 s88, -1\ns_cbranch_scc1 {lab}')
                else: self.sig_index(prev)
                a(f's_sub_u32 s88, s88, 20\nv_mov_b32 v50, s11\nv_lshlrev_b32 v51, 2, v1\ns_mov_b64 exec, 15\nbuffer_store_dword v50, v51, s[12:15], s88 offen sc1\ns_mov_b64 exec, -1\n{lab}:')
        drain = f's_waitcnt vmcnt({w[0]})\ns_barrier\ns_waitcnt vmcnt({w[1]})\ns_barrier\ns_waitcnt vmcnt(0)\ns_barrier\ns_barrier'
        if not nxt:
            if t == 'PV':
                def gdep():
                    a(f's_lshl_b32 s66, s61, 1\ns_add_u32 s66, s66, {F_VT}\ns_lshl_b32 s67, s61, 2'); return [('s67', 4), ('s66', 2)]
                def gate():
                    if self.flags: chk()
                    self.lin('s67', [('s60', 4608), ('s65', 2)], WS_GATE); self.srd(24, 'ws', 's67', 4 * 4608 + 512)
                    t_ = L['t']
                    a(f'v_lshrrev_b32 v{t_+1}, 5, v1\nv_mul_u32_u24 v{t_+1}, {4*4608 - 512}, v{t_+1}\nv_lshl_add_u32 v{t_}, v1, 4, v{t_+1}\ns_mov_b32 m0, {GL}\ns_nop 0')
                    a(f'buffer_load_dwordx4 v{t_}, s[24:27], 0 offen sc1 lds\ns_mov_b32 m0, s82')
                run(left - 3)
                if self.flags: self.w4(lambda: ask(gdep))
                run(2); self.w4(gate); run(1)
            else: run(left)
            if t == 'S' and self.xdma:
                a('s_waitcnt vmcnt(14)\ns_barrier'); self.x_dma()
                a('s_waitcnt vmcnt(13)\ns_barrier\ns_waitcnt vmcnt(6)\ns_barrier\ns_barrier')
            else: a(drain)
            return
        if pre: pre()
        if t == 'M' and 'bg' in OPT:
            for n in range(4):
                self.bg_prefetch(n); run(4); left -= 4
        lab = a.label('nx')
        if not prepped: self.ld_prep(nxt)
        if self.flags:
            run(left - 2)
            a(f'buffer_load_dwordx4 {vr(vt,4)}, v49, s[12:15], 0 offen {PF}')
            run(2)
            a(f's_waitcnt vmcnt({w[0]})'); self.min4(vt)
            a(f'v_cmp_eq_u32 s[94:95], 0, v{vt}')
        else: run(left)
        self.stamp(k)
        if self.instr and nxt == 'V': a('s_mov_b32 s90, 20')
        self.ld_commit()
        five = FIVE and nxt != 'M'
        call = f's_call_b64 s[68:69], L_prep_{nn}' if nn else ''
        if nn: self.preps.add(nn)
        if self.flags:
            a(f's_cmp_eq_u64 s[94:95], exec\ns_cbranch_scc1 {lab}_g\n{drain}')
            if five: a('s_barrier')
            a(call + '\ns_call_b64 s[68:69], L_lpoll')
            if nxt == 'M': self.ld_call('L_issue2'); a('s_waitcnt vmcnt(4)\ns_barrier'); self.ld_call('L_issue2')
            else: self.ld_call('L_issue', 2); a('s_waitcnt vmcnt(7)\ns_barrier'); self.ld_call('L_issue', 2 + five)
            a(f's_branch {lab}_e\n{lab}_g:')
        if nxt == 'M': self.ld_call('L_steady2', 2)
        elif M:
            for _ in range(2): a('s_waitcnt vmcnt(11)'); self.ld_call('L_steady', 1)
            self.ld_call('L_steady', 2)
        else: self.ld_call('L_steady', 4)
        if five: a('s_barrier'); self.ld_call('L_issue', 1)
        a(call)
        a(f's_barrier\n{lab}_e:')
        if five: a('s_waitcnt vmcnt(21)\ns_barrier')
    def bg_prefetch(self, n):
        a = self.a
        a('s_lshl_b32 s92, s2, 2\ns_add_u32 s92, s92, s3\ns_sub_u32 s92, s92, 4\nv_lshlrev_b32 v32, 4, v1')
        if n < 2:
            self.srd(24, 'wqkv_txt', 0, SZ['wqkv_txt'])
            a(f's_mul_i32 s92, s92, 10240\ns_add_u32 s92, s92, {5120*n}\ns_min_u32 s92, s92, {SZ["wqkv_txt"]-5120}\ns_add_u32 s93, s92, 4096')
            for i in range(5): a(f'buffer_load_dwordx4 v[36:39], v32, s[24:27], {"s92" if i < 4 else "s93"} offen offset:{1024*(i&3)}')
        else:
            self.srd(24, 'wmod_img' if n == 2 else 'wmod_txt', 0, SZ['wmod_img'])
            a('s_mul_i32 s92, s92, 3\ns_mov_b32 exec_hi, 0xf')
            for i in range(3):
                a(f's_add_u32 s93, s92, {i}\ns_and_b32 s84, s93, 1\ns_lshr_b32 s93, s93, 1\ns_min_u32 s93, s93, 1151\ns_mul_i32 s93, s93, 13824\ns_mul_i32 s84, s84, 1152\ns_add_u32 s93, s93, s84\ns_add_u32 s93, s93, 4608')
                a('buffer_load_dwordx4 v[36:39], v32, s[24:27], s93 offen\nbuffer_load_dwordx4 v[36:39], v32, s[24:27], s93 offen offset:576')
            a('s_mov_b32 exec_hi, -1')

    VA = 2; VB = 3; DT = 4; DK = 5; TA = 6; VROW = 10; VCOL = 11; VONE = 12; VZERO = 13
    ACC = 16; TMP = [64, 112]; FA = [160, 176]; FB = [192, 204]; FREE = 216
    def cp_static(self):
        a = self.a
        a('s_lshr_b32 s90, s3, 1\ns_and_b32 s91, s3, 1\ns_mov_b32 s89, -1\ns_mov_b32 s98, 0\ns_mov_b32 s88, 0')
        g, c, x, y = 196, 197, 198, 199
        a(f'v_lshrrev_b32 v{g}, 4, v1\nv_lshrrev_b32 v{x}, 1, v1\nv_xor_b32 v{x}, v{x}, v1\nv_bfe_u32 v{x}, v{x}, 2, 1\nv_mul_u32_u24 v{x}, 3, v{x}\nv_xor_b32 v{x}, v{x}, v{g}')
        a(f'v_and_b32 v{c}, 7, v1\nv_lshlrev_b32 v{c}, 6, v{c}\nv_lshl_add_u32 v{x}, v{x}, 4, v{c}\nv_bfe_u32 v{c}, v1, 3, 1\nv_mul_u32_u24 v{c}, {CH}, v{c}\nv_add_u32 v{x}, v{x}, v{c}')
        a(f's_mul_i32 s92, s91, {6*CH}\ns_add_u32 s92, s92, {16*CH}\nv_add_u32 v{self.VB}, s92, v{x}')
        a(f's_mul_i32 s93, s90, {8*CH}\ns_sub_u32 s93, s93, s92\nv_mov_b32 v{self.DK}, s93')
        a(f'v_mul_u32_u24 v{g}, {2*CH}, v{g}\nv_bfe_u32 v{c}, v1, 2, 2\nv_lshl_add_u32 v{g}, v{c}, 6, v{g}\nv_and_b32 v{c}, 3, v1\nv_lshl_add_u32 v{g}, v{c}, 3, v{g}')
        a(f's_lshl_b32 s93, s90, 9\nv_add_u32 v{g}, s93, v{g}\nv_sub_u32 v{self.DT}, v{g}, v{self.VB}')
        a(f'v_and_b32 v{x}, 12, v1\nv_bfe_u32 v{y}, v1, 4, 1\ns_mul_i32 s92, s91, 48\nv_add3_u32 v{self.VROW}, v{x}, v{y}, s92')
        a(f'v_and_b32 v{x}, 3, v1\nv_lshlrev_b32 v{x}, 5, v{x}\nv_lshrrev_b32 v{y}, 5, v1\nv_lshl_add_u32 v{x}, v{y}, 4, v{x}\ns_lshl_b32 s92, s90, 7\nv_add_u32 v{self.VCOL}, s92, v{x}')
        a(f'v_bfe_i32 v8, v1, 0, 1\nv_bfe_i32 v9, v1, 1, 1\nv_mov_b32 v{self.VONE}, 1\nv_mov_b32 v{self.VZERO}, 0')
    def reads(self, lay, kk, st):
        B = [f'ds_read_b128 {vr(self.FB[st]+4*jt,4)}, v{self.VB} offset:{jt*2*CH + kk*(512 if lay == "T" else CH)}' for jt in range(3)]
        A = []
        for it in range(4):
            if lay == 'K': A.append(f'ds_read_b128 {vr(self.FA[st]+4*it,4)}, v{self.VA} offset:{it*2*CH + kk*CH}')
            else:
                for h in range(2):
                    A.append(f'ds_read_b64_tr_b16 {vr(self.FA[st]+4*it+2*h,2)}, v{self.VA} offset:{(h+8*kk)*CH + (it>>1)*256 + (it&1)*32}')
        k = 1 if lay == 'K' else 2
        if 'jmaj' in OPT: return A[:k] + B[:1] + A[k:] + B[1:]
        return A[:k] + B + A[k:]
    def to_ft(self):
        self.a(f'v_add_u32 v{self.VB}, v{self.VB}, v14\nv_sub_u32 v{self.DT}, v{self.DT}, v14\nv_mov_b32 v14, 0')
    def mfmas(self, st, acc, zero=False):
        out = []
        order = [(it, (2 - jt if it & 1 and 'snake' in OPT else jt)) for it in range(4) for jt in range(3)]
        if 'jmaj' in OPT: order = [((3 - it if jt & 1 else it), jt) for jt in range(3) for it in range(4)]
        for it, jt in order:
            d = vr(acc + 4 * (it * 3 + jt), 4)
            out.append(f'v_mfma_f32_16x16x32_bf16 {d}, {vr(self.FA[st]+4*it,4)}, {vr(self.FB[st]+4*jt,4)}, {"0" if zero else d}')
        return out
    def advance(self, lay):
        return [f'v_add_u32 v{self.TA}, {STAGE}, v{self.VB}', f'v_add_u32 v{self.TA+1}, {(STAGE-RING) & 0xffffffff:#x}, v{self.VB}',
                f'v_min_u32 v{self.VB}, v{self.TA+1}, v{self.TA}', f'v_add_u32 v{self.VA}, v{self.VB}, v{self.DK if lay == "K" else self.DT}']
    def rebase(self, lay, sign):
        if sign > 0: self.a(self.advance(lay)[3])
    @staticmethod
    def regs_of(txt):
        import re
        out = []
        for m in re.finditer(r'v\[(\d+):(\d+)\]|v(\d+)', txt):
            out.append(set(range(int(m.group(1)), int(m.group(2)) + 1)) if m.group(1) else {int(m.group(3))})
        return out
    def emit_waits(self, seq, pending):
        a = self.a
        for pos, ins in enumerate(seq):
            rs = self.regs_of(ins)
            if ins.startswith('ds_read'):
                a(ins); pending.append(rs[0]); continue
            use = set().union(*rs) if rs else set()
            last = max((k for k, d in enumerate(pending) if d & use), default=-1)
            if last >= 0:
                for nx in [x for x in seq[pos + 1:pos + 12] if x.startswith('v_mfma')][:LOOK]:
                    u2 = set().union(*self.regs_of(nx))
                    last = max(last, max((k for k, d in enumerate(pending) if d & u2), default=-1))
                n = len(pending) - 1 - last
                assert n <= 15
                a(f's_waitcnt lgkmcnt({n})'); del pending[:last + 1]
            a(ins)
        return pending
    def weave(self, mf, rd, other):
        if 'nomfma' in OPT: mf = ['s_nop 0'] * len(mf)
        if 'noread' in OPT: rd = []
        n = len(mf); gaps = [[] for _ in range(n)]
        for k, r in enumerate(rd): gaps[min(n - 1, k * (n - 1) // max(1, len(rd)) if len(rd) < n else k)].append(r)
        return gaps, mf
    def substep(self, mf, rd, tail, other=(), bar=False):
        gaps, mf = self.weave(mf, rd, other)
        n = len(mf); other = list(other)
        for k, x in enumerate(other): gaps[k * n // len(other)].append(x)
        gaps[n - 1] += list(tail)
        seq = []
        if bar and 'bar0' in OPT: seq = ['s_barrier']
        elif bar: gaps[0].insert(0, 's_barrier')
        for m, g in zip(mf, gaps): seq += [m] + g
        return seq
    def stage(self, lay, acc, zero=False, ex0=(), ex1=(), half=False, end=()):
        adv = self.advance(lay)
        if half: return self.substep(self.mfmas(0, acc, zero), [], list(end), adv + list(ex0), bar=True)
        return self.substep(self.mfmas(0, acc, zero), self.reads(lay, 1, 1), adv[2:], adv[:2] + list(ex0)) + \
               self.substep(self.mfmas(1, acc), self.reads(lay, 0, 0), list(end), ex1, bar=True)
    def loop(self, pre, body):
        pend = self.emit_waits(pre, [])
        start = [set(x) for x in pend]
        return start, pend
    def signal_one(self):
        if not self.flags: return
        if not ONE: return self.signal_now()
        a = self.a; lab = a.label('s1')
        a(f's_waitcnt vmcnt(0)\nv_mov_b32 v254, {CX+28}\ns_mov_b64 exec, 1\nds_add_rtn_u32 v255, v254, v{self.VONE}\ns_andn2_b32 s88, s88, 15\ns_waitcnt lgkmcnt(0)')
        a(f'v_and_b32 v255, 3, v255\nv_cmp_eq_u32 vcc, 3, v255\ns_mov_b64 exec, 15\ns_cbranch_vccz {lab}\nv_mov_b32 v255, s11\nv_lshlrev_b32 v254, 2, v1\nbuffer_store_dword v255, v254, s[12:15], s88 offen sc1\n{lab}:\ns_mov_b64 exec, -1')
    def signal_now(self):
        if not self.flags: return
        self.a(f's_waitcnt vmcnt(0)\nv_mov_b32 v255, s11\ns_mov_b64 exec, 1\nbuffer_store_dword v255, v{self.VZERO}, s[12:15], s88 offen sc1\ns_mov_b64 exec, -1')
    ACC2 = 112; ACCT = 64; VO = 240
    def hook(self, lab):
        self.hooks.append(f'{lab}_h:\ns_call_b64 s[68:69], L_hook\ns_branch {lab}_n')
        return f's_cmp_eq_u32 s94, s89\ns_cbranch_scc1 {lab}_h\n{lab}_n:'
    def capture(self, fn):
        keep = self.a; self.a = Asm(); fn(); out = [l.strip() for l in self.a.lines if not l.strip().startswith('s_nop')]; self.a = keep
        return out
    def gemm_sub(self, lab, lay, acc, merged=False, epi=None, npeel=2):
        a = self.a
        nit = 18 if merged else 9
        adv = self.advance(lay); onlyA = lambda kk, st: [r for r in self.reads(lay, kk, st) if f'v{self.VA} ' in r]
        def body(ex, zero=False):
            if merged:
                return self.substep(self.mfmas(0, acc, zero), self.reads(lay, 1, 1), adv[2:], adv[:2] + ex[0]) + \
                       self.substep(self.mfmas(1, acc), onlyA(0, 0), [], ex[1], bar=True) + \
                       self.substep(self.mfmas(0, self.ACC2, zero), onlyA(1, 1), adv[2:], adv[:2] + ex[2]) + \
                       self.substep(self.mfmas(1, self.ACC2), self.reads(lay, 0, 0), [], ex[3], bar=True)
            return self.stage(lay, acc, zero=zero, ex0=ex[0], ex1=ex[1]) + self.stage(lay, acc, ex0=ex[2], ex1=ex[3])
        first = self.reads(lay, 0, 0) if 'noread' not in OPT else []
        a(f'{lab}:')
        self.rebase(lay, 1)
        start = self.emit_waits(first, [])
        for r in range(48): a(f'v_mov_b32 v{acc+r}, 0')
        if merged:
            for r in range(48): a(f'v_mov_b32 v{self.ACC2+r}, 0')
        a(f's_mov_b32 s94, {nit}')
        if epi:
            a(f's_branch {lab}_l\n{ALN}{lab}_w:')
            self.rebase(lay, 1)
            pend = self.emit_waits(first, [])
            n = 4 * npeel
            for k in range(npeel):
                pend = self.emit_waits(body([epi[(4*k+q)*len(epi)//n:(4*k+q+1)*len(epi)//n] for q in range(4)], zero=k == 0), pend)
            assert pend == start
            a(f's_mov_b32 s94, {nit - npeel}')
        a(f'{ALN}{lab}_l:')
        un = UNR if merged else 1
        assert (nit - npeel) % un == 0 and XAT % un == 0
        seq = []
        for u in range(un):
            seq += body([[], [], ['s_nop 0'] * 3 + ['s_waitcnt vmcnt(0)'] if u == un - 1 else [], [f's_sub_u32 s94, s94, {un}', 's_cmp_lg_u32 s94, 0'] if u == un - 1 else []])
        seq = [x for x in seq if x != 's_nop 0']
        pend = self.emit_waits(seq, list(start))
        assert pend == start
        a(f's_cbranch_scc1 {lab}_l')
        a('s_waitcnt lgkmcnt(0)\ns_nop 6\ns_setpc_b64 s[86:87]')
    def epi_rows(self, P=160):
        self.pack(self.ACCT, P); self.xpose(P, self.ACCT)
        for k in range(6): self.a(f'buffer_store_dwordx4 {vr(P+4*k,4)}, v{self.VO+k}, s[24:27], 0 offen sc1')
    def epi_qk(self):
        self.pack(self.ACC2, 160); self.store_ft(160, 28); self.pack(self.ACC, self.ACC2); self.store_ft(self.ACC2, 24)
    def pack(self, acc, dst):
        for jt in range(3):
            for p in range(2):
                Z = dst + 8 * jt + 4 * p
                x = acc + 4 * (2 * p * 3 + jt); y = acc + 4 * ((2 * p + 1) * 3 + jt)
                self.a(f'v_cvt_pk_bf16_f32 v{Z}, v{x}, v{x+1}\nv_cvt_pk_bf16_f32 v{Z+1}, v{x+2}, v{x+3}')
                self.a(f'v_cvt_pk_bf16_f32 v{Z+2}, v{y}, v{y+1}\nv_cvt_pk_bf16_f32 v{Z+3}, v{y+2}, v{y+3}')
    def hook_sub(self):
        a = self.a
        pass
        if True:
            a('L_st3:'); self.epi_rows(); a('s_setpc_b64 s[68:69]\nL_st6:'); self.epi_qk(); a('s_setpc_b64 s[68:69]')
    def store_ft(self, P, srd):
        a = self.a; v = [self.VROW, 246, 247]
        a(f'v_add_u32 v{v[1]}, 36864, v{v[0]}\nv_add_u32 v{v[2]}, {2*36864}, v{v[0]}')
        for k in range(6):
            for d in range(2): a(f'v_permlane16_swap_b32 v{P+4*k+d}, v{P+4*k+2+d}')
            a(f'buffer_store_dwordx4 {vr(P+4*k,4)}, v{v[k>>1]}, {sr(srd,4)}, 0 offen offset:{1024*(k&1)} sc1')
    def ft_static(self):
        a = self.a; x, y = 216, 217
        a(f'v_bfe_u32 v{y}, v1, 4, 1\nv_lshlrev_b32 v{y}, 9, v{y}\nv_lshrrev_b32 v{x}, 5, v1\nv_lshl_add_u32 v{y}, v{x}, 8, v{y}\nv_and_b32 v{x}, 15, v1\nv_lshl_add_u32 v{y}, v{x}, 4, v{y}')
        a(f's_mul_i32 s92, s91, {3*36864}\ns_lshl_b32 s93, s90, 11\ns_add_u32 s92, s92, s93\nv_add_u32 v{self.VROW}, s92, v{y}')
        a(f's_mul_i32 s92, s91, {6*CH}\ns_add_u32 s92, s92, {16*CH}\nv_lshl_add_u32 v14, v1, 4, s92\nv_sub_u32 v14, v14, v{self.VB}')
    def ops(self, op, it): self.a(f's_mov_b32 s98, {op}\ns_mov_b32 s89, {it}')
    def xpose(self, P, T, inverse=False, nj=3):
        a = self.a
        def swaps():
            for jt in range(nj):
                for r in (0, 4):
                    for d in range(2): a(f'v_permlane16_swap_b32 v{P+8*jt+r+d}, v{P+8*jt+r+2+d}')
        a('s_nop 1')
        if inverse: swaps()
        for bit, M, qp in ((2, 8, '[1,0,3,2]'), (4, 9, '[2,3,0,1]')):
            lo = [r for r in range(8 * nj) if not r & bit]
            for k, r in enumerate(lo): a(f'v_bfi_b32 v{T+k}, v{M}, v{P+r}, v{P+r+bit}')
            for k, r in enumerate(lo): a(f'v_mov_b32_dpp v{T+12+k}, v{T+k} quad_perm:{qp} row_mask:0xf bank_mask:0xf')
            for k, r in enumerate(lo): a(f'v_bfi_b32 v{P+r}, v{M}, v{T+12+k}, v{P+r}\nv_bfi_b32 v{P+r+bit}, v{M}, v{P+r+bit}, v{T+12+k}')
        if not inverse:
            a('s_nop 1'); swaps()
    def row_offsets(self, vo, t, jump):
        a = self.a
        a(f's_movk_i32 s92, {RP}')
        for k in range(6):
            a(f'v_add_u32 v{t}, {16*(k>>1)+2*(k&1)}, v{self.VROW}\nv_mad_u32_u24 v{vo+k}, v{t}, s92, v{self.VCOL}')
            if jump: a(f'v_lshrrev_b32 v{t}, 5, v{t}\nv_mad_u32_u24 v{vo+k}, v{t}, {jump}, v{vo+k}')
    def store_tile(self, acc, srd, vo, t):
        self.pack(acc, t); self.xpose(t, t + 24)
        for k in range(6): self.a(f'buffer_store_dwordx4 {vr(t+4*k,4)}, v{vo+k}, {sr(srd,4)}, 0 offen sc1')
    def store_sub(self):
        a = self.a
        a('L_store:')
        self.row_offsets(216, 222, 's79')
        self.store_tile(self.ACC, 24, 216, 160)
        a('s_setpc_b64 s[86:87]')
    def allred(self, v, tmp, op, n=3):
        a = self.a
        for sw in ('v_permlane16_swap_b32', 'v_permlane32_swap_b32'):
            for j in range(n): a(f'v_mov_b32 v{tmp+j}, v{v+j}')
            a('s_nop 1')
            for j in range(n): a(f'{sw} v{v+j}, v{tmp+j}')
            for j in range(n): a(f'{op} v{v+j}, v{v+j}, v{tmp+j}')
    def softmax_sub(self):
        a = self.a; acc = self.ACC
        m, o, l, pr = 64, 67, 70, 74
        a('L_softmax:\ns_cmp_lg_u32 s61, 8\ns_cbranch_scc1 L_sm_go\ns_cmp_lg_u32 s90, 0\ns_cbranch_scc1 L_sm_ret')
        for r in range(24, 48): a(f'v_mov_b32 v{acc+r}, 0xff800000')
        a('L_sm_go:')
        allred = self.allred
        R = [[acc + 4 * (it * 3 + jt) + r for it in range(4) for r in range(4)] for jt in range(3)]
        for jt in range(3): a(f'v_max_f32 v{m+jt}, v{R[jt][0]}, v{R[jt][1]}')
        for k in range(2, 16, 2):
            for jt in range(3): a(f'v_max3_f32 v{m+jt}, v{m+jt}, v{R[jt][k]}, v{R[jt][k+1]}')
        allred(m, o, 'v_max_f32')
        a(f's_cmp_eq_u32 s61, 8\ns_cbranch_scc1 L_sm_x\ns_mul_i32 s92, s3, 768\ns_add_u32 s92, s92, {XL}\nv_lshl_add_u32 v{pr}, v1, 2, s92')
        for jt in range(3): a(f'ds_write_b32 v{pr}, v{m+jt} offset:{256*jt}')
        a(f's_lshl_b32 s92, s91, 2\ns_add_u32 s92, s92, {CX+56}\nv_mov_b32 v{pr+1}, s92'); self.lds_arrive(pr + 1, self.VONE)
        a(f's_xor_b32 s92, s3, 2\ns_mul_i32 s92, s92, 768\ns_add_u32 s92, s92, {XL}\nv_lshl_add_u32 v{pr}, v1, 2, s92')
        self.lds_wait4(pr + 1, pr + 2, 2, sleep=False)
        for jt in range(3): a(f'ds_read_b32 v{o+jt}, v{pr} offset:{256*jt}')
        a('s_waitcnt lgkmcnt(0)')
        for jt in range(3): a(f'v_max_f32 v{m+jt}, v{m+jt}, v{o+jt}')
        a(f'L_sm_x:\ns_mov_b32 s92, {f2u(LOG2E * D ** -0.5):#x}')
        nm = 78
        for jt in range(3): a(f'v_mul_f32 v{m+jt}, s92, v{m+jt}\nv_mov_b32 v{nm+2*jt}, s92')
        for jt in range(3): a(f'v_sub_f32 v{nm+2*jt+1}, 0, v{m+jt}')
        a(f'v_add_u32 v246, 36864, v{self.VROW}\nv_add_u32 v247, {2*36864}, v{self.VROW}')
        for jt in range(3):
            for r in R[jt][::2]: a(f'v_pk_fma_f32 {vr(r,2)}, {vr(r,2)}, {vr(nm+2*jt,2)}, {vr(nm+2*jt,2)} op_sel:[0,0,1] op_sel_hi:[1,0,1]')
            for r in R[jt]: a(f'v_exp_f32 v{r}, v{r}')
            P = 160 + 8 * jt
            for k in range(8): a(f'v_cvt_pk_bf16_f32 v{P+k}, v{R[jt][2*k]}, v{R[jt][2*k+1]}')
            a(f'v_pk_add_f32 {vr(nm+2*jt,2)}, {vr(R[jt][0],2)}, {vr(R[jt][2],2)}')
            for p in range(2):
                for d in range(2): a(f'v_permlane16_swap_b32 v{P+4*p+d}, v{P+4*p+2+d}')
                a(f'buffer_store_dwordx4 {vr(P+4*p,4)}, v{(self.VROW, 246, 247)[jt]}, s[4:7], 0 offen offset:{1024*p} sc1')
        for k in range(4, 16, 2):
            for jt in range(3): a(f'v_pk_add_f32 {vr(nm+2*jt,2)}, {vr(nm+2*jt,2)}, {vr(R[jt][k],2)}')
        for jt in range(3): a(f'v_add_f32 v{l+jt}, v{nm+2*jt}, v{nm+2*jt+1}')
        allred(l, o, 'v_add_f32')
        a(f's_mul_i32 s92, s91, 48\nv_add_lshl_u32 v{o}, v1, s92, 3\nv_mov_b32 v{pr}, v{m}\nv_mov_b32 v{pr+1}, v{l}')
        a(f's_mov_b64 exec, 0xffff0000\ns_mov_b32 exec_hi, 0\nv_mov_b32 v{pr}, v{m+1}\nv_mov_b32 v{pr+1}, v{l+1}')
        a(f's_mov_b32 exec_lo, 0\ns_mov_b32 exec_hi, 0xffff\nv_mov_b32 v{pr}, v{m+2}\nv_mov_b32 v{pr+1}, v{l+2}\ns_mov_b32 exec_lo, -1')
        a(f'buffer_store_dwordx2 {vr(pr,2)}, v{o}, s[28:31], 0 offen sc1')
        a('s_mov_b64 exec, -1\nL_sm_ret:\ns_setpc_b64 s[86:87]')
    XR = 216; GT = 240; F = 248; VF = 251; LS = 252
    def pv_sub(self):
        a = self.a; main = self.ACC; tmp = self.TMP; f = self.F; vf = self.VF
        a('L_pv:')
        self.to_ft(); self.rebase('P', 1)
        for r in range(48): a(f'v_mov_b32 v{main+r}, 0')
        for r in range(48): a(f'v_mov_b32 v{tmp[1]+r}, 0')
        a(f'v_and_b32 v{vf}, 15, v1\ns_mul_i32 s92, s91, {9*192}\ns_add_u32 s92, s92, {XL+4096}\nv_lshl_add_u32 v{vf}, v{vf}, 2, s92\nv_mov_b32 v{vf+1}, {CX+64}')
        self.stamp(23)
        a('s_waitcnt lgkmcnt(0)\ns_barrier')
        self.stamp(24)
        def fold(tp):
            if 'pk' in OPT:
                return [f'v_pk_fma_f32 {vr(main+4*(it*3+jt)+r,2)}, {vr(tp+4*(it*3+jt)+r,2)}, {vr(f+(jt&2),2)}, {vr(main+4*(it*3+jt)+r,2)} ' + ('op_sel:[0,1,0]' if jt & 1 else 'op_sel_hi:[1,0,1]')
                        for it in range(4) for jt in range(3) for r in (0, 2)]
            return [f'v_fmac_f32 v{main+4*(it*3+jt)+r}, v{tp+4*(it*3+jt)+r}, v{f+jt}' for it in range(4) for jt in range(3) for r in range(4)]
        fread = [f'ds_read_b32 v{f+jt}, v{vf} offset:{64*jt}' for jt in range(3)] + [f'v_add_u32 v{vf}, 192, v{vf}']
        fread = [f'ds_read_b32 v{f+jt}, v{vf+1} offset:{64*jt}' for jt in range(3)] + [f'v_mov_b32 v{vf+1}, v{vf}', f'v_add_u32 v{vf}, 192, v{vf}']
        pend = self.emit_waits(self.reads('P', 0, 0) if 'noread' not in OPT else [], [])
        start = list(pend)
        a(f's_mov_b32 s94, 4\n{ALN}L_pv_l:')
        seq = []
        for p in range(2):
            fl = fold(tmp[p ^ 1])
            seq += self.stage('P', tmp[p], zero=True, ex1=fread + ['s_nop 0'] * 3 + fl[:10])
            seq += self.stage('P', tmp[p], ex0=fl[10:28], ex1=fl[28:] + (['s_sub_u32 s94, s94, 1', 's_cmp_lg_u32 s94, 0'] if p else []))
        seq = [x for x in seq if x != 's_nop 0']
        pend = self.emit_waits(seq, pend)
        assert pend == start
        a('s_cbranch_scc1 L_pv_l')
        self.emit_waits(fread + self.stage('P', tmp[0], zero=True, ex0=fold(tmp[1]), half=True, end=fread), pend)
        self.rebase('P', -1)
        a('s_waitcnt lgkmcnt(0)\ns_nop 5\ns_setpc_b64 s[86:87]')
        self.fold = fold
    def gate_loads(self, gt, va, jts):
        a = self.a
        for n, jt in enumerate(jts):
            a(f'v_lshrrev_b32 v{va}, 4, v1\nv_lshlrev_b32 v{va}, 4, v{va}\ns_lshl_b32 s92, s90, 8')
            if jt is not None:
                a(f's_mul_i32 s93, s91, 48\ns_add_u32 s93, s93, {16*jt}\ns_lshr_b32 s93, s93, 5\ns_mul_i32 s93, s93, 4608\ns_add_u32 s92, s92, s93')
            for it in range(4): a(f'buffer_load_dwordx4 {vr(gt+16*n+4*it,4)}, v{va}, s[4:7], s92 offen offset:{64*it} sc1')
    def resid_epi(self, acc, xr, gt, zr, vo, t):
        a = self.a
        for jt in range(3):
            for it in range(4):
                q = acc + 4 * (it * 3 + jt); o = 8 * jt + 2 * it; u = t + 4 * (it & 1)
                if zr is not None:
                    for d in range(2): a(f'v_lshlrev_b32 v{u+2*d}, 16, v{zr+o+d}\nv_and_b32 v{u+2*d+1}, 0xffff0000, v{zr+o+d}')
                    for r in range(4): a(f'v_add_f32 v{q+r}, v{q+r}, v{u+r}')
                for d in range(2): a(f'v_lshlrev_b32 v{u+2*d}, 16, v{xr+o+d}\nv_and_b32 v{u+2*d+1}, 0xffff0000, v{xr+o+d}')
                for r in range(4): a(f'v_fmac_f32 v{u+r}, v{q+r}, v{gt(jt)+4*it+r}')
                for d in range(2): a(f'v_cvt_pk_bf16_f32 v{xr+o+d}, v{u+2*d}, v{u+2*d+1}')
        self.xpose(xr, t)
        for k in range(6): a(f'buffer_store_dwordx4 {vr(xr+4*k,4)}, v{vo+k}, s[24:27], 0 offen {OUTF}')

    def cp_task(self, t, aux, late, nxt_early, cont=False, join=None, pv=False):
        a = self.a
        def wsl(srd, base, sregs, lim):
            a(f's_mov_b32 s67, {base}')
            for s in sregs: a(f's_add_u32 s67, s67, {s}')
            self.srd(srd, 'ws', 's67', lim)
        JUMP = 1024 * RP
        weave = WEAVE and t == 'U'
        if t in 'UMV':
            two = t == 'M'
            a('s_barrier\ns_barrier' if late and t != 'U' else 's_barrier')
            self.stamp(28 if t == 'U' else 12 if two else 16)
            a(f's_call_b64 s[86:87], {"L_qk" if two else "L_tk"}{"_w" if cont and weave else ""}')
            if join: a(f'{join}:')
            if FIVE and nxt_early and nxt_early != 'M': a('s_barrier')
            self.stamp(29 if t == 'U' else 13 if two else 17)
            if t == 'U': self.lin('s70', [('s62', 96 * RP)]); wsl(24, WS_U, ['s70', 's65'], 96 * RP)
            elif t == 'M': a('s_lshl_b32 s70, s61, 12'); wsl(24, WS_Q, ['s63', 's70'], 's64'); wsl(28, WS_K, ['s63', 's70'], 's64')
            else: wsl(24, WS_V, ['s63', 's65'], 's64')
            if not (nxt_early and weave): a(f's_call_b64 s[68:69], L_st{6 if two else 3}')
            if not nxt_early: self.sig_index(t, aux); self.signal_now()
            self.stamp(18)
            return
        elif t == 'S':
            self.to_ft()
            self.lin('s70', [('s60', 17 * 1056 * 8), ('s61', 2 * 1056 * 8), ('s90', 1056 * 8), ('s62', 96 * 8)], WS_ST)
            self.sdiv('s71', 's64', RP // 8); self.srd(28, 'ws', 's70', 's71')
            a('s_lshl_b32 s70, s61, 12'); wsl(4, WS_P, ['s63', 's70'], 's64')
            a('s_barrier\ns_barrier' if late else 's_barrier')
            self.stamp(19); a(f's_call_b64 s[86:87], L_kk{"_w" if cont and weave else ""}'); self.stamp(20)
            a('s_call_b64 s[86:87], L_softmax'); self.stamp(21)
            self.sig_index(t, aux)
            self.signal_one()
            return
        elif t == 'PV':
            self.to_ft()
            a(f'v_bfe_u32 v246, v1, 2, 2\nv_mul_u32_u24 v246, {CH}, v246\nv_and_b32 v247, 3, v1\nv_lshl_add_u32 v246, v247, 8, v246\nv_lshrrev_b32 v247, 4, v1\nv_lshl_add_u32 v246, v247, 3, v246')
            a(f'v_lshlrev_b32 v247, 4, v1\nv_sub_u32 v246, v246, v247\ns_mul_i32 s92, s91, {6*CH}\ns_lshl_b32 s93, s90, 7\ns_add_u32 s92, s92, s93\ns_sub_u32 s92, s92, {16*CH}\nv_add3_u32 v246, v246, s92, v{self.VB}')
            for x in self.advance('P'): a(x)
            a('s_barrier'); self.stamp(22)
            for jt in range(3):
                for it in range(4): a(f'ds_read_b64 {vr(self.XR+8*jt+2*it,2)}, v246 offset:{4*jt*CH + 32*it}')
            self.lin('s70', [('s60', 1024 * RP), ('s62', 96 * RP), ('s65', 1)])
            a('s_sub_u32 s71, s64, s65'); self.srd(24, 'out', 's70', 's71')
            a('s_call_b64 s[86:87], L_pv'); self.stamp(25)
            if t == 'PV':
                a(f'v_and_b32 v246, 48, v1\ns_lshl_b32 s92, s90, 8\ns_add_u32 s92, s92, {GL}\nv_add_u32 v246, s92, v246')
                for sp in range(2):
                    for it in range(4): a(f'ds_read_b128 {vr((192, 112, 128)[sp]+4*it,4)}, v246 offset:{512*sp+64*it}')
                acc, tp, f, xr, g = self.ACC, self.TMP[0], self.F, self.XR, 192
                a(f'v_lshlrev_b32 v160, 4, v1\nv_sub_u32 v160, v{self.VB}, v160\ns_mul_i32 s92, s91, {6*CH}\ns_add_u32 s92, s92, {16*CH}\ns_mul_i32 s93, s3, {48*144}\ns_sub_u32 s92, s93, s92\nv_add_u32 v160, s92, v160')
                a('v_and_b32 v161, 15, v1\nv_mul_u32_u24 v161, 144, v161\nv_lshrrev_b32 v162, 4, v1\nv_lshl_add_u32 v161, v162, 3, v161\nv_add_u32 v161, v161, v160')
                a(f'v_and_b32 v162, 12, v1\nv_bfe_u32 v163, v1, 4, 1\nv_add_u32 v162, v162, v163\nv_mul_u32_u24 v162, 144, v162\nv_and_b32 v163, 127, v{self.VCOL}\nv_add3_u32 v160, v160, v162, v163')
                for it in range(4):
                    for jt in range(3):
                        for r in (0, 2):
                            q = 4 * (it * 3 + jt) + r
                            a(f'v_pk_fma_f32 {vr(acc+q,2)}, {vr(tp+q,2)}, {vr(f+(jt&2),2)}, {vr(acc+q,2)} ' + ('op_sel:[0,1,0]' if jt & 1 else 'op_sel_hi:[1,0,1]'))
                a('s_waitcnt lgkmcnt(0)')
                for e in range(0, 16, 2): a(f'v_pk_add_f32 {vr(g+e,2)}, {vr(g+e,2)}, {vr(112+e,2)}')
                for jt in range(3):
                    for it in range(4):
                        q = acc + 4 * (it * 3 + jt); o = xr + 8 * jt + 2 * it; u = 164 + 4 * (it & 1)
                        for d in range(2): a(f'v_lshlrev_b32 v{u+2*d}, 16, v{o+d}\nv_and_b32 v{u+2*d+1}, 0xffff0000, v{o+d}')
                        for r in (0, 2): a(f'v_pk_fma_f32 {vr(u+r,2)}, {vr(q+r,2)}, {vr(g+4*it+r,2)}, {vr(u+r,2)}')
                        for d in range(2): a(f'v_cvt_pk_bf16_f32 v{o+d}, v{u+2*d}, v{u+2*d+1}')
                        a(f'ds_write_b64 v161, {vr(o,2)} offset:{16*144*jt + 32*it}')
                    for h in range(2): a(f'ds_read_b128 {vr(64+8*jt+4*h,4)}, v160 offset:{16*144*jt + 2*144*h}')
                    if jt:
                        a('s_waitcnt lgkmcnt(6)')
                        for h in range(2): a(f'buffer_store_dwordx4 {vr(64+8*(jt-1)+4*h,4)}, v{self.VO+2*(jt-1)+h}, s[24:27], 0 offen {OUTF}')
                a('s_waitcnt lgkmcnt(0)')
                for h in range(2): a(f'buffer_store_dwordx4 {vr(80+4*h,4)}, v{self.VO+4+h}, s[24:27], 0 offen {OUTF}')
    def x_loads(self):
        a = self.a
        self.lin('s79', [('s60', 1024 * RP), ('s62', 96 * RP), ('s65', 1)])
        a('s_sub_u32 s71, s64, s65'); self.srd(32, 'x_img', 's79', 's71')
        for k in range(6): a(f'buffer_load_dwordx4 {vr(self.XR+4*k,4)}, v{self.VO+k}, s[32:35], 0 offen nt')

    GW = 32; GS = 80; GA = 104; GT_ = 120; LX = 140; GC = 204
    def lds_arrive(self, va, vone):
        self.a(f's_mov_b64 exec, 1\nds_add_u32 v{va}, v{vone}\ns_mov_b64 exec, -1')
    def lds_wait4(self, va, vt, n=4, sleep=True):
        a = self.a; lab = a.label('lw')
        a(f's_mov_b32 s74, {SPIN}\n{lab}:\nds_read_b32 v{vt}, v{va}\ns_waitcnt lgkmcnt(0)\nv_cmp_le_u32 vcc, {n}, v{vt}')
        a(f's_cbranch_vccnz {lab}_d\n' + ('s_sleep 1\n' if sleep else '') + f's_sub_u32 s74, s74, 1\ns_cmp_lg_u32 s74, 0\ns_cbranch_scc1 {lab}\n{lab}_d:')
    def gemv_job(self, kind, ls=0):
        a = self.a
        a('s_lshr_b32 s71, s3, 2')
        self.lin('s79', [('s71', 2048)], XL + (8192 if ls else 0))
        self.lin('s80', [('s71', 4)], CX + (0, 8, 40)[ls])
        if kind == 'mod':
            a('s_mov_b32 s71, s81\ns_mov_b32 s81, s92'); self.sdiv('s92', 's81', 3, 's93')
            a('s_lshl_b32 s67, s92, 7\ns_mul_i32 s70, s93, 384\ns_movk_i32 s78, 9216')
            self.lin('s76', [('s93', 4 * 9216), ('s71', 2 * 9216), ('s92', 256)], WS_MODP)
            a('s_mov_b32 s77, 4\ns_mov_b32 s6, -1')
        else:
            a('s_mov_b32 s81, s92'); self.sdiv('s71', 's81', 18, 's92')
            a('s_lshl_b32 s66, s93, 1\ns_add_u32 s66, s66, 1\ns_lshl_b32 s67, s92, 7\ns_add_u32 s67, s67, 4608\ns_movk_i32 s78, 4608\ns_mul_i32 s70, s93, 384')
            self.lin('s6', [('s81', 2 * FS), ('s93', FS)])
            self.lin('s76', [('s93', 4 * 4608), ('s71', 2 * 4608), ('s92', 256)], WS_GATE)
    def gemv_loads(self, W, C, mid={}):
        a = self.a; T = self.GT_
        a('s_lshl_b32 s75, s70, 1')
        for b in range(2):
            for k in range(3): a(f'buffer_load_dwordx2 {vr(C+6*b+2*k,2)}, v{T+2}, s[20:23], s75 offen offset:{2304*b+8*k}')
        a('s_mul_i32 s81, s70, 13824')
        for i in range(12):
            if i in mid: a(mid[i])
            a(f'buffer_load_dwordx4 {vr(W+4*i,4)}, v{T}, s[16:19], s81 offen nt')
            if i < 11: a(f's_add_u32 s81, s81, 13824')
    def gemv_subs(self):
        a = self.a
        W, S, ACC, T, X, C = self.GW, self.GS, self.GA, self.GT_, self.LX, self.GC
        a('L_gemv:\ns_and_b32 s75, s3, 3\ns_mul_i32 s75, s75, 96\ns_add_u32 s70, s70, s75')
        a(f'v_and_b32 v{T}, 7, v1\nv_lshrrev_b32 v{T+1}, 3, v1\nv_lshlrev_b32 v{T}, 4, v{T}\ns_mov_b32 s75, {12*13824}\nv_mad_u32_u24 v{T}, v{T+1}, s75, v{T}\nv_add_u32 v{T}, s67, v{T}')
        a(f'v_mul_u32_u24 v{T+2}, 24, v{T+1}')
        a(f's_cmp_eq_u32 s71, 1\ns_cselect_b32 s16, s{PTR["wmod_txt"]}, s{PTR["wmod_img"]}\ns_cselect_b32 s17, s{PTR["wmod_txt"]+1}, s{PTR["wmod_img"]+1}')
        a(f's_mov_b32 s18, {SZ["wmod_img"]}\ns_mov_b32 s19, 0x20000')
        self.srd(20, 'c', 0, SZ['c'])
        a('s_cmp_eq_u32 s66, 2\ns_cbranch_scc1 L_gv_ret')
        self.gemv_loads(W, C)
        a(f'v_mov_b32 v{T+4}, {CX+32}\nv_mov_b32 v{T+5}, 1'); self.lds_arrive(T + 4, T + 5)
        a('s_cmp_lg_u32 s7, 0x20000\ns_cbranch_scc1 L_gemv2'); self.tag()
        a('L_gemv2:')
        for r in range(16): a(f'v_mov_b32 v{ACC+r}, 0')
        W2 = 140; C2 = 188
        a('s_waitcnt vmcnt(12)\ns_cmp_lg_u32 s66, 3\ns_cbranch_scc1 L_gv_l\ns_add_u32 s70, s70, 384')
        self.gemv_loads(W2, C2)
        a('s_waitcnt vmcnt(18)\nL_gv_l:\ns_cmp_lg_u32 s66, 3')
        q = T + 8; e = 216
        for i in range(12):
            for b in range(2):
                src = C + 6 * b + i // 2
                a(f'v_and_b32 v{S+2*i+b}, 0xffff0000, v{src}' if i & 1 else f'v_lshlrev_b32 v{S+2*i+b}, 16, v{src}')
        for r in range(24): a(f'v_mul_f32 v{e+r}, {f2u(-LOG2E):#x}, v{S+r}')
        for r in range(24): a(f'v_exp_f32 v{e+r}, v{e+r}')
        for r in range(24): a(f'v_add_f32 v{e+r}, 1.0, v{e+r}')
        for r in range(24): a(f'v_rcp_f32 v{e+r}, v{e+r}')
        for r in range(24): a(f'v_mul_f32 v{S+r}, v{S+r}, v{e+r}')
        for i in range(12):
            a(f's_cbranch_scc0 L_gv_w{i}\ns_waitcnt vmcnt({11-i})\nL_gv_w{i}:')
            for d in range(4):
                w = W + 4 * i + d
                a(f'v_lshlrev_b32 v{q+2*d}, 16, v{w}\nv_and_b32 v{q+2*d+1}, 0xffff0000, v{w}')
            for d in range(4):
                a(f'v_pk_fma_f32 {vr(ACC+4*d,2)}, {vr(q+2*d,2)}, {vr(S+2*i,2)}, {vr(ACC+4*d,2)} op_sel_hi:[0,1,1]')
                a(f'v_pk_fma_f32 {vr(ACC+4*d+2,2)}, {vr(q+2*d,2)}, {vr(S+2*i,2)}, {vr(ACC+4*d+2,2)} op_sel:[1,0,0]')
        a('s_cbranch_scc1 L_gv_done\ns_mov_b32 s66, 1\ns_waitcnt vmcnt(0)')
        for r in range(48): a(f'v_mov_b32 v{W+r}, v{W2+r}')
        for r in range(12): a(f'v_mov_b32 v{C+r}, v{C2+r}')
        a('s_branch L_gv_l\nL_gv_done:')
        self.stamp(27)
        for v in range(8): a(f'v_permlane32_swap_b32 v{ACC+v}, v{ACC+v+8}')
        for v in range(8): a(f'v_add_f32 v{ACC+v}, v{ACC+v}, v{ACC+v+8}')
        a('s_nop 1')
        for v in range(4): a(f'v_permlane16_swap_b32 v{ACC+v}, v{ACC+v+4}')
        for v in range(4): a(f'v_add_f32 v{ACC+v}, v{ACC+v}, v{ACC+v+4}')
        a('s_nop 1')
        for v in range(4): a(f'v_add_f32_dpp v{ACC+4+v}, v{ACC+v}, v{ACC+v} row_ror:8 row_mask:0xf bank_mask:0xf')
        RED = XL
        a(f's_and_b32 s81, s3, 3\ns_lshl_b32 s81, s81, 9\ns_add_u32 s81, s81, s79\nv_and_b32 v{T}, 7, v1\nv_lshlrev_b32 v{T}, 6, v{T}\nv_lshrrev_b32 v{T+1}, 4, v1\nv_lshl_add_u32 v{T}, v{T+1}, 4, v{T}\nv_add_u32 v{T}, s81, v{T}')
        a(f'v_mov_b32 v{T+4}, s80\nv_mov_b32 v{T+5}, 1\nv_mov_b32 v{T+6}, 0\nds_write_b128 v{T}, {vr(ACC+4,4)}')
        self.lds_arrive(T + 4, T + 5)
        a(f's_and_b32 s75, s3, 3\ns_cmp_lg_u32 s75, 3\ns_cbranch_scc1 L_gv_ret')
        self.lds_wait4(T + 4, T, 's77')
        a(f'v_lshl_add_u32 v{T}, v1, 3, s79')
        for w in range(4): a(f'ds_read_b64 {vr(ACC+2*w,2)}, v{T} offset:{512*w}')
        a(f'v_lshlrev_b32 v{T}, 2, v1\ns_add_u32 s78, s78, s76\ns_waitcnt lgkmcnt(0)')
        a(f'v_pk_add_f32 {vr(ACC,2)}, {vr(ACC,2)}, {vr(ACC+2,2)}\nv_pk_add_f32 {vr(ACC+4,2)}, {vr(ACC+4,2)}, {vr(ACC+6,2)}\nv_pk_add_f32 {vr(ACC,2)}, {vr(ACC,2)}, {vr(ACC+4,2)}')
        a(f's_and_b32 s75, s11, 255\ns_cmp_eq_u32 s6, -1\ns_cselect_b32 s75, s75, 0\nv_mov_b32 v{T+5}, s11')
        for r in range(2): a(f'v_and_b32 v{ACC+r}, 0xffffff00, v{ACC+r}\nv_or_b32 v{ACC+r}, s75, v{ACC+r}')
        a(f'buffer_store_dword v{ACC}, v{T}, s[12:15], s76 offen sc1\nbuffer_store_dword v{ACC+1}, v{T}, s[12:15], s78 offen sc1')
        if self.flags:
            a('s_cmp_eq_u32 s6, -1\ns_cbranch_scc1 L_gv_ret\ns_waitcnt vmcnt(0)')
            a(f's_mov_b64 exec, 15\nbuffer_store_dword v{T+5}, v{T}, s[12:15], s6 offen sc1\ns_mov_b64 exec, -1')
        a('L_gv_ret:\ns_setpc_b64 s[86:87]')
    def mod_table(self):
        a = self.a; a0, a1, a2, a3 = 180, 181, 182, 183; TAB = XL + 8192
        a('s_lshr_b32 s80, s10, 7\ns_lshr_b32 s81, s10, 6\ns_bfe_u32 s75, s10, 0x10001\ns_cmp_eq_u32 s80, 1\ns_cselect_b32 s81, s75, s81')
        a(f'v_cmp_le_u32 vcc, 32, v0\nv_mov_b32 v14, {CX+16}\nv_mov_b32 v223, 1.0\nv_cndmask_b32 v222, 0, v223, vcc')
        self.lin('s76', [('s80', 2 * 9216), ('s81', 9216)], WS_MODP)
        M = 184
        a(f'v_lshlrev_b32 v{a0}, 4, v0\nv_lshlrev_b32 v{a1}, 4, v1')
        a(f's_lshl_b32 s75, s3, 8\nv_add_u32 v{a1}, s75, v{a1}')
        a(f'v_mov_b32 v{a2}, {CX+20}'); self.lds_wait4(a2, a3)
        a('s_and_b32 s77, s11, 255\ns_mov_b32 s74, 0x80000\nL_ln_p:')
        for sp in range(3):
            for r in range(4): a(f'v_mov_b32 v{M+12*sp+8+r}, s77')
        for sp in range(3):
            for k in range(2):
                a(f's_add_u32 s75, s76, {sp*4*9216 + k*4096}\nbuffer_load_dwordx4 {vr(M+12*sp+4*k,4)}, v{a0}, s[12:15], s75 offen {PF}')
        a('s_mov_b64 s[82:83], exec\ns_and_b64 exec, exec, 0xffff\ns_cbranch_execz L_ln_q')
        for sp in range(3): a(f's_add_u32 s75, s76, {sp*4*9216 + 8192}\nbuffer_load_dwordx4 {vr(M+12*sp+8,4)}, v{a1}, s[12:15], s75 offen {PF}')
        a('L_ln_q:\ns_mov_b64 exec, s[82:83]')
        a('s_waitcnt vmcnt(0)')
        for r in range(36): a(f'v_xor_b32 v{M+r}, s77, v{M+r}')
        a(f'v_or_b32 v{a2}, v{M}, v{M+1}')
        for r in range(2, 36, 2): a(f'v_or3_b32 v{a2}, v{a2}, v{M+r}, v{M+r+1}')
        a(f'v_and_b32 v{a2}, 255, v{a2}\nv_cmp_ne_u32 vcc, 0, v{a2}\ns_cbranch_vccz L_ln_g\ns_sub_u32 s74, s74, 1\ns_cmp_eq_u32 s74, 0\ns_cbranch_scc1 L_ln_g\ns_mov_b64 exec, vcc\ns_sleep {PSL}\ns_branch L_ln_p\nL_ln_g:\ns_mov_b64 exec, -1')
        self.stamp(14)
        a(f'v_add_u32 v{a2}, {TAB}, v{a0}')
        for r in range(0, 12, 2): a(f'v_pk_add_f32 {vr(M+r,2)}, {vr(M+r,2)}, {vr(M+12+r,2)}')
        for r in range(0, 12, 2): a(f'v_pk_add_f32 {vr(M+r,2)}, {vr(M+r,2)}, {vr(M+24+r,2)}')
        for r in range(4, 12): a(f'v_add_f32 v{M+r}, v{M+r}, v{222 + (r >> 3)}')
        for k in range(2): a(f'ds_write_b128 v{a2}, {vr(M+4*k,4)} offset:{k*4096}')
        a(f'v_add_u32 v{a1}, {TAB}, v{a1}\ns_mov_b64 exec, 0xffff\nds_write_b128 v{a1}, {vr(M+8,4)} offset:8192\ns_mov_b64 exec, -1')
        self.lds_arrive(14, self.VONE)
    def ln(self, gv):
        a = self.a; X = self.LX; F = 32
        a(f'v_subrev_u32 v0, 256, v0\nv_mov_b32 v{self.VONE}, 1\nv_mov_b32 v{self.VZERO}, 0\ns_sub_u32 s3, s3, 4')
        a(f'v_lshrrev_b32 v176, 4, v0\nv_and_b32 v177, 15, v0\nv_mul_u32_u24 v176, {RP}, v176\nv_lshl_add_u32 v176, v177, 4, v176')
        a(f's_and_b32 s83, s10, 127\ns_mul_i32 s83, s83, {16*RP}\ns_cmp_ge_u32 s10, 128')
        a(f's_cselect_b32 s24, s{PTR["x_txt"]}, s{PTR["x_img"]}\ns_cselect_b32 s25, s{PTR["x_txt"]+1}, s{PTR["x_img"]+1}')
        a(f's_mov_b32 s26, {SZ["x_img"]}\ns_cselect_b32 s26, {SZ["x_txt"]}, s26\ns_mov_b32 s27, 0x20000')
        if gv: a(f'v_mov_b32 v14, {CX+32}'); self.lds_wait4(14, 180)
        for i in range(9): a(f'buffer_load_dwordx4 {vr(X+4*i,4)}, v176, s[24:27], s83 offen offset:{i*256} nt')
        self.tag()
        a('s_waitcnt vmcnt(0)')
        for i in range(9):
            for d in range(4):
                a(f'v_lshlrev_b32 v{F+8*i+2*d}, 16, v{X+4*i+d}\nv_and_b32 v{F+8*i+2*d+1}, 0xffff0000, v{X+4*i+d}')
        def rowsum(v, t):
            for r in (8, 4, 2, 1):
                a(f's_nop 1\nv_add_f32_dpp v{t}, v{v}, v{v} row_ror:{r} row_mask:0xf bank_mask:0xf')
                v, t = t, v
            return v
        a0, a1, a2, a3 = 180, 181, 182, 183
        a(f'v_pk_add_f32 {vr(a0,2)}, {vr(F,2)}, {vr(F+2,2)}')
        for e in range(4, 72, 2): a(f'v_pk_add_f32 {vr(a0,2)}, {vr(a0,2)}, {vr(F+e,2)}')
        a(f'v_add_f32 v{a0}, v{a0}, v{a1}')
        v = rowsum(a0, a1)
        a(f'v_mul_f32 v{a0}, {f2u(-1.0/1152):#x}, v{v}')
        for e in range(0, 72, 2): a(f'v_pk_add_f32 {vr(F+e,2)}, {vr(F+e,2)}, {vr(a0,2)} op_sel_hi:[1,0]')
        a(f'v_mov_b32 v14, {CX+20}'); self.lds_arrive(14, self.VONE)
        a(f'v_pk_mul_f32 {vr(a2,2)}, {vr(F,2)}, {vr(F,2)}')
        for e in range(2, 72, 2): a(f'v_pk_fma_f32 {vr(a2,2)}, {vr(F+e,2)}, {vr(F+e,2)}, {vr(a2,2)}')
        a(f'v_add_f32 v{a1}, v{a2}, v{a3}')
        v = rowsum(a1, a2)
        a(f'v_mov_b32 v{a0}, {f2u(1e-5):#x}\nv_fmac_f32 v{a0}, {f2u(1.0/1152):#x}, v{v}\nv_rsq_f32 v{a0}, v{a0}\ns_nop 0')
        for e in range(0, 72, 2): a(f'v_pk_mul_f32 {vr(F+e,2)}, {vr(F+e,2)}, {vr(a0,2)} op_sel_hi:[1,0]')
        self.stamp(15)
        a('s_lshr_b32 s80, s10, 7\ns_lshr_b32 s81, s10, 6\ns_bfe_u32 s75, s10, 0x10001\ns_cmp_eq_u32 s80, 1\ns_cselect_b32 s81, s75, s81')
        TAB = XL + 8192
        a(f'v_lshlrev_b32 v{a0}, 4, v0\nv_mov_b32 v14, {CX+16}')
        a(f's_and_b32 s75, s10, 63\ns_mul_i32 s76, s75, {16*RP}\ns_mul_i32 s75, s81, {1056*RP}\ns_add_u32 s75, s75, {WS_H}')
        a(f's_cmp_eq_u32 s80, 1\ns_cselect_b32 s75, {WS_HT}, s75\ns_add_u32 s76, s76, s75')
        a('s_lshl_b32 s75, s80, 30\nv_or_b32 v176, s75, v176')
        self.sig_index('LN')
        a(f'v_lshlrev_b32 v{a2}, 5, v177\nv_add_u32 v{a2}, {TAB}, v{a2}')
        self.lds_wait4(14, a3)
        self.stamp(14)
        B = [104, 184]
        def rd(i0, p):
            for i in range(i0, i0 + 2):
                if i < 9:
                    k = i - i0
                    for h in range(2):
                        a(f'ds_read_b128 {vr(B[p]+16*k+4*h,4)}, v{a2} offset:{i*512+h*16}\nds_read_b128 {vr(B[p]+16*k+8+4*h,4)}, v{a2} offset:{4608+i*512+h*16}')
        rd(0, 0)
        for n, i0 in enumerate(range(0, 9, 2)):
            p = n & 1
            rd(i0 + 2, p ^ 1)
            left = 4 * max(0, min(9, i0 + 4) - (i0 + 2))
            a(f's_waitcnt lgkmcnt({left})')
            for i in range(i0, min(9, i0 + 2)):
                sh = B[p] + 16 * (i - i0); sc = sh + 8
                for e in range(0, 8, 2): a(f'v_pk_fma_f32 {vr(sh+e,2)}, {vr(F+8*i+e,2)}, {vr(sc+e,2)}, {vr(sh+e,2)}')
                for d in range(4): a(f'v_cvt_pk_bf16_f32 v{X+4*i+d}, v{sh+2*d}, v{sh+2*d+1}')
                a(f'buffer_store_dwordx4 {vr(X+4*i,4)}, v176, s[12:15], s76 offen offset:{i*256} sc1')
        a(f's_cmp_eq_u32 s80, 0\ns_cbranch_scc1 L_ln_rm\nv_and_b32 v176, 0xf0, v0\nv_add_u32 v{a1}, v{a0}, v176\nv_mul_u32_u24 v177, 272, v177\nv_add_u32 v176, v177, v176\nv_mov_b32 v14, {CX+24}')
        for i in range(9): a(f'ds_write_b128 v176, {vr(X+4*i,4)} offset:{i*4352}')
        self.lds_arrive(14, self.VONE)
        self.lds_wait4(14, a3)
        for i in range(9): a(f'ds_read_b128 {vr(X+4*i,4)}, v{a1} offset:{i*4352}')
        for i in range(9): a(f's_waitcnt lgkmcnt({8-i})\nbuffer_store_dwordx4 {vr(X+4*i,4)}, v{a0}, s[12:15], s76 offen sc1\ns_add_u32 s76, s76, 4096')
        a('L_ln_rm:')
        self.signal_one()
        a('s_add_u32 s3, s3, 4')

    def idx_main(self):
        a = self.a
        a('s_and_b32 s92, s2, 3\ns_lshr_b32 s93, s2, 3\ns_bfe_u32 s60, s2, 0x10002')
        self.sdiv('s62', 's93', 5, 's61')
        a('s_lshr_b32 s70, s93, 2\ns_and_b32 s71, s93, 3\ns_bitcmp1_b32 s92, 0\ns_cselect_b32 s62, s70, s62\ns_cselect_b32 s61, s71, s61')
        a('s_lshl_b32 s70, s92, 2\ns_lshr_b32 s71, 0x0650, s70\ns_and_b32 s71, s71, 15\ns_add_u32 s62, s62, s71\ns_lshr_b32 s71, 0x5400, s70\ns_and_b32 s71, s71, 15\ns_add_u32 s61, s61, s71')
        a('s_mul_i32 s92, s92, 25\ns_add_u32 s92, s92, s93')
        a('s_cmp_eq_u32 s92, 20\ns_cselect_b32 s61, 4, s61\ns_cselect_b32 s62, 5, s62\ns_cmp_eq_u32 s92, 49\ns_cselect_b32 s62, 4, s62')
        self.set_bij('img')
        seen = set()
        for x in range(4):
            for jj in range(25):
                j, i = divmod(jj, 4 if x & 1 else 5); j += (0x0650 >> 4 * x) & 15; i += (0x5400 >> 4 * x) & 15
                if 25 * x + jj == 20: i, j = 4, 5
                if 25 * x + jj == 49: j = 4
                if 25 * x + jj < 99: seen.add((i, j))
        assert seen == {(i, j) for i in range(9) for j in range(11)}
    def idx_u(self, skip, sid='s2'):
        a = self.a
        a(f's_cmp_ge_u32 {sid}, 112\ns_cbranch_scc1 {skip}\ns_and_b32 s92, {sid}, 7\ns_mul_i32 s92, s92, 14\ns_lshr_b32 s93, {sid}, 3\ns_add_u32 s92, s92, s93\ns_cmp_ge_u32 s92, 108\ns_cbranch_scc1 {skip}')
        self.sdiv('s70', 's92', 36, 's71'); self.sdiv('s62', 's71', 3, 's61')
        a('s_mul_i32 s70, s70, 3\ns_add_u32 s61, s61, s70\ns_mov_b32 s60, 0\ns_lshl_b32 s65, s61, 8')
    AUXOPS = ['end', 'T', 'VT', 'Y', 'AT', 'OT', 'X', 'G', 'OP']
    AUXPROG = [(0, 'X T Y VT'), (18, 'X T Y AT'), (36, 'X T G OP OT'), (42, 'X G T G OP OT'), (51, 'G T G OP OT'), (54, 'G G G')]
    SB = 64; SA = [212, 228]; SBASE = [2, 5]
    def idx_aux(self, t):
        a = self.a
        if t in ('T', 'VT'): a('s_mov_b32 s61, s9')
        elif t in ('OT', 'OP', 'AT'): a(f's_sub_u32 s61, s9, {18 if t == "AT" else 36}')
        else: self.sdiv('s60', 's9', 18, 's61')
        a('s_lshl_b32 s65, s61, 7')
    def sk_loader(self, t):
        a = self.a; L = self.LV; tm = L['t']
        def wgt(name, sreg, const=0):
            a(f's_add_u32 s67, {sreg}, {const}\ns_sub_u32 s66, {SZ[name]}, s67'); self.srd(16, name, 's67', 's66')
        def poll(r): self.flag_lanes(L['vF'], tm, r); a('s_call_b64 s[68:69], L_lpoll')
        lay, pitch, n = 'T', RP, 18
        if t == 'OT':
            self.lin('s70', [('s61', 2)], F_GG + 36)
            if self.flags: self.w4(lambda: poll([('s70', 2)]))
            a('s_barrier')
            if self.flags: self.w4(lambda: poll([(F_AT, 18)]))
            a('s_waitcnt vmcnt(0)\ns_barrier\ns_barrier')
            return
        if t == 'T': wgt('wqkv_txt', 's65'); pitch = 6912; dep = [(F_LN + 128, 4)]
        elif t == 'VT': wgt('wo_img', 's65'); dep = [(F_T + 36, 18)]
        elif t == 'AT': wgt('wqkv_img', 's65', 4608); pitch = 6912; dep = [(F_Y, 36)]
        elif t == 'OP': wgt('wo_txt', 's65')
        elif t == 'Y':
            if self.flags: self.lin('s70', [('s60', 64)], F_LN); poll([('s70', 64)])
            self.lin('s67', [('s60', 1056 * RP), ('s65', 1)], WS_H); self.srd(16, 'ws', 's67', 1056 * RP)
            n = 16; dep = [('s71', 17)]
        v = L['vA']
        a(f's_sub_u32 s84, s3, 4\ns_mov_b32 s76, {pitch}\ns_mul_i32 s80, s84, {2*PS}\ns_lshl_b32 s84, s84, 4\nv_and_b32 v{tm}, 3, v1\nv_lshlrev_b32 v{tm}, 4, v{tm}')
        if lay == 'T':
            a(f'v_lshrrev_b32 v{tm+1}, 5, v1\nv_bfe_u32 v{tm+2}, v1, 2, 2\nv_lshl_add_u32 v{tm+1}, v{tm+1}, 2, v{tm+2}\nv_bfe_u32 v{tm+2}, v1, 4, 1')
        a(f'v_lshl_add_u32 v{tm}, v{tm+2}, 6, v{tm}\nv_add_u32 v{tm+1}, s84, v{tm+1}\nv_mad_u32_u24 v{v}, v{tm+1}, s76, v{tm}\nv_add_u32 v{v+1}, {8*pitch - PS}, v{v}')
        a(f's_mov_b32 s78, {64*pitch if lay == "T" else 2048}\ns_mov_b32 s83, {n}\ns_call_b64 s[86:87], {"L_panel_nt" if t in ("T", "OP") else "L_panel"}')
        if t == 'OP': return
        if t == 'Y':
            def stdep():
                a('s_lshl_b32 s70, s61, 1'); self.sdiv('s71', 's70', 3); a('s_min_u32 s71, s71, 9')
                self.lin('s70', [('s60', 99), ('s71', 9)], F_K)
                a(f's_cmp_eq_u32 s61, 16\ns_cselect_b32 s70, {F_T+18}, s70'); poll([('s70', 18)])
            if self.flags: self.w4(lambda: poll([(F_T, 18)]))
            a('s_barrier')
            if self.flags: self.w4(stdep)
            a('s_waitcnt vmcnt(0)\ns_barrier')
            if self.flags: a(f's_add_u32 s70, s61, {F_T+36}'); poll([('s70', 1)])
            a('s_mov_b32 s83, 1\ns_call_b64 s[86:87], L_panel_l')
            self.lin('s71', [('s60', 17)], F_PT)
        if self.flags: self.w4(lambda: poll(dep))
        a('s_waitcnt vmcnt(0)\ns_barrier\ns_barrier')
    def panel_subs(self):
        a = self.a; v = self.LV['vA']
        for lab, fl in (('L_panel', 'sc1'), ('L_panel_nt', 'nt')):
            a(f'{lab}:\ns_mov_b32 s81, 0\n{lab}_l:\ns_mov_b32 m0, s80\ns_add_u32 s80, s80, {8*PS}')
            a(f'buffer_load_dwordx4 v{v}, s[16:19], s81 offen {fl} lds\nbuffer_load_dwordx4 v{v+1}, s[16:19], s81 offen offset:{PS} {fl} lds')
            a(f's_add_u32 s81, s81, s78\ns_sub_u32 s83, s83, 1\ns_cmp_lg_u32 s83, 0\ns_cbranch_scc1 {lab}_l\ns_setpc_b64 s[86:87]')
    def sk_static(self):
        a = self.a; T, K = self.SBASE; x, y = 208, 209
        a(f'v_lshrrev_b32 v{x}, 4, v1\nv_mul_u32_u24 v{T}, {PS}, v{x}\nv_bfe_u32 v{y}, v1, 2, 2\nv_lshl_add_u32 v{T}, v{y}, 6, v{T}\nv_and_b32 v{y}, 3, v1\nv_lshl_add_u32 v{T}, v{y}, 3, v{T}')
        a(f's_xor_b32 s92, s90, 1\ns_mul_i32 s93, s92, {64*PS}\nv_add_u32 v{K}, s93, v{T}\ns_lshl_b32 s92, s92, 14\ns_mul_i32 s93, s91, {36*1024}\ns_add_u32 s92, s92, s93\nv_lshl_add_u32 v245, v1, 4, s92')
        for b in (T, K):
            for k in (1, 2): a(f'v_add_u32 v{b+k}, {k*48*PS}, v{b}')
        a(f's_mul_i32 s92, s3, {36*1024}\nv_lshl_add_u32 v246, v1, 4, s92\nv_bfe_u32 v{y}, v1, 4, 1\nv_lshlrev_b32 v{y}, 9, v{y}\nv_lshrrev_b32 v{x}, 5, v1\nv_lshl_add_u32 v{y}, v{x}, 8, v{y}')
        a(f'v_and_b32 v{x}, 15, v1\nv_lshl_add_u32 v{y}, v{x}, 4, v{y}\nv_add_u32 v247, s92, v{y}')
        a(f'v_and_b32 v{x}, 12, v1\nv_bfe_u32 v{y}, v1, 4, 1\ns_lshl_b32 s92, s3, 4\nv_add3_u32 v{x}, v{x}, v{y}, s92\nv_mul_u32_u24 v{x}, {RP}, v{x}')
        a(f'v_and_b32 v{y}, 127, v{self.VCOL}\nv_add_u32 v248, v{x}, v{y}\nv_add_u32 v249, {2*RP}, v248')
    def sk_sub(self, lab, lay, fold=False):
        a = self.a; SB = self.SB; nk = 17 if fold else 36
        base = self.SBASE[1 if fold else 0]; vb = 245 if fold else 246
        def rd(kk):
            st = self.SA[kk & 1]; b = base + kk // 12; k = kk % 12
            if lay == 'K': return [f'ds_read_b128 {vr(st+4*t,4)}, v{b} offset:{(8*(k>>1)+2*t+(k&1))*PS}' for t in range(4)]
            return [f'ds_read_b64_tr_b16 {vr(st+4*t+2*h,2)}, v{b} offset:{4*k*PS + h*512 + (t>>1)*256 + (t&1)*32}' for t in range(4) for h in range(2)]
        a(f'{lab}:')
        AH = 17 if fold else SKAH
        def ldb(kk):
            return ([f's_mov_b32 s92, {kk*1024}'] if kk % 4 == 0 else []) + [f'buffer_load_dwordx4 {vr(SB+4*kk,4)}, v{vb}, s[20:23], s92 offen offset:{(kk%4)*1024} sc1']
        if fold: self.sk_factors(lambda: [a(x) for kk in range(AH) for x in ldb(kk)], AH)
        else:
            for kk in range(AH):
                for x in ldb(kk): a(x)
        if fold: self.stamp(25)
        seq = rd(0)
        for kk in range(nk):
            st = self.SA[kk & 1]
            acc = 16 if not fold else (48, 196)[(kk >> 1) & 1]
            zero = kk == 0 if not fold else kk % 2 == 0
            nxt = rd(kk + 1) if kk + 1 < nk else []
            ex = []
            if fold and kk % 2 == 1 and kk > 1 or fold and kk == nk - 1:
                r = (kk >> 1) - 1; pv = (48, 196)[r & 1]
                ex = [(f'v_mul_f32 v{16+e}, v{pv+e}, v{32+r}' if r == 0 else f'v_fmac_f32 v{16+e}, v{pv+e}, v{32+r}') for e in range(16)]
                if kk == nk - 1: ex = ['s_nop 7'] + ex
            seq.append(f's_waitcnt vmcnt({min(AH, nk-kk)-1})')
            for t in range(4):
                d = vr(acc + 4 * t, 4)
                seq.append(f'v_mfma_f32_16x16x32_bf16 {d}, {vr(st+4*t,4)}, {vr(SB+4*kk,4)}, {"0" if zero else d}')
                seq += nxt[t * len(nxt) // 4:(t + 1) * len(nxt) // 4]
            seq += ex
            if kk + AH < nk: seq += ldb(kk + AH)
        self.emit_waits(seq, [])
        a('s_nop 7\ns_setpc_b64 s[86:87]')
    def sk_factors(self, mid, nmid):
        a = self.a; st = 208; m = 250
        dst = lambda r: st + 2 * r if r < 16 else 252
        a(f'v_and_b32 v{m}, 15, v1\ns_lshl_b32 s92, s91, 4\nv_add_lshl_u32 v{m}, v{m}, s92, 3\ns_mul_i32 s93, s90, {8*1056*8}\nv_add_u32 v{m+1}, s93, v{m}\ns_sub_u32 s93, {8*1056*8}, s93\nv_add_u32 v{m+4}, s93, v{m}')
        for r in range(17): a(f's_mov_b32 s92, {(r & 7 if r < 16 else 16)*1056*8}\nbuffer_load_dwordx2 {vr(dst(r),2)}, v{m + (4, 1, 0)[r >> 3]}, s[28:31], s92 offen sc1')
        mid()
        a(f's_waitcnt vmcnt({nmid})\nv_max3_f32 v{m}, v{dst(0)}, v{dst(1)}, v{dst(2)}')
        for r in range(3, 17, 2): a(f'v_max3_f32 v{m}, v{m}, v{dst(r)}, v{dst(r+1)}')
        for r in range(17): a(f'v_sub_f32 v{dst(r)}, v{dst(r)}, v{m}')
        for r in range(17): a(f'v_exp_f32 v{dst(r)}, v{dst(r)}')
        a(f'v_mul_f32 v{m+1}, v{dst(0)}, v{dst(0)+1}')
        for r in range(1, 17): a(f'v_fmac_f32 v{m+1}, v{dst(r)}, v{dst(r)+1}')
        a(f'v_rcp_f32 v{m+1}, v{m+1}\ns_nop 0')
        for r in list(range(8)) + [16]: a(f'v_mul_f32 v{32+r if r < 16 else m}, v{dst(r)}, v{m+1}')
    def sk_pack(self, P=64):
        for t in range(4): self.a(f'v_cvt_pk_bf16_f32 v{P+2*t}, v{16+4*t}, v{17+4*t}\nv_cvt_pk_bf16_f32 v{P+2*t+1}, v{18+4*t}, v{19+4*t}')
    def sk_epi_subs(self):
        a = self.a
        a('L_sk_ft:'); self.sk_pack(); a('s_nop 1')
        for r in (0, 4):
            for d in range(2): a(f'v_permlane16_swap_b32 v{64+r+d}, v{66+r+d}')
        for p in range(2): a(f'buffer_store_dwordx4 {vr(64+4*p,4)}, v247, s[12:15], s70 offen offset:{1024*p} sc1')
        a('s_setpc_b64 s[68:69]')
        a('L_sk_row:'); self.sk_pack(72); self.xpose(72, 80, nj=1)
        a(f's_lshr_b32 s92, s3, 1\ns_mul_i32 s92, s92, {1024*RP}\ns_add_u32 s92, s92, s71')
        for p in range(2): a(f'buffer_store_dwordx4 {vr(72+4*p,4)}, v{248+p}, s[12:15], s92 offen sc1')
        a('s_setpc_b64 s[68:69]')
    def st_compute(self):
        a = self.a; lab = 'L_std'
        ft = lambda base, bmul=0: self.lin('s70', [('s61', 2048), ('s60', bmul)], base)
        self.lin('s67', [('s60', FTS // 2)], WS_QT); self.srd(20, 'ws', 's67', FTS // 2)
        self.lin('s67', [('s60', 1056 * RP), ('s61', 64 * RP)], WS_K)
        a(f's_mov_b32 s66, {64*RP}\ns_cmp_eq_u32 s61, 16\ns_cselect_b32 s66, {32*RP}, s66'); self.srd(16, 'ws', 's67', 's66')
        self.lin('s67', [('s60', 17 * 1056 * 8), ('s61', 1056 * 8)], WS_ST + 1024 * 8); self.srd(28, 'ws', 's67', 0x100000)
        A0 = 48
        a(f's_mul_i32 s92, s3, 9216\nv_lshl_add_u32 v{A0}, v1, 4, s92')
        for t in range(1, 4): a(f'v_add_u32 v{A0+t}, {t*36864}, v{A0}')
        a(f's_and_b32 s92, s3, 1\ns_mul_i32 s93, s92, 36864\nv_add_u32 v{A0+4}, s93, v{A0}\ns_sub_u32 s93, 36864, s93\nv_add_u32 v{A0+5}, s93, v{A0}')
        R0 = 136 * PS
        a(f's_lshl_b32 s92, s92, 13\ns_add_u32 s92, s92, {R0}\nv_lshl_add_u32 v{A0+6}, v1, 4, s92\nv_xor_b32 v{A0+7}, s92, v{A0+6}\ns_sub_u32 s92, {2*R0 + 8192}, s92\nv_lshl_add_u32 v{A0+7}, v1, 4, s92\nv_mov_b32 v{A0+8}, {CX+48}\nv_mov_b32 v{A0+9}, {CX+52}')
        B = lambda kk, j: 64 + 8 * kk + 4 * j
        a('s_barrier')
        for kk in range(9):
            if kk % 4 == 0: a(f's_mov_b32 s92, {kk*1024}')
            for j in range(2): a(f'buffer_load_dwordx4 {vr(B(kk,j),4)}, v{A0+4+j}, s[20:23], s92 offen offset:{(kk%4)*1024} sc1')
        a(f's_barrier\ns_cmp_eq_u32 s61, 17\ns_cbranch_scc1 {lab}_x')
        if not self.do_st: a(f's_branch {lab}_x')
        self.stamp(18)
        A = lambda kk, t: 136 + 16 * (kk % 6) + 4 * t
        def ld(kk):
            if kk % 4 == 0: a(f's_mov_b32 s92, {kk*1024}')
            for t in range(4): a(f'buffer_load_dwordx4 {vr(A(kk,t),4)}, v{A0+t}, s[16:19], s92 offen offset:{(kk%4)*1024} sc1')
        for kk in range(6): ld(kk)
        for kk in range(9):
            a(f's_waitcnt vmcnt({4*(min(9, kk+6)-kk-1)})')
            for j in range(2):
                for t in range(4):
                    d = vr(16 + 16 * j + 4 * t, 4)
                    a(f'v_mfma_f32_16x16x32_bf16 {d}, {vr(A(kk,t),4)}, {vr(B(kk,j),4)}, {"0" if kk == 0 else d}')
            if kk + 6 < 9: ld(kk + 6)
        self.stamp(24)
        a(f's_nop 7\ns_cmp_lt_u32 s3, 2\ns_cbranch_scc1 {lab}_o')
        for q in range(8): a(f'ds_write_b128 v{A0+6}, {vr(16+4*q,4)} offset:{1024*q}')
        self.lds_arrive(A0 + 8, self.VONE)
        a(f's_branch {lab}_e\n{lab}_o:')
        self.lds_wait4(A0 + 8, 60, 2)
        for q in range(8): a(f'ds_read_b128 {vr(64+4*q,4)}, v{A0+6} offset:{1024*q}')
        a('s_waitcnt lgkmcnt(0)')
        for e in range(32): a(f'v_add_f32 v{16+e}, v{16+e}, v{64+e}')
        for q in range(4): a(f'ds_write_b128 v{A0+6}, {vr(32+4*q,4)} offset:{1024*q}')
        self.lds_arrive(A0 + 9, self.VONE)
        self.lds_wait4(A0 + 9, 60, 2)
        for q in range(4): a(f'ds_read_b128 {vr(64+4*q,4)}, v{A0+7} offset:{1024*q}')
        a('s_waitcnt lgkmcnt(0)')
        for e in range(16): a(f'v_add_f32 v{16+e}, v{16+e}, v{64+e}')
        a(f's_cmp_lg_u32 s61, 16\ns_cbranch_scc1 {lab}_m')
        for e in range(8, 16): a(f'v_mov_b32 v{16+e}, 0xff800000')
        a(f'{lab}_m:\nv_max_f32 v32, v16, v17')
        for e in range(2, 16, 2): a(f'v_max3_f32 v32, v32, v{16+e}, v{17+e}')
        self.allred(32, 34, 'v_max_f32', 1)
        a(f's_mov_b32 s92, {f2u(LOG2E * D ** -0.5):#x}\nv_mul_f32 v32, s92, v32')
        for e in range(16): a(f'v_fma_f32 v{16+e}, v{16+e}, s92, -v32')
        for e in range(16): a(f'v_exp_f32 v{16+e}, v{16+e}')
        ft(WS_PT, FTS // 2); a('s_call_b64 s[68:69], L_sk_ft\nv_add_f32 v33, v16, v17')
        for e in range(2, 16): a(f'v_add_f32 v33, v33, v{16+e}')
        self.allred(33, 34, 'v_add_f32', 1)
        a('s_lshl_b32 s92, s3, 7\nv_lshlrev_b32 v34, 3, v1\ns_mov_b64 exec, 0xffff\nbuffer_store_dwordx2 v[32:33], v34, s[28:31], s92 offen sc1\ns_mov_b64 exec, -1')
        a(f'{lab}_e:')
        self.sig_index('ST'); self.signal_one() if ONE > 1 else self.signal_now()
        self.stamp(19)
        a(f'{lab}_x:')
    def sk_compute(self, t):
        a = self.a
        half = t == 'Y'
        if half: self.st_compute()
        lab = a.label('sk')
        src = {'T': WS_HT, 'VT': WS_VT, 'ST': WS_QT, 'Y': WS_PT, 'AT': WS_Y, 'OT': WS_AT}[t]
        if half:
            self.lin('s67', [('s60', FTS // 2)], src)
            self.srd(20, 'ws', 's67', FTS // 2)
            self.lin('s67', [('s60', 17 * 1056 * 8), ], WS_ST + 1024 * 8); self.srd(28, 'ws', 's67', 0x100000)
        else: self.srd(20, 'ws', src, FTS)
        ft = lambda base, bmul=0: self.lin('s70', [('s61', 2048), ('s60', bmul)], base)
        if t == 'OT':
            a(f's_add_u32 s70, s65, {SZ["x_img"]}\ns_sub_u32 s71, {64*RP}, s65')
            self.srd(24, 'out', 's70', 's71'); self.srd(32, 'x_txt', 's65', 's71')
            a('s_barrier')
            for p in range(2): a(f'buffer_load_dwordx4 {vr(48+4*p,4)}, v{248+p}, s[32:35], 0 offen')
            a('s_lshr_b32 s71, s3, 1'); self.lin('s70', [('s71', 4608), ('s61', 256)], WS_GATE + 2 * 4608); a('v_and_b32 v250, 48, v1')
            for sp in range(2):
                for it in range(4): a(f'buffer_load_dwordx4 {vr((32, 160, 176)[sp]+4*it,4)}, v250, s[12:15], s70 offen offset:{64*it} sc1')
                a(f's_add_u32 s70, s70, {4*4608}')
            a('s_waitcnt vmcnt(0)')
            for e in range(16): a(f'v_add_f32 v{32+e}, v{32+e}, v{160+e}')
            self.xpose(48, 64, inverse=True, nj=1)
        a('s_barrier')
        self.stamp({'T': 20, 'Y': 22}.get(t, 16))
        if half and not self.do_y: a(f's_branch {lab}_s')
        if t == 'AT':
            self.lin('s70', [('s3', 18 * 4096), ('s61', 4096)], WS_Z); a('v_lshlrev_b32 v250, 4, v1')
            for it in range(4): a(f'buffer_load_dwordx4 {vr(32+4*it,4)}, v250, s[12:15], s70 offen offset:{1024*it} sc1')
        a(f's_call_b64 s[86:87], {"L_sky" if t == "Y" else "L_skt"}')
        if half:
            a(f's_lshl_b32 s92, s91, 12\ns_add_u32 s92, s92, {XL+8192}\nv_lshl_add_u32 v64, v1, 4, s92\ns_cmp_lt_u32 s3, 2\ns_cbranch_scc1 {lab}_o')
            for q in range(4): a(f'ds_write_b128 v64, {vr(16+4*q,4)} offset:{1024*q}')
            a(f's_waitcnt lgkmcnt(0)\ns_branch {lab}_s\n{lab}_o:\ns_barrier')
            for q in range(4): a(f'ds_read_b128 {vr(68+4*q,4)}, v64 offset:{1024*q}')
            a('s_waitcnt lgkmcnt(0)')
            for e in range(16): a(f'v_add_f32 v{16+e}, v{16+e}, v{68+e}')
        else: a('s_barrier')
        self.stamp({'T': 21, 'Y': 23}.get(t, 17))
        if t == 'T':
            a(f's_cmp_ge_u32 s61, 18\ns_cbranch_scc1 {lab}_k'); ft(WS_QT); a(f's_call_b64 s[68:69], L_sk_ft\ns_branch {lab}_e\n{lab}_k:')
            a(f's_cmp_ge_u32 s61, 36\ns_cbranch_scc1 {lab}_v\ns_lshr_b32 s71, s3, 1')
            self.lin('s70', [('s61', 2048), ('s71', 1024 * RP)], WS_K + 1024 * RP - 18 * 2048); a(f's_call_b64 s[68:69], L_sk_ft\ns_branch {lab}_e\n{lab}_v:')
            ft(WS_VT - 36 * 2048); a(f's_call_b64 s[68:69], L_sk_ft\ns_add_u32 s71, s65, {WS_H + 1024*RP - 4608}')
            a('s_call_b64 s[68:69], L_sk_row')
        elif t == 'VT': a(f's_add_u32 s71, s65, {WS_V + 1024*RP}\ns_call_b64 s[68:69], L_sk_row')
        elif t == 'AT':
            for e in range(16): a(f'v_add_f32 v{16+e}, v{16+e}, v{32+e}')
            ft(WS_AT); a('s_call_b64 s[68:69], L_sk_ft')
        elif t == 'Y':
            ft(WS_Y, FTS // 2); a('s_call_b64 s[68:69], L_sk_ft')
            for e in range(16): a(f'v_mul_f32 v{48+e}, v{48+e}, v250')
            self.lin('s70', [('s60', 36 * 4096), ('s3', 18 * 4096), ('s61', 4096)], WS_Z); a('v_lshlrev_b32 v250, 4, v1')
            for it in range(4): a(f'buffer_store_dwordx4 {vr(48+4*it,4)}, v250, s[12:15], s70 offen offset:{1024*it} sc1')
        elif t == 'OT':
            for it in range(4):
                for d in range(2): a(f'v_lshlrev_b32 v{64+2*d}, 16, v{48+2*it+d}\nv_and_b32 v{65+2*d}, 0xffff0000, v{48+2*it+d}')
                for r in range(4): a(f'v_fmac_f32 v{64+r}, v{16+4*it+r}, v{32+4*it+r}')
                for d in range(2): a(f'v_cvt_pk_bf16_f32 v{48+2*it+d}, v{64+2*d}, v{65+2*d}')
            self.xpose(48, 64, nj=1)
            for p in range(2): a(f'buffer_store_dwordx4 {vr(48+4*p,4)}, v{248+p}, s[24:27], 0 offen sc1')
        if half: a(f's_branch {lab}_e\n{lab}_s:\ns_barrier')
        a(f'{lab}_e:')
        if t != 'OT': self.sig_index(t); self.signal_one() if ONE > 1 else self.signal_now()
        else: a(f's_add_u32 s92, s61, s3\ns_cmp_lg_u32 s92, 0\ns_cbranch_scc1 {lab}_t\nv_mov_b32 v255, s11\ns_mov_b32 s92, {WS_E}\ns_mov_b64 exec, 1\nbuffer_store_dword v255, v{self.VZERO}, s[12:15], s92 offen sc1\ns_mov_b64 exec, -1\n{lab}_t:')
    def aux_interp(self, side, only):
        a = self.a; p = f'L_{side}x'; self.do_st = only is None or 'ST' in only; self.do_y = only is None or 'Y' in only
        a('s_mov_b32 s8, 0\ns_mov_b32 s60, 0\ns_mov_b32 s10, 0\ns_sub_u32 s62, s9, 42\ns_sub_u32 s92, s9, 18\ns_cmp_lt_u32 s9, 42\ns_cselect_b32 s62, s92, s62')
        if side == 'c': self.sk_static()
        for lim, prog in self.AUXPROG:
            ops = [o for o in prog.split() if only is None or o in only or (o == 'Y' and 'ST' in only) or (o == 'OP' and 'OT' in only)]
            code = sum(self.AUXOPS.index(o) << (4 * k) for k, o in enumerate(ops))
            a(f's_cmp_ge_u32 s9, {lim}\ns_cselect_b32 s8, {code}, s8')
        a(f'{p}_next:\ns_and_b32 s92, s8, 15\ns_lshr_b32 s8, s8, 4')
        for k, o in enumerate(self.AUXOPS[1:], 1): a(f's_cmp_eq_u32 s92, {k}\ns_cbranch_scc1 {p}_{o}')
        a('s_branch L_fin')
        for k, o in enumerate(self.AUXOPS[1:], 1):
            a(f'{p}_{o}:')
            if o == 'P':
                a('s_sub_u32 s84, s9, 42'); self.prefetch_qk(0, PFR); a('s_waitcnt vmcnt(0)')
            elif o in 'XG':
                if o == 'G':
                    a(f's_barrier\ns_lshl_b32 s92, s62, 1\ns_add_u32 s92, s92, {int(side == "l")}\ns_add_u32 s10, s10, 1')
                    a('s_cmp_lt_u32 s62, 12\ns_cselect_b32 s93, 24, 2\ns_add_u32 s62, s62, s93\ns_cmp_ge_u32 s92, 36\ns_cselect_b32 s93, 1, 0\ns_mul_i32 s75, s93, 36\ns_sub_u32 s92, s92, s75')
                    self.gemv_job('gate', 2); a('s_lshl_b32 s77, s10, 2')
                else:
                    g = int(side == 'l')
                    a(f's_lshl_b32 s92, s9, 1\ns_add_u32 s92, s92, {6 + g}\ns_add_u32 s93, s9, 48\ns_cmp_lt_u32 s9, 42\ns_cselect_b32 s92, s93, s92\ns_mov_b32 s81, 1\ns_mov_b32 s66, 2')
                    if g: a(f's_cbranch_scc0 {p}_X2\ns_barrier\ns_branch {p}_next\n{p}_X2:')
                    self.gemv_job('mod', 1)
                a('s_call_b64 s[86:87], L_gemv')
                if o == 'X':
                    self.gemv_loads(self.GW, self.GC); a('s_call_b64 s[86:87], L_gemv2\ns_barrier')
            else:
                self.idx_aux(o)
                if side == 'l': self.sk_loader(o)
                elif o != 'OP': self.sk_compute(o)
            self.stamp(k + 3)
            a(f's_branch {p}_next')
        if side == 'c':
            self.sk_sub('L_skt', 'T'); self.sk_sub('L_sky', 'T', True); self.sk_epi_subs()
        else: self.panel_subs()
    def kernel(self, name, only=None):
        a = self.a
        has = lambda t: only is None or t in only
        kernel_head(a, name)
        if self.instr: a('s_memrealtime s[94:95]')
        if DIAG: a('s_memrealtime s[72:73]\ns_memrealtime s[96:97]')
        a('s_load_dwordx8 s[36:43], s[0:1], 0\ns_load_dwordx8 s[44:51], s[0:1], 32\ns_load_dwordx8 s[52:59], s[0:1], 64')
        a('s_cmp_ge_u32 s2, 256\ns_cbranch_scc1 L_end')
        a('s_getpc_b64 s[6:7]\nL_pc:\ns_lshr_b32 s92, s2, 3\ns_lshl_b32 s92, s92, 11\nv_subrev_u32 v2, 384, v0\nv_lshl_add_u32 v3, v2, 4, s92')
        a('s_mov_b32 s4, s6\ns_mov_b32 s5, s7\ns_mov_b32 s6, L_end - L_pc\ns_mov_b32 s7, 0x20000\nv_cmp_gt_u32 vcc, 128, v2')
        a('s_cbranch_vccz L_nocpf\nbuffer_load_dwordx4 v[248:251], v3, s[4:7], 0 offen\nL_nocpf:')
        a('v_lshrrev_b32 v1, 6, v0\nv_mov_b32 v15, 0\nv_readfirstlane_b32 s3, v1\nv_and_b32 v1, 63, v0')
        a(f'v_lshlrev_b32 v2, 2, v1\nv_add_u32 v2, {CX}, v2\nds_write_b32 v2, v15')
        a('s_sub_u32 s9, s2, 200\ns_sub_u32 s10, s2, 112\ns_cmp_ge_u32 s2, 220\ns_cselect_b32 s81, 1, 0\ns_mul_i32 s92, s81, 108\ns_sub_u32 s92, s10, s92\ns_mov_b32 s66, 1')
        a('s_lshr_b32 s93, s3, 2\ns_mul_i32 s93, s93, 14\ns_add_u32 s92, s92, s93')
        self.gemv_job('mod')
        for i, g in ((195, 128), (199, 129), (240, 83), (241, 87), (242, 200), (243, 200), (254, 130), (255, 131)):
            a(f's_cmp_eq_u32 s2, {i}\ns_cselect_b32 s10, {g}, s10')
        a(f's_waitcnt lgkmcnt(0)\ns_load_dword s8, {sr(PTR["ws"],2)}, {WS_E}\ns_barrier')
        self.srd(12, 'ws', 0, SZ['ws'])
        self.stamp(0)
        if self.instr: a('v_writelane_b32 v15, s94, 30')
        self.prefetch_u()
        a('s_cmp_ge_u32 s3, 4\ns_cbranch_scc1 L_loader')
        main = ['M', 'V', 'S']
        self.hooks = []; self.xdma = only is None; self.preps = set(); self.gate_job = False
        if 'dup' in OPT: main = ['V', 'V', 'V', 'V', 'S']
        elif 'vs' in OPT: main = ['V', 'M', 'V', 'M', 'S']
        else: main = [t for t in main if has(t)]
        chain = only is None or 'dup' in OPT or 'vs' in OPT
        def spare(): a('s_cmp_ge_u32 s92, 99\ns_cbranch_scc1 L_fin')
        if 'late' in OPT: self.cp_static(); self.tag()
        if has('GV'): a('s_cmp_lt_u32 s2, 112\ns_cbranch_scc1 L_c_nogv\ns_call_b64 s[86:87], L_gemv\nL_c_nogv:')
        self.stamp(1)
        self.help_u()
        if 'late' not in OPT: self.cp_static(); self.tag()
        a('s_mov_b32 s7, 0')
        if has('LN'): a('s_cmp_ge_u32 s10, 132\ns_cbranch_scc1 L_notab'); self.mod_table(); a('L_notab:')
        a('s_mov_b32 s60, 0\ns_mov_b32 s62, 0\ns_mov_b32 s64, 0\ns_mov_b32 s65, 0')
        if self.instr:
            a('s_and_b32 s84, s2, 0xfffffffb\ns_cmp_lg_u32 s84, 195\ns_cbranch_scc1 L_notrace\ns_cmp_lg_u32 s3, 1\ns_cbranch_scc1 L_notrace\ns_mov_b32 s84, 0')
            a('L_trace:\ns_memrealtime s[72:73]\ns_memtime s[96:97]\ns_waitcnt lgkmcnt(0)\ns_mov_b32 m0, s84\ns_nop 4\nv_writelane_b32 v16, s72, m0\nv_writelane_b32 v17, s96, m0\ns_sleep 24\ns_add_u32 s84, s84, 1\ns_cmp_lt_u32 s84, 64\ns_cbranch_scc1 L_trace')
            a(f's_lshl_b32 s72, s2, 9\ns_add_u32 s72, s72, {WS_DBG + (1 << 20)}\nv_lshlrev_b32 v14, 3, v1\nbuffer_store_dwordx2 v[16:17], v14, s[12:15], s72 offen\ns_endpgm\nL_notrace:')
        self.stamp(3)
        body = self.a
        subs = Asm(); subs.uid = 10000; self.a = subs
        self.gemv_subs();
        self.chain = chain; er = self.capture(lambda: self.epi_rows(216))
        self.gemm_sub('L_tk', 'T', self.ACCT); self.gemm_sub('L_qk', 'T', self.ACC, True, epi=er if WEAVE else None, npeel=NPEEL); self.hook_sub(); self.gemm_sub('L_kk', 'K', self.ACC); self.softmax_sub(); self.pv_sub()
        for h in self.hooks: subs(h)
        lsubs = Asm(); lsubs.uid = 20000; self.a = lsubs
        self.ld_subs()
        self.a = a = body
        self.row_offsets(self.VO, 216, None); self.ft_static()
        a('s_cmp_ge_u32 s2, 200\ns_cbranch_scc1 L_caux')
        if has('U'):
            self.idx_u('L_c_nou')
            self.cp_task('U', False, True, chain and main[0])
            self.stamp(4)
            if chain: self.idx_main(); a('s_barrier'); self.stamp(12); a(f's_call_b64 s[86:87], L_qk{"_w" if WEAVE else ""}\ns_branch L_c_k')
        a('L_c_nou:')
        self.idx_main(); spare()
        if PFW:
            self.sdiv('s70', 's62', 3, 's71')
            a(f's_mul_i32 s71, s71, {PFW}\ns_and_b32 s70, s2, 7\ns_mul_i32 s70, s70, 9\ns_lshr_b32 s70, s70, 2\ns_add_u32 s71, s71, s70')
            self.srd(32, 'wqkv_img', 0, SZ['wqkv_img'])
            a('v_lshrrev_b32 v246, 4, v1\nv_mul_u32_u24 v246, 6912, v246\nv_and_b32 v247, 15, v1\nv_lshl_add_u32 v246, v247, 4, v246')
            for k in range(PFW):
                a(f's_add_u32 s70, s71, {k}\ns_sub_u32 s66, s70, 18\ns_min_u32 s70, s70, s66')
                self.lin('s66', [('s70', 64 * 6912), ('s3', 16 * 6912), ('s65', 1)])
                for m in range(4): a(f'buffer_load_dwordx4 v[252:255], v246, s[32:35], s66 offen\nbuffer_load_dwordx4 v[252:255], v246, s[32:35], s66 offen offset:2304\ns_add_u32 s66, s66, {4*6912}')
        for k, t in enumerate(main):
            self.cp_task(t, False, k == 0 or not chain, chain and k + 1 < len(main) and main[k + 1], cont=chain and k > 0, join='L_c_k' if chain and k == 0 else None, pv=only is None)
            self.stamp(5 + k)
        if has('PV'): self.cp_task('PV', False, True, False, pv=only is None)
        a('s_branch L_fin')
        a.lines += subs.lines
        a('L_caux:\ns_barrier')
        self.aux_interp('c', only)
        a('L_loader:')
        a('s_cmp_lt_u32 s2, 112\ns_cbranch_scc1 L_l_nogv\ns_cmp_ge_u32 s10, 132\ns_cbranch_scc1 L_l_noln')
        if has('LN'): self.ln(has('GV'))
        self.stamp(13)
        a('s_branch L_l_nogv\nL_l_noln:')
        if has('GV'): a('s_call_b64 s[86:87], L_gemv')
        a('L_l_nogv:')
        self.ld_static()
        if self.instr: a('s_mov_b32 s90, 0\nv_mov_b32 v13, 0')
        self.stamp(26)
        a('s_cmp_ge_u32 s2, 200\ns_cbranch_scc1 L_laux')
        if has('U'):
            self.idx_u('L_l_nou'); self.ld_late_start('U', False, 1); self.tag(); self.sig_index('U')
            if chain: self.ld_body('U', main[0], self.idx_main, True, 2); a('s_branch L_l_k')
            else: self.ld_body('U', None)
        a('L_l_nou:\ns_mov_b32 s88, -1'); self.tag()
        self.idx_main(); spare()
        for k, t in enumerate(main):
            if k == 0 or not chain: self.ld_late_start(t, False, 2, ready=True)
            if k == 0: a('L_l_k:')
            self.ld_body(t, main[k + 1] if chain and k + 1 < len(main) else None, k=3 + k, nn=main[k + 2] if chain and k + 2 < len(main) else None, prepped=k > 0, prev=(main[k - 1] if k > 0 else 'U') if chain else None, short=bool(FIVE and chain and k > 0 and t != 'M'))
        if has('PV'): self.ld_pv_start(); self.ld_body('PV', None)
        a('s_branch L_fin')
        a.lines += lsubs.lines
        for t in sorted(self.preps): a(f'L_prep_{t}:'); self.ld_prep(t); a('s_setpc_b64 s[68:69]')
        a('L_laux:'); self.tag(); a('s_mov_b32 s7, 0')
        a('s_barrier')
        self.aux_interp('l', only)
        a('L_fin:')
        if DIAG:
            self.stamp(31)
            a(f's_cmp_lg_u32 s2, {DIAG[1]}\ns_cbranch_scc1 L_end\ns_cmp_lg_u32 s3, {DIAG[2]}\ns_cbranch_scc1 L_end\ns_sub_u32 s72, s96, s72\ns_memrealtime s[96:97]\ns_waitcnt lgkmcnt(0)')
            if DIAG[0] == 99: a('s_movk_i32 s72, 2000')
            a('L_dg:\ns_memrealtime s[74:75]\ns_waitcnt lgkmcnt(0)\ns_sub_u32 s74, s74, s96\ns_cmp_lt_u32 s74, s72\ns_cbranch_scc1 L_dg')
        self.stamp_store()
        a('L_end:\ns_endpgm')
    def rows4(self, srd, pitch, offs):
        a = self.a
        a(f'v_lshrrev_b32 v216, 4, v1\nv_and_b32 v217, 15, v1\nv_mul_u32_u24 v216, {pitch}, v216\nv_lshl_add_u32 v216, v217, 4, v216')
        for k, so in enumerate(offs):
            for i in range(9): a(f'buffer_load_dwordx4 {vr(252,4)}, v216, {sr(srd,4)}, {so} offen offset:{i*256}')
    def help_u(self):
        if not HLP: return
        a = self.a
        a(f's_sub_u32 s84, s2, {HB}'); self.idx_u('L_hlp_e', 's84')
        a(f's_sub_u32 s66, {SZ["wo_img"]}, s65'); self.srd(28, 'wo_img', 's65', 's66')
        a(f's_mul_i32 s67, s62, {96*6912}\ns_add_u32 s67, s67, 4608\ns_sub_u32 s66, {SZ["wqkv_img"]}, s67'); self.srd(32, 'wqkv_img', 's67', 's66')
        a(f'v_lshrrev_b32 v246, 4, v1\nv_lshl_add_u32 v246, s3, 4, v246\nv_mul_u32_u24 v246, {RP}, v246\nv_and_b32 v247, 15, v1\nv_lshl_add_u32 v246, v247, 4, v246')
        a('s_mul_i32 s66, s3, 24\nv_lshrrev_b32 v247, 3, v1\nv_add_u32 v247, s66, v247\nv_mul_u32_u24 v247, 6912, v247\nv_and_b32 v248, 7, v1\nv_lshl_add_u32 v247, v248, 4, v247')
        self.sdiv('s70', 's62', 5, 's76'); self.sdiv('s70', 's61', 3, 's77')
        if HW: a(f's_cmp_ge_u32 s10, 128\ns_cbranch_scc1 L_hlp_s\nv_mov_b32 v248, {CX+16}'); self.lds_wait4(248, 249); a('L_hlp_s:')
        a(f's_and_b32 s78, s2, 7\ns_mul_i32 s78, s78, 9\ns_lshr_b32 s78, s78, 2\ns_add_u32 s78, s78, {HLP}\ns_mov_b32 s83, {18 - HLP}\nL_hlp:')
        a('s_sub_u32 s70, s78, 18\ns_min_u32 s70, s70, s78\ns_sub_u32 s76, s76, 1\ns_cbranch_scc0 L_hlp_b\ns_mov_b32 s76, 4')
        a(f's_mul_i32 s71, s70, {64*RP}')
        for m in range(4): a(f'buffer_load_dwordx4 v[252:255], v246, s[28:31], s71 offen\ns_add_u32 s71, s71, {4*RP}')
        a('L_hlp_b:\ns_sub_u32 s77, s77, 1\ns_cbranch_scc0 L_hlp_n\ns_mov_b32 s77, 2\ns_lshl_b32 s71, s70, 7')
        for m in range(3): a(f'buffer_load_dwordx4 v[252:255], v247, s[32:35], s71 offen\ns_add_u32 s71, s71, {8*6912}')
        a(f'L_hlp_n:\ns_waitcnt vmcnt({HTH})\ns_add_u32 s78, s78, 1\ns_sub_u32 s83, s83, 1\ns_cmp_lg_u32 s83, 0\ns_cbranch_scc1 L_hlp\nL_hlp_e:')
    def prefetch_u(self):
        if 'pfu' not in OPT: return
        a = self.a
        a('s_sub_u32 s84, s2, 116\ns_cmp_ge_u32 s84, 72\ns_cbranch_scc1 L_pfu\ns_lshl_b32 s84, s84, 2\ns_and_b32 s85, s3, 3\ns_add_u32 s84, s84, s85')
        a(f's_cmp_ge_u32 s3, 4\ns_cselect_b32 s32, s{PTR["wo_img"]}, s{PTR["wqkv_img"]}\ns_cselect_b32 s33, s{PTR["wo_img"]+1}, s{PTR["wqkv_img"]+1}')
        a(f's_mov_b32 s34, {SZ["wqkv_img"]}\ns_cselect_b32 s34, {SZ["wo_img"]}, s34\ns_mov_b32 s35, 0x20000\ns_movk_i32 s85, 6912\ns_cselect_b32 s85, 2304, s85\ns_cselect_b32 s82, 0, 4608')
        a('s_mul_i32 s84, s84, s85\ns_lshl_b32 s84, s84, 2\ns_add_u32 s84, s84, s82')
        self.rows4(32, 's85', ['s84'])
        a('L_pfu:')
    def prefetch_qk(self, first, rounds):
        a = self.a
        a(f's_lshl_b32 s84, s84, 3\ns_add_u32 s84, s84, s3\ns_add_u32 s84, s84, {first}\ns_mul_i32 s84, s84, {4*6912}')
        self.srd(32, 'wqkv_img', 0, SZ['wqkv_img'])
        for r in range(rounds):
            a('s_add_u32 s83, s84, 2304')
            self.rows4(32, 6912, ['s84', 's83'])
            a(f's_add_u32 s84, s84, {(128 if r == 0 else 96)*4*6912}')

def post(text):
    import re
    if 'nochk' in OPT:
        text = re.sub(r'  s_cbranch_vccnz L_chk_\d+_s\n', '', text).replace('L_spin:\n', 'L_spin:\n  s_setpc_b64 s[68:69]\n')
    if 'nofree' in OPT:
        text = text.replace('  s_cbranch_vccnz L_run_slow\n', '').replace('  s_cbranch_vccz L_run_go\nL_run_slow:', '  s_branch L_run_go\nL_run_slow:')
    if 'nocw' in OPT: text = text.replace('  ds_write_b32 v253, v252\n', '')
    if 'nocr' in OPT: text = text.replace('  ds_read_b32 v255, v254\n', '')
    if 'nolw' in OPT: text = text.replace('  ds_write_b32 v10, v12\n', '')
    if 'nolr' in OPT: text = text.replace('  ds_read_b32 v24, v9\n', '')
    if 'noldr' in OPT: text = text.replace('L_lprog0:\n', 'L_lprog0:\n  s_endpgm\n')
    if 'nocmp' in OPT: text = text.replace('L_cprog0:\n', 'L_cprog0:\n  s_endpgm\n')
    if 'nobar' in OPT: text = text.replace('  s_barrier\n', '')
    return text
def relabel(text, suffix):
    import re
    return re.sub(r'\b(L_\w+)', lambda m: m.group(1) + suffix, text)

def build(mode='fused', instr=False, cls=Mega):
    hdr = [l for l in open('standalone__mm_dit__diffusion.s.ref').read().split('\n')
           if l.startswith(';') and '@launch' not in l and 'Override launch' not in l and 'Harness parses' not in l]
    out = '\n'.join(hdr) + '\n'
    if mode == 'fused':
        name = 'standalone__mm_dit__diffusion_kernel'
        m = cls(instr, True); m.kernel(name)
        out += f'; @launch grid=(256,1,1) block=(512,1,1) lds={LDS}\n'
        out += '.amdgcn_target "amdgcn-amd-amdhsa--gfx950"\n.text\n' + m.a.text() + '.section .rodata,"a"\n' + kernel_desc(name, 256, 102)
        return out
    if mode.startswith('only:'):
        name = 'standalone__mm_dit__diffusion_kernel'
        m = cls(instr, False); m.kernel(name, set(mode[5:].split('+')))
        out += f'; @launch grid=(256,1,1) block=(512,1,1) lds={LDS}\n'
        out += '.amdgcn_target "amdgcn-amd-amdhsa--gfx950"\n.text\n' + m.a.text() + '.section .rodata,"a"\n' + kernel_desc(name, 256, 102)
        return out
    steps = [{'U', 'GV', 'G', 'X'}, {'LN'}, {'M', 'V', 'T'}, {'S', 'VT', 'Q2'}, {'PV', 'ST'}, {'Y'}, {'AT'}, {'OT'}]
    text = ''; desc = ''
    for k, st in enumerate(steps):
        name = f'step{k}_kernel'
        m = cls(instr, False); m.kernel(name, st)
        text += relabel(m.a.text(), f'_{k}'); desc += kernel_desc(name, 256, 102)
        out += f'; @launch kernel={name} grid=(256,1,1) block=(512,1,1) lds={LDS}\n'
    out += '.amdgcn_target "amdgcn-amd-amdhsa--gfx950"\n.text\n' + text + '.section .rodata,"a"\n' + desc
    return out

if __name__ == '__main__':
    mode = sys.argv[2] if len(sys.argv) > 2 else 'fused'
    open(sys.argv[1], 'w').write(post(build(mode, len(sys.argv) > 3)))
```

```python
import sys, struct
from asmlib import *
from gemm import Operand, emit_swz, emit_swap23

D = 1152
KA = ['x_img', 'x_txt', 'c', 'wqkv_img', 'wqkv_txt', 'wo_img', 'wo_txt', 'wmod_img', 'wmod_txt', 'out', 'dbg', 'ws']
PTR = {n: 36 + 2 * k for k, n in enumerate(KA)}
SZ = dict(x_img=4718592, x_txt=147456, c=4608, wqkv_img=7962624, wqkv_txt=7962624, wo_img=2654208, wo_txt=2654208,
          wmod_img=15925248, wmod_txt=15925248, out=4866048, dbg=256, ws=268435456)
MB = 1 << 20
RP = 2304
WS_FLAG = 0
WS_MODP = 151552
WS_GATE = WS_MODP + 3 * 4 * 9216
WS_ST = 327680
FTS = 4 * 36 * 1024
WS_HT = 655360; WS_QT = WS_HT + FTS; WS_VT = WS_QT + FTS; WS_Q2 = WS_VT + FTS; WS_PT = WS_Q2 + FTS; WS_Y = WS_PT + FTS; WS_AT = WS_Y + FTS
WS_Z = WS_AT + FTS
assert WS_Z + 4 * 18 * 4096 <= 2 * MB and WS_GATE + 12 * 4608 <= WS_ST and WS_ST + 34 * 1056 * 8 + 1024 <= WS_HT
BS = 2 * 1056 * RP
WS_H = 2 * MB; WS_Q = WS_H + BS; WS_K = WS_Q + BS; WS_V = WS_K + BS; WS_P = WS_V + BS; WS_U = WS_P + BS
USZ = 1152 * RP
WS_DBG = 64 * MB
FS = 128
F_GG = 0
F_LN = 108
F_U = 240
F_K = 348
F_V = 546
F_P = 744
F_T = 942; F_VT = 996; F_PT = 1014; F_Y = 1048; F_AT = 1084
NFLAG = 1184
assert WS_MODP == NFLAG * FS and WS_GATE == 4 * 65536
WS_E = (NFLAG - 1) * FS
PS = 1056
NS = 5; CH = 1040; STAGE = 28 * CH; RING = NS * STAGE; XL = RING; LDS = 163840
CB = LDS - 2048
GL = XL + 13312
CX = XL + 17920
SPIN = 0x1000000
LOG2E = 1.4426950408889634
def f2u(x): return struct.unpack('<I', struct.pack('<f', x))[0]

import os
OPT = set(os.environ.get('OPT', '').split(','))
LDF = os.environ.get('LDF', 'sc1')
SW = int(os.environ.get('SW', 5)); SD = int(os.environ.get('SD', 3))
DEPTH = int(os.environ.get('DEPTH', 2))
CSLEEP = '' if 'nocsleep' in OPT else 's_sleep 1\n'
LSLEEP = '' if 'nolsleep' in OPT else 's_sleep 1\n'
COLD = tuple(os.environ.get('COLD', 'none').split(','))
PSL = int(os.environ.get('PSL', 1))
PFAT = int(os.environ.get('PFAT', 5))
SIGW = int(os.environ.get('SIGW', 1))
ALN = f".p2align {os.environ.get('ALIGN', 6)}\n" + 's_nop 0\n' * int(os.environ.get('APAD', 0))
SKAH = int(os.environ.get('SKAH', 12))
PFD = int(os.environ.get('PFD', 4))
PFR = int(os.environ.get('PFR', 2))
XROT = tuple(os.environ.get('XROT', 'M,U').split(','))
PW = int(os.environ.get('PW', 3)); PD = int(os.environ.get('PD', 1))
NPEEL = int(os.environ.get('NPEEL', 0))
XAT = int(os.environ.get('XAT', 8))
PFW = int(os.environ.get('PFW', 0))
OUTF = os.environ.get('OUTF', 'sc1')
WEAVE = 'weave' in OPT
UNR = int(os.environ.get('UNR', 2)); LOOK = int(os.environ.get('LOOK', 0))
HLP = int(os.environ.get('HLP', 0)); HB = int(os.environ.get('HB', 144))
HTH = int(os.environ.get('HTH', 63)); HW = int(os.environ.get('HW', 0))
XE = int(os.environ.get('XE', 0))
DIAG = [int(x) for x in os.environ.get('DIAG', '').split(',') if x]
PF = os.environ.get('PF', 'sc1'); TCH = int(os.environ.get('TCH', 0))
FIVE = int(os.environ.get('FIVE', 0)); SIGV = int(os.environ.get('SIGV', 3))
LSIG = int(os.environ.get('LSIG', 1))
ONE = int(os.environ.get('ONE', 2))
REV = tuple(os.environ.get('REV', 'none').split(','))
PFA = int(os.environ.get('PFA', 0))
class Mega:
    def __init__(self, instr=False, flags=True):
        self.a = Asm(); self.instr = instr; self.flags = flags

    def srd(self, srd, ptr, off, limit):
        a = self.a; p = PTR[ptr]
        a(f's_add_u32 s{srd}, s{p}, {off}\ns_addc_u32 s{srd+1}, s{p+1}, 0\ns_mov_b32 s{srd+2}, {limit}\ns_mov_b32 s{srd+3}, 0x20000')
    def sdiv(self, dst, src, c, rem=None):
        self.a(f's_mul_hi_u32 {dst}, {src}, {(1 << 32) // c + 1}')
        if rem: self.a(f's_mul_i32 {rem}, {dst}, {c}\ns_sub_u32 {rem}, {src}, {rem}')
    def lin(self, dst, terms, const=0):
        a = self.a; a(f's_mov_b32 {dst}, {const}')
        for r, c in terms: a(f's_mul_i32 s75, {r}, {c}\ns_add_u32 {dst}, {dst}, s75')
    def stamp(self, n):
        if DIAG and n == DIAG[0]: self.a('s_memrealtime s[96:97]\ns_waitcnt lgkmcnt(0)')
        if self.instr: self.a(f's_memrealtime s[72:73]\ns_memtime s[96:97]\ns_waitcnt lgkmcnt(0)\nv_writelane_b32 v15, s72, {n}\nv_writelane_b32 v15, s96, {32+n}')
    def stamp_store(self):
        if not self.instr: return
        a = self.a
        self.stamp(2); a('s_waitcnt vmcnt(0)')
        self.stamp(31)
        a(f's_lshl_b32 s72, s2, 3\ns_add_u32 s72, s72, s3\ns_lshl_b32 s72, s72, 8\ns_add_u32 s72, s72, {WS_DBG}')
        a(f'v_lshlrev_b32 v14, 2, v1\nbuffer_store_dword v15, v14, s[12:15], s72 offen\ns_add_u32 s72, s72, {2 << 20}\nbuffer_store_dword v13, v14, s[12:15], s72 offen')
    def flag_lanes(self, vd, vt, ranges):
        a = self.a
        first = True; acc = 0
        if len(ranges) == 1:
            st, cnt = ranges[0]
            if isinstance(cnt, int): a(f'v_min_u32 v{vd}, {cnt-1}, v1')
            else: a(f's_sub_u32 s75, {cnt}, 1\nv_min_u32 v{vd}, s75, v1')
            a(f'v_add_u32 v{vd}, {st}, v{vd}\nv_lshlrev_b32 v{vd}, 7, v{vd}')
            return
        tot = sum(c for _, c in ranges)
        a(f'v_min_u32 v{vt}, {tot-1}, v1')
        for st, cnt in ranges:
            if isinstance(st, int): a(f's_mov_b32 s75, {st - acc}')
            else: a(f's_sub_u32 s75, {st}, {acc}')
            if first: a(f'v_mov_b32 v{vd}, s75')
            else: a(f'v_mov_b32 v{vt+1}, s75\nv_cmp_le_u32 vcc, {acc}, v{vt}\ns_nop 1\nv_cndmask_b32 v{vd}, v{vd}, v{vt+1}, vcc')
            first = False; acc += cnt
        a(f'v_add_lshl_u32 v{vd}, v{vd}, v{vt}, 7')
    def poll_sub(self, lab, vo, vt):
        a = self.a
        a(f'{lab}:\ns_mov_b32 s74, 0x80000\n{lab}_l:')
        a(f'buffer_load_dwordx4 {vr(vt,4)}, v{vo}, s[12:15], 0 offen {PF}\ns_waitcnt vmcnt(0)')
        self.min4(vt); a(f'v_cmp_eq_u32 vcc, 0, v{vt}')
        a(f's_cmp_eq_u64 vcc, exec\ns_cbranch_scc1 {lab}_d\ns_sub_u32 s74, s74, 1\ns_cmp_eq_u32 s74, 0\ns_cbranch_scc1 {lab}_d\ns_sleep {PSL}\ns_branch {lab}_l')
        a(f'{lab}_d:\ns_setpc_b64 s[68:69]')
    def ld_params(self, t):
        a = self.a
        def ws(srd, off, lim=None): self.srd(srd, 'ws', off, lim if lim is not None else 0x4000000)
        def wsl(srd, base, sreg, lim=None):
            a(f's_add_u32 s67, {sreg}, {base}'); ws(srd, 's67', lim)
        def wgt(srd, name, sreg, const=0):
            a(f's_add_u32 s67, {sreg}, {const}\ns_sub_u32 s66, {SZ[name]}, s67'); self.srd(srd, name, 's67', 's66')
        if t in 'UW':
            wgt(16, 'wo_img', 's65'); a(f's_mul_i32 s70, s62, {96*6912}'); wgt(20, 'wqkv_img', 's70', 4608); return 'T', RP, 6912, 18
        if t == 'M':
            wgt(16, 'wqkv_img', 's65', 0); wsl(20, WS_H, 's63', 's64'); return 'T', 6912, RP, 18
        if t == 'V':
            wsl(16, WS_U, 's65'); wsl(20, WS_H, 's63', 's64'); return 'T', RP, RP, 18
        if t == 'S':
            self.lin('s70', [('s60', 1056 * RP), ('s61', 128 * RP)])
            a(f's_mov_b32 s71, {128*RP}\ns_cmp_eq_u32 s61, 8\ns_cselect_b32 s71, {32*RP}, s71')
            wsl(16, WS_K, 's70', 's71'); wsl(20, WS_Q, 's63', 's64'); return 'K', RP, RP, 18
        if t == 'PV':
            a(f's_mul_i32 s70, s60, {1056*RP}\ns_add_u32 s70, s70, s65')
            wsl(16, WS_V, 's70'); wsl(20, WS_P, 's63', 's64'); return 'T', RP, RP, 17
        raise ValueError(t)
    def dep_ranges(self, t, aux=False):
        a = self.a
        if t == 'M':
            self.lin('s70', [('s60', 64), ('s62', 6)], F_LN)
            a('s_cmp_eq_u32 s62, 10\ns_cselect_b32 s71, 4, 6'); return [('s70', 's71')]
        if t == 'V':
            self.lin('s70', [('s61', 12)], F_U); return [('s70', 12)]
        if t == 'S':
            a('s_lshl_b32 s70, s61, 2'); self.sdiv('s71', 's70', 3)
            self.lin('s70', [('s60', 99), ('s71', 9)], F_K)
            a(f's_cmp_eq_u32 s61, 8\ns_cselect_b32 s70, {F_T+18}, s70')
            self.lin('s66', [('s60', 99), ('s62', 9)], F_K)
            return [('s70', 18), ('s66', 9)]
        if t == 'PV':
            self.lin('s70', [('s60', 99), ('s62', 9)], F_P); self.lin('s71', [('s60', 99), ('s61', 11)], F_V)
            return [('s70', 9), ('s71', 11)]
        return None
    def sig_index(self, t, aux=False):
        m = {'U': ([('s61', 12), ('s62', 1)], F_U), 'M': ([('s60', 99), ('s62', 9), ('s61', 1)], F_K),
             'V': ([('s60', 99), ('s61', 11), ('s62', 1)], F_V), 'S': ([('s60', 99), ('s62', 9), ('s61', 1)], F_P),
             'T': ([('s61', 1)], F_T), 'VT': ([('s61', 1)], F_VT), 'ST': ([('s60', 17), ('s61', 1)], F_PT),
             'Y': ([('s60', 18), ('s61', 1)], F_Y), 'AT': ([('s61', 1)], F_AT), 'LN': ([('s10', 1)], F_LN)}[t]
        self.lin('s88', [(r, c * FS) for r, c in m[0]] + [('s3', 4)], m[1] * FS)
    def set_bij(self, rows):
        a = self.a
        if rows == 'img':
            self.lin('s63', [('s60', 1056 * RP), ('s62', 96 * RP)])
            a(f's_mov_b32 s64, {96*RP}\ns_cmp_eq_u32 s62, 10\ns_cselect_b32 s64, {64*RP}, s64')
        else:
            self.lin('s63', [('s60', 1056 * RP)], 1024 * RP); a(f's_mov_b32 s64, {32*RP}')
        a('s_lshl_b32 s65, s61, 8')

    LV = dict(rowT=2, inT=3, rowKA=4, rowKB=5, inK=6, inKB=7, vF=8, oA=9, oB=10, vA=24, vB=28, t=20, fd=16)
    def ld_static(self):
        a = self.a; L = self.LV; t = L['t']
        a(f's_sub_u32 s84, s3, 4\ns_mul_i32 s85, s84, {4*CH}\ns_mov_b32 s82, s85\ns_mul_i32 s5, s84, {CH}\ns_sub_u32 s5, {16*CH}, s5\ns_mov_b32 m0, s82')
        a(f'v_bfe_u32 v{L["rowT"]}, v1, 2, 2\nv_lshl_add_u32 v{L["rowT"]}, s84, 4, v{L["rowT"]}')
        a(f'v_lshrrev_b32 v{t}, 4, v1\nv_and_b32 v{t+1}, 3, v1\nv_lshlrev_b32 v{t+1}, 4, v{t+1}\nv_lshl_add_u32 v{L["inT"]}, v{t}, 6, v{t+1}')
        a(f'v_bfe_u32 v{t}, v1, 2, 3\nv_lshl_add_u32 v{L["rowKA"]}, s84, 5, v{t}\ns_mul_i32 s75, s84, 24\nv_add_u32 v{L["rowKB"]}, s75, v{t}')
        a(f'v_bfe_u32 v{t}, v1, 4, 1\nv_mul_u32_u24 v{t}, 48, v{t}\nv_xor_b32 v{t+1}, v{t+1}, v{t}\nv_lshrrev_b32 v{t}, 5, v1\nv_lshl_add_u32 v{L["inK"]}, v{t}, 6, v{t+1}')
        a(f's_and_b32 s75, s84, 1\ns_mul_i32 s75, s75, 48\nv_xor_b32 v{L["inKB"]}, s75, v{L["inK"]}\nv_mov_b32 v{L["vF"]}, 0')
    def order_valu(self, n, dst, t, u0, limit, SW=SW, SD=SD):
        a = self.a; u, dl, sd = t, t + 1, t + 2
        a(f'v_add_u32 v{u}, {u0}, v{n}\nv_mov_b32 v{sd}, {SD}')
        a(f'v_mul_u32_u24 v{dl}, {(1<<16)//SW+1}, v{u}\nv_lshrrev_b32 v{dl}, 16, v{dl}\nv_mul_u32_u24 v{dl}, {SW}, v{dl}\nv_sub_u32 v{u}, v{u}, v{dl}')
        a(f'v_cmp_ge_u32 vcc, {SD}, v{u}\nv_cmp_eq_u32 s[66:67], 0, v{u}\nv_sub_u32 v{u}, v{n}, v{u}\nv_cndmask_b32 v{dl}, 0, -1, vcc')
        a(f'v_cmp_gt_u32 vcc, {0 if "nostag" in OPT else limit}, v{u}\nv_cndmask_b32 v{dl}, v{dl}, v{sd}, s[66:67]\ns_nop 0\nv_cndmask_b32 v{dl}, 0, v{dl}, vcc')
        a(f'v_add_u32 v{dst}, v{n}, v{dl}')
    def pv_order(self, q, t):
        a = self.a
        a(f'v_subrev_u32 v{q}, 1, v{q}\ns_add_u32 s84, s62, {PW}')
        self.order_valu(q, q, t, 's84', 7 - PD, PW, PD)
        a(f's_add_u32 s84, s61, 1\nv_add_u32 v{t}, 1, v{q}\nv_and_b32 v{t}, 8, v{t}\nv_add_u32 v{q}, s84, v{q}\nv_and_b32 v{q}, 7, v{q}\nv_max_u32 v{q}, v{q}, v{t}')
    def ld_setup(self, t, mid=None):
        a = self.a; L = self.LV; tm = L['t']; vA, vB = L['vA'], L['vB']
        S = 17 if t in ('PV', 'Y') else 18
        cold = t in COLD and 'norot' not in OPT
        if cold:
            self.lin('s84', [('s61', 2), ('s60', 1), ('s62', 3)]); self.sdiv('s75', 's84', 18, 's83')
            a(f'v_add_u32 v{L["oB"]}, s83, v1\nv_subrev_u32 v{tm}, 18, v{L["oB"]}\nv_min_u32 v{L["oB"]}, v{L["oB"]}, v{tm}')
        else:
            a('s_add_u32 s84, s61, s62')
            if t == 'PV':
                a(f'v_lshrrev_b32 v{L["oB"]}, 1, v1'); self.pv_order(L['oB'], tm)
                a(f'v_and_b32 v{tm}, 1, v1\nv_lshl_add_u32 v{L["oB"]}, v{L["oB"]}, 1, v{tm}')
            else:
                w_, d_ = [int(x) for x in os.environ.get('ST_' + t, f'{SW},{SD}').split(',')]
                self.order_valu(1, L['oB'], tm, 's84', 18 - d_, w_, d_)
            if t in REV: a(f'v_min_u32 v{L["oB"]}, 17, v{L["oB"]}\nv_sub_u32 v{L["oB"]}, 17, v{L["oB"]}')
            if t in XROT:
                a(f's_and_b32 s84, s2, 7\ns_mul_i32 s84, s84, 9\ns_lshr_b32 s84, s84, 2\nv_add_u32 v{L["oB"]}, s84, v{L["oB"]}\nv_subrev_u32 v{tm}, 18, v{L["oB"]}\nv_min_u32 v{L["oB"]}, v{L["oB"]}, v{tm}')
        if mid: mid()
        lay, pA, pB, S2 = self.ld_params(t)
        assert S == S2
        ftB = t in ('S', 'PV')
        a(f's_mov_b32 s7, 2304\ns_mov_b32 s76, {pA}\ns_mov_b32 s77, {pB}\ns_mov_b32 s78, {pA * 64 if lay == "T" else 2048}')
        a(f'v_mul_u32_u24 v{L["oA"]}, s78, v{L["oB"]}\nv_lshlrev_b32 v{L["oB"]}, {11 if ftB else 7}, v{L["oB"]}')
        if lay == 'T':
            a(f'v_mad_u32_u24 v{vA}, v{L["rowT"]}, s76, v{L["inT"]}')
            for m in range(1, 4): a(f'v_add_u32 v{vA+m}, {m*(4*pA - CH)}, v{vA}')
        else:
            a(f's_sub_u32 s84, s3, 4\ns_mul_i32 s84, s84, {2*36864}\ns_add_u32 s84, s84, 64\nv_lshl_add_u32 v{vA}, v1, 4, s84')
            for m in range(1, 4): a(f'v_add_u32 v{vA+m}, {((m>>1)*36864 + (m&1)*1024 - m*CH) & 0xffffffff:#x}, v{vA}')
            a('s_sub_u32 s16, s16, 64\ns_subb_u32 s17, s17, 0\ns_add_u32 s18, s18, 64')
        a(f'v_readlane_b32 s100, v{L["oA"]}, 0\nv_readlane_b32 s101, v{L["oB"]}, 0\ns_mov_b32 s98, 1')
        if ftB:
            for m in range(3):
                a(f's_sub_u32 s84, s3, 4\ns_mul_i32 s84, s84, 3\ns_add_u32 s84, s84, {m}\ns_lshr_b32 s75, s84, 1\ns_mul_i32 s75, s75, {36864 - 2048}\ns_lshl_b32 s84, s84, 10')
                a(f's_add_u32 s84, s84, s75\ns_add_u32 s84, s84, {(64 - m*CH) & 0xffffffff:#x}\nv_lshl_add_u32 v{vB+m}, v1, 4, s84')
            a('s_sub_u32 s20, s20, 64\ns_subb_u32 s21, s21, 0\ns_add_u32 s22, s22, 64')
        else:
            a(f'v_mad_u32_u24 v{vB}, v{L["rowKB"]}, s77, v{L["inKB"]}\nv_xor_b32 v{tm}, 48, v{vB}')
            for m in range(1, 3): a(f'v_add_u32 v{vB+m}, {m*(8*pB - CH)}, v{tm if m & 1 else vB}')
        assert pA % 64 == 0 and pB % 64 == 0
    SH = {24: 40, 25: 41, 26: 42, 27: 43, 28: 44, 29: 45, 30: 46, 9: 47, 10: 48, 8: 49}
    def ld_prep(self, t):
        import re
        def f():
            self.ld_setup(t)
            if self.flags: self.flag_lanes(self.LV['vF'], self.LV['t'], self.dep_ranges(t, False))
        keep = self.a; self.a = Asm(); f(); code = self.a.lines; self.a = keep
        for l in code:
            if 'readlane' in l or 's98' in l: continue
            l = re.sub(r'\bv(\d+)\b', lambda m: f'v{self.SH.get(int(m.group(1)), int(m.group(1)))}', l)
            l = re.sub(r'\bs(1[6-9]|2[0-3])\b', lambda m: f's{int(m.group(1)) + 8}', l)
            self.a(l)
    def ld_commit(self):
        a = self.a
        a('v_readlane_b32 s100, v47, 0\nv_readlane_b32 s101, v48, 0\ns_mov_b32 s98, 1')
        a('s_mov_b64 s[16:17], s[24:25]\ns_mov_b32 s18, s26\ns_mov_b64 s[20:21], s[28:29]\ns_mov_b32 s22, s30')
        for d, x in self.SH.items(): a(f'v_mov_b32 v{d}, v{x}')
    def min4(self, v):
        for r in range(4): self.a(f'v_xor_b32 v{v+r}, s11, v{v+r}')
        self.a(f'v_or3_b32 v{v}, v{v}, v{v+1}, v{v+2}\nv_or_b32 v{v}, v{v}, v{v+3}')
    def tag(self): self.a('s_waitcnt lgkmcnt(0)\ns_mul_i32 s11, s8, 1664525\ns_add_u32 s11, s11, 1013904223')
    def ld_issue(self, kind='n'):
        a = self.a; L = self.LV
        ld = lambda v, srd, so, m: a(f'buffer_load_dwordx4 v{v+m}, {srd}, {so} offen offset:{m*CH} {LDF} lds') if 'noload' not in OPT else a('s_nop 0')
        if kind == 'y':
            ld(L['vA'], 's[16:19]', 's99', 0)
            a(f's_add_u32 s82, s82, {STAGE}\ns_cmp_ge_u32 s82, {RING}')
            ld(L['vA'], 's[16:19]', 's99', 1)
            a('s_cselect_b32 s82, s85, s82')
            ld(L['vA'], 's[16:19]', 's99', 2); ld(L['vA'], 's[16:19]', 's99', 3)
            a('s_mov_b32 m0, s82\ns_nop 0')
            return
        for m in range(4): ld(L['vA'], 's[16:19]', 's100', m)
        if kind == 'x': a('s_add_u32 s99, s100, s7')
        a(f's_add_u32 m0, s82, s5\nv_readlane_b32 s100, v{L["oA"]}, s98')
        ld(L['vB'], 's[20:23]', 's101', 0)
        a(f's_add_u32 s82, s82, {STAGE}\ns_cmp_ge_u32 s82, {RING}')
        ld(L['vB'], 's[20:23]', 's101', 1)
        a('s_cselect_b32 s82, s85, s82')
        ld(L['vB'], 's[20:23]', 's101', 2)
        a(f's_mov_b32 m0, s82\nv_readlane_b32 s101, v{L["oB"]}, s98\ns_add_u32 s98, s98, 1')
    def ld_subs(self):
        a = self.a; L = self.LV
        loop = lambda l: a(f's_sub_u32 s83, s83, 1\ns_cmp_lg_u32 s83, 0\ns_cbranch_scc1 {l}\ns_setpc_b64 s[86:87]')
        a('L_issue:'); self.ld_issue(); loop('L_issue')
        a('L_steady:\ns_waitcnt vmcnt(14)\ns_barrier')
        if self.instr: a('s_cmp_lt_u32 s90, 16\ns_cbranch_scc1 L_notr2\ns_memrealtime s[72:73]\ns_waitcnt lgkmcnt(0)\ns_mov_b32 m0, s90\ns_add_u32 s90, s90, 1\nv_writelane_b32 v13, s72, m0\ns_mov_b32 m0, s82\ns_nop 0\nL_notr2:')
        self.ld_issue(); loop('L_steady')
        a('L_issue2:'); self.ld_issue('x'); self.ld_issue('y'); a('s_setpc_b64 s[86:87]')
        a('L_steady2:\ns_waitcnt vmcnt(11)\ns_barrier')
        if self.instr: a('s_memrealtime s[72:73]\ns_waitcnt lgkmcnt(0)\ns_mov_b32 m0, s90\ns_add_u32 s90, s90, 1\nv_writelane_b32 v13, s72, m0\ns_mov_b32 m0, s82\ns_nop 0')
        self.ld_issue('x')
        a('s_waitcnt vmcnt(11)\ns_barrier'); self.ld_issue('y'); loop('L_steady2')
        self.poll_sub('L_lpoll', L['vF'], L['fd'])
    def ld_call(self, what, n=None):
        if n is not None:
            if n == 0: return
            self.a(f's_mov_b32 s83, {n}')
        self.a(f's_call_b64 s[86:87], {what}')
    def w4(self, fn):
        lab = self.a.label('w4'); self.a(f's_cmp_lg_u32 s3, 4\ns_cbranch_scc1 {lab}'); fn(); self.a(f'{lab}:')
    def ld_late_start(self, t, aux, k, ready=False):
        a = self.a; L = self.LV
        def poll():
            r = self.dep_ranges(t, aux)
            if r: self.flag_lanes(L['vF'], L['t'], r); a('s_call_b64 s[68:69], L_lpoll')
        self.ld_setup(t)
        if self.flags and t != 'U': self.w4(poll)
        if t != 'U': a('s_barrier')
        self.stamp(k)
        if t in 'MW':
            self.ld_call('L_issue2'); a('s_waitcnt vmcnt(4)\ns_barrier'); self.ld_call('L_issue2'); return
        self.ld_call('L_issue', 2)
        a('s_waitcnt vmcnt(7)\ns_barrier')
        self.ld_call('L_issue', 2)
    def x_dma(self):
        a = self.a
        self.lin('s70', [('s60', 1024 * RP), ('s62', 96 * RP), ('s65', 1)])
        a('s_sub_u32 s71, s64, s65'); self.srd(24, 'x_img', 's70', 's71')
        a(f's_sub_u32 s84, s3, 4\ns_mul_i32 s70, s84, 24\nv_lshrrev_b32 v50, 4, v1\nv_add_u32 v50, s70, v50\nv_mul_u32_u24 v50, {RP}, v50\nv_and_b32 v51, 15, v1\nv_lshl_add_u32 v50, v51, 4, v50')
        a(f's_mul_i32 s84, s84, {2*CH}\ns_add_u32 s84, s84, s82')
        for m in range(6): a(f's_add_u32 m0, s84, {m*CH}\nv_add_u32 v51, {4*m*RP}, v50\nbuffer_load_dwordx4 v51, s[24:27], 0 offen nt lds')
        a(f's_add_u32 s82, s82, {STAGE}\ns_cmp_ge_u32 s82, {RING}\ns_cselect_b32 s82, s85, s82\ns_mov_b32 m0, s82')
    def ld_pv_start(self):
        a = self.a; L = self.LV; vt = L['fd']
        st, t, ad, vf = 64, 100, 96, 112
        if not self.xdma: self.x_dma()
        self.ld_setup('PV')
        if self.instr: a('s_mov_b32 s90, 52')
        self.lin('s70', [('s60', 17 * 1056 * 8), ('s62', 96 * 8)], WS_ST); self.srd(28, 'ws', 's70', 0x100000)
        a(f'v_and_b32 v{vf}, 15, v1\ns_sub_u32 s91, s3, 4\ns_min_u32 s91, s91, 2\ns_lshl_b32 s92, s91, 4\nv_add_lshl_u32 v{t}, v{vf}, s92, 3\nv_lshrrev_b32 v{t+1}, 4, v1\ns_movk_i32 s92, {1056*8}')
        for m in range(2):
            n = ad + 2 * m
            a(f'v_add_u32 v{n}, {4*m}, v{t+1}'); self.pv_order(n, t + 3)
            a(f'v_lshlrev_b32 v{n}, 1, v{n}\nv_mad_u32_u24 v{n}, v{n}, s92, v{t}\nv_add_u32 v{n+1}, s92, v{n}')
        a(f's_lshl_b32 s92, s91, 6\ns_add_u32 s92, s92, {XL+4096}\nv_lshl_add_u32 v{vf}, v{vf}, 2, s92\nv_mul_u32_u24 v{t+1}, 192, v{t+1}\nv_add_u32 v{t+1}, v{t+1}, v{vf}')
        def stats():
            a(f's_mov_b32 s93, {16*1056*8}')
            for m in range(4):
                for jt in range(2): a(f'buffer_load_dwordx2 {vr(st+2*(m*3+jt),2)}, v{ad+m}, s[28:31], 0 offen offset:{384*jt} sc1')
            for jt in range(2): a(f'buffer_load_dwordx2 {vr(st+2*(12+jt),2)}, v{t}, s[28:31], s93 offen offset:{384*jt} sc1')
        if self.flags:
            self.lin('s70', [('s60', 99), ('s62', 9)], F_P); self.lin('s71', [('s60', 99), ('s61', 11)], F_V)
            def first():
                a('s_cmp_eq_u32 s61, 8\ns_cselect_b32 s66, s70, s71'); self.flag_lanes(L['vF'], L['t'], [('s71', 11), ('s66', 1)]); a('s_call_b64 s[68:69], L_lpoll')
            self.w4(first)
            a(f'v_and_b32 v{L["vF"]}, 7, v1\ns_add_u32 s66, s61, 1\nv_add_u32 v{L["vF"]}, s66, v{L["vF"]}\nv_subrev_u32 v{L["t"]}, 9, v{L["vF"]}\nv_min_u32 v{L["vF"]}, v{L["vF"]}, v{L["t"]}\nv_add_lshl_u32 v{L["vF"]}, v{L["vF"]}, s70, 7')
        a('s_waitcnt vmcnt(0)\ns_barrier')
        self.stamp(10)
        self.ld_call('L_issue', 2)
        if self.flags: a(f'buffer_load_dwordx4 {vr(vt,4)}, v{L["vF"]}, s[12:15], 0 offen {PF}')
        a(f's_waitcnt vmcnt({7 + self.flags})\ns_barrier')
        if self.flags:
            a('s_waitcnt vmcnt(0)'); self.min4(vt)
            a(f'v_cmp_ne_u32 vcc, 0, v{vt}\ns_cbranch_vccz L_pv_fast\ns_barrier\ns_call_b64 s[68:69], L_lpoll')
            stats(); self.ld_call('L_issue', 2); a('s_branch L_pv_tab\nL_pv_fast:')
        stats(); self.ld_call('L_issue', 1); a('s_waitcnt vmcnt(17)\ns_barrier'); self.ld_call('L_issue', 1)
        a('L_pv_tab:\ns_waitcnt vmcnt(14)')
        mx, o = t + 4, t + 8
        M = [[st + 2 * (m * 3 + jt) for m in range(5)] for jt in range(2)]
        for jt in range(2): a(f'v_max3_f32 v{mx+jt}, v{M[jt][0]}, v{M[jt][2]}, v{M[jt][4]}')
        self.allred(mx, o, 'v_max_f32', 2)
        for m in (0, 2, 4):
            for jt in range(2): a(f'v_sub_f32 v{M[jt][m]}, v{M[jt][m]}, v{mx+jt}')
        for m in (0, 2, 4):
            for jt in range(2): a(f'v_exp_f32 v{M[jt][m]}, v{M[jt][m]}')
        for jt in range(2): a(f'v_mul_f32 v{mx+jt}, v{M[jt][0]}, v{M[jt][0]+1}')
        for m in range(1, 4):
            for jt in range(2): a(f'v_fmac_f32 v{mx+jt}, v{M[jt][m & 2]}, v{M[jt][m]+1}')
        self.allred(mx, o, 'v_add_f32', 2)
        for jt in range(2): a(f'v_fmac_f32 v{mx+jt}, v{M[jt][4]}, v{M[jt][4]+1}')
        for jt in range(2): a(f'v_rcp_f32 v{mx+jt}, v{mx+jt}')
        a('s_nop 0')
        for m in (0, 2, 4):
            for jt in range(2): a(f'v_mul_f32 v{M[jt][m]}, v{M[jt][m]}, v{mx+jt}\nds_write_b32 v{t+1 if m < 4 else vf}, v{M[jt][m]} offset:{m*384+jt*9*192}')
        a('s_waitcnt vmcnt(7)\ns_barrier')
        self.ld_call('L_issue', 2)
        a('s_waitcnt lgkmcnt(0)')
        self.stamp(12)
    def ld_body(self, t, nxt, pre=None, ready=False, k=0, nn=None, prepped=False, short=False, prev=None):
        a = self.a; L = self.LV; vt = L['fd']
        M = t in 'MW'
        left = {'PV': 11, 'M': 32, 'W': 32}.get(t, 14) - short
        run = (lambda n: self.ld_call('L_steady2', n // 2)) if M else (lambda n: self.ld_call('L_steady', n))
        def ask(r):
            self.flag_lanes(L['vF'], L['t'], r())
            a(f'buffer_load_dwordx4 {vr(vt,4)}, v{L["vF"]}, s[12:15], 0 offen {PF}')
        def chk():
            lab = a.label('dep_ok'); a(f's_waitcnt vmcnt({11 if M else 14})'); self.min4(vt)
            a(f'v_cmp_eq_u32 vcc, 0, v{vt}\ns_cmp_eq_u64 vcc, exec\ns_cbranch_scc1 {lab}')
            a(f's_call_b64 s[68:69], L_lpoll\n{lab}:')
        w = (11, 4) if M else (14, 7)
        if prev:
            n = 2 * (NPEEL + UNR) if M else 2
            run(n); left -= n
            if self.flags:
                lab = a.label('sg'); a(f's_cmp_lg_u32 s3, 5\ns_cbranch_scc1 {lab}')
                if prev == 'U': a(f's_cmp_eq_u32 s88, -1\ns_cbranch_scc1 {lab}')
                else: self.sig_index(prev)
                a(f's_sub_u32 s88, s88, 20\nv_mov_b32 v50, s11\nv_lshlrev_b32 v51, 2, v1\ns_mov_b64 exec, 15\nbuffer_store_dword v50, v51, s[12:15], s88 offen sc1\ns_mov_b64 exec, -1\n{lab}:')
        drain = f's_waitcnt vmcnt({w[0]})\ns_barrier\ns_waitcnt vmcnt({w[1]})\ns_barrier\ns_waitcnt vmcnt(0)\ns_barrier\ns_barrier'
        if not nxt:
            if t == 'PV':
                def gdep():
                    a(f's_lshl_b32 s66, s61, 1\ns_add_u32 s66, s66, {F_VT}\ns_lshl_b32 s67, s61, 2'); return [('s67', 4), ('s66', 2)]
                def gate():
                    if self.flags: chk()
                    self.lin('s67', [('s60', 4608), ('s65', 2)], WS_GATE); self.srd(24, 'ws', 's67', 4 * 4608 + 512)
                    t_ = L['t']
                    a(f'v_lshrrev_b32 v{t_+1}, 5, v1\nv_mul_u32_u24 v{t_+1}, {4*4608 - 512}, v{t_+1}\nv_lshl_add_u32 v{t_}, v1, 4, v{t_+1}\ns_mov_b32 m0, {GL}\ns_nop 0')
                    a(f'buffer_load_dwordx4 v{t_}, s[24:27], 0 offen sc1 lds\ns_mov_b32 m0, s82')
                run(left - 3)
                if self.flags: self.w4(lambda: ask(gdep))
                run(2); self.w4(gate); run(1)
            else: run(left)
            if t == 'S' and self.xdma:
                a('s_waitcnt vmcnt(14)\ns_barrier'); self.x_dma()
                if PFA:
                    self.sdiv('s70', 's62', 6, 's71'); self.lin('s70', [('s60', 1056 * RP), ('s71', 176 * RP), ('s3', 44 * RP), ('s65', 1)], WS_V - 176 * RP)
                    a(f'v_lshrrev_b32 v50, 4, v1\nv_mul_u32_u24 v50, {RP}, v50\nv_and_b32 v51, 15, v1\nv_lshl_add_u32 v50, v51, 4, v50')
                    pf = lambda n: [a(f'buffer_load_dwordx4 v[52:55], v50, s[12:15], s70 offen sc1\ns_add_u32 s70, s70, {4*RP}') for _ in range(n)]
                    a('s_waitcnt vmcnt(13)\ns_barrier'); pf(3); a('s_waitcnt vmcnt(9)\ns_barrier'); pf(4); a('s_barrier'); pf(4)
                else: a('s_waitcnt vmcnt(13)\ns_barrier\ns_waitcnt vmcnt(6)\ns_barrier\ns_barrier')
            else: a(drain)
            return
        if pre: pre()
        if t == 'M' and 'bg' in OPT:
            for n in range(4):
                self.bg_prefetch(n); run(4); left -= 4
        lab = a.label('nx')
        if not prepped: self.ld_prep(nxt)
        if self.flags:
            run(left - 2)
            a(f'buffer_load_dwordx4 {vr(vt,4)}, v49, s[12:15], 0 offen {PF}')
            run(2)
            a(f's_waitcnt vmcnt({w[0]})'); self.min4(vt)
            a(f'v_cmp_eq_u32 s[94:95], 0, v{vt}')
        else: run(left)
        self.stamp(k)
        if self.instr and nxt == 'V': a('s_mov_b32 s90, 20')
        self.ld_commit()
        five = FIVE and nxt != 'M'
        call = f's_call_b64 s[68:69], L_prep_{nn}' if nn else ''
        if nn: self.preps.add(nn)
        if self.flags:
            a(f's_cmp_eq_u64 s[94:95], exec\ns_cbranch_scc1 {lab}_g\n{drain}')
            if five: a('s_barrier')
            a(call + '\ns_call_b64 s[68:69], L_lpoll')
            if nxt == 'M': self.ld_call('L_issue2'); a('s_waitcnt vmcnt(4)\ns_barrier'); self.ld_call('L_issue2')
            else: self.ld_call('L_issue', 2); a('s_waitcnt vmcnt(7)\ns_barrier'); self.ld_call('L_issue', 2 + five)
            a(f's_branch {lab}_e\n{lab}_g:')
        if nxt == 'M': self.ld_call('L_steady2', 2)
        elif M:
            for _ in range(2): a('s_waitcnt vmcnt(11)'); self.ld_call('L_steady', 1)
            self.ld_call('L_steady', 2)
        else: self.ld_call('L_steady', 4)
        if five: a('s_barrier'); self.ld_call('L_issue', 1)
        a(call)
        a(f's_barrier\n{lab}_e:')
        if five: a('s_waitcnt vmcnt(21)\ns_barrier')
    def bg_prefetch(self, n):
        a = self.a
        a('s_lshl_b32 s92, s2, 2\ns_add_u32 s92, s92, s3\ns_sub_u32 s92, s92, 4\nv_lshlrev_b32 v32, 4, v1')
        if n < 2:
            self.srd(24, 'wqkv_txt', 0, SZ['wqkv_txt'])
            a(f's_mul_i32 s92, s92, 10240\ns_add_u32 s92, s92, {5120*n}\ns_min_u32 s92, s92, {SZ["wqkv_txt"]-5120}\ns_add_u32 s93, s92, 4096')
            for i in range(5): a(f'buffer_load_dwordx4 v[36:39], v32, s[24:27], {"s92" if i < 4 else "s93"} offen offset:{1024*(i&3)}')
        else:
            self.srd(24, 'wmod_img' if n == 2 else 'wmod_txt', 0, SZ['wmod_img'])
            a('s_mul_i32 s92, s92, 3\ns_mov_b32 exec_hi, 0xf')
            for i in range(3):
                a(f's_add_u32 s93, s92, {i}\ns_and_b32 s84, s93, 1\ns_lshr_b32 s93, s93, 1\ns_min_u32 s93, s93, 1151\ns_mul_i32 s93, s93, 13824\ns_mul_i32 s84, s84, 1152\ns_add_u32 s93, s93, s84\ns_add_u32 s93, s93, 4608')
                a('buffer_load_dwordx4 v[36:39], v32, s[24:27], s93 offen\nbuffer_load_dwordx4 v[36:39], v32, s[24:27], s93 offen offset:576')
            a('s_mov_b32 exec_hi, -1')

    VA = 2; VB = 3; DT = 4; DK = 5; TA = 6; VROW = 10; VCOL = 11; VONE = 12; VZERO = 13
    ACC = 16; TMP = [64, 112]; FA = [160, 176]; FB = [192, 204]; FREE = 216
    def cp_static(self):
        a = self.a
        a('s_lshr_b32 s90, s3, 1\ns_and_b32 s91, s3, 1\ns_mov_b32 s89, -1\ns_mov_b32 s98, 0\ns_mov_b32 s88, 0')
        g, c, x, y = 196, 197, 198, 199
        a(f'v_lshrrev_b32 v{g}, 4, v1\nv_lshrrev_b32 v{x}, 1, v1\nv_xor_b32 v{x}, v{x}, v1\nv_bfe_u32 v{x}, v{x}, 2, 1\nv_mul_u32_u24 v{x}, 3, v{x}\nv_xor_b32 v{x}, v{x}, v{g}')
        a(f'v_and_b32 v{c}, 7, v1\nv_lshlrev_b32 v{c}, 6, v{c}\nv_lshl_add_u32 v{x}, v{x}, 4, v{c}\nv_bfe_u32 v{c}, v1, 3, 1\nv_mul_u32_u24 v{c}, {CH}, v{c}\nv_add_u32 v{x}, v{x}, v{c}')
        a(f's_mul_i32 s92, s91, {6*CH}\ns_add_u32 s92, s92, {16*CH}\nv_add_u32 v{self.VB}, s92, v{x}')
        a(f's_mul_i32 s93, s90, {8*CH}\ns_sub_u32 s93, s93, s92\nv_mov_b32 v{self.DK}, s93')
        a(f'v_mul_u32_u24 v{g}, {2*CH}, v{g}\nv_bfe_u32 v{c}, v1, 2, 2\nv_lshl_add_u32 v{g}, v{c}, 6, v{g}\nv_and_b32 v{c}, 3, v1\nv_lshl_add_u32 v{g}, v{c}, 3, v{g}')
        a(f's_lshl_b32 s93, s90, 9\nv_add_u32 v{g}, s93, v{g}\nv_sub_u32 v{self.DT}, v{g}, v{self.VB}')
        a(f'v_and_b32 v{x}, 12, v1\nv_bfe_u32 v{y}, v1, 4, 1\ns_mul_i32 s92, s91, 48\nv_add3_u32 v{self.VROW}, v{x}, v{y}, s92')
        a(f'v_and_b32 v{x}, 3, v1\nv_lshlrev_b32 v{x}, 5, v{x}\nv_lshrrev_b32 v{y}, 5, v1\nv_lshl_add_u32 v{x}, v{y}, 4, v{x}\ns_lshl_b32 s92, s90, 7\nv_add_u32 v{self.VCOL}, s92, v{x}')
        a(f'v_bfe_i32 v8, v1, 0, 1\nv_bfe_i32 v9, v1, 1, 1\nv_mov_b32 v{self.VONE}, 1\nv_mov_b32 v{self.VZERO}, 0')
    def reads(self, lay, kk, st):
        B = [f'ds_read_b128 {vr(self.FB[st]+4*jt,4)}, v{self.VB} offset:{jt*2*CH + kk*(512 if lay == "T" else CH)}' for jt in range(3)]
        A = []
        for it in range(4):
            if lay == 'K': A.append(f'ds_read_b128 {vr(self.FA[st]+4*it,4)}, v{self.VA} offset:{it*2*CH + kk*CH}')
            else:
                for h in range(2):
                    A.append(f'ds_read_b64_tr_b16 {vr(self.FA[st]+4*it+2*h,2)}, v{self.VA} offset:{(h+8*kk)*CH + (it>>1)*256 + (it&1)*32}')
        k = 1 if lay == 'K' else 2
        if 'jmaj' in OPT: return A[:k] + B[:1] + A[k:] + B[1:]
        return A[:k] + B + A[k:]
    def to_ft(self):
        self.a(f'v_add_u32 v{self.VB}, v{self.VB}, v14\nv_sub_u32 v{self.DT}, v{self.DT}, v14\nv_mov_b32 v14, 0')
    def mfmas(self, st, acc, zero=False):
        out = []
        order = [(it, (2 - jt if it & 1 and 'snake' in OPT else jt)) for it in range(4) for jt in range(3)]
        if 'jmaj' in OPT: order = [((3 - it if jt & 1 else it), jt) for jt in range(3) for it in range(4)]
        for it, jt in order:
            d = vr(acc + 4 * (it * 3 + jt), 4)
            out.append(f'v_mfma_f32_16x16x32_bf16 {d}, {vr(self.FA[st]+4*it,4)}, {vr(self.FB[st]+4*jt,4)}, {"0" if zero else d}')
        return out
    def advance(self, lay):
        return [f'v_add_u32 v{self.TA}, {STAGE}, v{self.VB}', f'v_add_u32 v{self.TA+1}, {(STAGE-RING) & 0xffffffff:#x}, v{self.VB}',
                f'v_min_u32 v{self.VB}, v{self.TA+1}, v{self.TA}', f'v_add_u32 v{self.VA}, v{self.VB}, v{self.DK if lay == "K" else self.DT}']
    def rebase(self, lay, sign):
        if sign > 0: self.a(self.advance(lay)[3])
    @staticmethod
    def regs_of(txt):
        import re
        out = []
        for m in re.finditer(r'v\[(\d+):(\d+)\]|v(\d+)', txt):
            out.append(set(range(int(m.group(1)), int(m.group(2)) + 1)) if m.group(1) else {int(m.group(3))})
        return out
    def emit_waits(self, seq, pending):
        a = self.a
        for pos, ins in enumerate(seq):
            rs = self.regs_of(ins)
            if ins.startswith('ds_read'):
                a(ins); pending.append(rs[0]); continue
            use = set().union(*rs) if rs else set()
            last = max((k for k, d in enumerate(pending) if d & use), default=-1)
            if last >= 0:
                for nx in [x for x in seq[pos + 1:pos + 12] if x.startswith('v_mfma')][:LOOK]:
                    u2 = set().union(*self.regs_of(nx))
                    last = max(last, max((k for k, d in enumerate(pending) if d & u2), default=-1))
                n = len(pending) - 1 - last
                assert n <= 15
                a(f's_waitcnt lgkmcnt({n})'); del pending[:last + 1]
            a(ins)
        return pending
    def weave(self, mf, rd, other):
        if 'nomfma' in OPT: mf = ['s_nop 0'] * len(mf)
        if 'noread' in OPT: rd = []
        n = len(mf); gaps = [[] for _ in range(n)]
        for k, r in enumerate(rd): gaps[min(n - 1, k * (n - 1) // max(1, len(rd)) if len(rd) < n else k)].append(r)
        return gaps, mf
    def substep(self, mf, rd, tail, other=(), bar=False):
        gaps, mf = self.weave(mf, rd, other)
        n = len(mf); other = list(other)
        for k, x in enumerate(other): gaps[k * n // len(other)].append(x)
        gaps[n - 1] += list(tail)
        seq = []
        if bar and 'bar0' in OPT: seq = ['s_barrier']
        elif bar: gaps[0].insert(0, 's_barrier')
        for m, g in zip(mf, gaps): seq += [m] + g
        return seq
    def stage(self, lay, acc, zero=False, ex0=(), ex1=(), half=False, end=()):
        adv = self.advance(lay)
        if half: return self.substep(self.mfmas(0, acc, zero), [], list(end), adv + list(ex0), bar=True)
        return self.substep(self.mfmas(0, acc, zero), self.reads(lay, 1, 1), adv[2:], adv[:2] + list(ex0)) + \
               self.substep(self.mfmas(1, acc), self.reads(lay, 0, 0), list(end), ex1, bar=True)
    def loop(self, pre, body):
        pend = self.emit_waits(pre, [])
        start = [set(x) for x in pend]
        return start, pend
    def signal_one(self):
        if not self.flags: return
        if not ONE: return self.signal_now()
        a = self.a; lab = a.label('s1')
        a(f's_waitcnt vmcnt(0)\nv_mov_b32 v254, {CX+28}\ns_mov_b64 exec, 1\nds_add_rtn_u32 v255, v254, v{self.VONE}\ns_andn2_b32 s88, s88, 15\ns_waitcnt lgkmcnt(0)')
        a(f'v_and_b32 v255, 3, v255\nv_cmp_eq_u32 vcc, 3, v255\ns_mov_b64 exec, 15\ns_cbranch_vccz {lab}\nv_mov_b32 v255, s11\nv_lshlrev_b32 v254, 2, v1\nbuffer_store_dword v255, v254, s[12:15], s88 offen sc1\n{lab}:\ns_mov_b64 exec, -1')
    def signal_now(self):
        if not self.flags: return
        self.a(f's_waitcnt vmcnt(0)\nv_mov_b32 v255, s11\ns_mov_b64 exec, 1\nbuffer_store_dword v255, v{self.VZERO}, s[12:15], s88 offen sc1\ns_mov_b64 exec, -1')
    ACC2 = 112; ACCT = 64; VO = 240
    def hook(self, lab):
        self.hooks.append(f'{lab}_h:\ns_call_b64 s[68:69], L_hook\ns_branch {lab}_n')
        return f's_cmp_eq_u32 s94, s89\ns_cbranch_scc1 {lab}_h\n{lab}_n:'
    def capture(self, fn):
        keep = self.a; self.a = Asm(); fn(); out = [l.strip() for l in self.a.lines if not l.strip().startswith('s_nop')]; self.a = keep
        return out
    def gemm_sub(self, lab, lay, acc, merged=False, epi=None, npeel=2):
        a = self.a
        nit = 18 if merged else 9
        adv = self.advance(lay); onlyA = lambda kk, st: [r for r in self.reads(lay, kk, st) if f'v{self.VA} ' in r]
        def body(ex, zero=False):
            if merged:
                return self.substep(self.mfmas(0, acc, zero), self.reads(lay, 1, 1), adv[2:], adv[:2] + ex[0]) + \
                       self.substep(self.mfmas(1, acc), onlyA(0, 0), [], ex[1], bar=True) + \
                       self.substep(self.mfmas(0, self.ACC2, zero), onlyA(1, 1), adv[2:], adv[:2] + ex[2]) + \
                       self.substep(self.mfmas(1, self.ACC2), self.reads(lay, 0, 0), [], ex[3], bar=True)
            return self.stage(lay, acc, zero=zero, ex0=ex[0], ex1=ex[1]) + self.stage(lay, acc, ex0=ex[2], ex1=ex[3])
        first = self.reads(lay, 0, 0) if 'noread' not in OPT else []
        a(f'{lab}:')
        self.rebase(lay, 1)
        start = self.emit_waits(first, [])
        for r in range(48): a(f'v_mov_b32 v{acc+r}, 0')
        if merged:
            for r in range(48): a(f'v_mov_b32 v{self.ACC2+r}, 0')
        a(f's_mov_b32 s94, {nit}')
        if epi:
            a(f's_branch {lab}_l\n{ALN}{lab}_w:')
            self.rebase(lay, 1)
            pend = self.emit_waits(first, [])
            n = 4 * npeel
            for k in range(npeel):
                pend = self.emit_waits(body([epi[(4*k+q)*len(epi)//n:(4*k+q+1)*len(epi)//n] for q in range(4)], zero=k == 0), pend)
            assert pend == start
            a(f's_mov_b32 s94, {nit - npeel}')
        a(f'{ALN}{lab}_l:')
        un = UNR if merged else 1
        assert (nit - npeel) % un == 0 and XAT % un == 0
        seq = []
        for u in range(un):
            seq += body([[], [], ['s_nop 0'] * 3 + ['s_waitcnt vmcnt(0)'] if u == un - 1 else [], [f's_sub_u32 s94, s94, {un}', 's_cmp_lg_u32 s94, 0'] if u == un - 1 else []])
        seq = [x for x in seq if x != 's_nop 0']
        pend = self.emit_waits(seq, list(start))
        assert pend == start
        a(f's_cbranch_scc1 {lab}_l')
        a('s_waitcnt lgkmcnt(0)\ns_nop 6\ns_setpc_b64 s[86:87]')
    def epi_rows(self, P=160):
        self.pack(self.ACCT, P); self.xpose(P, self.ACCT)
        for k in range(6): self.a(f'buffer_store_dwordx4 {vr(P+4*k,4)}, v{self.VO+k}, s[24:27], 0 offen sc1')
    def epi_qk(self):
        self.pack(self.ACC2, 160); self.store_ft(160, 28); self.pack(self.ACC, self.ACC2); self.store_ft(self.ACC2, 24)
    def pack(self, acc, dst):
        for jt in range(3):
            for p in range(2):
                Z = dst + 8 * jt + 4 * p
                x = acc + 4 * (2 * p * 3 + jt); y = acc + 4 * ((2 * p + 1) * 3 + jt)
                self.a(f'v_cvt_pk_bf16_f32 v{Z}, v{x}, v{x+1}\nv_cvt_pk_bf16_f32 v{Z+1}, v{x+2}, v{x+3}')
                self.a(f'v_cvt_pk_bf16_f32 v{Z+2}, v{y}, v{y+1}\nv_cvt_pk_bf16_f32 v{Z+3}, v{y+2}, v{y+3}')
    def hook_sub(self):
        a = self.a
        pass
        if True:
            a('L_st3:'); self.epi_rows(); a('s_setpc_b64 s[68:69]\nL_st6:'); self.epi_qk(); a('s_setpc_b64 s[68:69]')
    def store_ft(self, P, srd):
        a = self.a; v = [self.VROW, 246, 247]
        a(f'v_add_u32 v{v[1]}, 36864, v{v[0]}\nv_add_u32 v{v[2]}, {2*36864}, v{v[0]}')
        for k in range(6):
            for d in range(2): a(f'v_permlane16_swap_b32 v{P+4*k+d}, v{P+4*k+2+d}')
            a(f'buffer_store_dwordx4 {vr(P+4*k,4)}, v{v[k>>1]}, {sr(srd,4)}, 0 offen offset:{1024*(k&1)} sc1')
    def ft_static(self):
        a = self.a; x, y = 216, 217
        a(f'v_bfe_u32 v{y}, v1, 4, 1\nv_lshlrev_b32 v{y}, 9, v{y}\nv_lshrrev_b32 v{x}, 5, v1\nv_lshl_add_u32 v{y}, v{x}, 8, v{y}\nv_and_b32 v{x}, 15, v1\nv_lshl_add_u32 v{y}, v{x}, 4, v{y}')
        a(f's_mul_i32 s92, s91, {3*36864}\ns_lshl_b32 s93, s90, 11\ns_add_u32 s92, s92, s93\nv_add_u32 v{self.VROW}, s92, v{y}')
        a(f's_mul_i32 s92, s91, {6*CH}\ns_add_u32 s92, s92, {16*CH}\nv_lshl_add_u32 v14, v1, 4, s92\nv_sub_u32 v14, v14, v{self.VB}')
    def ops(self, op, it): self.a(f's_mov_b32 s98, {op}\ns_mov_b32 s89, {it}')
    def xpose(self, P, T, inverse=False, nj=3):
        a = self.a
        def swaps():
            for jt in range(nj):
                for r in (0, 4):
                    for d in range(2): a(f'v_permlane16_swap_b32 v{P+8*jt+r+d}, v{P+8*jt+r+2+d}')
        a('s_nop 1')
        if inverse: swaps()
        for bit, M, qp in ((2, 8, '[1,0,3,2]'), (4, 9, '[2,3,0,1]')):
            lo = [r for r in range(8 * nj) if not r & bit]
            for k, r in enumerate(lo): a(f'v_bfi_b32 v{T+k}, v{M}, v{P+r}, v{P+r+bit}')
            for k, r in enumerate(lo): a(f'v_mov_b32_dpp v{T+12+k}, v{T+k} quad_perm:{qp} row_mask:0xf bank_mask:0xf')
            for k, r in enumerate(lo): a(f'v_bfi_b32 v{P+r}, v{M}, v{T+12+k}, v{P+r}\nv_bfi_b32 v{P+r+bit}, v{M}, v{P+r+bit}, v{T+12+k}')
        if not inverse:
            a('s_nop 1'); swaps()
    def row_offsets(self, vo, t, jump):
        a = self.a
        a(f's_movk_i32 s92, {RP}')
        for k in range(6):
            a(f'v_add_u32 v{t}, {16*(k>>1)+2*(k&1)}, v{self.VROW}\nv_mad_u32_u24 v{vo+k}, v{t}, s92, v{self.VCOL}')
            if jump: a(f'v_lshrrev_b32 v{t}, 5, v{t}\nv_mad_u32_u24 v{vo+k}, v{t}, {jump}, v{vo+k}')
    def store_tile(self, acc, srd, vo, t):
        self.pack(acc, t); self.xpose(t, t + 24)
        for k in range(6): self.a(f'buffer_store_dwordx4 {vr(t+4*k,4)}, v{vo+k}, {sr(srd,4)}, 0 offen sc1')
    def store_sub(self):
        a = self.a
        a('L_store:')
        self.row_offsets(216, 222, 's79')
        self.store_tile(self.ACC, 24, 216, 160)
        a('s_setpc_b64 s[86:87]')
    def allred(self, v, tmp, op, n=3):
        a = self.a
        for sw in ('v_permlane16_swap_b32', 'v_permlane32_swap_b32'):
            for j in range(n): a(f'v_mov_b32 v{tmp+j}, v{v+j}')
            a('s_nop 1')
            for j in range(n): a(f'{sw} v{v+j}, v{tmp+j}')
            for j in range(n): a(f'{op} v{v+j}, v{v+j}, v{tmp+j}')
    def softmax_sub(self):
        a = self.a; acc = self.ACC
        m, o, l, pr = 64, 67, 70, 74
        a('L_softmax:\ns_cmp_lg_u32 s61, 8\ns_cbranch_scc1 L_sm_go\ns_cmp_lg_u32 s90, 0\ns_cbranch_scc1 L_sm_ret')
        for r in range(24, 48): a(f'v_mov_b32 v{acc+r}, 0xff800000')
        a('L_sm_go:')
        allred = self.allred
        R = [[acc + 4 * (it * 3 + jt) + r for it in range(4) for r in range(4)] for jt in range(3)]
        for jt in range(3): a(f'v_max_f32 v{m+jt}, v{R[jt][0]}, v{R[jt][1]}')
        for k in range(2, 16, 2):
            for jt in range(3): a(f'v_max3_f32 v{m+jt}, v{m+jt}, v{R[jt][k]}, v{R[jt][k+1]}')
        allred(m, o, 'v_max_f32')
        a(f's_cmp_eq_u32 s61, 8\ns_cbranch_scc1 L_sm_x\ns_mul_i32 s92, s3, 768\ns_add_u32 s92, s92, {XL}\nv_lshl_add_u32 v{pr}, v1, 2, s92')
        for jt in range(3): a(f'ds_write_b32 v{pr}, v{m+jt} offset:{256*jt}')
        a(f's_lshl_b32 s92, s91, 2\ns_add_u32 s92, s92, {CX+56}\nv_mov_b32 v{pr+1}, s92'); self.lds_arrive(pr + 1, self.VONE)
        a(f's_xor_b32 s92, s3, 2\ns_mul_i32 s92, s92, 768\ns_add_u32 s92, s92, {XL}\nv_lshl_add_u32 v{pr}, v1, 2, s92')
        self.lds_wait4(pr + 1, pr + 2, 2, sleep=False)
        for jt in range(3): a(f'ds_read_b32 v{o+jt}, v{pr} offset:{256*jt}')
        a('s_waitcnt lgkmcnt(0)')
        for jt in range(3): a(f'v_max_f32 v{m+jt}, v{m+jt}, v{o+jt}')
        a(f'L_sm_x:\ns_mov_b32 s92, {f2u(LOG2E * D ** -0.5):#x}')
        nm = 78
        for jt in range(3): a(f'v_mul_f32 v{m+jt}, s92, v{m+jt}\nv_mov_b32 v{nm+2*jt}, s92')
        for jt in range(3): a(f'v_sub_f32 v{nm+2*jt+1}, 0, v{m+jt}')
        a(f'v_add_u32 v246, 36864, v{self.VROW}\nv_add_u32 v247, {2*36864}, v{self.VROW}')
        for jt in range(3):
            for r in R[jt][::2]: a(f'v_pk_fma_f32 {vr(r,2)}, {vr(r,2)}, {vr(nm+2*jt,2)}, {vr(nm+2*jt,2)} op_sel:[0,0,1] op_sel_hi:[1,0,1]')
            for r in R[jt]: a(f'v_exp_f32 v{r}, v{r}')
            P = 160 + 8 * jt
            for k in range(8): a(f'v_cvt_pk_bf16_f32 v{P+k}, v{R[jt][2*k]}, v{R[jt][2*k+1]}')
            a(f'v_pk_add_f32 {vr(nm+2*jt,2)}, {vr(R[jt][0],2)}, {vr(R[jt][2],2)}')
            for p in range(2):
                for d in range(2): a(f'v_permlane16_swap_b32 v{P+4*p+d}, v{P+4*p+2+d}')
                a(f'buffer_store_dwordx4 {vr(P+4*p,4)}, v{(self.VROW, 246, 247)[jt]}, s[4:7], 0 offen offset:{1024*p} sc1')
        for k in range(4, 16, 2):
            for jt in range(3): a(f'v_pk_add_f32 {vr(nm+2*jt,2)}, {vr(nm+2*jt,2)}, {vr(R[jt][k],2)}')
        for jt in range(3): a(f'v_add_f32 v{l+jt}, v{nm+2*jt}, v{nm+2*jt+1}')
        allred(l, o, 'v_add_f32')
        a(f's_mul_i32 s92, s91, 48\nv_add_lshl_u32 v{o}, v1, s92, 3\nv_mov_b32 v{pr}, v{m}\nv_mov_b32 v{pr+1}, v{l}')
        a(f's_mov_b64 exec, 0xffff0000\ns_mov_b32 exec_hi, 0\nv_mov_b32 v{pr}, v{m+1}\nv_mov_b32 v{pr+1}, v{l+1}')
        a(f's_mov_b32 exec_lo, 0\ns_mov_b32 exec_hi, 0xffff\nv_mov_b32 v{pr}, v{m+2}\nv_mov_b32 v{pr+1}, v{l+2}\ns_mov_b32 exec_lo, -1')
        a(f'buffer_store_dwordx2 {vr(pr,2)}, v{o}, s[28:31], 0 offen sc1')
        a('s_mov_b64 exec, -1\nL_sm_ret:\ns_setpc_b64 s[86:87]')
    XR = 216; GT = 240; F = 248; VF = 251; LS = 252
    def pv_sub(self):
        a = self.a; main = self.ACC; tmp = self.TMP; f = self.F; vf = self.VF
        a('L_pv:')
        self.to_ft(); self.rebase('P', 1)
        for r in range(48): a(f'v_mov_b32 v{main+r}, 0')
        for r in range(48): a(f'v_mov_b32 v{tmp[1]+r}, 0')
        a(f'v_and_b32 v{vf}, 15, v1\ns_mul_i32 s92, s91, {9*192}\ns_add_u32 s92, s92, {XL+4096}\nv_lshl_add_u32 v{vf}, v{vf}, 2, s92\nv_mov_b32 v{vf+1}, {CX+64}')
        self.stamp(23)
        a('s_waitcnt lgkmcnt(0)\ns_barrier')
        self.stamp(24)
        def fold(tp):
            if 'pk' in OPT:
                return [f'v_pk_fma_f32 {vr(main+4*(it*3+jt)+r,2)}, {vr(tp+4*(it*3+jt)+r,2)}, {vr(f+(jt&2),2)}, {vr(main+4*(it*3+jt)+r,2)} ' + ('op_sel:[0,1,0]' if jt & 1 else 'op_sel_hi:[1,0,1]')
                        for it in range(4) for jt in range(3) for r in (0, 2)]
            return [f'v_fmac_f32 v{main+4*(it*3+jt)+r}, v{tp+4*(it*3+jt)+r}, v{f+jt}' for it in range(4) for jt in range(3) for r in range(4)]
        fread = [f'ds_read_b32 v{f+jt}, v{vf} offset:{64*jt}' for jt in range(3)] + [f'v_add_u32 v{vf}, 192, v{vf}']
        fread = [f'ds_read_b32 v{f+jt}, v{vf+1} offset:{64*jt}' for jt in range(3)] + [f'v_mov_b32 v{vf+1}, v{vf}', f'v_add_u32 v{vf}, 192, v{vf}']
        pend = self.emit_waits(self.reads('P', 0, 0) if 'noread' not in OPT else [], [])
        start = list(pend)
        a(f's_mov_b32 s94, 4\n{ALN}L_pv_l:')
        seq = []
        for p in range(2):
            fl = fold(tmp[p ^ 1])
            seq += self.stage('P', tmp[p], zero=True, ex1=fread + ['s_nop 0'] * 3 + fl[:10])
            seq += self.stage('P', tmp[p], ex0=fl[10:28], ex1=fl[28:] + (['s_sub_u32 s94, s94, 1', 's_cmp_lg_u32 s94, 0'] if p else []))
        seq = [x for x in seq if x != 's_nop 0']
        pend = self.emit_waits(seq, pend)
        assert pend == start
        a('s_cbranch_scc1 L_pv_l')
        self.emit_waits(fread + self.stage('P', tmp[0], zero=True, ex0=fold(tmp[1]), half=True, end=fread), pend)
        self.rebase('P', -1)
        a('s_waitcnt lgkmcnt(0)\ns_nop 5\ns_setpc_b64 s[86:87]')
        self.fold = fold
    def gate_loads(self, gt, va, jts):
        a = self.a
        for n, jt in enumerate(jts):
            a(f'v_lshrrev_b32 v{va}, 4, v1\nv_lshlrev_b32 v{va}, 4, v{va}\ns_lshl_b32 s92, s90, 8')
            if jt is not None:
                a(f's_mul_i32 s93, s91, 48\ns_add_u32 s93, s93, {16*jt}\ns_lshr_b32 s93, s93, 5\ns_mul_i32 s93, s93, 4608\ns_add_u32 s92, s92, s93')
            for it in range(4): a(f'buffer_load_dwordx4 {vr(gt+16*n+4*it,4)}, v{va}, s[4:7], s92 offen offset:{64*it} sc1')
    def resid_epi(self, acc, xr, gt, zr, vo, t):
        a = self.a
        for jt in range(3):
            for it in range(4):
                q = acc + 4 * (it * 3 + jt); o = 8 * jt + 2 * it; u = t + 4 * (it & 1)
                if zr is not None:
                    for d in range(2): a(f'v_lshlrev_b32 v{u+2*d}, 16, v{zr+o+d}\nv_and_b32 v{u+2*d+1}, 0xffff0000, v{zr+o+d}')
                    for r in range(4): a(f'v_add_f32 v{q+r}, v{q+r}, v{u+r}')
                for d in range(2): a(f'v_lshlrev_b32 v{u+2*d}, 16, v{xr+o+d}\nv_and_b32 v{u+2*d+1}, 0xffff0000, v{xr+o+d}')
                for r in range(4): a(f'v_fmac_f32 v{u+r}, v{q+r}, v{gt(jt)+4*it+r}')
                for d in range(2): a(f'v_cvt_pk_bf16_f32 v{xr+o+d}, v{u+2*d}, v{u+2*d+1}')
        self.xpose(xr, t)
        for k in range(6): a(f'buffer_store_dwordx4 {vr(xr+4*k,4)}, v{vo+k}, s[24:27], 0 offen {OUTF}')

    def cp_task(self, t, aux, late, nxt_early, cont=False, join=None, pv=False):
        a = self.a
        def wsl(srd, base, sregs, lim):
            a(f's_mov_b32 s67, {base}')
            for s in sregs: a(f's_add_u32 s67, s67, {s}')
            self.srd(srd, 'ws', 's67', lim)
        JUMP = 1024 * RP
        weave = WEAVE and t == 'U'
        if t in 'UMV':
            two = t == 'M'
            a('s_barrier\ns_barrier' if late and t != 'U' else 's_barrier')
            self.stamp(28 if t == 'U' else 12 if two else 16)
            a(f's_call_b64 s[86:87], {"L_qk" if two else "L_tk"}{"_w" if cont and weave else ""}')
            if join: a(f'{join}:')
            if FIVE and nxt_early and nxt_early != 'M': a('s_barrier')
            self.stamp(29 if t == 'U' else 13 if two else 17)
            if t == 'U': self.lin('s70', [('s62', 96 * RP)]); wsl(24, WS_U, ['s70', 's65'], 96 * RP)
            elif t == 'M': a('s_lshl_b32 s70, s61, 12'); wsl(24, WS_Q, ['s63', 's70'], 's64'); wsl(28, WS_K, ['s63', 's70'], 's64')
            else: wsl(24, WS_V, ['s63', 's65'], 's64')
            if not (nxt_early and weave): a(f's_call_b64 s[68:69], L_st{6 if two else 3}')
            if not nxt_early: self.sig_index(t, aux); self.signal_now()
            self.stamp(18)
            return
        elif t == 'S':
            self.to_ft()
            self.lin('s70', [('s60', 17 * 1056 * 8), ('s61', 2 * 1056 * 8), ('s90', 1056 * 8), ('s62', 96 * 8)], WS_ST)
            self.sdiv('s71', 's64', RP // 8); self.srd(28, 'ws', 's70', 's71')
            a('s_lshl_b32 s70, s61, 12'); wsl(4, WS_P, ['s63', 's70'], 's64')
            a('s_barrier\ns_barrier' if late else 's_barrier')
            self.stamp(19); a(f's_call_b64 s[86:87], L_kk{"_w" if cont and weave else ""}'); self.stamp(20)
            a('s_call_b64 s[86:87], L_softmax'); self.stamp(21)
            self.sig_index(t, aux)
            self.signal_one()
            return
        elif t == 'PV':
            self.to_ft()
            a(f'v_bfe_u32 v246, v1, 2, 2\nv_mul_u32_u24 v246, {CH}, v246\nv_and_b32 v247, 3, v1\nv_lshl_add_u32 v246, v247, 8, v246\nv_lshrrev_b32 v247, 4, v1\nv_lshl_add_u32 v246, v247, 3, v246')
            a(f'v_lshlrev_b32 v247, 4, v1\nv_sub_u32 v246, v246, v247\ns_mul_i32 s92, s91, {6*CH}\ns_lshl_b32 s93, s90, 7\ns_add_u32 s92, s92, s93\ns_sub_u32 s92, s92, {16*CH}\nv_add3_u32 v246, v246, s92, v{self.VB}')
            for x in self.advance('P'): a(x)
            a('s_barrier'); self.stamp(22)
            for jt in range(3):
                for it in range(4): a(f'ds_read_b64 {vr(self.XR+8*jt+2*it,2)}, v246 offset:{4*jt*CH + 32*it}')
            self.lin('s70', [('s60', 1024 * RP), ('s62', 96 * RP), ('s65', 1)])
            a('s_sub_u32 s71, s64, s65'); self.srd(24, 'out', 's70', 's71')
            a('s_call_b64 s[86:87], L_pv'); self.stamp(25)
            if t == 'PV':
                a(f'v_and_b32 v246, 48, v1\ns_lshl_b32 s92, s90, 8\ns_add_u32 s92, s92, {GL}\nv_add_u32 v246, s92, v246')
                for sp in range(2):
                    for it in range(4): a(f'ds_read_b128 {vr((192, 112, 128)[sp]+4*it,4)}, v246 offset:{512*sp+64*it}')
                acc, tp, f, xr, g = self.ACC, self.TMP[0], self.F, self.XR, 192
                a(f'v_lshlrev_b32 v160, 4, v1\nv_sub_u32 v160, v{self.VB}, v160\ns_mul_i32 s92, s91, {6*CH}\ns_add_u32 s92, s92, {16*CH}\ns_mul_i32 s93, s3, {48*144}\ns_sub_u32 s92, s93, s92\nv_add_u32 v160, s92, v160')
                a('v_and_b32 v161, 15, v1\nv_mul_u32_u24 v161, 144, v161\nv_lshrrev_b32 v162, 4, v1\nv_lshl_add_u32 v161, v162, 3, v161\nv_add_u32 v161, v161, v160')
                a(f'v_and_b32 v162, 12, v1\nv_bfe_u32 v163, v1, 4, 1\nv_add_u32 v162, v162, v163\nv_mul_u32_u24 v162, 144, v162\nv_and_b32 v163, 127, v{self.VCOL}\nv_add3_u32 v160, v160, v162, v163')
                for it in range(4):
                    for jt in range(3):
                        for r in (0, 2):
                            q = 4 * (it * 3 + jt) + r
                            a(f'v_pk_fma_f32 {vr(acc+q,2)}, {vr(tp+q,2)}, {vr(f+(jt&2),2)}, {vr(acc+q,2)} ' + ('op_sel:[0,1,0]' if jt & 1 else 'op_sel_hi:[1,0,1]'))
                a('s_waitcnt lgkmcnt(0)')
                for e in range(0, 16, 2): a(f'v_pk_add_f32 {vr(g+e,2)}, {vr(g+e,2)}, {vr(112+e,2)}')
                for jt in range(3):
                    for it in range(4):
                        q = acc + 4 * (it * 3 + jt); o = xr + 8 * jt + 2 * it; u = 164 + 4 * (it & 1)
                        for d in range(2): a(f'v_lshlrev_b32 v{u+2*d}, 16, v{o+d}\nv_and_b32 v{u+2*d+1}, 0xffff0000, v{o+d}')
                        for r in (0, 2): a(f'v_pk_fma_f32 {vr(u+r,2)}, {vr(q+r,2)}, {vr(g+4*it+r,2)}, {vr(u+r,2)}')
                        for d in range(2): a(f'v_cvt_pk_bf16_f32 v{o+d}, v{u+2*d}, v{u+2*d+1}')
                        a(f'ds_write_b64 v161, {vr(o,2)} offset:{16*144*jt + 32*it}')
                    for h in range(2): a(f'ds_read_b128 {vr(64+8*jt+4*h,4)}, v160 offset:{16*144*jt + 2*144*h}')
                    if jt:
                        a('s_waitcnt lgkmcnt(6)')
                        for h in range(2): a(f'buffer_store_dwordx4 {vr(64+8*(jt-1)+4*h,4)}, v{self.VO+2*(jt-1)+h}, s[24:27], 0 offen {OUTF}')
                a('s_waitcnt lgkmcnt(0)')
                for h in range(2): a(f'buffer_store_dwordx4 {vr(80+4*h,4)}, v{self.VO+4+h}, s[24:27], 0 offen {OUTF}')
    def x_loads(self):
        a = self.a
        self.lin('s79', [('s60', 1024 * RP), ('s62', 96 * RP), ('s65', 1)])
        a('s_sub_u32 s71, s64, s65'); self.srd(32, 'x_img', 's79', 's71')
        for k in range(6): a(f'buffer_load_dwordx4 {vr(self.XR+4*k,4)}, v{self.VO+k}, s[32:35], 0 offen nt')

    GW = 32; GS = 80; GA = 104; GT_ = 120; LX = 140; GC = 204
    def lds_arrive(self, va, vone):
        self.a(f's_mov_b64 exec, 1\nds_add_u32 v{va}, v{vone}\ns_mov_b64 exec, -1')
    def lds_wait4(self, va, vt, n=4, sleep=True):
        a = self.a; lab = a.label('lw')
        a(f's_mov_b32 s74, {SPIN}\n{lab}:\nds_read_b32 v{vt}, v{va}\ns_waitcnt lgkmcnt(0)\nv_cmp_le_u32 vcc, {n}, v{vt}')
        a(f's_cbranch_vccnz {lab}_d\n' + ('s_sleep 1\n' if sleep else '') + f's_sub_u32 s74, s74, 1\ns_cmp_lg_u32 s74, 0\ns_cbranch_scc1 {lab}\n{lab}_d:')
    def gemv_job(self, kind, ls=0):
        a = self.a
        a('s_lshr_b32 s71, s3, 2')
        self.lin('s79', [('s71', 2048)], XL + (8192 if ls else 0))
        self.lin('s80', [('s71', 4)], CX + (0, 8, 40)[ls])
        if kind == 'mod':
            a('s_mov_b32 s71, s81\ns_mov_b32 s81, s92'); self.sdiv('s92', 's81', 3, 's93')
            a('s_lshl_b32 s67, s92, 7\ns_mul_i32 s70, s93, 384\ns_movk_i32 s78, 9216')
            self.lin('s76', [('s93', 4 * 9216), ('s71', 2 * 9216), ('s92', 256)], WS_MODP)
            a('s_mov_b32 s77, 4\ns_mov_b32 s6, -1')
        else:
            a('s_mov_b32 s81, s92'); self.sdiv('s71', 's81', 18, 's92')
            a('s_lshl_b32 s66, s93, 1\ns_add_u32 s66, s66, 1\ns_lshl_b32 s67, s92, 7\ns_add_u32 s67, s67, 4608\ns_movk_i32 s78, 4608\ns_mul_i32 s70, s93, 384')
            self.lin('s6', [('s81', 2 * FS), ('s93', FS)])
            self.lin('s76', [('s93', 4 * 4608), ('s71', 2 * 4608), ('s92', 256)], WS_GATE)
    def gemv_addr(self):
        a = self.a; T = self.GT_
        a('s_and_b32 s75, s3, 3\ns_mul_i32 s75, s75, 96\ns_add_u32 s70, s70, s75')
        a(f'v_and_b32 v{T}, 7, v1\nv_lshrrev_b32 v{T+1}, 3, v1\nv_lshlrev_b32 v{T}, 4, v{T}\ns_mov_b32 s75, {12*13824}\nv_mad_u32_u24 v{T}, v{T+1}, s75, v{T}\nv_add_u32 v{T}, s67, v{T}')
        a(f'v_mul_u32_u24 v{T+2}, 24, v{T+1}')
    def gemv_srd(self):
        a = self.a
        a(f's_cmp_eq_u32 s71, 1\ns_cselect_b32 s16, s{PTR["wmod_txt"]}, s{PTR["wmod_img"]}\ns_cselect_b32 s17, s{PTR["wmod_txt"]+1}, s{PTR["wmod_img"]+1}')
        a(f's_mov_b32 s18, {SZ["wmod_img"]}\ns_mov_b32 s19, 0x20000')
        self.srd(20, 'c', 0, SZ['c'])
    def gemv_loads(self, W, C, mid={}):
        a = self.a; T = self.GT_
        a('s_lshl_b32 s75, s70, 1')
        for b in range(2):
            for k in range(3): a(f'buffer_load_dwordx2 {vr(C+6*b+2*k,2)}, v{T+2}, s[20:23], s75 offen offset:{2304*b+8*k}')
        a('s_mul_i32 s81, s70, 13824')
        for i in range(12):
            if i in mid: a(mid[i])
            a(f'buffer_load_dwordx4 {vr(W+4*i,4)}, v{T}, s[16:19], s81 offen nt')
            if i < 11: a(f's_add_u32 s81, s81, 13824')
    def gemv_subs(self):
        a = self.a
        W, S, ACC, T, X, C = self.GW, self.GS, self.GA, self.GT_, self.LX, self.GC
        a('L_gemv:'); self.gemv_addr(); a('L_gemv1:'); self.gemv_srd(); self.gemv_loads(W, C)
        a('L_gemv2:')
        for r in range(16): a(f'v_mov_b32 v{ACC+r}, 0')
        W2 = 140; C2 = 188
        a('s_waitcnt vmcnt(12)\ns_cmp_lg_u32 s66, 3\ns_cbranch_scc1 L_gv_l\ns_add_u32 s70, s70, 384')
        self.gemv_loads(W2, C2)
        a('s_waitcnt vmcnt(18)\nL_gv_l:\ns_cmp_lg_u32 s66, 3')
        q = T + 8; e = 216
        for i in range(12):
            for b in range(2):
                src = C + 6 * b + i // 2
                a(f'v_and_b32 v{S+2*i+b}, 0xffff0000, v{src}' if i & 1 else f'v_lshlrev_b32 v{S+2*i+b}, 16, v{src}')
        for r in range(24): a(f'v_mul_f32 v{e+r}, {f2u(-LOG2E):#x}, v{S+r}')
        for r in range(24): a(f'v_exp_f32 v{e+r}, v{e+r}')
        for r in range(24): a(f'v_add_f32 v{e+r}, 1.0, v{e+r}')
        for r in range(24): a(f'v_rcp_f32 v{e+r}, v{e+r}')
        for r in range(24): a(f'v_mul_f32 v{S+r}, v{S+r}, v{e+r}')
        for i in range(12):
            a(f's_cbranch_scc0 L_gv_w{i}\ns_waitcnt vmcnt({11-i})\nL_gv_w{i}:')
            for d in range(4):
                w = W + 4 * i + d
                a(f'v_lshlrev_b32 v{q+2*d}, 16, v{w}\nv_and_b32 v{q+2*d+1}, 0xffff0000, v{w}')
            for d in range(4):
                a(f'v_pk_fma_f32 {vr(ACC+4*d,2)}, {vr(q+2*d,2)}, {vr(S+2*i,2)}, {vr(ACC+4*d,2)} op_sel_hi:[0,1,1]')
                a(f'v_pk_fma_f32 {vr(ACC+4*d+2,2)}, {vr(q+2*d,2)}, {vr(S+2*i,2)}, {vr(ACC+4*d+2,2)} op_sel:[1,0,0]')
        a('s_cbranch_scc1 L_gv_done\ns_mov_b32 s66, 1\ns_waitcnt vmcnt(0)')
        for r in range(48): a(f'v_mov_b32 v{W+r}, v{W2+r}')
        for r in range(12): a(f'v_mov_b32 v{C+r}, v{C2+r}')
        a('s_branch L_gv_l\nL_gv_done:')
        self.stamp(27)
        for v in range(8): a(f'v_permlane32_swap_b32 v{ACC+v}, v{ACC+v+8}')
        for v in range(8): a(f'v_add_f32 v{ACC+v}, v{ACC+v}, v{ACC+v+8}')
        a('s_nop 1')
        for v in range(4): a(f'v_permlane16_swap_b32 v{ACC+v}, v{ACC+v+4}')
        for v in range(4): a(f'v_add_f32 v{ACC+v}, v{ACC+v}, v{ACC+v+4}')
        a('s_nop 1')
        for v in range(4): a(f'v_add_f32_dpp v{ACC+4+v}, v{ACC+v}, v{ACC+v} row_ror:8 row_mask:0xf bank_mask:0xf')
        RED = XL
        a(f's_and_b32 s81, s3, 3\ns_lshl_b32 s81, s81, 9\ns_add_u32 s81, s81, s79\nv_and_b32 v{T}, 7, v1\nv_lshlrev_b32 v{T}, 6, v{T}\nv_lshrrev_b32 v{T+1}, 4, v1\nv_lshl_add_u32 v{T}, v{T+1}, 4, v{T}\nv_add_u32 v{T}, s81, v{T}')
        a(f'v_mov_b32 v{T+4}, s80\nv_mov_b32 v{T+5}, 1\nv_mov_b32 v{T+6}, 0\nds_write_b128 v{T}, {vr(ACC+4,4)}')
        self.lds_arrive(T + 4, T + 5)
        a(f's_and_b32 s75, s3, 3\ns_cmp_lg_u32 s75, 3\ns_cbranch_scc1 L_gv_ret')
        self.lds_wait4(T + 4, T, 's77')
        a(f'v_lshl_add_u32 v{T}, v1, 3, s79')
        for w in range(4): a(f'ds_read_b64 {vr(ACC+2*w,2)}, v{T} offset:{512*w}')
        a(f'v_lshlrev_b32 v{T}, 2, v1\ns_add_u32 s78, s78, s76\ns_waitcnt lgkmcnt(0)')
        a(f'v_pk_add_f32 {vr(ACC,2)}, {vr(ACC,2)}, {vr(ACC+2,2)}\nv_pk_add_f32 {vr(ACC+4,2)}, {vr(ACC+4,2)}, {vr(ACC+6,2)}\nv_pk_add_f32 {vr(ACC,2)}, {vr(ACC,2)}, {vr(ACC+4,2)}')
        a(f's_and_b32 s75, s11, 255\ns_cmp_eq_u32 s6, -1\ns_cselect_b32 s75, s75, 0\nv_mov_b32 v{T+5}, s11')
        for r in range(2): a(f'v_and_b32 v{ACC+r}, 0xffffff00, v{ACC+r}\nv_or_b32 v{ACC+r}, s75, v{ACC+r}')
        a(f'buffer_store_dword v{ACC}, v{T}, s[12:15], s76 offen sc1\nbuffer_store_dword v{ACC+1}, v{T}, s[12:15], s78 offen sc1')
        if self.flags:
            a('s_cmp_eq_u32 s6, -1\ns_cbranch_scc1 L_gv_ret\ns_waitcnt vmcnt(0)')
            a(f's_mov_b64 exec, 15\nbuffer_store_dword v{T+5}, v{T}, s[12:15], s6 offen sc1\ns_mov_b64 exec, -1')
        a('L_gv_ret:\ns_setpc_b64 s[86:87]')
    def mod_table(self):
        a = self.a; a0, a1, a2, a3 = 180, 181, 182, 183; TAB = XL + 8192
        a('s_lshr_b32 s80, s10, 7\ns_lshr_b32 s81, s10, 6\ns_bfe_u32 s75, s10, 0x10001\ns_cmp_eq_u32 s80, 1\ns_cselect_b32 s81, s75, s81')
        a(f'v_cmp_le_u32 vcc, 32, v0\nv_mov_b32 v14, {CX+16}\nv_mov_b32 v223, 1.0\nv_cndmask_b32 v222, 0, v223, vcc')
        self.lin('s76', [('s80', 2 * 9216), ('s81', 9216)], WS_MODP)
        M = 184
        a(f'v_lshlrev_b32 v{a0}, 4, v0\nv_lshlrev_b32 v{a1}, 4, v1')
        a(f's_lshl_b32 s75, s3, 8\nv_add_u32 v{a1}, s75, v{a1}')
        a(f'v_mov_b32 v{a2}, {CX+20}'); self.lds_wait4(a2, a3)
        a('s_and_b32 s77, s11, 255\ns_mov_b32 s74, 0x80000\nL_ln_p:')
        for sp in range(3):
            for r in range(4): a(f'v_mov_b32 v{M+12*sp+8+r}, s77')
        for sp in range(3):
            for k in range(2):
                a(f's_add_u32 s75, s76, {sp*4*9216 + k*4096}\nbuffer_load_dwordx4 {vr(M+12*sp+4*k,4)}, v{a0}, s[12:15], s75 offen {PF}')
        a('s_mov_b64 s[82:83], exec\ns_and_b64 exec, exec, 0xffff\ns_cbranch_execz L_ln_q')
        for sp in range(3): a(f's_add_u32 s75, s76, {sp*4*9216 + 8192}\nbuffer_load_dwordx4 {vr(M+12*sp+8,4)}, v{a1}, s[12:15], s75 offen {PF}')
        a('L_ln_q:\ns_mov_b64 exec, s[82:83]')
        a('s_waitcnt vmcnt(0)')
        for r in range(36): a(f'v_xor_b32 v{M+r}, s77, v{M+r}')
        a(f'v_or_b32 v{a2}, v{M}, v{M+1}')
        for r in range(2, 36, 2): a(f'v_or3_b32 v{a2}, v{a2}, v{M+r}, v{M+r+1}')
        a(f'v_and_b32 v{a2}, 255, v{a2}\nv_cmp_ne_u32 vcc, 0, v{a2}\ns_cbranch_vccz L_ln_g\ns_sub_u32 s74, s74, 1\ns_cmp_eq_u32 s74, 0\ns_cbranch_scc1 L_ln_g\ns_mov_b64 exec, vcc\ns_sleep {PSL}\ns_branch L_ln_p\nL_ln_g:\ns_mov_b64 exec, -1')
        self.stamp(14)
        a(f'v_add_u32 v{a2}, {TAB}, v{a0}')
        for r in range(0, 12, 2): a(f'v_pk_add_f32 {vr(M+r,2)}, {vr(M+r,2)}, {vr(M+12+r,2)}')
        for r in range(0, 12, 2): a(f'v_pk_add_f32 {vr(M+r,2)}, {vr(M+r,2)}, {vr(M+24+r,2)}')
        for r in range(4, 12): a(f'v_add_f32 v{M+r}, v{M+r}, v{222 + (r >> 3)}')
        for k in range(2): a(f'ds_write_b128 v{a2}, {vr(M+4*k,4)} offset:{k*4096}')
        a(f'v_add_u32 v{a1}, {TAB}, v{a1}\ns_mov_b64 exec, 0xffff\nds_write_b128 v{a1}, {vr(M+8,4)} offset:8192\ns_mov_b64 exec, -1')
        self.lds_arrive(14, self.VONE)
    def ln(self, gv):
        a = self.a; X = self.LX; F = 32
        a(f'v_subrev_u32 v0, 256, v0\nv_mov_b32 v{self.VONE}, 1\nv_mov_b32 v{self.VZERO}, 0\ns_sub_u32 s3, s3, 4')
        a(f'v_lshrrev_b32 v176, 4, v0\nv_and_b32 v177, 15, v0\nv_mul_u32_u24 v176, {RP}, v176\nv_lshl_add_u32 v176, v177, 4, v176')
        a(f's_and_b32 s83, s10, 127\ns_mul_i32 s83, s83, {16*RP}\ns_cmp_ge_u32 s10, 128')
        a(f's_cselect_b32 s24, s{PTR["x_txt"]}, s{PTR["x_img"]}\ns_cselect_b32 s25, s{PTR["x_txt"]+1}, s{PTR["x_img"]+1}')
        a(f's_mov_b32 s26, {SZ["x_img"]}\ns_cselect_b32 s26, {SZ["x_txt"]}, s26\ns_mov_b32 s27, 0x20000')
        for i in range(9): a(f'buffer_load_dwordx4 {vr(X+4*i,4)}, v176, s[24:27], s83 offen offset:{i*256} nt')
        a('s_waitcnt vmcnt(0)')
        for i in range(9):
            for d in range(4):
                a(f'v_lshlrev_b32 v{F+8*i+2*d}, 16, v{X+4*i+d}\nv_and_b32 v{F+8*i+2*d+1}, 0xffff0000, v{X+4*i+d}')
        def rowsum(v, t):
            for r in (8, 4, 2, 1):
                a(f's_nop 1\nv_add_f32_dpp v{t}, v{v}, v{v} row_ror:{r} row_mask:0xf bank_mask:0xf')
                v, t = t, v
            return v
        a0, a1, a2, a3 = 180, 181, 182, 183
        a(f'v_pk_add_f32 {vr(a0,2)}, {vr(F,2)}, {vr(F+2,2)}')
        for e in range(4, 72, 2): a(f'v_pk_add_f32 {vr(a0,2)}, {vr(a0,2)}, {vr(F+e,2)}')
        a(f'v_add_f32 v{a0}, v{a0}, v{a1}')
        v = rowsum(a0, a1)
        a(f'v_mul_f32 v{a0}, {f2u(-1.0/1152):#x}, v{v}')
        for e in range(0, 72, 2): a(f'v_pk_add_f32 {vr(F+e,2)}, {vr(F+e,2)}, {vr(a0,2)} op_sel_hi:[1,0]')
        a(f'v_mov_b32 v14, {CX+20}'); self.lds_arrive(14, self.VONE)
        a(f'v_pk_mul_f32 {vr(a2,2)}, {vr(F,2)}, {vr(F,2)}')
        for e in range(2, 72, 2): a(f'v_pk_fma_f32 {vr(a2,2)}, {vr(F+e,2)}, {vr(F+e,2)}, {vr(a2,2)}')
        a(f'v_add_f32 v{a1}, v{a2}, v{a3}')
        v = rowsum(a1, a2)
        a(f'v_mov_b32 v{a0}, {f2u(1e-5):#x}\nv_fmac_f32 v{a0}, {f2u(1.0/1152):#x}, v{v}\nv_rsq_f32 v{a0}, v{a0}\ns_nop 0')
        for e in range(0, 72, 2): a(f'v_pk_mul_f32 {vr(F+e,2)}, {vr(F+e,2)}, {vr(a0,2)} op_sel_hi:[1,0]')
        self.stamp(15)
        a('s_lshr_b32 s80, s10, 7\ns_lshr_b32 s81, s10, 6\ns_bfe_u32 s75, s10, 0x10001\ns_cmp_eq_u32 s80, 1\ns_cselect_b32 s81, s75, s81')
        TAB = XL + 8192
        a(f'v_lshlrev_b32 v{a0}, 4, v0\nv_mov_b32 v14, {CX+16}')
        a(f's_and_b32 s75, s10, 63\ns_mul_i32 s76, s75, {16*RP}\ns_mul_i32 s75, s81, {1056*RP}\ns_add_u32 s75, s75, {WS_H}')
        a(f's_cmp_eq_u32 s80, 1\ns_cselect_b32 s75, {WS_HT}, s75\ns_add_u32 s76, s76, s75')
        a('s_lshl_b32 s75, s80, 30\nv_or_b32 v176, s75, v176')
        self.sig_index('LN')
        a(f'v_lshlrev_b32 v{a2}, 5, v177\nv_add_u32 v{a2}, {TAB}, v{a2}')
        self.lds_wait4(14, a3)
        self.stamp(14)
        B = [104, 184]
        def rd(i0, p):
            for i in range(i0, i0 + 2):
                if i < 9:
                    k = i - i0
                    for h in range(2):
                        a(f'ds_read_b128 {vr(B[p]+16*k+4*h,4)}, v{a2} offset:{i*512+h*16}\nds_read_b128 {vr(B[p]+16*k+8+4*h,4)}, v{a2} offset:{4608+i*512+h*16}')
        rd(0, 0)
        for n, i0 in enumerate(range(0, 9, 2)):
            p = n & 1
            rd(i0 + 2, p ^ 1)
            left = 4 * max(0, min(9, i0 + 4) - (i0 + 2))
            a(f's_waitcnt lgkmcnt({left})')
            for i in range(i0, min(9, i0 + 2)):
                sh = B[p] + 16 * (i - i0); sc = sh + 8
                for e in range(0, 8, 2): a(f'v_pk_fma_f32 {vr(sh+e,2)}, {vr(F+8*i+e,2)}, {vr(sc+e,2)}, {vr(sh+e,2)}')
                for d in range(4): a(f'v_cvt_pk_bf16_f32 v{X+4*i+d}, v{sh+2*d}, v{sh+2*d+1}')
                a(f'buffer_store_dwordx4 {vr(X+4*i,4)}, v176, s[12:15], s76 offen offset:{i*256} sc1')
        a(f's_cmp_eq_u32 s80, 0\ns_cbranch_scc1 L_ln_rm\nv_and_b32 v176, 0xf0, v0\nv_add_u32 v{a1}, v{a0}, v176\nv_mul_u32_u24 v177, 272, v177\nv_add_u32 v176, v177, v176\nv_mov_b32 v14, {CX+24}')
        for i in range(9): a(f'ds_write_b128 v176, {vr(X+4*i,4)} offset:{i*4352}')
        self.lds_arrive(14, self.VONE)
        self.lds_wait4(14, a3)
        for i in range(9): a(f'ds_read_b128 {vr(X+4*i,4)}, v{a1} offset:{i*4352}')
        for i in range(9): a(f's_waitcnt lgkmcnt({8-i})\nbuffer_store_dwordx4 {vr(X+4*i,4)}, v{a0}, s[12:15], s76 offen sc1\ns_add_u32 s76, s76, 4096')
        a('L_ln_rm:')
        self.signal_one()
        a('s_add_u32 s3, s3, 4')

    def idx_main(self):
        a = self.a
        a('s_and_b32 s92, s2, 3\ns_lshr_b32 s93, s2, 3\ns_bfe_u32 s60, s2, 0x10002')
        self.sdiv('s62', 's93', 5, 's61')
        a('s_lshr_b32 s70, s93, 2\ns_and_b32 s71, s93, 3\ns_bitcmp1_b32 s92, 0\ns_cselect_b32 s62, s70, s62\ns_cselect_b32 s61, s71, s61')
        a('s_lshl_b32 s70, s92, 2\ns_lshr_b32 s71, 0x0650, s70\ns_and_b32 s71, s71, 15\ns_add_u32 s62, s62, s71\ns_lshr_b32 s71, 0x5400, s70\ns_and_b32 s71, s71, 15\ns_add_u32 s61, s61, s71')
        a('s_mul_i32 s92, s92, 25\ns_add_u32 s92, s92, s93')
        a('s_cmp_eq_u32 s92, 20\ns_cselect_b32 s61, 4, s61\ns_cselect_b32 s62, 5, s62\ns_cmp_eq_u32 s92, 49\ns_cselect_b32 s62, 4, s62')
        self.set_bij('img')
        seen = set()
        for x in range(4):
            for jj in range(25):
                j, i = divmod(jj, 4 if x & 1 else 5); j += (0x0650 >> 4 * x) & 15; i += (0x5400 >> 4 * x) & 15
                if 25 * x + jj == 20: i, j = 4, 5
                if 25 * x + jj == 49: j = 4
                if 25 * x + jj < 99: seen.add((i, j))
        assert seen == {(i, j) for i in range(9) for j in range(11)}
    def idx_u(self, skip, sid='s2'):
        a = self.a
        a(f's_cmp_ge_u32 {sid}, 112\ns_cbranch_scc1 {skip}\ns_and_b32 s92, {sid}, 7\ns_mul_i32 s92, s92, 14\ns_lshr_b32 s93, {sid}, 3\ns_add_u32 s92, s92, s93\ns_cmp_ge_u32 s92, 108\ns_cbranch_scc1 {skip}')
        self.sdiv('s70', 's92', 36, 's71'); self.sdiv('s62', 's71', 3, 's61')
        a('s_mul_i32 s70, s70, 3\ns_add_u32 s61, s61, s70\ns_mov_b32 s60, 0\ns_lshl_b32 s65, s61, 8')
    AUXOPS = ['end', 'T', 'VT', 'Y', 'AT', 'OT', 'X', 'G', 'OP']
    AUXPROG = [(0, 'X T Y VT'), (18, 'X T Y AT'), (36, 'X T G OP OT'), (42, 'X G T G OP OT'), (51, 'G T G OP OT'), (54, 'G G G')]
    SB = 64; SA = [132, 148, 164]; SBASE = [2, 5]
    def idx_aux(self, t):
        a = self.a
        if t in ('T', 'VT'): a('s_mov_b32 s61, s9')
        elif t in ('OT', 'OP', 'AT'): a(f's_sub_u32 s61, s9, {18 if t == "AT" else 36}')
        else: self.sdiv('s60', 's9', 18, 's61')
        a('s_lshl_b32 s65, s61, 7')
    def sk_loader(self, t):
        a = self.a; L = self.LV; tm = L['t']
        def wgt(name, sreg, const=0):
            a(f's_add_u32 s67, {sreg}, {const}\ns_sub_u32 s66, {SZ[name]}, s67'); self.srd(16, name, 's67', 's66')
        def poll(r): self.flag_lanes(L['vF'], tm, r); a('s_call_b64 s[68:69], L_lpoll')
        lay, pitch, n = 'T', RP, 18
        if t == 'OT':
            self.lin('s70', [('s61', 2)], F_GG + 36)
            if self.flags: self.w4(lambda: poll([('s70', 2)]))
            a('s_barrier')
            if self.flags: self.w4(lambda: poll([(F_AT, 18)]))
            a('s_waitcnt vmcnt(0)\ns_barrier\ns_barrier')
            return
        if t == 'T': wgt('wqkv_txt', 's65'); pitch = 6912; dep = [(F_LN + 128, 4)]
        elif t == 'VT': wgt('wo_img', 's65'); dep = [(F_T + 36, 18)]
        elif t == 'AT': wgt('wqkv_img', 's65', 4608); pitch = 6912; dep = [(F_Y, 36)]
        elif t == 'OP': wgt('wo_txt', 's65')
        elif t == 'Y':
            if self.flags: self.lin('s70', [('s60', 64)], F_LN); poll([('s70', 64)])
            self.lin('s67', [('s60', 1056 * RP), ('s65', 1)], WS_H); self.srd(16, 'ws', 's67', 1056 * RP)
            n = 16; dep = [('s71', 17)]
        v = L['vA']
        a(f's_sub_u32 s84, s3, 4\ns_mov_b32 s76, {pitch}\ns_mul_i32 s80, s84, {2*PS}\ns_lshl_b32 s84, s84, 4\nv_and_b32 v{tm}, 3, v1\nv_lshlrev_b32 v{tm}, 4, v{tm}')
        if lay == 'T':
            a(f'v_lshrrev_b32 v{tm+1}, 5, v1\nv_bfe_u32 v{tm+2}, v1, 2, 2\nv_lshl_add_u32 v{tm+1}, v{tm+1}, 2, v{tm+2}\nv_bfe_u32 v{tm+2}, v1, 4, 1')
        a(f'v_lshl_add_u32 v{tm}, v{tm+2}, 6, v{tm}\nv_add_u32 v{tm+1}, s84, v{tm+1}\nv_mad_u32_u24 v{v}, v{tm+1}, s76, v{tm}\nv_add_u32 v{v+1}, {8*pitch - PS}, v{v}')
        a(f's_mov_b32 s78, {64*pitch if lay == "T" else 2048}\ns_mov_b32 s83, {n}\ns_call_b64 s[86:87], {"L_panel_nt" if t in ("T", "OP") else "L_panel"}')
        if t == 'OP': return
        if t == 'Y':
            def stdep():
                a('s_lshl_b32 s70, s61, 1'); self.sdiv('s71', 's70', 3); a('s_min_u32 s71, s71, 9')
                self.lin('s70', [('s60', 99), ('s71', 9)], F_K)
                a(f's_cmp_eq_u32 s61, 16\ns_cselect_b32 s70, {F_T+18}, s70'); poll([('s70', 18)])
            if self.flags: self.w4(lambda: poll([(F_T, 18)]))
            a('s_barrier')
            if self.flags: self.w4(stdep)
            a('s_waitcnt vmcnt(0)\ns_barrier')
            if self.flags: a(f's_add_u32 s70, s61, {F_T+36}'); poll([('s70', 1)])
            a('s_mov_b32 s83, 1\ns_call_b64 s[86:87], L_panel_l')
            self.lin('s71', [('s60', 17)], F_PT)
        if self.flags: self.w4(lambda: poll(dep))
        a('s_waitcnt vmcnt(0)\ns_barrier\ns_barrier')
    def panel_subs(self):
        a = self.a; v = self.LV['vA']
        for lab, fl in (('L_panel', 'sc1'), ('L_panel_nt', 'nt')):
            a(f'{lab}:\ns_mov_b32 s81, 0\n{lab}_l:\ns_mov_b32 m0, s80\ns_add_u32 s80, s80, {8*PS}')
            a(f'buffer_load_dwordx4 v{v}, s[16:19], s81 offen {fl} lds\nbuffer_load_dwordx4 v{v+1}, s[16:19], s81 offen offset:{PS} {fl} lds')
            a(f's_add_u32 s81, s81, s78\ns_sub_u32 s83, s83, 1\ns_cmp_lg_u32 s83, 0\ns_cbranch_scc1 {lab}_l\ns_setpc_b64 s[86:87]')
    def sk_static(self):
        a = self.a; T, K = self.SBASE; x, y = 208, 209
        a(f'v_lshrrev_b32 v{x}, 4, v1\nv_mul_u32_u24 v{T}, {PS}, v{x}\nv_bfe_u32 v{y}, v1, 2, 2\nv_lshl_add_u32 v{T}, v{y}, 6, v{T}\nv_and_b32 v{y}, 3, v1\nv_lshl_add_u32 v{T}, v{y}, 3, v{T}')
        a(f's_xor_b32 s92, s90, 1\ns_mul_i32 s93, s92, {64*PS}\nv_add_u32 v{K}, s93, v{T}\ns_lshl_b32 s92, s92, 14\ns_mul_i32 s93, s91, {36*1024}\ns_add_u32 s92, s92, s93\nv_lshl_add_u32 v245, v1, 4, s92')
        for b in (T, K):
            for k in (1, 2): a(f'v_add_u32 v{b+k}, {k*48*PS}, v{b}')
        a(f's_mul_i32 s92, s3, {36*1024}\nv_lshl_add_u32 v246, v1, 4, s92\nv_bfe_u32 v{y}, v1, 4, 1\nv_lshlrev_b32 v{y}, 9, v{y}\nv_lshrrev_b32 v{x}, 5, v1\nv_lshl_add_u32 v{y}, v{x}, 8, v{y}')
        a(f'v_and_b32 v{x}, 15, v1\nv_lshl_add_u32 v{y}, v{x}, 4, v{y}\nv_add_u32 v247, s92, v{y}')
        a(f'v_and_b32 v{x}, 12, v1\nv_bfe_u32 v{y}, v1, 4, 1\ns_lshl_b32 s92, s3, 4\nv_add3_u32 v{x}, v{x}, v{y}, s92\nv_mul_u32_u24 v{x}, {RP}, v{x}')
        a(f'v_and_b32 v{y}, 127, v{self.VCOL}\nv_add_u32 v248, v{x}, v{y}\nv_add_u32 v249, {2*RP}, v248')
    def sk_sub(self, lab, lay, fold=False):
        a = self.a; SB = self.SB; nk = 17 if fold else 36
        base = self.SBASE[1 if fold else 0]; vb = 245 if fold else 246
        def rd(kk):
            st = self.SA[kk % 3]; b = base + kk // 12; k = kk % 12
            if lay == 'K': return [f'ds_read_b128 {vr(st+4*t,4)}, v{b} offset:{(8*(k>>1)+2*t+(k&1))*PS}' for t in range(4)]
            return [f'ds_read_b64_tr_b16 {vr(st+4*t+2*h,2)}, v{b} offset:{4*k*PS + h*512 + (t>>1)*256 + (t&1)*32}' for t in range(4) for h in range(2)]
        a(f'{lab}:')
        AH = 17 if fold else SKAH
        def ldb(kk):
            return ([f's_mov_b32 s92, {kk*1024}'] if kk % 4 == 0 else []) + [f'buffer_load_dwordx4 {vr(SB+4*(kk%17),4)}, v{vb}, s[20:23], s92 offen offset:{(kk%4)*1024} sc1']
        if fold: self.sk_factors(lambda: [a(x) for kk in range(AH) for x in ldb(kk)], AH)
        else:
            for kk in range(AH):
                for x in ldb(kk): a(x)
        if fold: self.stamp(25)
        seq = rd(0) + rd(1)
        for kk in range(nk):
            st = self.SA[kk % 3]
            acc = 16 if not fold else (48, 196)[(kk >> 1) & 1]
            zero = kk == 0 if not fold else kk % 2 == 0
            nxt = rd(kk + 2) if kk + 2 < nk else []
            ex = []
            if fold and kk % 2 == 1 and kk > 1 or fold and kk == nk - 1:
                r = (kk >> 1) - 1; pv = (48, 196)[r & 1]
                ex = [(f'v_mul_f32 v{16+e}, v{pv+e}, v{32+r}' if r == 0 else f'v_fmac_f32 v{16+e}, v{pv+e}, v{32+r}') for e in range(16)]
                if kk == nk - 1: ex = ['s_nop 7'] + ex
            seq.append(f's_waitcnt vmcnt({min(AH, nk-kk)-1})')
            for t in range(4):
                d = vr(acc + 4 * t, 4)
                seq.append(f'v_mfma_f32_16x16x32_bf16 {d}, {vr(st+4*t,4)}, {vr(SB+4*(kk%17),4)}, {"0" if zero else d}')
                seq += nxt[t * len(nxt) // 4:(t + 1) * len(nxt) // 4]
            seq += ex
            if kk + AH < nk: seq += ldb(kk + AH)
        self.emit_waits(seq, [])
        a('s_nop 7\ns_setpc_b64 s[86:87]')
    def sk_factors(self, mid, nmid):
        a = self.a; st = 208; m = 250
        dst = lambda r: st + 2 * r if r < 16 else 252
        a(f'v_and_b32 v{m}, 15, v1\ns_lshl_b32 s92, s91, 4\nv_add_lshl_u32 v{m}, v{m}, s92, 3\ns_mul_i32 s93, s90, {8*1056*8}\nv_add_u32 v{m+1}, s93, v{m}\ns_sub_u32 s93, {8*1056*8}, s93\nv_add_u32 v{m+4}, s93, v{m}')
        for r in range(17): a(f's_mov_b32 s92, {(r & 7 if r < 16 else 16)*1056*8}\nbuffer_load_dwordx2 {vr(dst(r),2)}, v{m + (4, 1, 0)[r >> 3]}, s[28:31], s92 offen sc1')
        mid()
        a(f's_waitcnt vmcnt({nmid})\nv_max3_f32 v{m}, v{dst(0)}, v{dst(1)}, v{dst(2)}')
        for r in range(3, 17, 2): a(f'v_max3_f32 v{m}, v{m}, v{dst(r)}, v{dst(r+1)}')
        for r in range(17): a(f'v_sub_f32 v{dst(r)}, v{dst(r)}, v{m}')
        for r in range(17): a(f'v_exp_f32 v{dst(r)}, v{dst(r)}')
        a(f'v_mul_f32 v{m+1}, v{dst(0)}, v{dst(0)+1}')
        for r in range(1, 17): a(f'v_fmac_f32 v{m+1}, v{dst(r)}, v{dst(r)+1}')
        a(f'v_rcp_f32 v{m+1}, v{m+1}\ns_nop 0')
        for r in list(range(8)) + [16]: a(f'v_mul_f32 v{32+r if r < 16 else m}, v{dst(r)}, v{m+1}')
    def sk_pack(self, P=64):
        for t in range(4): self.a(f'v_cvt_pk_bf16_f32 v{P+2*t}, v{16+4*t}, v{17+4*t}\nv_cvt_pk_bf16_f32 v{P+2*t+1}, v{18+4*t}, v{19+4*t}')
    def sk_epi_subs(self):
        a = self.a
        a('L_sk_ft:'); self.sk_pack(); a('s_nop 1')
        for r in (0, 4):
            for d in range(2): a(f'v_permlane16_swap_b32 v{64+r+d}, v{66+r+d}')
        for p in range(2): a(f'buffer_store_dwordx4 {vr(64+4*p,4)}, v247, s[12:15], s70 offen offset:{1024*p} sc1')
        a('s_setpc_b64 s[68:69]')
        a('L_sk_row:'); self.sk_pack(72); self.xpose(72, 80, nj=1)
        a(f's_lshr_b32 s92, s3, 1\ns_mul_i32 s92, s92, {1024*RP}\ns_add_u32 s92, s92, s71')
        for p in range(2): a(f'buffer_store_dwordx4 {vr(72+4*p,4)}, v{248+p}, s[12:15], s92 offen sc1')
        a('s_setpc_b64 s[68:69]')
    def st_compute(self):
        a = self.a; lab = 'L_std'
        ft = lambda base, bmul=0: self.lin('s70', [('s61', 2048), ('s60', bmul)], base)
        self.lin('s67', [('s60', FTS // 2)], WS_QT); self.srd(20, 'ws', 's67', FTS // 2)
        self.lin('s67', [('s60', 1056 * RP), ('s61', 64 * RP)], WS_K)
        a(f's_mov_b32 s66, {64*RP}\ns_cmp_eq_u32 s61, 16\ns_cselect_b32 s66, {32*RP}, s66'); self.srd(16, 'ws', 's67', 's66')
        self.lin('s67', [('s60', 17 * 1056 * 8), ('s61', 1056 * 8)], WS_ST + 1024 * 8); self.srd(28, 'ws', 's67', 0x100000)
        A0 = 48
        a(f's_mul_i32 s92, s3, 9216\nv_lshl_add_u32 v{A0}, v1, 4, s92')
        for t in range(1, 4): a(f'v_add_u32 v{A0+t}, {t*36864}, v{A0}')
        a(f's_and_b32 s92, s3, 1\ns_mul_i32 s93, s92, 36864\nv_add_u32 v{A0+4}, s93, v{A0}\ns_sub_u32 s93, 36864, s93\nv_add_u32 v{A0+5}, s93, v{A0}')
        R0 = 136 * PS
        a(f's_lshl_b32 s92, s92, 13\ns_add_u32 s92, s92, {R0}\nv_lshl_add_u32 v{A0+6}, v1, 4, s92\nv_xor_b32 v{A0+7}, s92, v{A0+6}\ns_sub_u32 s92, {2*R0 + 8192}, s92\nv_lshl_add_u32 v{A0+7}, v1, 4, s92\nv_mov_b32 v{A0+8}, {CX+48}\nv_mov_b32 v{A0+9}, {CX+52}')
        B = lambda kk, j: 64 + 8 * kk + 4 * j
        a('s_barrier')
        for kk in range(9):
            if kk % 4 == 0: a(f's_mov_b32 s92, {kk*1024}')
            for j in range(2): a(f'buffer_load_dwordx4 {vr(B(kk,j),4)}, v{A0+4+j}, s[20:23], s92 offen offset:{(kk%4)*1024} sc1')
        a(f's_barrier\ns_cmp_eq_u32 s61, 17\ns_cbranch_scc1 {lab}_x')
        if not self.do_st: a(f's_branch {lab}_x')
        self.stamp(18)
        A = lambda kk, t: 136 + 16 * (kk % 6) + 4 * t
        def ld(kk):
            if kk % 4 == 0: a(f's_mov_b32 s92, {kk*1024}')
            for t in range(4): a(f'buffer_load_dwordx4 {vr(A(kk,t),4)}, v{A0+t}, s[16:19], s92 offen offset:{(kk%4)*1024} sc1')
        for kk in range(6): ld(kk)
        for kk in range(9):
            a(f's_waitcnt vmcnt({4*(min(9, kk+6)-kk-1)})')
            for j in range(2):
                for t in range(4):
                    d = vr(16 + 16 * j + 4 * t, 4)
                    a(f'v_mfma_f32_16x16x32_bf16 {d}, {vr(A(kk,t),4)}, {vr(B(kk,j),4)}, {"0" if kk == 0 else d}')
            if kk + 6 < 9: ld(kk + 6)
        self.stamp(24)
        a(f's_nop 7\ns_cmp_lt_u32 s3, 2\ns_cbranch_scc1 {lab}_o')
        for q in range(8): a(f'ds_write_b128 v{A0+6}, {vr(16+4*q,4)} offset:{1024*q}')
        self.lds_arrive(A0 + 8, self.VONE)
        a(f's_branch {lab}_e\n{lab}_o:')
        self.lds_wait4(A0 + 8, 60, 2)
        for q in range(8): a(f'ds_read_b128 {vr(64+4*q,4)}, v{A0+6} offset:{1024*q}')
        a('s_waitcnt lgkmcnt(0)')
        for e in range(32): a(f'v_add_f32 v{16+e}, v{16+e}, v{64+e}')
        for q in range(4): a(f'ds_write_b128 v{A0+6}, {vr(32+4*q,4)} offset:{1024*q}')
        self.lds_arrive(A0 + 9, self.VONE)
        self.lds_wait4(A0 + 9, 60, 2)
        for q in range(4): a(f'ds_read_b128 {vr(64+4*q,4)}, v{A0+7} offset:{1024*q}')
        a('s_waitcnt lgkmcnt(0)')
        for e in range(16): a(f'v_add_f32 v{16+e}, v{16+e}, v{64+e}')
        a(f's_cmp_lg_u32 s61, 16\ns_cbranch_scc1 {lab}_m')
        for e in range(8, 16): a(f'v_mov_b32 v{16+e}, 0xff800000')
        a(f'{lab}_m:\nv_max_f32 v32, v16, v17')
        for e in range(2, 16, 2): a(f'v_max3_f32 v32, v32, v{16+e}, v{17+e}')
        self.allred(32, 34, 'v_max_f32', 1)
        a(f's_mov_b32 s92, {f2u(LOG2E * D ** -0.5):#x}\nv_mul_f32 v32, s92, v32')
        for e in range(16): a(f'v_fma_f32 v{16+e}, v{16+e}, s92, -v32')
        for e in range(16): a(f'v_exp_f32 v{16+e}, v{16+e}')
        ft(WS_PT, FTS // 2); a('s_call_b64 s[68:69], L_sk_ft\nv_add_f32 v33, v16, v17')
        for e in range(2, 16): a(f'v_add_f32 v33, v33, v{16+e}')
        self.allred(33, 34, 'v_add_f32', 1)
        a('s_lshl_b32 s92, s3, 7\nv_lshlrev_b32 v34, 3, v1\ns_mov_b64 exec, 0xffff\nbuffer_store_dwordx2 v[32:33], v34, s[28:31], s92 offen sc1\ns_mov_b64 exec, -1')
        a(f'{lab}_e:')
        self.sig_index('ST'); self.signal_one() if ONE > 1 else self.signal_now()
        self.stamp(19)
        a(f'{lab}_x:')
    def sk_compute(self, t):
        a = self.a
        half = t == 'Y'
        if half: self.st_compute()
        lab = a.label('sk')
        src = {'T': WS_HT, 'VT': WS_VT, 'ST': WS_QT, 'Y': WS_PT, 'AT': WS_Y, 'OT': WS_AT}[t]
        if half:
            self.lin('s67', [('s60', FTS // 2)], src)
            self.srd(20, 'ws', 's67', FTS // 2)
            self.lin('s67', [('s60', 17 * 1056 * 8), ], WS_ST + 1024 * 8); self.srd(28, 'ws', 's67', 0x100000)
        else: self.srd(20, 'ws', src, FTS)
        ft = lambda base, bmul=0: self.lin('s70', [('s61', 2048), ('s60', bmul)], base)
        if t == 'OT':
            a(f's_add_u32 s70, s65, {SZ["x_img"]}\ns_sub_u32 s71, {64*RP}, s65')
            self.srd(24, 'out', 's70', 's71'); self.srd(32, 'x_txt', 's65', 's71')
            a('s_barrier')
            for p in range(2): a(f'buffer_load_dwordx4 {vr(48+4*p,4)}, v{248+p}, s[32:35], 0 offen')
            a('s_lshr_b32 s71, s3, 1'); self.lin('s70', [('s71', 4608), ('s61', 256)], WS_GATE + 2 * 4608); a('v_and_b32 v250, 48, v1')
            for sp in range(2):
                for it in range(4): a(f'buffer_load_dwordx4 {vr((32, 160, 176)[sp]+4*it,4)}, v250, s[12:15], s70 offen offset:{64*it} sc1')
                a(f's_add_u32 s70, s70, {4*4608}')
            a('s_waitcnt vmcnt(0)')
            for e in range(16): a(f'v_add_f32 v{32+e}, v{32+e}, v{160+e}')
            self.xpose(48, 64, inverse=True, nj=1)
        a('s_barrier')
        self.stamp({'T': 20, 'Y': 22}.get(t, 16))
        if half and not self.do_y: a(f's_branch {lab}_s')
        if t == 'AT':
            self.lin('s70', [('s3', 18 * 4096), ('s61', 4096)], WS_Z); a('v_lshlrev_b32 v250, 4, v1')
            for it in range(4): a(f'buffer_load_dwordx4 {vr(32+4*it,4)}, v250, s[12:15], s70 offen offset:{1024*it} sc1')
        a(f's_call_b64 s[86:87], {"L_sky" if t == "Y" else "L_skt"}')
        if half:
            a(f's_lshl_b32 s92, s91, 12\ns_add_u32 s92, s92, {XL+8192}\nv_lshl_add_u32 v64, v1, 4, s92\ns_cmp_lt_u32 s3, 2\ns_cbranch_scc1 {lab}_o')
            for q in range(4): a(f'ds_write_b128 v64, {vr(16+4*q,4)} offset:{1024*q}')
            a(f's_waitcnt lgkmcnt(0)\ns_branch {lab}_s\n{lab}_o:\ns_barrier')
            for q in range(4): a(f'ds_read_b128 {vr(68+4*q,4)}, v64 offset:{1024*q}')
            a('s_waitcnt lgkmcnt(0)')
            for e in range(16): a(f'v_add_f32 v{16+e}, v{16+e}, v{68+e}')
        else: a('s_barrier')
        self.stamp({'T': 21, 'Y': 23}.get(t, 17))
        if t == 'T':
            a(f's_cmp_ge_u32 s61, 18\ns_cbranch_scc1 {lab}_k'); ft(WS_QT); a(f's_call_b64 s[68:69], L_sk_ft\ns_branch {lab}_e\n{lab}_k:')
            a(f's_cmp_ge_u32 s61, 36\ns_cbranch_scc1 {lab}_v\ns_lshr_b32 s71, s3, 1')
            self.lin('s70', [('s61', 2048), ('s71', 1024 * RP)], WS_K + 1024 * RP - 18 * 2048); a(f's_call_b64 s[68:69], L_sk_ft\ns_branch {lab}_e\n{lab}_v:')
            ft(WS_VT - 36 * 2048); a(f's_call_b64 s[68:69], L_sk_ft\ns_add_u32 s71, s65, {WS_H + 1024*RP - 4608}')
            a('s_call_b64 s[68:69], L_sk_row')
        elif t == 'VT': a(f's_add_u32 s71, s65, {WS_V + 1024*RP}\ns_call_b64 s[68:69], L_sk_row')
        elif t == 'AT':
            for e in range(16): a(f'v_add_f32 v{16+e}, v{16+e}, v{32+e}')
            ft(WS_AT); a('s_call_b64 s[68:69], L_sk_ft')
        elif t == 'Y':
            ft(WS_Y, FTS // 2); a('s_call_b64 s[68:69], L_sk_ft')
            for e in range(16): a(f'v_mul_f32 v{48+e}, v{48+e}, v250')
            self.lin('s70', [('s60', 36 * 4096), ('s3', 18 * 4096), ('s61', 4096)], WS_Z); a('v_lshlrev_b32 v250, 4, v1')
            for it in range(4): a(f'buffer_store_dwordx4 {vr(48+4*it,4)}, v250, s[12:15], s70 offen offset:{1024*it} sc1')
        elif t == 'OT':
            for it in range(4):
                for d in range(2): a(f'v_lshlrev_b32 v{64+2*d}, 16, v{48+2*it+d}\nv_and_b32 v{65+2*d}, 0xffff0000, v{48+2*it+d}')
                for r in range(4): a(f'v_fmac_f32 v{64+r}, v{16+4*it+r}, v{32+4*it+r}')
                for d in range(2): a(f'v_cvt_pk_bf16_f32 v{48+2*it+d}, v{64+2*d}, v{65+2*d}')
            self.xpose(48, 64, nj=1)
            for p in range(2): a(f'buffer_store_dwordx4 {vr(48+4*p,4)}, v{248+p}, s[24:27], 0 offen sc1')
        if half: a(f's_branch {lab}_e\n{lab}_s:\ns_barrier')
        a(f'{lab}_e:')
        if t != 'OT': self.sig_index(t); self.signal_one() if ONE > 1 else self.signal_now()
        else: a(f's_add_u32 s92, s61, s3\ns_cmp_lg_u32 s92, 0\ns_cbranch_scc1 {lab}_t\nv_mov_b32 v255, s11\ns_mov_b32 s92, {WS_E}\ns_mov_b64 exec, 1\nbuffer_store_dword v255, v{self.VZERO}, s[12:15], s92 offen sc1\ns_mov_b64 exec, -1\n{lab}_t:')
    def aux_interp(self, side, only):
        a = self.a; p = f'L_{side}x'; self.do_st = only is None or 'ST' in only; self.do_y = only is None or 'Y' in only
        a('s_mov_b32 s8, 0\ns_mov_b32 s60, 0\ns_mov_b32 s10, 0\ns_sub_u32 s62, s9, 42\ns_sub_u32 s92, s9, 18\ns_cmp_lt_u32 s9, 42\ns_cselect_b32 s62, s92, s62')
        if side == 'c': self.sk_static()
        for lim, prog in self.AUXPROG:
            ops = [o for o in prog.split() if only is None or o in only or (o == 'Y' and 'ST' in only) or (o == 'OP' and 'OT' in only)]
            code = sum(self.AUXOPS.index(o) << (4 * k) for k, o in enumerate(ops))
            a(f's_cmp_ge_u32 s9, {lim}\ns_cselect_b32 s8, {code}, s8')
        a(f'{p}_next:\ns_and_b32 s92, s8, 15\ns_lshr_b32 s8, s8, 4')
        for k, o in enumerate(self.AUXOPS[1:], 1): a(f's_cmp_eq_u32 s92, {k}\ns_cbranch_scc1 {p}_{o}')
        a('s_branch L_fin')
        for k, o in enumerate(self.AUXOPS[1:], 1):
            a(f'{p}_{o}:')
            if o == 'P':
                a('s_sub_u32 s84, s9, 42'); self.prefetch_qk(0, PFR); a('s_waitcnt vmcnt(0)')
            elif o in 'XG':
                if o == 'G':
                    a(f's_barrier\ns_lshl_b32 s92, s62, 1\ns_add_u32 s92, s92, {int(side == "l")}\ns_add_u32 s10, s10, 1')
                    a('s_cmp_lt_u32 s62, 12\ns_cselect_b32 s93, 24, 2\ns_add_u32 s62, s62, s93\ns_cmp_ge_u32 s92, 36\ns_cselect_b32 s93, 1, 0\ns_mul_i32 s75, s93, 36\ns_sub_u32 s92, s92, s75')
                    self.gemv_job('gate', 2); a('s_lshl_b32 s77, s10, 2')
                else:
                    g = int(side == 'l')
                    a(f's_lshl_b32 s92, s9, 1\ns_add_u32 s92, s92, {6 + g}\ns_add_u32 s93, s9, 48\ns_cmp_lt_u32 s9, 42\ns_cselect_b32 s92, s93, s92\ns_mov_b32 s81, 1\ns_mov_b32 s66, 1')
                    if g: a(f's_cbranch_scc0 {p}_X2\ns_barrier\ns_branch {p}_next\n{p}_X2:')
                    self.gemv_job('mod', 1)
                a('s_call_b64 s[86:87], L_gemv')
                if o == 'X':
                    a('s_barrier')
            else:
                self.idx_aux(o)
                if side == 'l': self.sk_loader(o)
                elif o != 'OP': self.sk_compute(o)
            self.stamp(k + 3)
            a(f's_branch {p}_next')
        if side == 'c':
            self.sk_sub('L_skt', 'T'); self.sk_sub('L_sky', 'T', True); self.sk_epi_subs()
        else: self.panel_subs()
    def args_in(self):
        a = self.a
        a(f's_waitcnt lgkmcnt(0)\ns_load_dword s8, {sr(PTR["ws"],2)}, {WS_E}')
        self.srd(12, 'ws', 0, SZ['ws'])
        if self.instr: a('v_writelane_b32 v15, s94, 30\nv_writelane_b32 v15, s94, 0')
    def kernel(self, name, only=None):
        a = self.a
        has = lambda t: only is None or t in only
        kernel_head(a, name)
        if self.instr: a('s_memrealtime s[94:95]')
        if DIAG: a('s_memrealtime s[72:73]\ns_memrealtime s[96:97]')
        a('s_load_dwordx8 s[36:43], s[0:1], 0\ns_load_dwordx8 s[44:51], s[0:1], 32\ns_load_dwordx8 s[52:59], s[0:1], 64')
        a('s_cmp_ge_u32 s2, 256\ns_cbranch_scc1 L_end')
        a('s_getpc_b64 s[6:7]\nL_pc:\ns_lshr_b32 s92, s2, 3\ns_lshl_b32 s92, s92, 11\nv_subrev_u32 v2, 384, v0\nv_lshl_add_u32 v3, v2, 4, s92')
        a('s_mov_b32 s4, s6\ns_mov_b32 s5, s7\ns_mov_b32 s6, L_end - L_pc\ns_mov_b32 s7, 0x20000\nv_cmp_gt_u32 vcc, 128, v2')
        a('s_cbranch_vccz L_nocpf\nbuffer_load_dwordx4 v[248:251], v3, s[4:7], 0 offen\nL_nocpf:')
        a('v_lshrrev_b32 v1, 6, v0\nv_mov_b32 v15, 0\nv_readfirstlane_b32 s3, v1\nv_and_b32 v1, 63, v0')
        a(f'v_lshlrev_b32 v2, 2, v1\nv_add_u32 v2, {CX}, v2\nds_write_b32 v2, v15')
        if has('U'):
            a('s_cmp_lt_u32 s3, 4\ns_cbranch_scc1 L_nofast')
            self.idx_u('L_nofast'); self.ld_static(); self.ld_setup('U', self.args_in)
            if self.instr: a('s_mov_b32 s90, 0\nv_mov_b32 v13, 0')
            a('s_nop 1'); self.ld_issue(); a('s_branch L_l_u\nL_nofast:')
        a('s_sub_u32 s9, s2, 200\ns_sub_u32 s10, s2, 112\ns_cmp_ge_u32 s2, 220\ns_cselect_b32 s81, 1, 0\ns_mul_i32 s92, s81, 108\ns_sub_u32 s92, s10, s92\ns_mov_b32 s66, 1')
        a('s_lshr_b32 s93, s3, 2\ns_mul_i32 s93, s93, 14\ns_add_u32 s92, s92, s93')
        self.gemv_job('mod'); self.gemv_addr()
        self.args_in()
        if has('GV'):
            a('s_cmp_ge_u32 s3, 4\ns_cbranch_scc1 L_nold\ns_cmp_lt_u32 s2, 112\ns_cbranch_scc1 L_nold'); self.gemv_srd(); self.gemv_loads(self.GW, self.GC); a('L_nold:')
        for i, g in ((195, 128), (199, 129), (240, 83), (241, 87), (242, 200), (243, 200), (254, 130), (255, 131)):
            a(f's_cmp_eq_u32 s2, {i}\ns_cselect_b32 s10, {g}, s10')
        a('s_barrier')
        self.tag()
        a('s_cmp_ge_u32 s3, 4\ns_cbranch_scc1 L_loader')
        main = ['M', 'V', 'S']
        self.hooks = []; self.xdma = only is None; self.preps = set(); self.gate_job = False
        if 'dup' in OPT: main = ['V', 'V', 'V', 'V', 'S']
        elif 'vs' in OPT: main = ['V', 'M', 'V', 'M', 'S']
        else: main = [t for t in main if has(t)]
        chain = only is None or 'dup' in OPT or 'vs' in OPT
        def spare(): a('s_cmp_ge_u32 s92, 99\ns_cbranch_scc1 L_fin')
        if has('GV'): a('s_cmp_lt_u32 s2, 112\ns_cbranch_scc1 L_c_nogv\ns_call_b64 s[86:87], L_gemv2\nL_c_nogv:')
        self.stamp(1)
        self.help_u()
        self.cp_static()
        if has('LN'): a('s_cmp_ge_u32 s10, 132\ns_cbranch_scc1 L_notab'); self.mod_table(); a('L_notab:')
        a('s_mov_b32 s60, 0\ns_mov_b32 s62, 0\ns_mov_b32 s64, 0\ns_mov_b32 s65, 0')
        if self.instr:
            a('s_and_b32 s84, s2, 0xfffffffb\ns_cmp_lg_u32 s84, 195\ns_cbranch_scc1 L_notrace\ns_cmp_lg_u32 s3, 1\ns_cbranch_scc1 L_notrace\ns_mov_b32 s84, 0')
            a('L_trace:\ns_memrealtime s[72:73]\ns_memtime s[96:97]\ns_waitcnt lgkmcnt(0)\ns_mov_b32 m0, s84\ns_nop 4\nv_writelane_b32 v16, s72, m0\nv_writelane_b32 v17, s96, m0\ns_sleep 24\ns_add_u32 s84, s84, 1\ns_cmp_lt_u32 s84, 64\ns_cbranch_scc1 L_trace')
            a(f's_lshl_b32 s72, s2, 9\ns_add_u32 s72, s72, {WS_DBG + (1 << 20)}\nv_lshlrev_b32 v14, 3, v1\nbuffer_store_dwordx2 v[16:17], v14, s[12:15], s72 offen\ns_endpgm\nL_notrace:')
        self.stamp(3)
        body = self.a
        subs = Asm(); subs.uid = 10000; self.a = subs
        self.gemv_subs();
        self.chain = chain; er = self.capture(lambda: self.epi_rows(216))
        self.gemm_sub('L_tk', 'T', self.ACCT); self.gemm_sub('L_qk', 'T', self.ACC, True, epi=er if WEAVE else None, npeel=NPEEL); self.hook_sub(); self.gemm_sub('L_kk', 'K', self.ACC); self.softmax_sub(); self.pv_sub()
        for h in self.hooks: subs(h)
        lsubs = Asm(); lsubs.uid = 20000; self.a = lsubs
        self.ld_subs()
        self.a = a = body
        self.row_offsets(self.VO, 216, None); self.ft_static()
        a('s_cmp_ge_u32 s2, 200\ns_cbranch_scc1 L_caux')
        if has('U'):
            self.idx_u('L_c_nou')
            self.cp_task('U', False, True, chain and main[0])
            self.stamp(4)
            if chain: self.idx_main(); a('s_barrier'); self.stamp(12); a(f's_call_b64 s[86:87], L_qk{"_w" if WEAVE else ""}\ns_branch L_c_k')
        a('L_c_nou:')
        self.idx_main(); spare()
        if PFW:
            self.sdiv('s70', 's62', 3, 's71')
            a(f's_mul_i32 s71, s71, {PFW}\ns_and_b32 s70, s2, 7\ns_mul_i32 s70, s70, 9\ns_lshr_b32 s70, s70, 2\ns_add_u32 s71, s71, s70')
            self.srd(32, 'wqkv_img', 0, SZ['wqkv_img'])
            a('v_lshrrev_b32 v246, 4, v1\nv_mul_u32_u24 v246, 6912, v246\nv_and_b32 v247, 15, v1\nv_lshl_add_u32 v246, v247, 4, v246')
            for k in range(PFW):
                a(f's_add_u32 s70, s71, {k}\ns_sub_u32 s66, s70, 18\ns_min_u32 s70, s70, s66')
                self.lin('s66', [('s70', 64 * 6912), ('s3', 16 * 6912), ('s65', 1)])
                for m in range(4): a(f'buffer_load_dwordx4 v[252:255], v246, s[32:35], s66 offen\nbuffer_load_dwordx4 v[252:255], v246, s[32:35], s66 offen offset:2304\ns_add_u32 s66, s66, {4*6912}')
        for k, t in enumerate(main):
            self.cp_task(t, False, k == 0 or not chain, chain and k + 1 < len(main) and main[k + 1], cont=chain and k > 0, join='L_c_k' if chain and k == 0 else None, pv=only is None)
            self.stamp(5 + k)
        if has('PV'): self.cp_task('PV', False, True, False, pv=only is None)
        a('s_branch L_fin')
        a.lines += subs.lines
        a('L_caux:\ns_barrier')
        self.aux_interp('c', only)
        a('L_loader:')
        a('s_cmp_lt_u32 s2, 112\ns_cbranch_scc1 L_l_nogv\ns_cmp_ge_u32 s10, 132\ns_cbranch_scc1 L_l_noln')
        if has('LN'): self.ln(has('GV'))
        self.stamp(13)
        a('s_branch L_l_nogv\nL_l_noln:')
        if has('GV'): a('s_call_b64 s[86:87], L_gemv1')
        a('L_l_nogv:')
        self.ld_static()
        if self.instr: a('s_mov_b32 s90, 0\nv_mov_b32 v13, 0')
        self.stamp(26)
        a('s_cmp_ge_u32 s2, 200\ns_cbranch_scc1 L_laux')
        if has('U'):
            a('s_branch L_l_nou\nL_l_u:\ns_barrier'); self.stamp(1)
            self.ld_call('L_issue', 1); a('s_waitcnt vmcnt(7)\ns_barrier'); self.ld_call('L_issue', 2)
            self.tag(); self.sig_index('U')
            if chain: self.ld_body('U', main[0], self.idx_main, True, 2); a('s_branch L_l_k')
            else: self.ld_body('U', None)
        a('L_l_nou:\ns_mov_b32 s88, -1')
        self.idx_main(); spare()
        for k, t in enumerate(main):
            if k == 0 or not chain: self.ld_late_start(t, False, 2, ready=True)
            if k == 0: a('L_l_k:')
            self.ld_body(t, main[k + 1] if chain and k + 1 < len(main) else None, k=3 + k, nn=main[k + 2] if chain and k + 2 < len(main) else None, prepped=k > 0, prev=(main[k - 1] if k > 0 else 'U') if chain else None, short=bool(FIVE and chain and k > 0 and t != 'M'))
        if has('PV'): self.ld_pv_start(); self.ld_body('PV', None)
        a('s_branch L_fin')
        a.lines += lsubs.lines
        for t in sorted(self.preps): a(f'L_prep_{t}:'); self.ld_prep(t); a('s_setpc_b64 s[68:69]')
        a('L_laux:')
        a('s_barrier')
        self.aux_interp('l', only)
        a('L_fin:')
        if DIAG:
            self.stamp(31)
            a(f's_cmp_lg_u32 s2, {DIAG[1]}\ns_cbranch_scc1 L_end\ns_cmp_lg_u32 s3, {DIAG[2]}\ns_cbranch_scc1 L_end\ns_sub_u32 s72, s96, s72\ns_memrealtime s[96:97]\ns_waitcnt lgkmcnt(0)')
            a('s_lshl_b32 s72, s72, 2\ns_add_u32 s72, s72, 2000')
            a('L_dg:\ns_memrealtime s[74:75]\ns_waitcnt lgkmcnt(0)\ns_sub_u32 s74, s74, s96\ns_cmp_lt_u32 s74, s72\ns_cbranch_scc1 L_dg')
        self.stamp_store()
        a('L_end:\ns_endpgm')
    def rows4(self, srd, pitch, offs):
        a = self.a
        a(f'v_lshrrev_b32 v216, 4, v1\nv_and_b32 v217, 15, v1\nv_mul_u32_u24 v216, {pitch}, v216\nv_lshl_add_u32 v216, v217, 4, v216')
        for k, so in enumerate(offs):
            for i in range(9): a(f'buffer_load_dwordx4 {vr(252,4)}, v216, {sr(srd,4)}, {so} offen offset:{i*256}')
    def help_u(self):
        if not HLP: return
        a = self.a
        a(f's_sub_u32 s84, s2, {HB}'); self.idx_u('L_hlp_e', 's84')
        a(f's_sub_u32 s66, {SZ["wo_img"]}, s65'); self.srd(28, 'wo_img', 's65', 's66')
        a(f's_mul_i32 s67, s62, {96*6912}\ns_add_u32 s67, s67, 4608\ns_sub_u32 s66, {SZ["wqkv_img"]}, s67'); self.srd(32, 'wqkv_img', 's67', 's66')
        a(f'v_lshrrev_b32 v246, 4, v1\nv_lshl_add_u32 v246, s3, 4, v246\nv_mul_u32_u24 v246, {RP}, v246\nv_and_b32 v247, 15, v1\nv_lshl_add_u32 v246, v247, 4, v246')
        a('s_mul_i32 s66, s3, 24\nv_lshrrev_b32 v247, 3, v1\nv_add_u32 v247, s66, v247\nv_mul_u32_u24 v247, 6912, v247\nv_and_b32 v248, 7, v1\nv_lshl_add_u32 v247, v248, 4, v247')
        self.sdiv('s70', 's62', 5, 's76'); self.sdiv('s70', 's61', 3, 's77')
        if HW: a(f's_cmp_ge_u32 s10, 128\ns_cbranch_scc1 L_hlp_s\nv_mov_b32 v248, {CX+16}'); self.lds_wait4(248, 249); a('L_hlp_s:')
        a(f's_and_b32 s78, s2, 7\ns_mul_i32 s78, s78, 9\ns_lshr_b32 s78, s78, 2\ns_add_u32 s78, s78, {HLP}\ns_mov_b32 s83, {18 - HLP}\nL_hlp:')
        a('s_sub_u32 s70, s78, 18\ns_min_u32 s70, s70, s78\ns_sub_u32 s76, s76, 1\ns_cbranch_scc0 L_hlp_b\ns_mov_b32 s76, 4')
        a(f's_mul_i32 s71, s70, {64*RP}')
        for m in range(4): a(f'buffer_load_dwordx4 v[252:255], v246, s[28:31], s71 offen\ns_add_u32 s71, s71, {4*RP}')
        a('L_hlp_b:\ns_sub_u32 s77, s77, 1\ns_cbranch_scc0 L_hlp_n\ns_mov_b32 s77, 2\ns_lshl_b32 s71, s70, 7')
        for m in range(3): a(f'buffer_load_dwordx4 v[252:255], v247, s[32:35], s71 offen\ns_add_u32 s71, s71, {8*6912}')
        a(f'L_hlp_n:\ns_waitcnt vmcnt({HTH})\ns_add_u32 s78, s78, 1\ns_sub_u32 s83, s83, 1\ns_cmp_lg_u32 s83, 0\ns_cbranch_scc1 L_hlp\nL_hlp_e:')
    def prefetch_u(self):
        if 'pfu' not in OPT: return
        a = self.a
        a('s_sub_u32 s84, s2, 116\ns_cmp_ge_u32 s84, 72\ns_cbranch_scc1 L_pfu\ns_lshl_b32 s84, s84, 2\ns_and_b32 s85, s3, 3\ns_add_u32 s84, s84, s85')
        a(f's_cmp_ge_u32 s3, 4\ns_cselect_b32 s32, s{PTR["wo_img"]}, s{PTR["wqkv_img"]}\ns_cselect_b32 s33, s{PTR["wo_img"]+1}, s{PTR["wqkv_img"]+1}')
        a(f's_mov_b32 s34, {SZ["wqkv_img"]}\ns_cselect_b32 s34, {SZ["wo_img"]}, s34\ns_mov_b32 s35, 0x20000\ns_movk_i32 s85, 6912\ns_cselect_b32 s85, 2304, s85\ns_cselect_b32 s82, 0, 4608')
        a('s_mul_i32 s84, s84, s85\ns_lshl_b32 s84, s84, 2\ns_add_u32 s84, s84, s82')
        self.rows4(32, 's85', ['s84'])
        a('L_pfu:')
    def prefetch_qk(self, first, rounds):
        a = self.a
        a(f's_lshl_b32 s84, s84, 3\ns_add_u32 s84, s84, s3\ns_add_u32 s84, s84, {first}\ns_mul_i32 s84, s84, {4*6912}')
        self.srd(32, 'wqkv_img', 0, SZ['wqkv_img'])
        for r in range(rounds):
            a('s_add_u32 s83, s84, 2304')
            self.rows4(32, 6912, ['s84', 's83'])
            a(f's_add_u32 s84, s84, {(128 if r == 0 else 96)*4*6912}')

def post(text):
    import re
    if 'nochk' in OPT:
        text = re.sub(r'  s_cbranch_vccnz L_chk_\d+_s\n', '', text).replace('L_spin:\n', 'L_spin:\n  s_setpc_b64 s[68:69]\n')
    if 'nofree' in OPT:
        text = text.replace('  s_cbranch_vccnz L_run_slow\n', '').replace('  s_cbranch_vccz L_run_go\nL_run_slow:', '  s_branch L_run_go\nL_run_slow:')
    if 'nocw' in OPT: text = text.replace('  ds_write_b32 v253, v252\n', '')
    if 'nocr' in OPT: text = text.replace('  ds_read_b32 v255, v254\n', '')
    if 'nolw' in OPT: text = text.replace('  ds_write_b32 v10, v12\n', '')
    if 'nolr' in OPT: text = text.replace('  ds_read_b32 v24, v9\n', '')
    if 'noldr' in OPT: text = text.replace('L_lprog0:\n', 'L_lprog0:\n  s_endpgm\n')
    if 'nocmp' in OPT: text = text.replace('L_cprog0:\n', 'L_cprog0:\n  s_endpgm\n')
    if 'nobar' in OPT: text = text.replace('  s_barrier\n', '')
    return text
def relabel(text, suffix):
    import re
    return re.sub(r'\b(L_\w+)', lambda m: m.group(1) + suffix, text)

def build(mode='fused', instr=False, cls=Mega):
    hdr = [l for l in open('standalone__mm_dit__diffusion.s.ref').read().split('\n')
           if l.startswith(';') and '@launch' not in l and 'Override launch' not in l and 'Harness parses' not in l]
    out = '\n'.join(hdr) + '\n'
    if mode == 'fused':
        name = 'standalone__mm_dit__diffusion_kernel'
        m = cls(instr, True); m.kernel(name)
        out += f'; @launch grid=(256,1,1) block=(512,1,1) lds={LDS}\n'
        out += '.amdgcn_target "amdgcn-amd-amdhsa--gfx950"\n.text\n' + m.a.text() + '.section .rodata,"a"\n' + kernel_desc(name, 256, 102)
        return out
    if mode.startswith('only:'):
        name = 'standalone__mm_dit__diffusion_kernel'
        m = cls(instr, False); m.kernel(name, set(mode[5:].split('+')))
        out += f'; @launch grid=(256,1,1) block=(512,1,1) lds={LDS}\n'
        out += '.amdgcn_target "amdgcn-amd-amdhsa--gfx950"\n.text\n' + m.a.text() + '.section .rodata,"a"\n' + kernel_desc(name, 256, 102)
        return out
    steps = [{'U', 'GV', 'G', 'X'}, {'LN'}, {'M', 'V', 'T'}, {'S', 'VT', 'Q2'}, {'PV', 'ST'}, {'Y'}, {'AT'}, {'OT'}]
    text = ''; desc = ''
    for k, st in enumerate(steps):
        name = f'step{k}_kernel'
        m = cls(instr, False); m.kernel(name, st)
        text += relabel(m.a.text(), f'_{k}'); desc += kernel_desc(name, 256, 102)
        out += f'; @launch kernel={name} grid=(256,1,1) block=(512,1,1) lds={LDS}\n'
    out += '.amdgcn_target "amdgcn-amd-amdhsa--gfx950"\n.text\n' + text + '.section .rodata,"a"\n' + desc
    return out

if __name__ == '__main__':
    mode = sys.argv[2] if len(sys.argv) > 2 else 'fused'
    open(sys.argv[1], 'w').write(post(build(mode, len(sys.argv) > 3)))
```
